```python
import torch

def _softmax(x, axis=-1):
    return torch.softmax(x, dim=axis)
def _gelu(x):
    return torch.nn.functional.gelu(x, approximate="tanh")
def _silu(x):
    return torch.nn.functional.silu(x)
def _sigmoid(x):
    return torch.sigmoid(x)
def _layernorm(x, axis=-1, eps=1e-5):
    m = x.mean(dim=axis, keepdim=True)
    v = x.var(dim=axis, keepdim=True, unbiased=False)
    return (x - m) / torch.sqrt(v + eps)
def _scatter_add(tgt, idx, src, axis=0):
    return tgt.clone().index_add_(axis, idx, src)
def _segment_sum(src, seg, n):
    out = torch.zeros((n,) + src.shape[1:], dtype=src.dtype)
    return out.index_add_(0, seg, src)
def _pad(x, pw):
    flat = tuple(v for pair in reversed(pw) for v in pair)
    return torch.nn.functional.pad(x, flat)

kernel_name = 'gated_mix__linear_attn_block__dense_activation_squared_relu__prompt'

def setup_inputs():

    _w = (lambda a: (lambda t: t.to(torch.bfloat16) if t.is_floating_point() else t)(torch.as_tensor(a)))
    def _A_setup():
        B, S, D = 1, 2048, 640
        return {
            "x": _w((lambda *s: torch.randn(*s, dtype=torch.bfloat16) * 0.05)(B, S, D)),
            "wqkv": _w((lambda *s: torch.randn(*s, dtype=torch.bfloat16) * 0.8)(D, 3 * D)),
            "wo": _w((lambda *s: torch.randn(*s, dtype=torch.bfloat16) * 0.2)(D, D)),
        }
    _A_in = _A_setup()

    def _B_setup():
        B, S, D, F = 1, 2048, 640, 1536
        return {
            "x": _w((lambda *s: torch.randn(*s, dtype=torch.bfloat16) * 0.05)(B, S, D)),
            "w1": _w((lambda *s: torch.randn(*s, dtype=torch.bfloat16) * 0.1)(D, F)),
            "b1": _w((lambda *s: torch.randn(*s, dtype=torch.bfloat16) * 0.05)(F)),
            "w2": _w((lambda *s: torch.randn(*s, dtype=torch.bfloat16) * 0.05)(F, D)),
            "b2": _w((lambda *s: torch.randn(*s, dtype=torch.bfloat16) * 0.05)(D)),
        }
    _B_in = _B_setup()

    return {
        "A_x": _A_in["x"],
        "A_wqkv": _A_in["wqkv"],
        "A_wo": _A_in["wo"],
        "B_x": _B_in["x"],
        "B_w1": _B_in["w1"],
        "B_b1": _B_in["b1"],
        "B_w2": _B_in["w2"],
        "B_b2": _B_in["b2"],
        "gate_w": _w((lambda *s: torch.randn(*s, dtype=torch.bfloat16) * 0.05)(640) * 16.0),
    }

def reference(A_x, A_wqkv, A_wo, B_x, B_w1, B_b1, B_w2, B_b2, gate_w):
    def _A_ref(x, wqkv, wo):
        B, S, D = x.shape
        H = 32; Dh = D // H
        qkv = (lambda x, *d: x.permute(*d))((x @ wqkv).reshape(B, S, 3, H, Dh), 2, 0, 3, 1, 4)
        q, k, v = qkv[0], qkv[1], qkv[2]
        phi = lambda t: torch.where(t > 0, t + 1, torch.exp(t)) + 1e-6
        pq, pk = phi(q), phi(k)
        kv = torch.einsum("bhsd,bhse->bhde", pk, v)
        z = torch.einsum("bhsd->bhd", pk)
        num = torch.einsum("bhqd,bhde->bhqe", pq, kv)
        den = torch.einsum("bhqd,bhd->bhq", pq, z)[..., None] + 1e-6
        o = num / den
        return (lambda x, *d: x.permute(*d))(o, 0, 2, 1, 3).reshape(B, S, D) @ wo

    def _B_ref(x, w1, b1, w2, b2):
        h = torch.einsum("bsd,df->bsf", x, w1) + b1
        zero = torch.zeros_like(h)
        r = torch.where(h > zero, h, zero)
        h = r * r
        out = torch.einsum("bsf,fd->bsd", h, w2) + b2
        return out

    x = A_x
    g = _sigmoid((x * gate_w).sum(-1, keepdims=True))
    a = _A_ref(x, A_wqkv, A_wo)
    b = _B_ref(x, B_w1, B_b1, B_w2, B_b2)
    return g * a + (1 - g) * b
```

```python
import sys

NAME = "gated_mix__linear_attn_block__dense_activation_squared_relu__prompt"

ACT_LD = 2176 * 2
ACT_BYTES = 2048 * ACT_LD
PART_OFF = 0x900000
PART_BLK = 7168
PART_BYTES = 8 * 16 * PART_BLK
G_OFF = 0xA00000
WS_USED = 0xB00000


class Asm:
    def __init__(self):
        self.lines = []
        self.vm = []
        self.lg = []

    def e(self, s):
        self.lines.append("  " + s)

    def label(self, s):
        self.lines.append(s + ":")

    def c(self, s):
        self.lines.append("  ; " + s)

    def vmem(self, s, tag):
        self.e(s)
        self.vm.append(tag)

    def wait_vm(self, tags):
        if isinstance(tags, str):
            tags = [tags]
        last = -1
        for i, t in enumerate(self.vm):
            if t in tags:
                last = i
        if last < 0:
            return
        n = len(self.vm) - 1 - last
        n = min(n, 63)
        self.e(f"s_waitcnt vmcnt({n})")
        self.vm = self.vm[len(self.vm) - n:] if n > 0 else []

    def wait_vm_all(self):
        self.e("s_waitcnt vmcnt(0)")
        self.vm = []

    def lds(self, s, tag):
        self.e(s)
        self.lg.append(tag)

    def wait_lg(self, tags):
        if isinstance(tags, (str, tuple)):
            tags = [tags]
        last = -1
        for i, t in enumerate(self.lg):
            if t in tags:
                last = i
        if last < 0:
            return
        n = len(self.lg) - 1 - last
        n = min(n, 15)
        self.e(f"s_waitcnt lgkmcnt({n})")
        self.lg = self.lg[len(self.lg) - n:] if n > 0 else []

    def wait_lg_all(self):
        self.e("s_waitcnt lgkmcnt(0)")
        self.lg = []

    def nop(self, n):
        while n > 0:
            k = min(n, 16)
            self.e(f"s_nop {k-1}")
            n -= k


def vr(b, n=1):
    return f"v{b}" if n == 1 else f"v[{b}:{b+n-1}]"


def ar(b, n=1):
    return f"a{b}" if n == 1 else f"a[{b}:{b+n-1}]"


def sr(b, n=1):
    return f"s{b}" if n == 1 else f"s[{b}:{b+n-1}]"


P_X, P_WQKV, P_WO, P_BX, P_W1, P_B1, P_W2, P_B2, P_GW, P_OUT, P_DBG, P_WS = [16 + 2 * i for i in range(12)]


def prologue_kernargs(a):
    a.e("s_load_dwordx16 s[16:31], s[0:1], 0")
    a.e("s_load_dwordx8 s[32:39], s[0:1], 64")


def make_srd(a, dst, ptr, nbytes, off=0):
    if off:
        a.e(f"s_add_u32 s{dst}, s{ptr}, {hex(off)}")
        a.e(f"s_addc_u32 s{dst+1}, s{ptr+1}, 0")
        a.e(f"s_and_b32 s{dst+1}, s{dst+1}, 0xffff")
    else:
        a.e(f"s_mov_b32 s{dst}, s{ptr}")
        a.e(f"s_and_b32 s{dst+1}, s{ptr+1}, 0xffff")
    a.e(f"s_mov_b32 s{dst+2}, {hex(nbytes)}")
    a.e(f"s_mov_b32 s{dst+3}, 0x00020000")


def kperm_vgpr(a, dst, rho, t0, t1):
    a.e(f"v_and_b32 v{dst}, 0xffffffe3, v{rho}")
    a.e(f"v_bfe_u32 v{t0}, v{rho}, 2, 2")
    a.e(f"v_lshl_or_b32 v{dst}, v{t0}, 3, v{dst}")
    a.e(f"v_bfe_u32 v{t1}, v{rho}, 4, 1")
    a.e(f"v_lshl_or_b32 v{dst}, v{t1}, 2, v{dst}")


def odd_dma_offsets(a, dsts, first_instr_sgpr_or_const, lane_v, ldw, colbytes_s, t):
    for n, d in enumerate(dsts):
        a.e(f"v_add_u32 v{t[0]}, {first_instr_sgpr_or_const}, v{lane_v}")
        if n:
            a.e(f"v_add_u32 v{t[0]}, {64*n}, v{t[0]}")
        a.e(f"v_mul_u32_u24 v{t[1]}, 6554, v{t[0]}")
        a.e(f"v_lshrrev_b32 v{t[1]}, 16, v{t[1]}")
        a.e(f"v_mul_u32_u24 v{t[2]}, 10, v{t[1]}")
        a.e(f"v_sub_u32 v{t[0]}, v{t[0]}, v{t[2]}")
        kperm_vgpr(a, t[2], t[1], t[3], d)
        a.e(f"v_mul_u32_u24 v{t[2]}, {ldw}, v{t[2]}")
        a.e(f"v_lshl_add_u32 v{d}, v{t[0]}, 4, v{t[2]}")
        a.e(f"v_add_u32 v{d}, {colbytes_s}, v{d}")


def gemm_loop(a, nks, kpc, nslots, nb, arows, wbuf, afrag, acc, tr_addr, dma_chunk, a_tag, swap, first_zero=True,
              pre_step=None, chunk_hook=None):
    nchunks = nks // kpc

    def reads(s, t):
        for hf in range(2):
            v, off = tr_addr(s, t, hf)
            b = wbuf(s & 1, t) + 2 * hf
            a.lds(f"ds_read_b64_tr_b16 {vr(b,2)}, v{v} offset:{off}", ("R", s, t))

    def new_chunk(c):
        a.wait_vm(f"dma{c}")
        a.e("s_barrier")
        nx = c - 2 + nslots
        if c >= 2 and nx < nchunks:
            dma_chunk(nx)
        if chunk_hook:
            chunk_hook(c)

    new_chunk(0)
    for t in range(nb):
        reads(0, t)
    for s in range(nks):
        if s + 1 < nks and (s + 1) % kpc == 0:
            new_chunk((s + 1) // kpc)
        if pre_step:
            pre_step(s)
        a.wait_vm(a_tag(s))
        for t in range(nb):
            if s + 1 < nks:
                reads(s + 1, t)
            a.wait_lg(("R", s, t))
            w = vr(wbuf(s & 1, t), 4)
            for rt in range(arows):
                x = afrag(s, rt)
                d = acc(rt, t)
                cin = "0" if (s == 0 and first_zero) else d
                if swap:
                    a.e(f"v_mfma_f32_16x16x32_bf16 {d}, {w}, {x}, {cin}")
                else:
                    a.e(f"v_mfma_f32_16x16x32_bf16 {d}, {x}, {w}, {cin}")


def unpack(a, lo, hi, p):
    a.e(f"v_lshlrev_b32 v{lo}, 16, v{p}")
    a.e(f"v_and_b32 v{hi}, 0xffff0000, v{p}")


LOG2E = "0x3fb8aa3b"


def phi_inplace(a, c, T, out0, out1, s_eps):
    p0, p1 = T, T + 1
    f = T + 2
    ex = T + 6
    a.e(f"v_cvt_pk_bf16_f32 v{p0}, v{c}, v{c+1}")
    a.e(f"v_cvt_pk_bf16_f32 v{p1}, v{c+2}, v{c+3}")
    unpack(a, f, f + 1, p0)
    unpack(a, f + 2, f + 3, p1)
    for i in range(4):
        a.e(f"v_mul_f32 v{ex+i}, {LOG2E}, v{f+i}")
    for i in range(4):
        a.e(f"v_exp_f32 v{ex+i}, v{ex+i}")
    for i in range(4):
        a.e(f"v_cmp_lt_f32 s[{60+2*i}:{61+2*i}], 0, v{f+i}")
    for i in range(4):
        a.e(f"v_add_f32 v{f+i}, 1.0, v{f+i}")
    for i in range(4):
        a.e(f"v_cndmask_b32 v{f+i}, v{ex+i}, v{f+i}, s[{60+2*i}:{61+2*i}]")
    a.e(f"v_cvt_pk_bf16_f32 v{p0}, v{f}, v{f+1}")
    a.e(f"v_cvt_pk_bf16_f32 v{p1}, v{f+2}, v{f+3}")
    unpack(a, f, f + 1, p0)
    unpack(a, f + 2, f + 3, p1)
    for i in range(4):
        a.e(f"v_add_f32 v{f+i}, {s_eps}, v{f+i}")
    a.e(f"v_cvt_pk_bf16_f32 v{out0}, v{f}, v{f+1}")
    a.e(f"v_cvt_pk_bf16_f32 v{out1}, v{f+2}, v{f+3}")


EPS = "0x358637bd"


def gen_k1(a):
    a.label("k1_kernel")
    a.e("s_cmp_ge_u32 s2, 256")
    a.e("s_cbranch_scc1 k1_exit")
    prologue_kernargs(a)
    a.e("s_and_b32 s3, s2, 7")
    a.e("s_lshr_b32 s4, s2, 3")
    a.e("s_lshr_b32 s5, s3, 2")
    a.e("s_lshl_b32 s5, s5, 3")
    a.e("s_and_b32 s6, s4, 7")
    a.e("s_add_u32 s5, s5, s6")
    a.e("s_lshr_b32 s6, s4, 3")
    a.e("s_and_b32 s7, s3, 3")
    a.e("s_lshl_b32 s7, s7, 1")
    a.e("s_and_b32 s8, s6, 1")
    a.e("s_add_u32 s7, s7, s8")
    a.e("v_lshrrev_b32 v1, 6, v0")
    a.e("v_and_b32 v0, 63, v0")
    a.e("s_nop 0")
    a.e("v_readfirstlane_b32 s9, v1")
    a.e("v_and_b32 v2, 15, v0")
    a.e("v_lshrrev_b32 v3, 4, v0")
    a.e("s_lshl_b32 s10, s5, 7")
    a.e("s_lshl_b32 s11, s9, 5")
    a.e("s_add_u32 s10, s10, s11")
    a.e("v_add_u32 v4, s10, v2")
    a.e("v_mul_u32_u24 v5, 1280, v4")
    a.e("v_lshl_add_u32 v5, v3, 4, v5")
    a.e("v_add_u32 v6, 20480, v5")
    a.e("s_waitcnt lgkmcnt(0)")
    make_srd(a, 40, P_X, 2048 * 1280)
    make_srd(a, 48, P_WS, WS_USED)
    a.e("s_cmp_ge_u32 s6, 2")
    a.e("s_cbranch_scc1 k1_h")

    AF = 0

    def afrag(s, rt):
        return ar(AF + (s * 2 + rt) * 4, 4)

    def issue_a(s):
        for rt in range(2):
            a.vmem(f"buffer_load_dwordx4 {afrag(s,rt)}, v{5+rt}, s[40:43], 0 offen offset:{64*s}", f"A{s}")

    a.c("---------------- KV path")
    make_srd(a, 44, P_WQKV, 640 * 3840)
    a.e("s_and_b32 s12, s9, 1")
    a.e("s_mul_i32 s12, s12, 320")
    a.e("s_lshr_b32 s13, s9, 1")
    a.e("s_mul_i32 s14, s7, 160")
    a.e("s_mul_i32 s15, s13, 1280")
    a.e("s_add_u32 s14, s14, s15")
    a.e("s_add_u32 s14, s14, 1280")
    DV = 8
    odd_dma_offsets(a, [DV + n for n in range(5)], "s12", 0, 3840, "s14", [14, 15, 16, 17])
    a.e("s_mul_i32 s15, s13, 10240")
    a.e("s_lshl_b32 s12, s12, 4")
    a.e("s_add_u32 s15, s15, s12")
    a.e("v_lshrrev_b32 v14, 2, v0")
    a.e("v_mul_u32_u24 v14, 160, v14")
    a.e("v_and_b32 v15, 3, v0")
    a.e("v_lshl_add_u32 v7, v15, 3, v14")
    a.e("v_add_u32 v13, 61440, v7")
    SLOT = 20480
    NSL = 5

    def dma_kv(c):
        sl = c % NSL
        a.e(f"s_mov_b32 s52, {c*64*3840}")
        for n in range(5):
            a.e(f"s_add_u32 m0, s15, {sl*SLOT + n*1024}")
            a.e("s_nop 0")
            a.vmem(f"buffer_load_dwordx4 v{DV+n}, s[44:47], s52 offen lds", f"dma{c}")

    for c in range(5):
        dma_kv(c)
        issue_a(2 * c)
        issue_a(2 * c + 1)

    ACC = 32
    WB = 112

    def tr_kv(s, t, hf):
        c = s // 2
        sl = c % NSL
        ks = s % 2
        off = (t // 5) * 10240 + (32 * ks + 16 * hf) * 160 + (t % 5) * 32
        if sl < 3:
            return 7, sl * SLOT + off
        return 13, (sl - 3) * SLOT + off

    def hook_kv(c):
        if 1 <= c <= 5:
            issue_a(8 + 2 * c)
            issue_a(9 + 2 * c)

    gemm_loop(a, 20, 2, NSL, 10, 2, lambda b, t: WB + (b * 10 + t) * 4, afrag,
              lambda rt, t: vr(ACC + (t * 2 + rt) * 4, 4), tr_kv, dma_kv, lambda s: f"A{s}", swap=False,
              chunk_hook=hook_kv)
    a.c("KV epilogue")
    a.nop(8)
    a.e(f"s_mov_b32 s58, {EPS}")
    PK = 112
    T = 152
    for t in range(5):
        for rt in range(2):
            c = ACC + (t * 2 + rt) * 4
            phi_inplace(a, c, T + (12 if rt else 0), PK + t * 4 + rt * 2, PK + t * 4 + rt * 2 + 1, "s58")
    for t in range(5, 10):
        for rt in range(2):
            c = ACC + (t * 2 + rt) * 4
            a.e(f"v_cvt_pk_bf16_f32 v{PK+t*4+rt*2}, v{c}, v{c+1}")
            a.e(f"v_cvt_pk_bf16_f32 v{PK+t*4+rt*2+1}, v{c+2}, v{c+3}")
    ONES = 176
    for i in range(4):
        a.e(f"v_mov_b32 v{ONES+i}, 0x3f803f80")
    a.nop(2)
    D2 = 32
    pairs = []
    for i in range(5):
        for j in range(5):
            if abs(i - j) <= 1:
                pairs.append((i, j))
    for (i, j) in pairs:
        a.e(f"v_mfma_f32_16x16x32_bf16 {vr(D2+(2*i+j)*4,4)}, {vr(PK+i*4,4)}, {vr(PK+(5+j)*4,4)}, 0")
    for i in range(5):
        a.e(f"v_mfma_f32_16x16x32_bf16 {vr(D2+(13+i)*4,4)}, {vr(PK+i*4,4)}, {vr(ONES,4)}, 0")
    a.e("s_barrier")
    a.e("s_mul_i32 s12, s9, 18432")
    a.e("v_lshl_add_u32 v14, v0, 4, s12")
    a.nop(8)
    for k in range(18):
        a.lds(f"ds_write_b128 v14, {vr(D2+k*4,4)} offset:{k*1024}", "W")
    a.wait_lg_all()
    a.e("s_barrier")
    a.e("s_lshl_b32 s12, s9, 6")
    a.e("v_add_u32 v16, s12, v0")
    a.e("s_lshl_b32 s12, s7, 4")
    a.e("s_add_u32 s12, s12, s5")
    a.e(f"s_mul_i32 s12, s12, {PART_BLK}")
    a.e(f"s_add_u32 s12, s12, {hex(PART_OFF)}")
    for it in range(7):
        I, H_, RM, DD, E_, Dg, Eg, TI, AD = 17, 18, 19, 20, 21, 22, 23, 24, 25
        a.e(f"v_add_u32 v{I}, {256*it}, v16")
        a.e(f"v_mul_u32_u24 v{H_}, 1249, v{I}")
        a.e(f"v_lshrrev_b32 v{H_}, 19, v{H_}")
        a.e(f"v_mul_u32_u24 v{RM}, 420, v{H_}")
        a.e(f"v_sub_u32 v{RM}, v{I}, v{RM}")
        a.e(f"v_mul_u32_u24 v{DD}, 3277, v{RM}")
        a.e(f"v_lshrrev_b32 v{DD}, 16, v{DD}")
        a.e(f"v_mul_u32_u24 v{E_}, 20, v{DD}")
        a.e(f"v_sub_u32 v{E_}, v{RM}, v{E_}")
        a.e(f"v_mul_u32_u24 v{H_}, 20, v{H_}")
        a.e(f"v_cmp_eq_u32 vcc, 20, v{DD}")
        a.e(f"v_add_u32 v{Eg}, v{H_}, v{E_}")
        a.e(f"v_add_u32 v{Dg}, v{H_}, v{DD}")
        a.e(f"v_cndmask_b32 v{Dg}, v{Dg}, v{Eg}, vcc")
        a.e(f"v_lshrrev_b32 v{TI}, 4, v{Dg}")
        a.e(f"v_lshrrev_b32 v{AD}, 4, v{Eg}")
        a.e(f"v_lshl_add_u32 v{AD}, v{TI}, 1, v{AD}")
        a.e(f"v_add_u32 v{TI}, 13, v{TI}")
        a.e(f"v_cndmask_b32 v{TI}, v{AD}, v{TI}, vcc")
        a.e(f"v_and_b32 v{Eg}, 15, v{Eg}")
        a.e(f"v_cndmask_b32 v{Eg}, v{Eg}, 0, vcc")
        a.e(f"v_bfe_u32 v{AD}, v{Dg}, 2, 2")
        a.e(f"v_lshl_add_u32 v{AD}, v{AD}, 4, v{Eg}")
        a.e(f"v_lshlrev_b32 v{AD}, 4, v{AD}")
        a.e(f"v_lshl_add_u32 v{AD}, v{TI}, 10, v{AD}")
        a.e(f"v_and_b32 v{Dg}, 3, v{Dg}")
        a.e(f"v_lshl_add_u32 v{AD}, v{Dg}, 2, v{AD}")
        if it == 6:
            a.e(f"v_cmp_gt_u32 vcc, 1680, v{I}")
            a.e("s_nop 1")
            a.e(f"v_cndmask_b32 v{AD}, 0, v{AD}, vcc")
        for w in range(4):
            a.lds(f"ds_read_b32 v{26+w}, v{AD} offset:{w*18432}", "Q")
        a.e(f"v_lshl_add_u32 v{I}, v{I}, 2, s12")
        a.wait_lg_all()
        a.e("v_add_f32 v26, v26, v27")
        a.e("v_add_f32 v28, v28, v29")
        a.e("v_add_f32 v26, v26, v28")
        if it == 6:
            a.e("s_and_saveexec_b64 s[60:61], vcc")
        a.vmem(f"buffer_store_dword v26, v{I}, s[48:51], 0 offen", "st")
        if it == 6:
            a.e("s_mov_b64 exec, s[60:61]")
    a.e("s_endpgm")

    a.label("k1_h")
    a.vm = []
    a.lg = []
    make_srd(a, 44, P_W1, 640 * 3072)
    make_srd(a, 52, P_B1, 3072)
    a.e("v_lshrrev_b32 v14, 3, v0")
    a.e("v_and_b32 v15, 3, v14")
    a.e("v_lshrrev_b32 v16, 2, v14")
    a.e("v_lshl_add_u32 v15, v16, 3, v15")
    a.e("v_mul_u32_u24 v8, 3072, v15")
    a.e("v_bfe_u32 v15, v0, 1, 2")
    a.e("v_lshrrev_b32 v16, 1, v14")
    a.e("v_xor_b32 v15, v15, v16")
    a.e("v_lshl_add_u32 v8, v15, 5, v8")
    a.e("v_and_b32 v15, 1, v0")
    a.e("v_lshl_add_u32 v8, v15, 4, v8")
    a.e("s_lshr_b32 s12, s9, 1")
    a.e("s_lshl_b32 s12, s12, 5")
    a.e("s_and_b32 s13, s9, 1")
    a.e("s_lshl_b32 s13, s13, 2")
    a.e("s_add_u32 s12, s12, s13")
    a.e("s_mul_i32 s12, s12, 3072")
    a.e("s_mul_i32 s13, s7, 384")
    a.e("s_add_u32 s12, s12, s13")
    a.e("v_add_u32 v8, s12, v8")
    a.e("s_mul_i32 s15, s9, 6144")
    a.e("v_lshrrev_b32 v14, 5, v0")
    a.e("v_mul_u32_u24 v14, 3072, v14")
    a.e("v_bfe_u32 v15, v0, 2, 3")
    a.e("v_lshl_add_u32 v14, v15, 7, v14")
    a.e("v_and_b32 v16, 3, v0")
    a.e("v_lshl_add_u32 v14, v16, 3, v14")
    a.e("v_lshrrev_b32 v15, 1, v15")
    for t3 in range(4):
        a.e(f"v_xor_b32 v16, {t3}, v15")
        a.e(f"v_lshl_add_u32 v{9+t3}, v16, 5, v14")
        a.e(f"v_add_u32 v{20+t3}, 49152, v{9+t3}")
        a.e(f"v_add_u32 v{24+t3}, 98304, v{9+t3}")
    SLOTH = 24576

    def dma_h(c):
        sl = c % NSL
        for u in range(2):
            for cbk in range(3):
                a.e(f"s_mov_b32 s56, {c*64*3072 + u*16*3072 + cbk*128}")
                a.e(f"s_add_u32 m0, s15, {sl*SLOTH + (u*3+cbk)*1024}")
                a.e("s_nop 0")
                a.vmem(f"buffer_load_dwordx4 v8, s[44:47], s56 offen lds", f"dma{c}")

    BB = 212
    a.e("s_mul_i32 s12, s7, 384")
    a.e("v_lshl_add_u32 v28, v3, 3, s12")
    for c in range(5):
        dma_h(c)
        issue_a(2 * c)
        issue_a(2 * c + 1)
    ACCH = 32
    WBH = 128
    BB = 224

    def tr_h(s, t, hf):
        c = s // 2
        sl = c % NSL
        ks = s % 2
        off = (ks * 4 + 2 * hf) * 3072 + (t >> 2) * 1024
        if sl < 2:
            return 9 + (t & 3), sl * SLOTH + off
        if sl < 4:
            return 20 + (t & 3), (sl - 2) * SLOTH + off
        return 24 + (t & 3), off

    def hook_h(c):
        if 1 <= c <= 5:
            issue_a(8 + 2 * c)
            issue_a(9 + 2 * c)
        if c == 6:
            for t in range(12):
                a.vmem(f"buffer_load_dwordx2 {vr(BB+2*t,2)}, v28, s[52:55], 0 offen offset:{32*t}", "bias")

    gemm_loop(a, 20, 2, NSL, 12, 2, lambda b, t: WBH + (b * 12 + t) * 4, afrag,
              lambda rt, t: vr(ACCH + (t * 2 + rt) * 4, 4), tr_h, dma_h, lambda s: f"A{s}", swap=True,
              chunk_hook=hook_h)
    a.c("H epilogue")
    a.e(f"v_mul_u32_u24 v5, {ACT_LD}, v4")
    a.e("v_lshl_add_u32 v5, v3, 3, v5")
    a.e("s_mul_i32 s12, s7, 384")
    a.e("s_add_u32 s12, s12, 1280")
    a.e("v_add_u32 v5, s12, v5")
    a.e(f"v_add_u32 v6, {16*ACT_LD}, v5")
    a.wait_vm("bias")
    a.nop(4)
    T = 128
    for t in range(12):
        bf = T
        unpack(a, bf, bf + 1, BB + 2 * t)
        unpack(a, bf + 2, bf + 3, BB + 2 * t + 1)
        for rt in range(2):
            c = ACCH + (t * 2 + rt) * 4
            p = T + 4 + rt * 8
            f = p + 2
            o = T + 20 + ((t * 2 + rt) % 8) * 2
            a.e(f"v_cvt_pk_bf16_f32 v{p}, v{c}, v{c+1}")
            a.e(f"v_cvt_pk_bf16_f32 v{p+1}, v{c+2}, v{c+3}")
            unpack(a, f, f + 1, p)
            unpack(a, f + 2, f + 3, p + 1)
            a.e(f"v_pk_add_f32 {vr(f,2)}, {vr(f,2)}, {vr(bf,2)}")
            a.e(f"v_pk_add_f32 {vr(f+2,2)}, {vr(f+2,2)}, {vr(bf+2,2)}")
            a.e(f"v_cvt_pk_bf16_f32 v{p}, v{f}, v{f+1}")
            a.e(f"v_cvt_pk_bf16_f32 v{p+1}, v{f+2}, v{f+3}")
            a.e(f"v_pk_max_i16 v{p}, v{p}, 0")
            a.e(f"v_pk_max_i16 v{p+1}, v{p+1}, 0")
            unpack(a, f, f + 1, p)
            unpack(a, f + 2, f + 3, p + 1)
            a.e(f"v_pk_mul_f32 {vr(f,2)}, {vr(f,2)}, {vr(f,2)}")
            a.e(f"v_pk_mul_f32 {vr(f+2,2)}, {vr(f+2,2)}, {vr(f+2,2)}")
            a.e(f"v_cvt_pk_bf16_f32 v{o}, v{f}, v{f+1}")
            a.e(f"v_cvt_pk_bf16_f32 v{o+1}, v{f+2}, v{f+3}")
            a.vmem(f"buffer_store_dwordx2 {vr(o,2)}, v{5+rt}, s[48:51], 0 offen offset:{32*t}", "st")
    a.label("k1_exit")
    a.e("s_endpgm")


def gen_k2(a):
    a.vm = []
    a.lg = []
    a.label("k2_kernel")
    a.e("s_cmp_ge_u32 s2, 256")
    a.e("s_cbranch_scc1 k2_exit")
    prologue_kernargs(a)
    a.e("s_and_b32 s3, s2, 7")
    a.e("s_lshr_b32 s4, s2, 3")
    a.e("s_lshr_b32 s5, s3, 1")
    a.e("s_lshl_b32 s5, s5, 3")
    a.e("s_and_b32 s6, s4, 7")
    a.e("s_add_u32 s5, s5, s6")
    a.e("s_and_b32 s7, s3, 1")
    a.e("s_lshl_b32 s7, s7, 2")
    a.e("s_lshr_b32 s6, s4, 3")
    a.e("s_add_u32 s7, s7, s6")
    a.e("v_lshrrev_b32 v1, 6, v0")
    a.e("v_mov_b32 v30, v0")
    a.e("v_and_b32 v0, 63, v0")
    a.e("s_nop 0")
    a.e("v_readfirstlane_b32 s9, v1")
    a.e("v_and_b32 v2, 15, v0")
    a.e("v_lshrrev_b32 v3, 4, v0")
    a.e("s_lshl_b32 s10, s5, 6")
    a.e("s_lshl_b32 s11, s9, 4")
    a.e("s_add_u32 s10, s10, s11")
    a.e("v_add_u32 v4, s10, v2")
    a.e("v_mul_u32_u24 v5, 1280, v4")
    a.e("v_lshl_add_u32 v5, v3, 4, v5")
    a.e("v_lshlrev_b32 v6, 4, v3")
    a.e("s_waitcnt lgkmcnt(0)")
    make_srd(a, 40, P_X, 2048 * 1280)
    make_srd(a, 44, P_WQKV, 640 * 3840)
    make_srd(a, 48, P_WS, WS_USED)
    make_srd(a, 52, P_GW, 1280)
    a.e("s_mul_i32 s12, s9, 320")
    a.e("s_mul_i32 s14, s7, 160")
    DV = 8
    odd_dma_offsets(a, [DV + n for n in range(5)], "s12", 0, 3840, "s14", [14, 15, 16, 17])
    a.e("s_mul_i32 s15, s9, 5120")
    a.e("v_lshrrev_b32 v14, 2, v0")
    a.e("v_mul_u32_u24 v14, 160, v14")
    a.e("v_and_b32 v15, 3, v0")
    a.e("v_lshl_add_u32 v7, v15, 3, v14")
    a.e("v_add_u32 v13, 61440, v7")
    SLOT = 20480
    IMG = 5 * SLOT
    AF = 0
    GF = 80

    def afrag(s, rt):
        return ar(AF + s * 4, 4)

    def dma(c):
        a.e(f"s_mov_b32 s56, {c*128*3840}")
        for n in range(5):
            a.e(f"s_add_u32 m0, s15, {c*SLOT + n*1024}")
            a.e("s_nop 0")
            a.vmem(f"buffer_load_dwordx4 v{DV+n}, s[44:47], s56 offen lds", f"dma{c}")

    for i in range(4):
        a.e(f"v_mov_b32 v{20+i}, 0")
    a.e("v_lshlrev_b32 v24, 4, v30")
    a.e(f"v_add_u32 v24, {IMG}, v24")
    for i in range(8):
        a.lds(f"ds_write_b128 v24, v[20:23] offset:{i*4096}", "Z")
    a.e("s_lshl_b32 s12, s7, 4")
    a.e(f"s_mul_i32 s12, s12, {PART_BLK}")
    a.e(f"s_add_u32 s12, s12, {hex(PART_OFF)}")
    a.e("v_lshl_add_u32 v25, v30, 4, s12")
    a.e("v_add_u32 v26, 4096, v25")
    PL = 64
    dma(0)
    for s in range(4):
        a.vmem(f"buffer_load_dwordx4 {afrag(s,0)}, v5, s[40:43], 0 offen offset:{64*s}", f"A{s}")
    for r in range(2):
        for rb in range(16):
            a.e(f"s_mov_b32 s57, {rb*PART_BLK}")
            a.vmem(f"buffer_load_dwordx4 {vr(PL+(r*16+rb)*4,4)}, v{25+r}, s[48:51], s57 offen", f"P{r}")
    for c in range(1, 5):
        dma(c)
        for s in range(4 * c, 4 * c + 4):
            a.vmem(f"buffer_load_dwordx4 {afrag(s,0)}, v5, s[40:43], 0 offen offset:{64*s}", f"A{s}")
    a.wait_lg_all()
    a.e("s_barrier")
    for r in range(2):
        a.wait_vm(f"P{r}")
        b = PL + r * 64
        for st in (8, 4, 2, 1):
            for k in range(st):
                a.e(f"v_pk_add_f32 {vr(b+k*4,2)}, {vr(b+k*4,2)}, {vr(b+(k+st)*4,2)}")
                a.e(f"v_pk_add_f32 {vr(b+k*4+2,2)}, {vr(b+k*4+2,2)}, {vr(b+(k+st)*4+2,2)}")
        a.e(f"v_cvt_pk_bf16_f32 v32, v{b}, v{b+1}")
        a.e(f"v_cvt_pk_bf16_f32 v33, v{b+2}, v{b+3}")
        F, H_, RM, DD, E0, AD = 34, 35, 36, 37, 38, 39
        a.e(f"v_add_u32 v{F}, {256*r}, v30")
        a.e(f"v_mul_u32_u24 v{H_}, 625, v{F}")
        a.e(f"v_lshrrev_b32 v{H_}, 16, v{H_}")
        a.e(f"v_mul_u32_u24 v{RM}, 105, v{H_}")
        a.e(f"v_sub_u32 v{RM}, v{F}, v{RM}")
        a.e(f"v_mul_u32_u24 v{DD}, 13108, v{RM}")
        a.e(f"v_lshrrev_b32 v{DD}, 16, v{DD}")
        a.e(f"v_mul_u32_u24 v{E0}, 5, v{DD}")
        a.e(f"v_sub_u32 v{E0}, v{RM}, v{E0}")
        a.e(f"v_lshlrev_b32 v{E0}, 2, v{E0}")
        a.e(f"v_mul_u32_u24 v{H_}, 20, v{H_}")
        a.e(f"v_add_u32 v{AD}, v{H_}, v{E0}")
        a.e(f"v_mul_u32_u24 v{AD}, 192, v{AD}")
        a.e(f"v_add_u32 v40, v{H_}, v{DD}")
        a.e(f"v_lshl_add_u32 v{AD}, v40, 1, v{AD}")
        a.e(f"v_add_u32 v{AD}, {IMG}, v{AD}")
        a.e(f"v_cmp_gt_u32 vcc, 420, v{F}")
        a.e("s_mov_b64 s[60:61], vcc")
        a.e(f"v_cmp_gt_u32 s[62:63], 20, v{DD}")
        a.e(f"v_cmp_eq_u32 s[64:65], 20, v{DD}")
        a.e("s_and_b64 s[62:63], s[62:63], s[60:61]")
        a.e("s_and_b64 s[64:65], s[64:65], s[60:61]")
        a.e("v_lshrrev_b32 v41, 16, v32")
        a.e("v_lshrrev_b32 v42, 16, v33")
        a.e("s_mov_b64 s[66:67], exec")
        a.e("s_mov_b64 exec, s[62:63]")
        a.lds(f"ds_write_b16 v{AD}, v32", "S")
        a.lds(f"ds_write_b16 v{AD}, v41 offset:192", "S")
        a.lds(f"ds_write_b16 v{AD}, v33 offset:384", "S")
        a.lds(f"ds_write_b16 v{AD}, v42 offset:576", "S")
        a.e("s_mov_b64 exec, s[66:67]")
        a.e(f"v_mul_u32_u24 v{AD}, 192, v{H_}")
        a.e(f"v_add_u32 v40, v{H_}, v{E0}")
        a.e(f"v_lshl_add_u32 v{AD}, v40, 1, v{AD}")
        a.e(f"v_add_u32 v{AD}, {IMG+15360}, v{AD}")
        a.e("s_mov_b64 exec, s[64:65]")
        for ee in range(20):
            a.lds(f"ds_write_b64 v{AD}, v[32:33] offset:{192*ee}", "S")
        a.e("s_mov_b64 exec, s[66:67]")
        a.wait_lg_all()
    for s in range(20):
        a.vmem(f"buffer_load_dwordx4 {ar(GF+s*4,4)}, v6, s[52:55], 0 offen offset:{64*s}", f"G{s}")
    ACC = 32
    WB = 64
    GA = 56
    a.e(f"v_mov_b32 v{GA}, 0")

    def tr(s, t, hf):
        c = s // 4
        ks = s % 4
        off = (32 * ks + 16 * hf) * 160 + t * 32
        if c < 3:
            return 7, c * SLOT + off
        return 13, (c - 3) * SLOT + off

    def pre(s):
        a.wait_vm([f"A{s}", f"G{s}"])
        for i in range(4):
            a.e(f"v_accvgpr_read_b32 v{104+i}, a{AF+s*4+i}")
            a.e(f"v_accvgpr_read_b32 v{108+i}, a{GF+s*4+i}")
        for i in range(4):
            a.e(f"v_dot2_f32_bf16 v{GA}, v{104+i}, v{108+i}, v{GA}")

    gemm_loop(a, 20, 4, 99, 5, 1, lambda b, t: WB + (b * 5 + t) * 4, afrag,
              lambda rt, t: vr(ACC + t * 4, 4), tr, lambda c: None, lambda s: f"A{s}", swap=True, pre_step=pre)
    a.c("K2 epilogue")
    a.e("v_mul_u32_u24 v14, 192, v2")
    a.e("v_lshl_add_u32 v14, v3, 3, v14")
    a.e(f"v_add_u32 v14, {IMG}, v14")
    ju = [(0, 0), (1, 0), (1, 1), (2, 0), (2, 1), (3, 1), (3, 2), (4, 1), (4, 2)]
    KF = 112
    for n, (j, u) in enumerate(ju):
        for im in range(2):
            b = KF + im * 36 + n * 4
            off = im * 15360 + j * 16 * 192 + u * 64
            a.lds(f"ds_read_b64 {vr(b,2)}, v14 offset:{off}", "F")
            a.lds(f"ds_read_b64 {vr(b+2,2)}, v14 offset:{off+32}", "F")
    a.e(f"s_mov_b32 s58, {EPS}")
    PQ = 184
    T = 196
    a.nop(4)
    for t in range(5):
        phi_inplace(a, ACC + t * 4, T + (12 if t & 1 else 0), PQ + t * 2, PQ + t * 2 + 1, "s58")
    a.e(f"v_mov_b32 v{PQ+10}, 0")
    a.e(f"v_mov_b32 v{PQ+11}, 0")
    a.wait_lg_all()
    a.nop(2)
    NUM = 64
    seen = set()
    for n, (j, u) in enumerate(ju):
        for im in range(2):
            d = vr(NUM + im * 20 + j * 4, 4)
            cin = d if (im, j) in seen else "0"
            seen.add((im, j))
            a.e(f"v_mfma_f32_16x16x32_bf16 {d}, {vr(KF+im*36+n*4,4)}, {vr(PQ+u*4,4)}, {cin}")
    a.e(f"v_mov_b32 v57, v{GA}")
    a.nop(2)
    a.e(f"v_permlane32_swap_b32 v57, v{GA}")
    a.nop(2)
    a.e(f"v_add_f32 v{GA}, v57, v{GA}")
    a.e(f"v_mov_b32 v57, v{GA}")
    a.nop(2)
    a.e(f"v_permlane16_swap_b32 v57, v{GA}")
    a.nop(2)
    a.e(f"v_add_f32 v{GA}, v57, v{GA}")
    a.e(f"v_cvt_pk_bf16_f32 v{GA}, v{GA}, v{GA}")
    a.e(f"v_lshlrev_b32 v{GA}, 16, v{GA}")
    a.e(f"v_mul_f32 v{GA}, 0xbfb8aa3b, v{GA}")
    a.e(f"v_exp_f32 v{GA}, v{GA}")
    a.e("s_nop 0")
    a.e(f"v_add_f32 v{GA}, 1.0, v{GA}")
    a.e(f"v_rcp_f32 v{GA}, v{GA}")
    a.e("s_nop 0")
    a.e(f"v_cvt_pk_bf16_f32 v{GA}, v{GA}, v{GA}")
    a.e(f"v_lshlrev_b32 v{GA}, 16, v{GA}")
    a.e(f"v_lshlrev_b32 v58, 2, v4")
    a.e(f"v_add_u32 v58, {hex(G_OFF)}, v58")
    a.e("s_cmp_lg_u32 s7, 0")
    a.e("s_cbranch_scc1 k2_nogate")
    a.e("v_cmp_gt_u32 vcc, 16, v0")
    a.e("s_and_saveexec_b64 s[60:61], vcc")
    a.e(f"buffer_store_dword v{GA}, v58, s[48:51], 0 offen")
    a.e("s_mov_b64 exec, s[60:61]")
    a.label("k2_nogate")
    a.e(f"v_mul_u32_u24 v5, {ACT_LD}, v4")
    a.e("v_lshl_add_u32 v5, v3, 3, v5")
    a.e("s_mul_i32 s12, s7, 160")
    a.e("v_add_u32 v5, s12, v5")
    a.nop(4)
    for j in range(5):
        n_ = NUM + j * 4
        d_ = NUM + 20 + j * 4
        p = T
        f = T + 4
        g = T + 8
        a.e(f"v_cvt_pk_bf16_f32 v{p}, v{n_}, v{n_+1}")
        a.e(f"v_cvt_pk_bf16_f32 v{p+1}, v{n_+2}, v{n_+3}")
        a.e(f"v_cvt_pk_bf16_f32 v{p+2}, v{d_}, v{d_+1}")
        a.e(f"v_cvt_pk_bf16_f32 v{p+3}, v{d_+2}, v{d_+3}")
        unpack(a, f, f + 1, p)
        unpack(a, f + 2, f + 3, p + 1)
        unpack(a, g, g + 1, p + 2)
        unpack(a, g + 2, g + 3, p + 3)
        for i in range(4):
            a.e(f"v_add_f32 v{g+i}, s58, v{g+i}")
        a.e(f"v_cvt_pk_bf16_f32 v{p+2}, v{g}, v{g+1}")
        a.e(f"v_cvt_pk_bf16_f32 v{p+3}, v{g+2}, v{g+3}")
        unpack(a, g, g + 1, p + 2)
        unpack(a, g + 2, g + 3, p + 3)
        for i in range(4):
            a.e(f"v_rcp_f32 v{g+4+i}, v{g+i}")
        a.e("s_nop 0")
        for i in range(4):
            a.e(f"v_mul_f32 v{g+8+i}, v{f+i}, v{g+4+i}")
        for i in range(4):
            a.e(f"v_fma_f32 v{f+i}, -v{g+i}, v{g+8+i}, v{f+i}")
        for i in range(4):
            a.e(f"v_fma_f32 v{g+8+i}, v{f+i}, v{g+4+i}, v{g+8+i}")
        o = T + 24 + j * 2
        a.e(f"v_cvt_pk_bf16_f32 v{o}, v{g+8}, v{g+9}")
        a.e(f"v_cvt_pk_bf16_f32 v{o+1}, v{g+10}, v{g+11}")
        a.vmem(f"buffer_store_dwordx2 {vr(o,2)}, v5, s[48:51], 0 offen offset:{32*j}", "st")
    a.label("k2_exit")
    a.e("s_endpgm")


def gen_k3(a):
    a.vm = []
    a.lg = []
    a.label("k3_kernel")
    a.e("s_cmp_ge_u32 s2, 256")
    a.e("s_cbranch_scc1 k3_exit")
    prologue_kernargs(a)
    a.e("s_and_b32 s3, s2, 7")
    a.e("s_lshr_b32 s4, s2, 3")
    a.e("s_lshr_b32 s5, s3, 1")
    a.e("s_lshl_b32 s5, s5, 3")
    a.e("s_and_b32 s6, s4, 7")
    a.e("s_add_u32 s5, s5, s6")
    a.e("s_and_b32 s7, s3, 1")
    a.e("s_lshl_b32 s7, s7, 2")
    a.e("s_lshr_b32 s6, s4, 3")
    a.e("s_add_u32 s7, s7, s6")
    a.e("v_lshrrev_b32 v1, 6, v0")
    a.e("v_and_b32 v0, 63, v0")
    a.e("s_nop 0")
    a.e("v_readfirstlane_b32 s9, v1")
    a.e("v_and_b32 v2, 15, v0")
    a.e("v_lshrrev_b32 v3, 4, v0")
    a.e("s_lshl_b32 s10, s5, 6")
    a.e("s_lshl_b32 s11, s9, 4")
    a.e("s_add_u32 s10, s10, s11")
    a.e("v_add_u32 v4, s10, v2")
    a.e(f"v_mul_u32_u24 v5, {ACT_LD}, v4")
    a.e("v_lshl_add_u32 v5, v3, 4, v5")
    a.e("v_add_u32 v6, 2048, v5")
    a.e("v_add_u32 v31, 4096, v5")
    a.e("s_waitcnt lgkmcnt(0)")
    make_srd(a, 40, P_WS, WS_USED)
    make_srd(a, 44, P_WO, 640 * 1280)
    make_srd(a, 48, P_W2, 1536 * 1280)
    make_srd(a, 52, P_B2, 1280)
    make_srd(a, 56, P_OUT, 2048 * 1280)
    a.e("s_mul_i32 s12, s9, 320")
    a.e("s_mul_i32 s14, s7, 160")
    DV = 8
    odd_dma_offsets(a, [DV + n for n in range(5)], "s12", 0, 1280, "s14", [14, 15, 16, 17])
    a.e("s_mul_i32 s15, s9, 5120")
    a.e("v_lshrrev_b32 v14, 2, v0")
    a.e("v_mul_u32_u24 v14, 160, v14")
    a.e("v_and_b32 v15, 3, v0")
    a.e("v_lshl_add_u32 v7, v15, 3, v14")
    a.e("v_add_u32 v13, 61440, v7")
    a.e("v_add_u32 v29, 122880, v7")
    SLOT = 20480
    NSL = 7
    NKS = 68

    def afrag(s, rt):
        if s < 64:
            return ar(s * 4, 4)
        return vr(200 + (s - 64) * 4, 4)

    def issue_a(s):
        o = 64 * s
        if o < 2048:
            v, o2 = 5, o
        elif o < 4096:
            v, o2 = 6, o - 2048
        else:
            v, o2 = 31, o - 4096
        a.vmem(f"buffer_load_dwordx4 {afrag(s,0)}, v{v}, s[40:43], 0 offen offset:{o2}", f"A{s}")

    def dma(c):
        sl = c % NSL
        if c < 5:
            srd, so = "s[44:47]", c * 128 * 1280
        else:
            srd, so = "s[48:51]", (c - 5) * 128 * 1280
        a.e(f"s_mov_b32 s60, {so}")
        for n in range(5):
            a.e(f"s_add_u32 m0, s15, {sl*SLOT + n*1024}")
            a.e("s_nop 0")
            a.vmem(f"buffer_load_dwordx4 v{DV+n}, {srd}, s60 offen lds", f"dma{c}")

    for c in range(NSL):
        dma(c)
        if c < 6:
            for s in range(4 * c, 4 * c + 4):
                issue_a(s)
    ACA = 32
    WB = 72

    def tr(s, t, hf):
        c = s // 4
        sl = c % NSL
        ks = s % 4
        off = (32 * ks + 16 * hf) * 160 + t * 32
        if sl < 3:
            return 7, sl * SLOT + off
        if sl < 6:
            return 13, (sl - 3) * SLOT + off
        return 29, (sl - 6) * SLOT + off

    def hook(c):
        cc = c + 5
        if c >= 1 and cc <= 16:
            for s in range(4 * cc, 4 * cc + 4):
                issue_a(s)
        if c == 12:
            a.e("s_mul_i32 s12, s7, 160")
            a.e("v_lshl_add_u32 v28, v3, 3, s12")
            a.e("v_lshlrev_b32 v30, 2, v4")
            a.e(f"v_add_u32 v30, {hex(G_OFF)}, v30")
            a.vmem("buffer_load_dword v112, v30, s[40:43], 0 offen", "g")
            for t in range(5):
                a.vmem(f"buffer_load_dwordx2 {vr(114+2*t,2)}, v28, s[52:55], 0 offen offset:{32*t}", "g")

    state = {"s": 0}
    nchunks = NKS // 4

    def reads(s, t):
        for hf in range(2):
            v, off = tr(s, t, hf)
            b = WB + ((s & 1) * 5 + t) * 4 + 2 * hf
            a.lds(f"ds_read_b64_tr_b16 {vr(b,2)}, v{v} offset:{off}", ("R", s, t))

    def new_chunk(c):
        a.wait_vm(f"dma{c}")
        a.e("s_barrier")
        nx = c - 2 + NSL
        if c >= 2 and nx < nchunks:
            dma(nx)
        hook(c)

    new_chunk(0)
    for t in range(5):
        reads(0, t)
    for s in range(NKS):
        if s + 1 < NKS and (s + 1) % 4 == 0:
            new_chunk((s + 1) // 4)
        a.wait_vm(f"A{s}")
        for t in range(5):
            if s + 1 < NKS:
                reads(s + 1, t)
            a.wait_lg(("R", s, t))
            w = vr(WB + ((s & 1) * 5 + t) * 4, 4)
            d = vr(ACA + (0 if s < 20 else 20) + t * 4, 4)
            cin = "0" if s in (0, 20) else d
            a.e(f"v_mfma_f32_16x16x32_bf16 {d}, {w}, {afrag(s,0)}, {cin}")
    a.c("K3 epilogue")
    a.e("v_mul_u32_u24 v5, 1280, v4")
    a.e("v_lshl_add_u32 v5, v3, 3, v5")
    a.e("s_mul_i32 s12, s7, 160")
    a.e("v_add_u32 v5, s12, v5")
    a.wait_vm("g")
    a.e("v_sub_f32 v113, 1.0, v112")
    a.e("v_cvt_pk_bf16_f32 v113, v113, v113")
    a.e("v_lshlrev_b32 v113, 16, v113")
    a.nop(6)
    T = 130
    for t in range(5):
        ca = ACA + t * 4
        cb = ACA + 20 + t * 4
        p = T
        fa = T + 4
        fb = T + 8
        bb = T + 12
        a.e(f"v_cvt_pk_bf16_f32 v{p}, v{ca}, v{ca+1}")
        a.e(f"v_cvt_pk_bf16_f32 v{p+1}, v{ca+2}, v{ca+3}")
        a.e(f"v_cvt_pk_bf16_f32 v{p+2}, v{cb}, v{cb+1}")
        a.e(f"v_cvt_pk_bf16_f32 v{p+3}, v{cb+2}, v{cb+3}")
        unpack(a, fa, fa + 1, p)
        unpack(a, fa + 2, fa + 3, p + 1)
        unpack(a, fb, fb + 1, p + 2)
        unpack(a, fb + 2, fb + 3, p + 3)
        unpack(a, bb, bb + 1, 114 + 2 * t)
        unpack(a, bb + 2, bb + 3, 115 + 2 * t)
        for i in range(4):
            a.e(f"v_add_f32 v{fb+i}, v{fb+i}, v{bb+i}")
        for i in range(4):
            a.e(f"v_mul_f32 v{fa+i}, v112, v{fa+i}")
        a.e(f"v_cvt_pk_bf16_f32 v{p+2}, v{fb}, v{fb+1}")
        a.e(f"v_cvt_pk_bf16_f32 v{p+3}, v{fb+2}, v{fb+3}")
        a.e(f"v_cvt_pk_bf16_f32 v{p}, v{fa}, v{fa+1}")
        a.e(f"v_cvt_pk_bf16_f32 v{p+1}, v{fa+2}, v{fa+3}")
        unpack(a, fb, fb + 1, p + 2)
        unpack(a, fb + 2, fb + 3, p + 3)
        unpack(a, fa, fa + 1, p)
        unpack(a, fa + 2, fa + 3, p + 1)
        for i in range(4):
            a.e(f"v_mul_f32 v{fb+i}, v113, v{fb+i}")
        a.e(f"v_cvt_pk_bf16_f32 v{p+2}, v{fb}, v{fb+1}")
        a.e(f"v_cvt_pk_bf16_f32 v{p+3}, v{fb+2}, v{fb+3}")
        unpack(a, fb, fb + 1, p + 2)
        unpack(a, fb + 2, fb + 3, p + 3)
        for i in range(4):
            a.e(f"v_add_f32 v{fa+i}, v{fa+i}, v{fb+i}")
        o = T + 20 + t * 2
        a.e(f"v_cvt_pk_bf16_f32 v{o}, v{fa}, v{fa+1}")
        a.e(f"v_cvt_pk_bf16_f32 v{o+1}, v{fa+2}, v{fa+3}")
        a.vmem(f"buffer_store_dwordx2 {vr(o,2)}, v5, s[56:59], 0 offen offset:{32*t}", "st")
    a.label("k3_exit")
    a.e("s_endpgm")


HEADER = """; Kernarg layout for this problem (96 bytes, ptrs only, base s[0:1]):
; @launch kernel=k1_kernel grid=(256,1,1) block=(256,1,1) lds=122880
; @launch kernel=k2_kernel grid=(256,1,1) block=(256,1,1) lds=135168
; @launch kernel=k3_kernel grid=(256,1,1) block=(256,1,1) lds=143360
.amdgcn_target "amdgcn-amd-amdhsa--gfx950"
.text
"""


def kd(name, vg, acc_off, sg=102):
    return f""".amdhsa_kernel {name}
  .amdhsa_next_free_vgpr {vg}
  .amdhsa_next_free_sgpr {sg}
  .amdhsa_accum_offset {acc_off}
  .amdhsa_group_segment_fixed_size 0
  .amdhsa_kernarg_size 96
  .amdhsa_user_sgpr_count 2
  .amdhsa_user_sgpr_kernarg_segment_ptr 1
  .amdhsa_system_sgpr_workgroup_id_x 1
.end_amdhsa_kernel
"""


def main():
    for i in range(1280):
        assert (i * 6554) >> 16 == i // 10
    for i in range(1792):
        assert (i * 1249) >> 19 == i // 420, i
    for i in range(420):
        assert (i * 3277) >> 16 == i // 20
    for i in range(512):
        assert (i * 625) >> 16 == i // 105, i
    for i in range(105):
        assert (i * 13108) >> 16 == i // 5
    out = [HEADER]
    for nm, fn in (("k1_kernel", gen_k1), ("k2_kernel", gen_k2), ("k3_kernel", gen_k3)):
        a = Asm()
        fn(a)
        out.append(f".globl {nm}\n.p2align 8\n.type {nm},@function\n" + "\n".join(a.lines) + "\n")
    out.append('.section .rodata,"a"\n')
    for nm in ("k1_kernel", "k2_kernel", "k3_kernel"):
        out.append(".p2align 6\n" + kd(nm, 512, 256))
    path = sys.argv[1] if len(sys.argv) > 1 else f"cdna_kernels/{NAME}.s"
    open(path, "w").write("".join(out))


if __name__ == "__main__":
    main()
```

```python
import sys

NAME = "gated_mix__linear_attn_block__dense_activation_squared_relu__prompt"

ACT_RT = 68 * 1024
PART_OFF = 0x900000
PART_BLK = 7168
G_OFF = 0xA00000
XF_OFF = 0xB00000
WQF_OFF = 0xE00000
W2F_OFF = 0xF00000
FLAG_OFF = 0x11F0000
WS_USED = 0x1200000


import os
STAMP = int(os.environ.get("STAMP", "0"))
STAMP_WG = int(os.environ.get("STAMP_WG", "0"))


class Asm:
    def __init__(self):
        self.lines = []
        self.vm = []
        self.lg = []
        self.nstamp = 0
        self.ndump = 0

    def e(self, s):
        self.lines.append("  " + s)

    def label(self, s):
        self.lines.append(s + ":")

    def c(self, s):
        self.lines.append("  ; " + s)

    def vmem(self, s, tag):
        self.e(s)
        self.vm.append(tag)

    def wait_vm(self, tags):
        if isinstance(tags, str):
            tags = [tags]
        last = -1
        for i, t in enumerate(self.vm):
            if t in tags:
                last = i
        if last < 0:
            return
        n = len(self.vm) - 1 - last
        n = min(n, 63)
        self.e(f"s_waitcnt vmcnt({n})")
        self.vm = self.vm[len(self.vm) - n:] if n > 0 else []

    def wait_vm_all(self):
        self.e("s_waitcnt vmcnt(0)")
        self.vm = []

    def lds(self, s, tag):
        self.e(s)
        self.lg.append(tag)

    def wait_lg(self, tags):
        if isinstance(tags, (str, tuple)):
            tags = [tags]
        last = -1
        for i, t in enumerate(self.lg):
            if t in tags:
                last = i
        if last < 0:
            return
        n = len(self.lg) - 1 - last
        n = min(n, 15)
        self.e(f"s_waitcnt lgkmcnt({n})")
        self.lg = self.lg[len(self.lg) - n:] if n > 0 else []

    def wait_lg_all(self):
        self.e("s_waitcnt lgkmcnt(0)")
        self.lg = []

    def stamp(self, name=""):
        if not STAMP:
            return
        if STAMP == 2:
            if name == "start":
                self.e("s_memrealtime s[96:97]")
                self.e("s_memtime s[92:93]")
                self.wait_lg_all()
            return
        i = self.nstamp
        self.nstamp += 1
        self.e(f"s_memtime s[{76+2*i}:{77+2*i}]")
        self.wait_lg_all()

    def dump_stamps(self):
        if not STAMP:
            return
        lab = "nodump%d_%d" % (self.kid, self.ndump)
        self.ndump += 1
        if STAMP == 2:
            self.e("s_waitcnt vmcnt(0)")
            self.e("s_memrealtime s[98:99]")
            self.e("s_memtime s[94:95]")
            self.e("s_waitcnt lgkmcnt(0)")
            self.e("s_cmp_lg_u32 s9, 0")
            self.e("s_cbranch_scc1 " + lab)
            make_srd(self, 64, P_WS, 0x2000000)
            self.e("s_lshl_b32 s68, s2, 4")
            self.e(f"s_add_u32 s68, s68, {hex(0x1800000 + self.kid * 4096)}")
            self.e("v_mov_b32 v1, s68")
            self.e("s_sub_u32 s94, s94, s92")
            self.e("s_getreg_b32 s95, hwreg(HW_REG_XCC_ID)")
            for i, r in enumerate((96, 98, 94, 95)):
                self.e(f"v_mov_b32 v2, s{r}")
                self.e(f"buffer_store_dword v2, v1, s[64:67], 0 offen offset:{4*i}")
            self.label(lab)
            return
        self.e("s_waitcnt lgkmcnt(0)")
        self.e("s_cmp_lg_u32 s2, %d" % STAMP_WG)
        self.e("s_cbranch_scc1 " + lab)
        self.e("s_cmp_lg_u32 s9, 0")
        self.e("s_cbranch_scc1 " + lab)
        make_srd(self, 64, P_DBG, 256)
        self.e("v_mov_b32 v1, 0")
        for i in range(self.nstamp):
            self.e(f"s_sub_u32 s68, s{76+2*i}, s76")
            self.e("v_mov_b32 v2, s68")
            self.e(f"buffer_store_dword v2, v1, s[64:67], 0 offen offset:{192+4*i}")
        self.label(lab)

    def nop(self, n):
        while n > 0:
            k = min(n, 16)
            self.e(f"s_nop {k-1}")
            n -= k


def vr(b, n=1):
    return f"v{b}" if n == 1 else f"v[{b}:{b+n-1}]"


def ar(b, n=1):
    return f"a{b}" if n == 1 else f"a[{b}:{b+n-1}]"


def sr(b, n=1):
    return f"s{b}" if n == 1 else f"s[{b}:{b+n-1}]"


P_X, P_WQKV, P_WO, P_BX, P_W1, P_B1, P_W2, P_B2, P_GW, P_OUT, P_DBG, P_WS = [16 + 2 * i for i in range(12)]


def prologue_kernargs(a):
    a.e("s_load_dwordx16 s[16:31], s[0:1], 0")
    a.e("s_load_dwordx8 s[32:39], s[0:1], 64")


def make_srd(a, dst, ptr, nbytes, off=0):
    if off:
        a.e(f"s_add_u32 s{dst}, s{ptr}, {hex(off)}")
        a.e(f"s_addc_u32 s{dst+1}, s{ptr+1}, 0")
        a.e(f"s_and_b32 s{dst+1}, s{dst+1}, 0xffff")
    else:
        a.e(f"s_mov_b32 s{dst}, s{ptr}")
        a.e(f"s_and_b32 s{dst+1}, s{ptr+1}, 0xffff")
    a.e(f"s_mov_b32 s{dst+2}, {hex(nbytes)}")
    a.e(f"s_mov_b32 s{dst+3}, 0x00020000")


def kperm_vgpr(a, dst, rho, t0, t1):
    a.e(f"v_and_b32 v{dst}, 0xffffffe3, v{rho}")
    a.e(f"v_bfe_u32 v{t0}, v{rho}, 2, 2")
    a.e(f"v_lshl_or_b32 v{dst}, v{t0}, 3, v{dst}")
    a.e(f"v_bfe_u32 v{t1}, v{rho}, 4, 1")
    a.e(f"v_lshl_or_b32 v{dst}, v{t1}, 2, v{dst}")


def odd_dma_offsets(a, dsts, first_instr_sgpr_or_const, lane_v, ldw, colbytes_s, t):
    for n, d in enumerate(dsts):
        a.e(f"v_add_u32 v{t[0]}, {first_instr_sgpr_or_const}, v{lane_v}")
        if n:
            a.e(f"v_add_u32 v{t[0]}, {64*n}, v{t[0]}")
        a.e(f"v_mul_u32_u24 v{t[1]}, 6554, v{t[0]}")
        a.e(f"v_lshrrev_b32 v{t[1]}, 16, v{t[1]}")
        a.e(f"v_mul_u32_u24 v{t[2]}, 10, v{t[1]}")
        a.e(f"v_sub_u32 v{t[0]}, v{t[0]}, v{t[2]}")
        kperm_vgpr(a, t[2], t[1], t[3], d)
        a.e(f"v_mul_u32_u24 v{t[2]}, {ldw}, v{t[2]}")
        a.e(f"v_lshl_add_u32 v{d}, v{t[0]}, 4, v{t[2]}")
        a.e(f"v_add_u32 v{d}, {colbytes_s}, v{d}")


def gemm_loop(a, nks, kpc, nslots, nb, arows, wbuf, afrag, acc, tr_addr, dma_chunk, a_tag, swap, first_zero=True,
              pre_step=None, chunk_hook=None):
    nchunks = nks // kpc

    def reads(s, t):
        for hf in range(2):
            v, off = tr_addr(s, t, hf)
            b = wbuf(s & 1, t) + 2 * hf
            a.lds(f"ds_read_b64_tr_b16 {vr(b,2)}, v{v} offset:{off}", ("R", s, t))

    def new_chunk(c):
        a.wait_vm(f"dma{c}")
        a.e("s_barrier")
        nx = c - 2 + nslots
        if c >= 2 and nx < nchunks:
            dma_chunk(nx)
        if chunk_hook:
            chunk_hook(c)

    new_chunk(0)
    for t in range(nb):
        reads(0, t)
    for s in range(nks):
        if s + 1 < nks and (s + 1) % kpc == 0:
            new_chunk((s + 1) // kpc)
        if pre_step:
            pre_step(s)
        a.wait_vm(a_tag(s))
        for t in range(nb):
            if s + 1 < nks:
                reads(s + 1, t)
            a.wait_lg(("R", s, t))
            w = vr(wbuf(s & 1, t), 4)
            for rt in range(arows):
                x = afrag(s, rt)
                d = acc(rt, t)
                cin = "0" if (s == 0 and first_zero) else d
                if swap:
                    a.e(f"v_mfma_f32_16x16x32_bf16 {d}, {w}, {x}, {cin}")
                else:
                    a.e(f"v_mfma_f32_16x16x32_bf16 {d}, {x}, {w}, {cin}")


def unpack(a, lo, hi, p):
    a.e(f"v_lshlrev_b32 v{lo}, 16, v{p}")
    a.e(f"v_and_b32 v{hi}, 0xffff0000, v{p}")


LOG2E = "0x3fb8aa3b"


def phi_inplace(a, c, T, out0, out1, s_eps):
    p0, p1 = T, T + 1
    f = T + 2
    ex = T + 6
    a.e(f"v_cvt_pk_bf16_f32 v{p0}, v{c}, v{c+1}")
    a.e(f"v_cvt_pk_bf16_f32 v{p1}, v{c+2}, v{c+3}")
    unpack(a, f, f + 1, p0)
    unpack(a, f + 2, f + 3, p1)
    a.e(f"v_pk_mul_f32 {vr(ex,2)}, {vr(f,2)}, s[60:61]")
    a.e(f"v_pk_mul_f32 {vr(ex+2,2)}, {vr(f+2,2)}, s[60:61]")
    for i in range(4):
        a.e(f"v_exp_f32 v{ex+i}, v{ex+i}")
    a.e(f"v_pk_add_f32 {vr(f,2)}, {vr(f,2)}, s[62:63]")
    a.e(f"v_pk_add_f32 {vr(f+2,2)}, {vr(f+2,2)}, s[62:63]")
    for i in range(4):
        a.e(f"v_med3_f32 v{f+i}, v{f+i}, v{ex+i}, 1.0")
    a.e(f"v_cvt_pk_bf16_f32 v{p0}, v{f}, v{f+1}")
    a.e(f"v_cvt_pk_bf16_f32 v{p1}, v{f+2}, v{f+3}")
    unpack(a, f, f + 1, p0)
    unpack(a, f + 2, f + 3, p1)
    a.e(f"v_pk_add_f32 {vr(f,2)}, {vr(f,2)}, s[64:65]")
    a.e(f"v_pk_add_f32 {vr(f+2,2)}, {vr(f+2,2)}, s[64:65]")
    a.e(f"v_cvt_pk_bf16_f32 v{out0}, v{f}, v{f+1}")
    a.e(f"v_cvt_pk_bf16_f32 v{out1}, v{f+2}, v{f+3}")


def phi_consts(a):
    a.e(f"s_mov_b32 s60, {LOG2E}")
    a.e(f"s_mov_b32 s61, {LOG2E}")
    a.e("s_mov_b32 s62, 1.0")
    a.e("s_mov_b32 s63, 1.0")
    a.e("s_mov_b32 s64, 0x358637bd")
    a.e("s_mov_b32 s65, 0x358637bd")


EPS = "0x358637bd"


SLOT1 = 20480
NSL1 = 8


def side_jobs_issue(a):
    a.e("s_lshl_b32 s53, s2, 2")
    a.e("s_add_u32 s53, s53, s9")
    for i in range(2):
        sb = 54
        a.e(f"s_add_u32 s{sb}, s53, {1024*i}")
        if i == 1:
            a.e(f"s_min_u32 s{sb}, s{sb}, 1759")
        a.e(f"s_mul_i32 s55, s{sb}, 52429")
        a.e("s_lshr_b32 s55, s55, 18")
        a.e("s_mul_i32 s56, s55, 5")
        a.e(f"s_sub_u32 s56, s{sb}, s56")
        a.e("s_movk_i32 s57, 1280")
        a.e(f"s_mov_b32 s59, {hex(W2F_OFF)}")
        a.e(f"s_mov_b32 s66, {hex(640*1280)}")
        a.e("s_cmp_lt_u32 s55, 80")
        a.e(f"s_cselect_b32 s64, s{P_WQKV}, s{P_WO}")
        a.e(f"s_cselect_b32 s65, s{P_WQKV+1}, s{P_WO+1}")
        a.e("s_cselect_b32 s57, 3840, s57")
        a.e("s_cselect_b32 s58, 0, 80")
        a.e(f"s_cselect_b32 s59, {hex(WQF_OFF)}, s59")
        a.e("s_cselect_b32 s60, 20, 68")
        a.e("s_cselect_b32 s61, 0, 80")
        a.e(f"s_cselect_b32 s66, {hex(640*3840)}, s66")
        a.e("s_cmp_lt_u32 s55, 160")
        a.e(f"s_cselect_b32 s64, s64, s{P_W2}")
        a.e(f"s_cselect_b32 s65, s65, s{P_W2+1}")
        a.e("s_cselect_b32 s58, s58, 160")
        a.e(f"s_cselect_b32 s66, s66, {hex(1536*1280)}")
        a.e("s_and_b32 s65, s65, 0xffff")
        a.e("s_mov_b32 s67, 0x00020000")
        a.e("s_sub_u32 s58, s55, s58")
        a.e("s_lshl_b32 s58, s58, 3")
        a.e("s_mul_i32 s58, s58, s57")
        a.e("s_lshl_b32 s62, s56, 8")
        a.e("s_add_u32 s58, s58, s62")
        a.e(f"v_lshl_add_u32 v{228+i}, v0, 2, s58")
        for r in range(8):
            a.e(f"s_mul_i32 s62, s57, {r}")
            a.vmem(f"buffer_load_dword v{200+8*i+r}, v{228+i}, s[64:67], s62 offen", "side")
        a.e("s_sub_u32 s61, s55, s61")
        a.e("s_lshr_b32 s62, s61, 2")
        a.e("s_and_b32 s61, s61, 3")
        a.e("s_lshl_b32 s63, s56, 7")
        a.e("v_lshl_add_u32 v232, v0, 1, s63")
        a.e("v_mul_u32_u24 v233, 820, v232")
        a.e("v_lshrrev_b32 v233, 16, v233")
        a.e("v_mul_u32_u24 v234, 80, v233")
        a.e("v_sub_u32 v232, v232, v234")
        a.e("v_mul_lo_u32 v233, v233, s60")
        a.e("v_add_u32 v233, s62, v233")
        a.e("v_mul_u32_u24 v233, 5, v233")
        a.e("v_lshrrev_b32 v234, 4, v232")
        a.e("v_add_u32 v233, v233, v234")
        a.e("v_lshlrev_b32 v233, 10, v233")
        a.e("v_and_b32 v232, 15, v232")
        a.e("v_lshl_add_u32 v233, v232, 4, v233")
        a.e("s_lshl_b32 s61, s61, 8")
        a.e("s_add_u32 s61, s61, s59")
        a.e(f"v_add_u32 v{230+i}, s61, v233")
    for i in range(3):
        a.e(f"s_add_u32 s54, s53, {1024*i}")
        if i == 2:
            a.e("s_min_u32 s54, s54, 2559")
        a.e("s_mul_i32 s55, s54, 52429")
        a.e("s_lshr_b32 s55, s55, 20")
        a.e("s_mul_i32 s56, s55, 20")
        a.e("s_sub_u32 s56, s54, s56")
        a.e("s_mul_i32 s55, s55, 20480")
        a.e("s_lshl_b32 s56, s56, 6")
        a.e("s_add_u32 s55, s55, s56")
        a.e("v_mul_u32_u24 v232, 1280, v2")
        a.e("v_lshl_add_u32 v232, v3, 4, v232")
        a.vmem(f"buffer_load_dwordx4 {vr(216+4*i,4)}, v232, s[40:43], s55 offen", "side")
        a.e("s_lshl_b32 s54, s54, 10")
        a.e(f"s_add_u32 s54, s54, {hex(XF_OFF)}")
        a.e(f"v_lshl_add_u32 v{236+i}, v0, 4, s54")


def side_jobs_store(a):
    lab = "k1_noflag%d" % len(a.lines)
    a.e("s_cmp_lg_u32 s53, 0")
    a.e("s_cbranch_scc1 " + lab)
    a.e("v_lshlrev_b32 v240, 7, v0")
    a.e(f"v_add_u32 v240, {hex(FLAG_OFF)}, v240")
    a.e("v_mov_b32 v241, 0")
    a.e("buffer_store_dword v241, v240, s[48:51], 0 offen")
    a.label(lab)
    a.e("s_waitcnt vmcnt(0)")
    a.vm = []
    a.e("s_mov_b32 s54, 0x05040100")
    a.e("s_mov_b32 s55, 0x07060302")
    for i in range(2):
        b = 200 + 8 * i
        o = 240
        for j in range(4):
            a.e(f"v_perm_b32 v{o+j}, v{b+2*j+1}, v{b+2*j}, s54")
        for j in range(4):
            a.e(f"v_perm_b32 v{o+4+j}, v{b+2*j+1}, v{b+2*j}, s55")
        a.vmem(f"buffer_store_dwordx4 {vr(o,4)}, v{230+i}, s[48:51], 0 offen", "st")
        a.vmem(f"buffer_store_dwordx4 {vr(o+4,4)}, v{230+i}, s[48:51], 0 offen offset:16", "st")
        a.nop(2)
    for i in range(3):
        a.vmem(f"buffer_store_dwordx4 {vr(216+4*i,4)}, v{236+i}, s[48:51], 0 offen", "st")


def producer_loop(a, nch, nsl, dma_chunk, ramp=2, hook=None):
    issued = 0

    def issue_upto(n):
        nonlocal issued
        while issued < min(n, nch):
            dma_chunk(issued)
            issued += 1

    issue_upto(nsl - 1)
    for c in range(nch):
        a.wait_vm(f"dma{c}")
        a.e("s_barrier")
        issue_upto(min(issued + ramp, c + nsl - 1))
        if hook:
            hook(c)


def consumer_loop(a, nks, kpc, nb, arows, wfrag, afrag, acc, reads, bump, swap, zero_at=(0,), per_tile=None,
                  stamps=()):
    a.e("s_barrier")
    for t in range(nb):
        reads(0, t)
    for s in range(nks):
        if s in stamps:
            a.stamp(f"s{s}")
        if s + 1 < nks and (s + 1) % kpc == 0:
            a.e("s_barrier")
            bump((s + 1) // kpc)
        for t in range(nb):
            if s + 1 < nks:
                reads(s + 1, t)
            need = [("R", s, t)]
            if t == 0:
                need += [("A", s, r) for r in range(arows)]
            a.wait_lg(need)
            for rt in range(arows):
                d = acc(s, rt, t)
                cin = "0" if s in zero_at else d
                if swap:
                    a.e(f"v_mfma_f32_16x16x32_bf16 {d}, {wfrag(s,t)}, {afrag(s,rt)}, {cin}")
                else:
                    a.e(f"v_mfma_f32_16x16x32_bf16 {d}, {afrag(s,rt)}, {wfrag(s,t)}, {cin}")
            if per_tile:
                per_tile(s, t)


def mk_bump(a, regs, slot, nsl):
    def f(c):
        d = slot if (c % nsl) else -(nsl - 1) * slot
        for r in regs:
            a.e(f"v_add_u32 v{r}, {d if d > 0 else hex(d & 0xffffffff)}, v{r}")
    return f


def poll_counter(a, srd, voff, target, lab):
    a.label(lab)
    a.e(f"buffer_load_dword v21, v{voff}, {srd}, 0 offen sc1")
    a.e("s_waitcnt vmcnt(0)")
    a.vm = []
    a.e("v_readfirstlane_b32 s72, v21")
    a.e(f"s_cmp_ge_u32 s72, {target}")
    a.e(f"s_cbranch_scc1 {lab}_done")
    a.e("s_sleep 8")
    a.e(f"s_branch {lab}")
    a.label(lab + "_done")


def gen_k1(a):
    a.label("k1_kernel")
    a.e("s_cmp_ge_u32 s2, 256")
    a.e("s_cbranch_scc1 k1_exit")
    a.stamp("start")
    prologue_kernargs(a)
    a.e("s_and_b32 s3, s2, 7")
    a.e("s_lshr_b32 s4, s2, 3")
    a.e("s_lshr_b32 s5, s3, 2")
    a.e("s_lshl_b32 s5, s5, 3")
    a.e("s_and_b32 s6, s4, 7")
    a.e("s_add_u32 s5, s5, s6")
    a.e("s_lshr_b32 s6, s4, 3")
    a.e("s_and_b32 s7, s3, 3")
    a.e("s_lshl_b32 s7, s7, 1")
    a.e("s_and_b32 s8, s6, 1")
    a.e("s_add_u32 s7, s7, s8")
    a.e("v_lshrrev_b32 v1, 6, v0")
    a.e("v_and_b32 v0, 63, v0")
    a.e("s_nop 0")
    a.e("v_readfirstlane_b32 s9, v1")
    a.e("v_and_b32 v2, 15, v0")
    a.e("v_lshrrev_b32 v3, 4, v0")
    a.e("s_and_b32 s8, s7, 1")
    a.e("s_cmp_ge_u32 s9, 4")
    a.e("s_cbranch_scc0 k1_cons")
    a.e("s_sub_u32 s9, s9, 4")
    a.e("s_lshl_b32 s10, s5, 7")
    a.e("s_lshl_b32 s11, s9, 5")
    a.e("s_add_u32 s10, s10, s11")
    a.e("v_lshrrev_b32 v14, 2, v0")
    a.e("v_add_u32 v15, s10, v14")
    a.e("v_mul_u32_u24 v15, 1280, v15")
    a.e("v_lshrrev_b32 v14, 5, v0")
    a.e("v_mul_u32_u24 v14, 3, v14")
    a.e("v_and_b32 v16, 3, v0")
    a.e("v_xor_b32 v16, v16, v14")
    a.e("v_lshl_add_u32 v5, v16, 4, v15")
    a.e("s_lshl_b32 s14, s9, 11")
    a.e("s_mul_i32 s15, s9, 3072")
    a.e("s_add_u32 s15, s15, 8192")
    a.e("s_waitcnt lgkmcnt(0)")
    make_srd(a, 40, P_X, 2048 * 1280)
    make_srd(a, 48, P_WS, WS_USED)

    a.e("s_and_b32 s68, s5, 7")
    a.e("s_mul_i32 s68, s68, 5")
    a.e("s_lshr_b32 s68, s68, 1")
    a.e("s_mul_i32 s69, s6, 5")
    a.e("s_add_u32 s68, s68, s69")
    a.e("s_add_u32 s68, s68, s3")
    a.e("s_cmp_ge_u32 s68, 20")
    a.e("s_cselect_b32 s69, 20, 0")
    a.e("s_sub_u32 s68, s68, s69")
    a.e("s_cmp_ge_u32 s68, 20")
    a.e("s_cselect_b32 s69, 20, 0")
    a.e("s_sub_u32 s68, s68, s69")

    def adv_k():
        a.e("s_add_u32 s68, s68, 1")
        a.e("s_cmp_ge_u32 s68, 20")
        a.e("s_cselect_b32 s68, 0, s68")

    def dma_a(c):
        sl = c % NSL1
        for n in range(2):
            a.e(f"s_lshl_b32 s52, s68, 6")
            if n:
                a.e(f"s_add_u32 s52, s52, {n*16*1280}")
            a.e(f"s_add_u32 m0, s14, {sl*SLOT1 + n*1024}")
            a.e("s_nop 0")
            a.vmem(f"buffer_load_dwordx4 v5, s[40:43], s52 offen lds", f"dma{c}")

    a.e("s_cmp_ge_u32 s6, 2")
    a.e("s_cbranch_scc1 k1_ph")
    make_srd(a, 44, P_WQKV, 640 * 3840)
    a.e("s_and_b32 s12, s9, 1")
    a.e("s_mul_i32 s12, s12, 192")
    a.e("s_lshr_b32 s13, s9, 1")
    a.e("s_mul_i32 s10, s7, 160")
    a.e("s_lshl_b32 s11, s8, 5")
    a.e("s_sub_u32 s10, s10, s11")
    a.e("s_mul_i32 s11, s13, 1280")
    a.e("s_add_u32 s10, s10, s11")
    a.e("s_add_u32 s10, s10, 1280")
    DV = 8
    for n in range(3):
        d = DV + n
        a.e(f"v_add_u32 v19, s12, v0")
        if n:
            a.e(f"v_add_u32 v19, {64*n}, v19")
        a.e("v_mul_u32_u24 v20, 5462, v19")
        a.e("v_lshrrev_b32 v20, 16, v20")
        a.e("v_mul_u32_u24 v21, 12, v20")
        a.e("v_sub_u32 v19, v19, v21")
        a.e("v_bfe_u32 v21, v20, 2, 1")
        a.e("v_lshlrev_b32 v21, 1, v21")
        a.e("v_xor_b32 v19, v19, v21")
        kperm_vgpr(a, 21, 20, 22, 23)
        a.e("v_mul_u32_u24 v21, 3840, v21")
        a.e(f"v_lshl_add_u32 v{d}, v19, 4, v21")
        a.e(f"v_add_u32 v{d}, s10, v{d}")

    def dma_kv(c):
        dma_a(c)
        sl = c % NSL1
        a.e(f"s_mul_i32 s52, s68, {32*3840}")
        for n in range(3):
            a.e(f"s_add_u32 m0, s15, {sl*SLOT1 + n*1024}")
            a.e("s_nop 0")
            a.vmem(f"buffer_load_dwordx4 v{DV+n}, s[44:47], s52 offen lds", f"dma{c}")
        adv_k()

    def side_hook(c):
        if c == 0:
            side_jobs_issue(a)
        if c == 8:
            side_jobs_store(a)

    a.e("s_cmp_lg_u32 s5, 0")
    a.e("s_cbranch_scc1 k1_nozero")
    make_srd(a, 64, P_DBG, 256)
    a.e("s_lshl_b32 s10, s7, 13")
    a.e("s_lshl_b32 s11, s9, 11")
    a.e("s_add_u32 s10, s10, s11")
    a.e(f"s_add_u32 s10, s10, {hex(PART_OFF)}")
    a.e("v_lshl_add_u32 v24, v0, 4, s10")
    for i in range(4):
        a.e(f"v_mov_b32 v{28+i}, 0")
    a.e("buffer_store_dwordx4 v[28:31], v24, s[48:51], 0 offen sc1")
    a.e("buffer_store_dwordx4 v[28:31], v24, s[48:51], 0 offen offset:1024 sc1")
    a.e("s_waitcnt vmcnt(0)")
    a.e("s_lshl_b32 s10, s7, 2")
    a.e("v_mov_b32 v24, s10")
    a.e("v_mov_b32 v25, 1")
    a.e("v_cmp_eq_u32 vcc, 0, v0")
    a.e("s_and_saveexec_b64 s[54:55], vcc")
    a.e("buffer_atomic_add v25, v24, s[64:67], 0 offen sc1")
    a.e("s_mov_b64 exec, s[54:55]")
    a.e("s_waitcnt vmcnt(0)")
    a.label("k1_nozero")
    producer_loop(a, 20, NSL1, dma_kv, hook=side_hook)
    a.e("s_endpgm")
    a.label("k1_ph")
    a.vm = []
    make_srd(a, 44, P_W1, 640 * 3072)
    a.e("v_lshrrev_b32 v14, 3, v0")
    a.e("v_and_b32 v15, 3, v14")
    a.e("v_lshrrev_b32 v16, 2, v14")
    a.e("v_lshl_add_u32 v15, v16, 3, v15")
    a.e("v_mul_u32_u24 v8, 3072, v15")
    a.e("v_bfe_u32 v15, v0, 1, 2")
    a.e("v_lshrrev_b32 v16, 1, v14")
    a.e("v_xor_b32 v15, v15, v16")
    a.e("v_lshl_add_u32 v8, v15, 5, v8")
    a.e("v_and_b32 v15, 1, v0")
    a.e("v_lshl_add_u32 v8, v15, 4, v8")
    a.e("s_and_b32 s12, s9, 1")
    a.e("s_lshl_b32 s12, s12, 4")
    a.e("s_lshr_b32 s13, s9, 1")
    a.e("s_lshl_b32 s13, s13, 2")
    a.e("s_add_u32 s12, s12, s13")
    a.e("s_mul_i32 s12, s12, 3072")
    a.e("s_mul_i32 s13, s7, 384")
    a.e("s_add_u32 s12, s12, s13")
    a.e("v_add_u32 v8, s12, v8")

    def dma_h(c):
        dma_a(c)
        sl = c % NSL1
        a.e(f"s_mul_i32 s52, s68, {32*3072}")
        for cbk in range(3):
            if cbk:
                a.e(f"s_add_u32 s52, s52, 128")
            a.e(f"s_add_u32 m0, s15, {sl*SLOT1 + cbk*1024}")
            a.e("s_nop 0")
            a.vmem(f"buffer_load_dwordx4 v8, s[44:47], s52 offen lds", f"dma{c}")
        adv_k()

    producer_loop(a, 20, NSL1, dma_h, hook=side_hook)
    a.e("s_endpgm")

    a.label("k1_cons")
    a.vm = []
    a.lg = []
    a.e("v_lshrrev_b32 v14, 3, v2")
    a.e("v_mul_u32_u24 v14, 3, v14")
    a.e("v_xor_b32 v14, v14, v3")
    a.e("v_lshlrev_b32 v15, 6, v2")
    a.e("v_lshl_add_u32 v17, v14, 4, v15")
    a.e("s_waitcnt lgkmcnt(0)")
    make_srd(a, 48, P_WS, WS_USED)
    a.e("s_cmp_ge_u32 s6, 2")
    a.e("s_cbranch_scc1 k1_ch")
    a.e("v_lshrrev_b32 v19, 2, v0")
    a.e("v_mul_u32_u24 v19, 192, v19")
    a.e("v_and_b32 v20, 3, v0")
    a.e("v_lshl_add_u32 v19, v20, 3, v19")
    a.e("s_lshl_b32 s11, s8, 5")
    a.e("s_add_u32 s11, s11, 8192")
    a.e("v_add_u32 v19, s11, v19")
    a.e("v_and_b32 v20, 1, v3")
    a.e("v_lshlrev_b32 v20, 5, v20")
    a.e("s_cmp_eq_u32 s8, 0")
    a.e("s_cselect_b32 s11, 1, -1")
    a.e("v_mul_lo_u32 v20, v20, s11")
    a.e("v_add_u32 v24, v19, v20")
    a.e("v_sub_u32 v25, v19, v20")
    a.e("s_lshl_b32 s14, s9, 11")
    a.e("v_add_u32 v26, s14, v17")
    ACC = 32
    WB = 112
    AB = 192

    def reads_kv(s, t):
        if t < 2:
            a.lds(f"ds_read_b128 {vr(AB+((s&1)*2+t)*4,4)}, v26 offset:{t*1024}", ("A", s, t))
        for hf in range(2):
            off = (t // 5) * 6144 + 16 * hf * 192 + (t % 5) * 32
            v = 24 if (t % 5) % 2 == 0 else 25
            a.lds(f"ds_read_b64_tr_b16 {vr(WB+((s&1)*10+t)*4+2*hf,2)}, v{v} offset:{off}", ("R", s, t))

    consumer_loop(a, 20, 1, 10, 2, lambda s, t: vr(WB + ((s & 1) * 10 + t) * 4, 4),
                  lambda s, rt: vr(AB + ((s & 1) * 2 + rt) * 4, 4),
                  lambda s, rt, t: vr(ACC + (t * 2 + rt) * 4, 4), reads_kv,
                  mk_bump(a, [24, 25, 26], SLOT1, NSL1), False, stamps=(0, 1, 4, 8, 12, 16))
    a.stamp("loop")
    a.c("KV epilogue")
    a.nop(8)
    a.e(f"s_mov_b32 s58, {EPS}")
    phi_consts(a)
    PK = 112
    T = 152
    for t in range(5):
        for rt in range(2):
            c = ACC + (t * 2 + rt) * 4
            phi_inplace(a, c, T + (12 if rt else 0), PK + t * 4 + rt * 2, PK + t * 4 + rt * 2 + 1, "s58")
    for t in range(5, 10):
        for rt in range(2):
            c = ACC + (t * 2 + rt) * 4
            a.e(f"v_cvt_pk_bf16_f32 v{PK+t*4+rt*2}, v{c}, v{c+1}")
            a.e(f"v_cvt_pk_bf16_f32 v{PK+t*4+rt*2+1}, v{c+2}, v{c+3}")
    ONES = 176
    for i in range(4):
        a.e(f"v_mov_b32 v{ONES+i}, 0x3f803f80")
    a.nop(2)
    D2 = 32
    pairs = [(i, j) for i in range(5) for j in range(5) if abs(i - j) <= 1]
    for (i, j) in pairs:
        a.e(f"v_mfma_f32_16x16x32_bf16 {vr(D2+(2*i+j)*4,4)}, {vr(PK+i*4,4)}, {vr(PK+(5+j)*4,4)}, 0")
    for i in range(5):
        a.e(f"v_mfma_f32_16x16x32_bf16 {vr(D2+(13+i)*4,4)}, {vr(PK+i*4,4)}, {vr(ONES,4)}, 0")
    a.e("s_barrier")
    a.e("s_mul_i32 s12, s9, 18432")
    a.e("v_lshl_add_u32 v14, v0, 4, s12")
    a.nop(8)
    for k in range(18):
        a.lds(f"ds_write_b128 v14, {vr(D2+k*4,4)} offset:{k*1024}", "W")
    a.wait_lg_all()
    a.e("s_barrier")
    a.e("s_lshl_b32 s12, s9, 6")
    a.e("v_add_u32 v16, s12, v0")
    a.e("s_lshl_b32 s12, s7, 13")
    a.e(f"s_add_u32 s12, s12, {hex(PART_OFF)}")
    make_srd(a, 64, P_DBG, 256)
    a.e("s_lshl_b32 s10, s7, 2")
    a.e("v_mov_b32 v20, s10")
    poll_counter(a, "s[64:67]", 20, 4, "k1_zpoll")
    for it in range(7):
        b = 112 + it * 16
        I, H_, RM, DD, E_, Dg, Eg, TI, AD = [b + k for k in range(9)]
        a.e(f"v_add_u32 v{I}, {256*it}, v16")
        a.e(f"v_mul_u32_u24 v{H_}, 1249, v{I}")
        a.e(f"v_lshrrev_b32 v{H_}, 19, v{H_}")
        a.e(f"v_mul_u32_u24 v{RM}, 420, v{H_}")
        a.e(f"v_sub_u32 v{RM}, v{I}, v{RM}")
        a.e(f"v_mul_u32_u24 v{DD}, 3277, v{RM}")
        a.e(f"v_lshrrev_b32 v{DD}, 16, v{DD}")
        a.e(f"v_mul_u32_u24 v{E_}, 20, v{DD}")
        a.e(f"v_sub_u32 v{E_}, v{RM}, v{E_}")
        a.e(f"v_mul_u32_u24 v{H_}, 20, v{H_}")
        a.e(f"v_cmp_eq_u32 vcc, 20, v{DD}")
        a.e(f"v_add_u32 v{Eg}, v{H_}, v{E_}")
        a.e(f"v_add_u32 v{Dg}, v{H_}, v{DD}")
        a.e(f"v_cndmask_b32 v{Dg}, v{Dg}, v{Eg}, vcc")
        a.e(f"v_lshrrev_b32 v{TI}, 4, v{Dg}")
        a.e(f"v_lshrrev_b32 v{AD}, 4, v{Eg}")
        a.e(f"v_lshl_add_u32 v{AD}, v{TI}, 1, v{AD}")
        a.e(f"v_add_u32 v{TI}, 13, v{TI}")
        a.e(f"v_cndmask_b32 v{TI}, v{AD}, v{TI}, vcc")
        a.e(f"v_and_b32 v{Eg}, 15, v{Eg}")
        a.e(f"v_cndmask_b32 v{Eg}, v{Eg}, 0, vcc")
        a.e(f"v_bfe_u32 v{AD}, v{Dg}, 2, 2")
        a.e(f"v_lshl_add_u32 v{AD}, v{AD}, 4, v{Eg}")
        a.e(f"v_lshlrev_b32 v{AD}, 4, v{AD}")
        a.e(f"v_lshl_add_u32 v{AD}, v{TI}, 10, v{AD}")
        a.e(f"v_and_b32 v{Dg}, 3, v{Dg}")
        a.e(f"v_lshl_add_u32 v{AD}, v{Dg}, 2, v{AD}")
        if it == 6:
            a.e(f"v_cmp_gt_u32 vcc, 1680, v{I}")
            a.e("s_nop 1")
            a.e(f"v_cndmask_b32 v{AD}, 0, v{AD}, vcc")
        for w in range(4):
            a.lds(f"ds_read_b32 v{b+10+w}, v{AD} offset:{w*18432}", ("Q", it))
        a.e(f"v_lshl_add_u32 v{I}, v{I}, 2, s12")
    for it in range(7):
        b = 112 + it * 16
        a.wait_lg(("Q", it))
        a.e(f"v_add_f32 v{b+10}, v{b+10}, v{b+11}")
        a.e(f"v_add_f32 v{b+12}, v{b+12}, v{b+13}")
        a.e(f"v_add_f32 v{b+10}, v{b+10}, v{b+12}")
        if it == 6:
            a.e("s_and_saveexec_b64 s[60:61], vcc")
        a.vmem(f"buffer_atomic_add_f32 v{b+10}, v{b}, s[48:51], 0 offen", "st")
        if it == 6:
            a.e("s_mov_b64 exec, s[60:61]")
    a.stamp("end")
    a.dump_stamps()
    a.e("s_endpgm")

    a.label("k1_ch")
    a.vm = []
    a.lg = []
    a.nstamp = 1
    a.e("v_lshrrev_b32 v14, 5, v0")
    a.e("v_mul_u32_u24 v14, 3072, v14")
    a.e("v_bfe_u32 v15, v0, 2, 3")
    a.e("v_lshl_add_u32 v14, v15, 7, v14")
    a.e("v_and_b32 v16, 3, v0")
    a.e("v_lshl_add_u32 v14, v16, 3, v14")
    a.e("v_add_u32 v14, 8192, v14")
    a.e("v_lshrrev_b32 v15, 1, v15")
    a.e("s_and_b32 s13, s9, 1")
    for t in range(6):
        a.e(f"s_mul_i32 s12, s13, 6")
        a.e(f"s_add_u32 s12, s12, {t}")
        a.e("s_and_b32 s11, s12, 3")
        a.e("s_lshr_b32 s12, s12, 2")
        a.e("s_lshl_b32 s12, s12, 10")
        a.e("v_xor_b32 v16, s11, v15")
        a.e(f"v_lshl_add_u32 v{20+t}, v16, 5, v14")
        a.e(f"v_add_u32 v{20+t}, s12, v{20+t}")
    a.e("s_lshr_b32 s12, s9, 1")
    a.e("s_lshl_b32 s12, s12, 12")
    a.e("v_add_u32 v26, s12, v17")
    ACCH = 32
    WBH = 128
    ABH = 176
    BB = 208
    make_srd(a, 64, P_B1, 3072)
    a.e("s_mul_i32 s12, s7, 384")
    a.e("s_mul_i32 s11, s13, 192")
    a.e("s_add_u32 s12, s12, s11")
    a.e("v_lshl_add_u32 v28, v3, 3, s12")
    for t in range(6):
        a.vmem(f"buffer_load_dwordx2 {vr(BB+2*t,2)}, v28, s[64:67], 0 offen offset:{32*t}", "bias")

    def reads_h(s, t):
        if t < 4:
            a.lds(f"ds_read_b128 {vr(ABH+((s&1)*4+t)*4,4)}, v26 offset:{t*1024}", ("A", s, t))
        for hf in range(2):
            a.lds(f"ds_read_b64_tr_b16 {vr(WBH+((s&1)*6+t)*4+2*hf,2)}, v{20+t} offset:{2*hf*3072}", ("R", s, t))

    consumer_loop(a, 20, 1, 6, 4, lambda s, t: vr(WBH + ((s & 1) * 6 + t) * 4, 4),
                  lambda s, rt: vr(ABH + ((s & 1) * 4 + rt) * 4, 4),
                  lambda s, rt, t: vr(ACCH + (t * 4 + rt) * 4, 4), reads_h,
                  mk_bump(a, [20, 21, 22, 23, 24, 25, 26], SLOT1, NSL1), True, stamps=(0, 1, 4, 8, 12, 16))
    a.stamp("loop")
    a.c("H epilogue")
    a.e("s_lshl_b32 s12, s5, 3")
    a.e("s_lshr_b32 s11, s9, 1")
    a.e("s_lshl_b32 s11, s11, 2")
    a.e("s_add_u32 s12, s12, s11")
    a.e(f"s_mul_i32 s12, s12, {ACT_RT}")
    a.e("s_mul_i32 s11, s7, 6")
    a.e("s_mul_i32 s10, s13, 3")
    a.e("s_add_u32 s11, s11, s10")
    a.e("s_add_u32 s11, s11, 20")
    a.e("s_lshl_b32 s11, s11, 10")
    a.e("s_add_u32 s12, s12, s11")
    a.e("v_lshrrev_b32 v14, 1, v3")
    a.e("v_lshl_add_u32 v14, v14, 4, v2")
    a.e("v_lshlrev_b32 v14, 4, v14")
    a.e("v_and_b32 v15, 1, v3")
    a.e("v_lshl_add_u32 v14, v15, 3, v14")
    for rt in range(4):
        a.e(f"v_add_u32 v{8+rt}, s12, v14")
        a.e(f"s_add_u32 s12, s12, {ACT_RT}")
    a.wait_vm("bias")
    a.nop(4)
    T = 128
    for t in range(6):
        bf = T
        unpack(a, bf, bf + 1, BB + 2 * t)
        unpack(a, bf + 2, bf + 3, BB + 2 * t + 1)
        for rt in range(4):
            c = ACCH + (t * 4 + rt) * 4
            p = T + 4 + (rt & 1) * 8
            f = p + 2
            o = T + 20 + ((t * 4 + rt) % 8) * 2
            a.e(f"v_cvt_pk_bf16_f32 v{p}, v{c}, v{c+1}")
            a.e(f"v_cvt_pk_bf16_f32 v{p+1}, v{c+2}, v{c+3}")
            unpack(a, f, f + 1, p)
            unpack(a, f + 2, f + 3, p + 1)
            a.e(f"v_pk_add_f32 {vr(f,2)}, {vr(f,2)}, {vr(bf,2)}")
            a.e(f"v_pk_add_f32 {vr(f+2,2)}, {vr(f+2,2)}, {vr(bf+2,2)}")
            a.e(f"v_cvt_pk_bf16_f32 v{p}, v{f}, v{f+1}")
            a.e(f"v_cvt_pk_bf16_f32 v{p+1}, v{f+2}, v{f+3}")
            a.e(f"v_pk_max_i16 v{p}, v{p}, 0")
            a.e(f"v_pk_max_i16 v{p+1}, v{p+1}, 0")
            unpack(a, f, f + 1, p)
            unpack(a, f + 2, f + 3, p + 1)
            a.e(f"v_pk_mul_f32 {vr(f,2)}, {vr(f,2)}, {vr(f,2)}")
            a.e(f"v_pk_mul_f32 {vr(f+2,2)}, {vr(f+2,2)}, {vr(f+2,2)}")
            a.e(f"v_cvt_pk_bf16_f32 v{o}, v{f}, v{f+1}")
            a.e(f"v_cvt_pk_bf16_f32 v{o+1}, v{f+2}, v{f+3}")
            a.vmem(f"buffer_store_dwordx2 {vr(o,2)}, v{8+rt}, s[48:51], 0 offen offset:{(t>>1)*1024 + (t&1)*512}", "st")
    a.stamp("end")
    a.dump_stamps()
    a.label("k1_exit")
    a.e("s_endpgm")


def ids_64x80(a):
    a.e("s_and_b32 s3, s2, 7")
    a.e("s_lshr_b32 s4, s2, 3")
    a.e("s_lshr_b32 s5, s3, 1")
    a.e("s_lshl_b32 s5, s5, 3")
    a.e("s_and_b32 s6, s4, 7")
    a.e("s_add_u32 s5, s5, s6")
    a.e("s_and_b32 s7, s3, 1")
    a.e("s_lshl_b32 s7, s7, 2")
    a.e("s_lshr_b32 s6, s4, 3")
    a.e("s_add_u32 s7, s7, s6")
    a.e("v_lshrrev_b32 v1, 6, v0")
    a.e("v_and_b32 v0, 63, v0")
    a.e("s_nop 0")
    a.e("v_readfirstlane_b32 s9, v1")
    a.e("v_and_b32 v2, 15, v0")
    a.e("v_lshrrev_b32 v3, 4, v0")
    a.e("v_lshlrev_b32 v7, 4, v0")


SLOT2 = 18432


def producer_setup_64x80(a, w_off, w_nks, a_off, a_rt_stride):
    a.e(f"s_mul_i32 s12, s7, {w_nks*5120}")
    a.e(f"s_add_u32 s12, s12, {hex(w_off)}")
    a.e("s_lshl_b32 s13, s5, 2")
    a.e(f"s_mul_i32 s13, s13, {a_rt_stride}")
    a.e(f"s_add_u32 s13, s13, {hex(a_off)}")
    for n in range(6):
        a.e("s_mul_i32 s14, s9, 6")
        a.e(f"s_add_u32 s14, s14, {n}")
        a.e("s_cmp_ge_u32 s14, 9")
        a.e("s_cselect_b32 s15, 1, 0")
        a.e("s_mul_i32 s10, s15, 9")
        a.e("s_sub_u32 s14, s14, s10")
        a.e("s_mul_i32 s10, s15, 5120")
        a.e("s_lshl_b32 s11, s14, 10")
        a.e("s_add_u32 s10, s10, s11")
        a.e("s_add_u32 s10, s10, s12")
        a.e("s_sub_u32 s11, s14, 5")
        a.e(f"s_mul_i32 s11, s11, {a_rt_stride}")
        a.e("s_lshl_b32 s15, s15, 10")
        a.e("s_add_u32 s11, s11, s15")
        a.e("s_add_u32 s11, s11, s13")
        a.e("s_movk_i32 s15, 2048")
        a.e("s_cmp_lt_u32 s14, 5")
        a.e("s_cselect_b32 s10, s10, s11")
        a.e("s_cselect_b32 s15, 10240, s15")
        a.e(f"v_add_u32 v{8+n}, s10, v7")
        a.e(f"v_mov_b32 v{14+n}, s15")
    a.e("s_mul_i32 s15, s9, 6144")


def rot_64x80(a, segs):
    a.e("s_and_b32 s68, s5, 7")
    a.e("s_lshl_b32 s68, s68, 2")
    a.e("s_and_b32 s69, s7, 3")
    a.e("s_add_u32 s68, s68, s69")


def seg_start(a, n, dst):
    a.e(f"s_mul_i32 {dst}, s68, {n}")
    a.e(f"s_lshr_b32 {dst}, {dst}, 5")


def mk_dma_64x80(a, nsl, srd, segs):
    bounds = {f: n for f, n in segs}

    def dma(c):
        sl = c % nsl
        if c in bounds:
            n = bounds[c]
            seg_start(a, n, "s69")
            for k in range(6):
                a.e(f"v_mul_lo_u32 v20, v{14+k}, s69")
                a.e(f"v_add_u32 v{8+k}, v{8+k}, v20")
        for n in range(6):
            a.e(f"s_add_u32 m0, s15, {sl*SLOT2 + n*1024}")
            a.e("s_nop 0")
            a.vmem(f"buffer_load_dwordx4 v{8+n}, {srd}, 0 offen lds", f"dma{c}")
        f, n = [(f, n) for f, n in segs if f <= c < f + n][0]
        last = (c == f + n - 1)
        a.e("s_add_u32 s69, s69, 1")
        a.e(f"s_cmp_ge_u32 s69, {n}")
        if not last:
            a.e(f"s_cselect_b32 s70, {1-n & 0xffffffff:#x}, 1")
            a.e("s_cselect_b32 s69, 0, s69")
        else:
            a.e(f"s_sub_u32 s70, {n+1}, s69")
        for k in range(6):
            a.e(f"v_mul_lo_u32 v20, v{14+k}, s70")
            a.e(f"v_add_u32 v{8+k}, v{8+k}, v20")
    return dma


def producer_addr(a, w_off, w_nks, w_ks0, a_off, a_rt_stride, a_ks0):
    a.e(f"s_mul_i32 s12, s7, {w_nks*5120}")
    a.e(f"s_add_u32 s12, s12, {hex(w_off + w_ks0*5120)}")
    a.e("s_lshl_b32 s13, s5, 2")
    a.e(f"s_mul_i32 s13, s13, {a_rt_stride}")
    a.e(f"s_add_u32 s13, s13, {hex(a_off + a_ks0*1024)}")
    for n in range(6):
        a.e("s_mul_i32 s14, s9, 6")
        a.e(f"s_add_u32 s14, s14, {n}")
        a.e("s_cmp_ge_u32 s14, 9")
        a.e("s_cselect_b32 s71, 1, 0")
        a.e("s_mul_i32 s10, s71, 9")
        a.e("s_sub_u32 s14, s14, s10")
        a.e("s_mul_i32 s10, s71, 5120")
        a.e("s_lshl_b32 s11, s14, 10")
        a.e("s_add_u32 s10, s10, s11")
        a.e("s_add_u32 s10, s10, s12")
        a.e("s_sub_u32 s11, s14, 5")
        a.e(f"s_mul_i32 s11, s11, {a_rt_stride}")
        a.e("s_lshl_b32 s71, s71, 10")
        a.e("s_add_u32 s11, s11, s71")
        a.e("s_add_u32 s11, s11, s13")
        a.e("s_movk_i32 s71, 2048")
        a.e("s_cmp_lt_u32 s14, 5")
        a.e("s_cselect_b32 s10, s10, s11")
        a.e("s_cselect_b32 s71, 10240, s71")
        a.e(f"v_add_u32 v{8+n}, s10, v7")
        a.e(f"v_mov_b32 v{14+n}, s71")


def mk_dma_seg(a, nsl, srd, segs):
    def dma(c):
        sl = c % nsl
        f, n, setup, flags = [sg for sg in segs if sg[0] <= c < sg[0] + sg[1]][0]
        if c == f:
            setup()
            seg_start(a, n, "s69")
            for k in range(6):
                a.e(f"v_mul_lo_u32 v20, v{14+k}, s69")
                a.e(f"v_add_u32 v{8+k}, v{8+k}, v20")
        for k in range(6):
            a.e(f"s_add_u32 m0, s15, {sl*SLOT2 + k*1024}")
            a.e("s_nop 0")
            a.vmem(f"buffer_load_dwordx4 v{8+k}, {srd}, 0 offen{flags} lds", f"dma{c}")
        if c != f + n - 1:
            a.e("s_add_u32 s69, s69, 1")
            a.e(f"s_cmp_ge_u32 s69, {n}")
            a.e(f"s_cselect_b32 s70, {1-n & 0xffffffff:#x}, 1")
            a.e("s_cselect_b32 s69, 0, s69")
            for k in range(6):
                a.e(f"v_mul_lo_u32 v20, v{14+k}, s70")
                a.e(f"v_add_u32 v{8+k}, v{8+k}, v20")
    return dma


def gen_k2(a):
    NSL = 7
    IMG = NSL * SLOT2
    a.label("k2_kernel")
    a.e("s_cmp_ge_u32 s2, 256")
    a.e("s_cbranch_scc1 k2_exit")
    a.stamp("start")
    prologue_kernargs(a)
    ids_64x80(a)
    a.e("s_cmp_ge_u32 s9, 4")
    a.e("s_cbranch_scc0 k2_cons")
    a.e("s_sub_u32 s9, s9, 4")
    a.e("s_mul_i32 s15, s9, 6144")
    a.e("s_lshl_b32 s10, s9, 6")
    a.e("v_add_u32 v30, s10, v0")
    a.e("s_lshl_b32 s10, s5, 7")
    a.e(f"s_add_u32 s10, s10, {hex(FLAG_OFF)}")
    a.e("v_mov_b32 v31, s10")
    a.e("s_waitcnt lgkmcnt(0)")
    make_srd(a, 48, P_WS, WS_USED)
    make_srd(a, 44, P_DBG, 256)
    for i in range(4):
        a.e(f"v_mov_b32 v{20+i}, 0")
    a.e("v_lshlrev_b32 v24, 4, v30")
    a.e(f"v_add_u32 v24, {IMG}, v24")
    for i in range(10):
        a.lds(f"ds_write_b128 v24, v[20:23] offset:{i*3072}", "Z")
    a.wait_lg_all()
    a.e("s_lshl_b32 s12, s7, 13")
    a.e(f"s_add_u32 s12, s12, {hex(PART_OFF)}")
    a.e("v_lshl_add_u32 v25, v30, 4, s12")
    PL = 64

    def p_issue(r):
        a.vmem(f"buffer_load_dwordx4 {vr(PL+r*4,4)}, v25, s[48:51], 0 offen offset:{r*3072 if r < 2 else 0}" if r < 2 else
               f"buffer_load_dwordx4 {vr(PL+r*4,4)}, v26, s[48:51], 0 offen", f"P{r}")

    a.e("v_add_u32 v26, 6144, v25")

    def p_proc(r):
        a.wait_vm(f"P{r}")
        b = PL + r * 4
        a.e(f"v_cvt_pk_bf16_f32 v32, v{b}, v{b+1}")
        a.e(f"v_cvt_pk_bf16_f32 v33, v{b+2}, v{b+3}")
        F, H_, RM, DD, E0, AD = 34, 35, 36, 37, 38, 39
        a.e(f"v_add_u32 v{F}, {192*r}, v30")
        a.e(f"v_mul_u32_u24 v{H_}, 625, v{F}")
        a.e(f"v_lshrrev_b32 v{H_}, 16, v{H_}")
        a.e(f"v_mul_u32_u24 v{RM}, 105, v{H_}")
        a.e(f"v_sub_u32 v{RM}, v{F}, v{RM}")
        a.e(f"v_mul_u32_u24 v{DD}, 13108, v{RM}")
        a.e(f"v_lshrrev_b32 v{DD}, 16, v{DD}")
        a.e(f"v_mul_u32_u24 v{E0}, 5, v{DD}")
        a.e(f"v_sub_u32 v{E0}, v{RM}, v{E0}")
        a.e(f"v_lshlrev_b32 v{E0}, 2, v{E0}")
        a.e(f"v_mul_u32_u24 v{H_}, 20, v{H_}")
        a.e(f"v_add_u32 v{AD}, v{H_}, v{E0}")
        a.e(f"v_mul_u32_u24 v{AD}, 192, v{AD}")
        a.e(f"v_add_u32 v40, v{H_}, v{DD}")
        a.e(f"v_lshl_add_u32 v{AD}, v40, 1, v{AD}")
        a.e(f"v_add_u32 v{AD}, {IMG}, v{AD}")
        a.e(f"v_cmp_gt_u32 vcc, 420, v{F}")
        a.e("s_mov_b64 s[60:61], vcc")
        a.e(f"v_cmp_gt_u32 s[62:63], 20, v{DD}")
        a.e(f"v_cmp_eq_u32 s[64:65], 20, v{DD}")
        a.e("s_and_b64 s[62:63], s[62:63], s[60:61]")
        a.e("s_and_b64 s[64:65], s[64:65], s[60:61]")
        a.e("v_lshrrev_b32 v41, 16, v32")
        a.e("v_lshrrev_b32 v42, 16, v33")
        a.e("s_mov_b64 s[66:67], exec")
        a.e("s_mov_b64 exec, s[62:63]")
        a.lds(f"ds_write_b16 v{AD}, v32", "S")
        a.lds(f"ds_write_b16 v{AD}, v41 offset:192", "S")
        a.lds(f"ds_write_b16 v{AD}, v33 offset:384", "S")
        a.lds(f"ds_write_b16 v{AD}, v42 offset:576", "S")
        a.e("s_mov_b64 exec, s[66:67]")
        a.e(f"v_mul_u32_u24 v{AD}, 192, v{H_}")
        a.e(f"v_add_u32 v40, v{H_}, v{E0}")
        a.e(f"v_lshl_add_u32 v{AD}, v40, 1, v{AD}")
        a.e(f"v_add_u32 v{AD}, {IMG+15360}, v{AD}")
        a.e("s_mov_b64 exec, s[64:65]")
        for ee in range(20):
            a.lds(f"ds_write_b64 v{AD}, v[32:33] offset:{192*ee}", "S")
        a.e("s_mov_b64 exec, s[66:67]")
        a.wait_lg_all()


    def phook(c):
        if c == 0:
            for r in range(3):
                p_issue(r)
        if c in (2, 3, 4):
            p_proc(c - 2)
        if c == 9:
            a.e("s_barrier")

    def setup_a():
        poll_counter(a, "s[48:51]", 31, 8, "k2_poll")
        producer_addr(a, W2F_OFF, 68, 0, 0, ACT_RT, 0)

    rot_64x80(a, None)
    segs = [(0, 10, lambda: producer_addr(a, WQF_OFF, 20, 0, XF_OFF, 20480, 0), ""),
            (10, 24, lambda: producer_addr(a, W2F_OFF, 68, 20, 0, ACT_RT, 20), ""),
            (34, 10, setup_a, " sc1")]
    producer_loop(a, 44, NSL, mk_dma_seg(a, NSL, "s[48:51]", segs), hook=phook)
    a.e("s_endpgm")

    a.label("k2_cons")
    a.vm = []
    a.lg = []
    a.e("s_lshl_b32 s10, s5, 2")
    a.e("s_add_u32 s10, s10, s9")
    a.e("s_lshl_b32 s11, s10, 4")
    a.e("v_add_u32 v4, s11, v2")
    a.e("v_lshlrev_b32 v6, 4, v3")
    a.e("s_lshl_b32 s12, s9, 10")
    a.e("s_add_u32 s12, s12, 5120")
    a.e("v_add_u32 v8, s12, v7")
    a.e("v_mov_b32 v9, v7")
    a.e("s_waitcnt lgkmcnt(0)")
    make_srd(a, 48, P_WS, WS_USED)
    make_srd(a, 52, P_GW, 1280)
    make_srd(a, 44, P_DBG, 256)
    make_srd(a, 40, P_B2, 1280)
    make_srd(a, 56, P_OUT, 2048 * 1280)
    GF = 112
    rot_64x80(a, None)
    seg_start(a, 10, "s69")
    for c in range(10):
        a.e("s_lshl_b32 s70, s69, 7")
        for ks in range(2):
            s_ = 2 * c + ks
            a.vmem(f"buffer_load_dwordx4 {vr(GF+s_*4,4)}, v6, s[52:55], s70 offen offset:{64*ks}", f"G{s_}")
        a.e("s_add_u32 s69, s69, 1")
        a.e("s_cmp_ge_u32 s69, 10")
        a.e("s_cselect_b32 s69, 0, s69")
    a.e("s_mul_i32 s12, s7, 160")
    a.e("v_lshl_add_u32 v28, v3, 3, s12")
    B2 = 240
    for t in range(5):
        a.vmem(f"buffer_load_dwordx2 {vr(B2+2*t,2)}, v28, s[40:43], 0 offen offset:{32*t}", "b2")
    ACC = 32
    WB = 64
    AB = 104
    GA = 56
    a.e(f"v_mov_b32 v{GA}, 0")

    def reads(s, t):
        ks = s % 2
        if t == 0:
            a.lds(f"ds_read_b128 {vr(AB+(s&1)*4,4)}, v8 offset:{ks*9216}", ("A", s, 0))
        a.lds(f"ds_read_b128 {vr(WB+((s&1)*5+t)*4,4)}, v9 offset:{ks*9216+t*1024}", ("R", s, t))

    def per_tile(s, t):
        if t == 0:
            a.wait_vm(f"G{s}")
        if t < 4:
            a.e(f"v_dot2_f32_bf16 v{GA}, v{AB+(s&1)*4+t}, v{GF+s*4+t}, v{GA}")

    bump = mk_bump(a, [8, 9], SLOT2, NSL)
    consumer_loop(a, 20, 2, 5, 1, lambda s, t: vr(WB + ((s & 1) * 5 + t) * 4, 4), lambda s, rt: vr(AB + (s & 1) * 4, 4),
                  lambda s, rt, t: vr(ACC + t * 4, 4), reads, bump, True, per_tile=per_tile,
                  stamps=(0, 8))
    a.stamp("loopdone")
    a.c("phase B epilogue")
    a.e(f"s_mov_b32 s58, {EPS}")
    phi_consts(a)
    PQ = 184
    T = 196
    a.nop(6)
    for t in range(5):
        phi_inplace(a, ACC + t * 4, T + (12 if t & 1 else 0), PQ + t * 2, PQ + t * 2 + 1, "s58")
    a.e(f"v_mov_b32 v{PQ+10}, 0")
    a.e(f"v_mov_b32 v{PQ+11}, 0")
    a.e("v_mul_u32_u24 v14, 192, v2")
    a.e("v_lshl_add_u32 v14, v3, 3, v14")
    a.e(f"v_add_u32 v14, {IMG}, v14")
    a.e("s_barrier")
    a.stamp("img")
    ju = [(0, 0), (1, 0), (1, 1), (2, 0), (2, 1), (3, 1), (3, 2), (4, 1), (4, 2)]
    KF = 112
    for n, (j, u) in enumerate(ju):
        for im in range(2):
            b = KF + im * 36 + n * 4
            off = im * 15360 + j * 16 * 192 + u * 64
            a.lds(f"ds_read_b64 {vr(b,2)}, v14 offset:{off}", ("F", n, im))
            a.lds(f"ds_read_b64 {vr(b+2,2)}, v14 offset:{off+32}", ("F", n, im))
    NUM = 64
    seen = set()
    for n, (j, u) in enumerate(ju):
        for im in range(2):
            d = vr(NUM + im * 20 + j * 4, 4)
            cin = d if (im, j) in seen else "0"
            seen.add((im, j))
            a.wait_lg(("F", n, im))
            a.e(f"v_mfma_f32_16x16x32_bf16 {d}, {vr(KF+im*36+n*4,4)}, {vr(PQ+u*4,4)}, {cin}")
    a.e(f"s_mul_i32 s12, s10, {ACT_RT}")
    a.e("s_mul_i32 s11, s7, 2560")
    a.e("s_add_u32 s12, s12, s11")
    a.e("v_lshrrev_b32 v14, 1, v3")
    a.e("v_lshl_add_u32 v14, v14, 4, v2")
    a.e("v_lshlrev_b32 v14, 4, v14")
    a.e("v_add_u32 v6, s12, v14")
    a.e("v_and_b32 v15, 1, v3")
    a.e("v_lshl_add_u32 v5, v15, 9, v6")
    a.nop(4)
    for j in range(5):
        n_ = NUM + j * 4
        d_ = NUM + 20 + j * 4
        p = T
        f = T + 4
        g = T + 8
        a.e(f"v_cvt_pk_bf16_f32 v{p}, v{n_}, v{n_+1}")
        a.e(f"v_cvt_pk_bf16_f32 v{p+1}, v{n_+2}, v{n_+3}")
        a.e(f"v_cvt_pk_bf16_f32 v{p+2}, v{d_}, v{d_+1}")
        a.e(f"v_cvt_pk_bf16_f32 v{p+3}, v{d_+2}, v{d_+3}")
        unpack(a, f, f + 1, p)
        unpack(a, f + 2, f + 3, p + 1)
        unpack(a, g, g + 1, p + 2)
        unpack(a, g + 2, g + 3, p + 3)
        a.e(f"v_pk_add_f32 {vr(g,2)}, {vr(g,2)}, s[64:65]")
        a.e(f"v_pk_add_f32 {vr(g+2,2)}, {vr(g+2,2)}, s[64:65]")
        a.e(f"v_cvt_pk_bf16_f32 v{p+2}, v{g}, v{g+1}")
        a.e(f"v_cvt_pk_bf16_f32 v{p+3}, v{g+2}, v{g+3}")
        unpack(a, g, g + 1, p + 2)
        unpack(a, g + 2, g + 3, p + 3)
        for i in range(4):
            a.e(f"v_rcp_f32 v{g+4+i}, v{g+i}")
        a.e("s_nop 0")
        for i in range(4):
            a.e(f"v_mul_f32 v{g+8+i}, v{f+i}, v{g+4+i}")
        for i in range(4):
            a.e(f"v_fma_f32 v{f+i}, -v{g+i}, v{g+8+i}, v{f+i}")
        for i in range(4):
            a.e(f"v_fma_f32 v{g+8+i}, v{f+i}, v{g+4+i}, v{g+8+i}")
        O = T + 24 + (j // 2) * 4
        if j < 4:
            o = O + (j & 1) * 2
            a.e(f"v_cvt_pk_bf16_f32 v{o}, v{g+8}, v{g+9}")
            a.e(f"v_cvt_pk_bf16_f32 v{o+1}, v{g+10}, v{g+11}")
        else:
            a.e(f"v_cvt_pk_bf16_f32 v{O}, v{g+8}, v{g+9}")
            a.e(f"v_cvt_pk_bf16_f32 v{O+1}, v{g+10}, v{g+11}")
            a.e(f"v_mov_b32 v{O+2}, v{O}")
            a.e(f"v_mov_b32 v{O+3}, v{O+1}")
        if j & 1 or j == 4:
            a.nop(2)
            a.e(f"v_permlane16_swap_b32 v{O}, v{O+2}")
            a.e(f"v_permlane16_swap_b32 v{O+1}, v{O+3}")
            a.nop(1)
            a.vmem(f"buffer_store_dwordx4 {vr(O,4)}, v{5 if j < 4 else 6}, s[48:51], 0 offen offset:{512*(j & ~1)} sc1", "st")
    a.e(f"v_mov_b32 v57, v{GA}")
    a.nop(2)
    a.e(f"v_permlane32_swap_b32 v57, v{GA}")
    a.nop(2)
    a.e(f"v_add_f32 v{GA}, v57, v{GA}")
    a.e(f"v_mov_b32 v57, v{GA}")
    a.nop(2)
    a.e(f"v_permlane16_swap_b32 v57, v{GA}")
    a.nop(2)
    a.e(f"v_add_f32 v{GA}, v57, v{GA}")
    a.e(f"v_cvt_pk_bf16_f32 v{GA}, v{GA}, v{GA}")
    a.e(f"v_lshlrev_b32 v{GA}, 16, v{GA}")
    a.e(f"v_mul_f32 v{GA}, 0xbfb8aa3b, v{GA}")
    a.e(f"v_exp_f32 v{GA}, v{GA}")
    a.e("s_nop 0")
    a.e(f"v_add_f32 v{GA}, 1.0, v{GA}")
    a.e(f"v_rcp_f32 v{GA}, v{GA}")
    a.e("s_nop 0")
    a.e(f"v_cvt_pk_bf16_f32 v{GA}, v{GA}, v{GA}")
    a.e(f"v_lshlrev_b32 v{GA}, 16, v{GA}")
    a.e(f"v_sub_f32 v57, 1.0, v{GA}")
    a.e("v_cvt_pk_bf16_f32 v57, v57, v57")
    a.e("v_lshlrev_b32 v57, 16, v57")
    a.wait_vm_all()
    a.stamp("pub")
    ACA = 16
    ACA = 112

    def reads_c(s, t):
        reads(s + 20, t)

    a.e("s_barrier")
    a.e("s_cmp_lg_u32 s9, 0")
    a.e("s_cbranch_scc1 k2_nopub")
    a.e("s_lshl_b32 s12, s5, 7")
    a.e(f"s_add_u32 s12, s12, {hex(FLAG_OFF)}")
    a.e("v_mov_b32 v58, s12")
    a.e("v_mov_b32 v59, 1")
    a.e("v_cmp_eq_u32 vcc, 0, v0")
    a.e("s_and_saveexec_b64 s[66:67], vcc")
    a.e("buffer_atomic_add v59, v58, s[48:51], 0 offen sc1")
    a.e("s_mov_b64 exec, s[66:67]")
    a.label("k2_nopub")
    bump(10)
    for t in range(5):
        reads(20, t)
    NK = 88
    for s in range(20, NK):
        if s in (28, 44, 68, 80):
            a.stamp(f"s{s}")
        if s + 1 < NK and (s + 1) % 2 == 0:
            a.e("s_barrier")
            bump((s + 1) // 2)
        for t in range(5):
            if s + 1 < NK:
                reads(s + 1, t)
            need = [("R", s, t)]
            if t == 0:
                need.append(("A", s, 0))
            a.wait_lg(need)
            d = vr(ACA + (20 if s < 68 else 0) + t * 4, 4)
            cin = "0" if s in (20, 68) else d
            a.e(f"v_mfma_f32_16x16x32_bf16 {d}, {vr(WB+((s&1)*5+t)*4,4)}, {vr(AB+(s&1)*4,4)}, {cin}")
    a.stamp("loopdone")
    a.c("final epilogue")
    a.e("v_mul_u32_u24 v5, 1280, v4")
    a.e("v_lshl_add_u32 v5, v3, 3, v5")
    a.e("s_mul_i32 s12, s7, 160")
    a.e("v_add_u32 v5, s12, v5")
    a.nop(6)
    T = 160
    for t in range(5):
        ca = ACA + t * 4
        cb = ACA + 20 + t * 4
        p = T
        fa = T + 4
        fb = T + 8
        bb = T + 12
        a.e(f"v_cvt_pk_bf16_f32 v{p}, v{ca}, v{ca+1}")
        a.e(f"v_cvt_pk_bf16_f32 v{p+1}, v{ca+2}, v{ca+3}")
        a.e(f"v_cvt_pk_bf16_f32 v{p+2}, v{cb}, v{cb+1}")
        a.e(f"v_cvt_pk_bf16_f32 v{p+3}, v{cb+2}, v{cb+3}")
        unpack(a, fa, fa + 1, p)
        unpack(a, fa + 2, fa + 3, p + 1)
        unpack(a, fb, fb + 1, p + 2)
        unpack(a, fb + 2, fb + 3, p + 3)
        unpack(a, bb, bb + 1, B2 + 2 * t)
        unpack(a, bb + 2, bb + 3, B2 + 2 * t + 1)
        a.e(f"v_pk_add_f32 {vr(fb,2)}, {vr(fb,2)}, {vr(bb,2)}")
        a.e(f"v_pk_add_f32 {vr(fb+2,2)}, {vr(fb+2,2)}, {vr(bb+2,2)}")
        for i in range(4):
            a.e(f"v_mul_f32 v{fa+i}, v{GA}, v{fa+i}")
        a.e(f"v_cvt_pk_bf16_f32 v{p+2}, v{fb}, v{fb+1}")
        a.e(f"v_cvt_pk_bf16_f32 v{p+3}, v{fb+2}, v{fb+3}")
        a.e(f"v_cvt_pk_bf16_f32 v{p}, v{fa}, v{fa+1}")
        a.e(f"v_cvt_pk_bf16_f32 v{p+1}, v{fa+2}, v{fa+3}")
        unpack(a, fb, fb + 1, p + 2)
        unpack(a, fb + 2, fb + 3, p + 3)
        unpack(a, fa, fa + 1, p)
        unpack(a, fa + 2, fa + 3, p + 1)
        for i in range(4):
            a.e(f"v_mul_f32 v{fb+i}, v57, v{fb+i}")
        a.e(f"v_cvt_pk_bf16_f32 v{p+2}, v{fb}, v{fb+1}")
        a.e(f"v_cvt_pk_bf16_f32 v{p+3}, v{fb+2}, v{fb+3}")
        unpack(a, fb, fb + 1, p + 2)
        unpack(a, fb + 2, fb + 3, p + 3)
        a.e(f"v_pk_add_f32 {vr(fa,2)}, {vr(fa,2)}, {vr(fb,2)}")
        a.e(f"v_pk_add_f32 {vr(fa+2,2)}, {vr(fa+2,2)}, {vr(fb+2,2)}")
        o = T + 20 + t * 2
        a.e(f"v_cvt_pk_bf16_f32 v{o}, v{fa}, v{fa+1}")
        a.e(f"v_cvt_pk_bf16_f32 v{o+1}, v{fa+2}, v{fa+3}")
        a.vmem(f"buffer_store_dwordx2 {vr(o,2)}, v5, s[56:59], 0 offen offset:{32*t}", "st")
    a.stamp("end")
    a.dump_stamps()
    a.label("k2_exit")
    a.e("s_endpgm")


HEADER = """; Kernarg layout for this problem (96 bytes, ptrs only, base s[0:1]):
; @launch kernel=k1_kernel grid=(256,1,1) block=(512,1,1) lds=163840
; @launch kernel=k2_kernel grid=(256,1,1) block=(448,1,1) lds=159744
.amdgcn_target "amdgcn-amd-amdhsa--gfx950"
.text
"""


def kd(name, vg, acc_off, sg=102):
    return f""".amdhsa_kernel {name}
  .amdhsa_next_free_vgpr {vg}
  .amdhsa_next_free_sgpr {sg}
  .amdhsa_accum_offset {acc_off}
  .amdhsa_group_segment_fixed_size 0
  .amdhsa_kernarg_size 96
  .amdhsa_user_sgpr_count 2
  .amdhsa_user_sgpr_kernarg_segment_ptr 1
  .amdhsa_system_sgpr_workgroup_id_x 1
.end_amdhsa_kernel
"""


def main():
    for i in range(1280):
        assert (i * 6554) >> 16 == i // 10
    for i in range(1792):
        assert (i * 1249) >> 19 == i // 420, i
    for i in range(420):
        assert (i * 3277) >> 16 == i // 20
    for i in range(576):
        assert (i * 625) >> 16 == i // 105, i
    for i in range(105):
        assert (i * 13108) >> 16 == i // 5
    for i in range(768):
        assert (i * 5462) >> 16 == i // 12
    for i in range(640):
        assert (i * 820) >> 16 == i // 80
    for i in range(2560):
        assert (i * 52429) >> 18 == i // 5
        assert (i * 52429) >> 20 == i // 20
    out = [HEADER]
    for nm, fn in (("k1_kernel", gen_k1), ("k2_kernel", gen_k2)):
        a = Asm()
        a.kid = int(nm[1])
        fn(a)
        out.append(f".globl {nm}\n.p2align 8\n.type {nm},@function\n" + "\n".join(a.lines) + "\n")
    out.append('.section .rodata,"a"\n')
    for nm in ("k1_kernel", "k2_kernel"):
        out.append(".p2align 6\n" + kd(nm, 256, 256))
    path = sys.argv[1] if len(sys.argv) > 1 else f"cdna_kernels/{NAME}.s"
    open(path, "w").write("".join(out))


if __name__ == "__main__":
    main()
```

```python
import sys
import os
sys.path.insert(0, os.path.dirname(os.path.abspath(__file__)))
from gen import (Asm, vr, ar, make_srd, prologue_kernargs, kperm_vgpr, unpack, LOG2E, NAME, kd,
                 P_X, P_WQKV, P_WO, P_BX, P_W1, P_B1, P_W2, P_B2, P_GW, P_OUT, P_DBG, P_WS,
                 ACT_RT, PART_OFF, XF_OFF, WQF_OFF, W2F_OFF, FLAG_OFF, WS_USED)

FAITH = int(os.environ.get("FAITH", "1"))
NOREPACK = int(os.environ.get("NOREPACK", "0"))
RP_ISSUE = int(os.environ.get("RP_ISSUE", "1"))
RP_STORE = int(os.environ.get("RP_STORE", "5"))

ACT_OFF = 4096
SLOT1 = 20480
NSL1 = 8
SLOT2 = 18432
NSL2 = 7
IMG = NSL2 * SLOT2
GWL = IMG + 30720
SCR = 90112
F_RW = FLAG_OFF
F_KV = FLAG_OFF + 128 * 8
F_H = FLAG_OFF + 128 * 16
F_O = FLAG_OFF + 128 * 32
F_RX = FLAG_OFF + 128 * 64

S_XCD, S_J, S_RBA, S_CBA, S_COLA, S_PAR, S_W = 3, 4, 5, 6, 7, 8, 9
S_RB, S_CB = 74, 75
SRD_X, SRD_W, SRD_WS, SRD_T = 40, 44, 48, 64


def s4(b):
    return f"s[{b}:{b+3}]"


def poll(a, srd, voff, target, lab, tmp=21, sleep=4):
    a.label(lab)
    a.e(f"buffer_load_dword v{tmp}, v{voff}, {srd}, 0 offen sc1")
    a.e("s_waitcnt vmcnt(0)")
    a.vm = []
    a.e(f"v_readfirstlane_b32 s72, v{tmp}")
    a.e(f"s_cmp_ge_u32 s72, {target}")
    a.e(f"s_cbranch_scc1 {lab}_done")
    a.e(f"s_sleep {sleep}")
    a.e(f"s_branch {lab}")
    a.label(lab + "_done")


def flag_add(a, srd, saddr, v0t=58):
    a.e(f"v_mov_b32 v{v0t}, {saddr}")
    a.e(f"v_mov_b32 v{v0t+1}, 1")
    a.e("s_mov_b64 exec, 1")
    a.e(f"buffer_atomic_add v{v0t+1}, v{v0t}, {srd}, 0 offen sc1")
    a.e("s_mov_b64 exec, -1")


def gen(a):
    a.label("fused_kernel")
    a.e("s_cmp_ge_u32 s2, 256")
    a.e("s_cbranch_scc1 f_exit")
    a.stamp("start")
    prologue_kernargs(a)
    a.e("s_and_b32 s3, s2, 7")
    a.e("s_lshr_b32 s4, s2, 3")
    a.e("s_lshr_b32 s5, s3, 2")
    a.e("s_lshl_b32 s5, s5, 3")
    a.e("s_and_b32 s6, s4, 7")
    a.e("s_add_u32 s5, s5, s6")
    a.e("s_lshr_b32 s6, s4, 3")
    a.e("s_and_b32 s7, s3, 3")
    a.e("s_lshl_b32 s7, s7, 1")
    a.e("s_and_b32 s8, s6, 1")
    a.e("s_add_u32 s7, s7, s8")
    a.e("s_and_b32 s8, s7, 1")
    a.e(f"s_lshr_b32 s{S_RB}, s3, 1")
    a.e(f"s_lshl_b32 s{S_RB}, s{S_RB}, 3")
    a.e("s_and_b32 s10, s4, 7")
    a.e(f"s_add_u32 s{S_RB}, s{S_RB}, s10")
    a.e(f"s_and_b32 s{S_CB}, s3, 1")
    a.e(f"s_lshl_b32 s{S_CB}, s{S_CB}, 2")
    a.e(f"s_add_u32 s{S_CB}, s{S_CB}, s6")
    a.e("v_lshrrev_b32 v1, 6, v0")
    a.e("v_and_b32 v0, 63, v0")
    a.e("s_nop 0")
    a.e("v_readfirstlane_b32 s9, v1")
    a.e("v_and_b32 v2, 15, v0")
    a.e("v_lshrrev_b32 v3, 4, v0")
    a.e("v_lshlrev_b32 v7, 4, v0")
    a.e(f"s_and_b32 s73, s{S_RB}, 7")
    a.e("s_lshl_b32 s73, s73, 2")
    a.e(f"s_and_b32 s10, s{S_CB}, 3")
    a.e("s_add_u32 s73, s73, s10")
    a.e("s_waitcnt lgkmcnt(0)")
    make_srd(a, SRD_X, P_X, 2048 * 1280)
    make_srd(a, SRD_WS, P_WS, WS_USED)
    a.e("s_cmp_ge_u32 s9, 4")
    a.e("s_cbranch_scc0 f_cons")
    gen_producers(a)
    a.label("f_cons")
    a.vm = []
    a.lg = []
    gen_consumers(a)
    a.label("f_exit")
    a.e("s_endpgm")


def gen_producers(a):
    a.e("s_sub_u32 s9, s9, 4")
    a.e("s_lshl_b32 s10, s5, 7")
    a.e("s_lshl_b32 s11, s9, 5")
    a.e("s_add_u32 s10, s10, s11")
    a.e("v_lshrrev_b32 v14, 2, v0")
    a.e("v_add_u32 v15, s10, v14")
    a.e("v_mul_u32_u24 v15, 1280, v15")
    a.e("v_lshrrev_b32 v14, 5, v0")
    a.e("v_mul_u32_u24 v14, 3, v14")
    a.e("v_and_b32 v16, 3, v0")
    a.e("v_xor_b32 v16, v16, v14")
    a.e("v_lshl_add_u32 v5, v16, 4, v15")
    a.e(f"v_add_u32 v6, {16*1280 - 1024}, v5")
    a.e("s_lshl_b32 s14, s9, 11")
    a.e("s_mul_i32 s15, s9, 3072")
    a.e("s_add_u32 s15, s15, 8192")
    a.e("s_and_b32 s68, s5, 7")
    a.e("s_mul_i32 s68, s68, 5")
    a.e("s_lshr_b32 s68, s68, 1")
    a.e("s_mul_i32 s69, s6, 5")
    a.e("s_add_u32 s68, s68, s69")
    a.e("s_add_u32 s68, s68, s3")
    for _ in range(2):
        a.e("s_cmp_ge_u32 s68, 20")
        a.e("s_cselect_b32 s69, 20, 0")
        a.e("s_sub_u32 s68, s68, s69")
    a.e("s_add_u32 s10, s2, s9")
    a.e("s_cmp_lg_u32 s10, 0")
    a.e("s_cbranch_scc1 fp_noflag")
    make_srd(a, SRD_T, P_DBG, 256)
    a.e("v_lshlrev_b32 v24, 7, v0")
    a.e(f"v_add_u32 v24, {hex(FLAG_OFF)}, v24")
    a.e("v_mov_b32 v25, 0")
    a.e(f"buffer_store_dword v25, v24, {s4(SRD_WS)}, 0 offen sc1")
    a.e("v_add_u32 v24, 8192, v24")
    a.e(f"buffer_store_dword v25, v24, {s4(SRD_WS)}, 0 offen sc1")
    a.e("s_waitcnt vmcnt(0)")
    a.e("s_mov_b32 s10, 32")
    flag_add(a, s4(SRD_T), "s10", 24)
    a.e("s_waitcnt vmcnt(0)")
    a.label("fp_noflag")

    def dma_a(c):
        sl = (c + 4) % NSL1
        a.e("s_lshl_b32 s52, s68, 6")
        a.e(f"s_add_u32 m0, s14, {sl*SLOT1}")
        a.e("s_nop 0")
        a.vmem(f"buffer_load_dwordx4 v5, {s4(SRD_X)}, s52 offen lds", f"dma{c}")
        a.vmem(f"buffer_load_dwordx4 v6, {s4(SRD_X)}, s52 offen offset:1024 lds", f"dma{c}")

    def adv_k():
        a.e("s_add_u32 s68, s68, 1")
        a.e("s_cmp_ge_u32 s68, 20")
        a.e("s_cselect_b32 s68, 0, s68")

    def loop_a(dma, tag):
        issued = 0
        while issued < 3:
            dma(issued)
            issued += 1
        for c in range(20):
            a.wait_vm(f"dma{c}")
            a.e("s_barrier")
            k = 0
            while issued < min(20, c + NSL1 - 1) and k < 2:
                dma(issued)
                issued += 1
                k += 1
            if c == 14:
                a.e(f"s_lshl_b32 s10, s{S_CB}, 7")
                a.e(f"s_add_u32 s10, s10, {hex(F_RW)}")
                a.e("v_mov_b32 v40, s10")
                a.e(f"s_lshl_b32 s10, s{S_RB}, 7")
                a.e(f"s_add_u32 s10, s10, {hex(F_RX)}")
                a.e("v_mov_b32 v41, s10")
            if c == 16:
                a.vmem(f"buffer_load_dword v42, v40, {s4(SRD_WS)}, 0 offen sc1", "pp0")
                a.vmem(f"buffer_load_dword v43, v41, {s4(SRD_WS)}, 0 offen sc1", "pp0")
            if c == 17:
                assert issued == 20
                a.e(f"s_branch fp_tail") if tag == "kv" else None
                return

    a.e("s_cmp_ge_u32 s6, 2")
    a.e("s_cbranch_scc1 fp_h")
    make_srd(a, SRD_W, P_WQKV, 640 * 3840)
    a.e("s_and_b32 s12, s9, 1")
    a.e("s_mul_i32 s12, s12, 192")
    a.e("s_lshr_b32 s13, s9, 1")
    a.e("s_mul_i32 s10, s7, 160")
    a.e("s_lshl_b32 s11, s8, 5")
    a.e("s_sub_u32 s10, s10, s11")
    a.e("s_mul_i32 s11, s13, 1280")
    a.e("s_add_u32 s10, s10, s11")
    a.e("s_add_u32 s10, s10, 1280")
    for n in range(3):
        d = 8 + n
        a.e("v_add_u32 v19, s12, v0")
        if n:
            a.e(f"v_add_u32 v19, {64*n}, v19")
        a.e("v_mul_u32_u24 v20, 5462, v19")
        a.e("v_lshrrev_b32 v20, 16, v20")
        a.e("v_mul_u32_u24 v21, 12, v20")
        a.e("v_sub_u32 v19, v19, v21")
        a.e("v_bfe_u32 v21, v20, 2, 1")
        a.e("v_lshlrev_b32 v21, 1, v21")
        a.e("v_xor_b32 v19, v19, v21")
        kperm_vgpr(a, 21, 20, 22, 23)
        a.e("v_mul_u32_u24 v21, 3840, v21")
        a.e(f"v_lshl_add_u32 v{d}, v19, 4, v21")
        a.e(f"v_add_u32 v{d}, s10, v{d}")
        if n:
            a.e(f"v_subrev_u32 v{d}, {1024*n}, v{d}")
    a.e("s_cmp_lg_u32 s5, 0")
    a.e("s_cbranch_scc1 fp_nozero")
    make_srd(a, SRD_T, P_DBG, 256)
    a.e("s_lshl_b32 s10, s7, 13")
    a.e("s_lshl_b32 s11, s9, 11")
    a.e("s_add_u32 s10, s10, s11")
    a.e(f"s_add_u32 s10, s10, {hex(PART_OFF)}")
    a.e("v_lshl_add_u32 v24, v0, 4, s10")
    for i in range(4):
        a.e(f"v_mov_b32 v{28+i}, 0")
    a.e(f"buffer_store_dwordx4 v[28:31], v24, {s4(SRD_WS)}, 0 offen sc1")
    a.e(f"buffer_store_dwordx4 v[28:31], v24, {s4(SRD_WS)}, 0 offen offset:1024 sc1")
    a.e("s_waitcnt vmcnt(0)")
    a.e("s_lshl_b32 s10, s7, 2")
    flag_add(a, s4(SRD_T), "s10", 24)
    a.e("s_waitcnt vmcnt(0)")
    a.label("fp_nozero")

    def dma_kv(c):
        dma_a(c)
        sl = (c + 4) % NSL1
        a.e(f"s_mul_i32 s52, s68, {32*3840}")
        a.e(f"s_add_u32 m0, s15, {sl*SLOT1}")
        adv_k()
        for n in range(3):
            a.vmem(f"buffer_load_dwordx4 v{8+n}, {s4(SRD_W)}, s52 offen offset:{1024*n} lds", f"dma{c}")

    loop_a(dma_kv, "kv")
    vm_after = list(a.vm)
    a.label("fp_h")
    a.vm = []
    make_srd(a, SRD_W, P_W1, 640 * 3072)
    a.e("v_lshrrev_b32 v14, 3, v0")
    a.e("v_and_b32 v15, 3, v14")
    a.e("v_lshrrev_b32 v16, 2, v14")
    a.e("v_lshl_add_u32 v15, v16, 3, v15")
    a.e("v_mul_u32_u24 v8, 3072, v15")
    a.e("v_bfe_u32 v15, v0, 1, 2")
    a.e("v_lshrrev_b32 v16, 1, v14")
    a.e("v_xor_b32 v15, v15, v16")
    a.e("v_lshl_add_u32 v8, v15, 5, v8")
    a.e("v_and_b32 v15, 1, v0")
    a.e("v_lshl_add_u32 v8, v15, 4, v8")
    a.e("s_and_b32 s12, s9, 1")
    a.e("s_lshl_b32 s12, s12, 4")
    a.e("s_lshr_b32 s13, s9, 1")
    a.e("s_lshl_b32 s13, s13, 2")
    a.e("s_add_u32 s12, s12, s13")
    a.e("s_mul_i32 s12, s12, 3072")
    a.e("s_mul_i32 s13, s7, 384")
    a.e("s_add_u32 s12, s12, s13")
    a.e("v_add_u32 v8, s12, v8")

    def dma_h(c):
        dma_a(c)
        sl = (c + 4) % NSL1
        a.e(f"s_mul_i32 s52, s68, {32*3072}")
        for cbk in range(3):
            a.e(f"s_add_u32 m0, s15, {sl*SLOT1 + cbk*1024}")
            if cbk == 0:
                adv_k()
            else:
                a.e("s_add_u32 s52, s52, 128")
            a.vmem(f"buffer_load_dwordx4 v8, {s4(SRD_W)}, s52 offen lds", f"dma{c}")

    loop_a(dma_h, "h")
    assert a.vm == vm_after
    a.label("fp_tail")
    a.e("s_cmp_eq_u32 s9, 3")
    a.e("s_cbranch_scc1 fp_helper")

    def seg_setup(w_off, w_nks, w_ks0, a_off, a_rts, a_ks0, nchunks):
        a.e(f"s_mul_i32 s69, s73, {nchunks}")
        a.e("s_lshr_b32 s69, s69, 5")
        a.e(f"s_mul_i32 s60, s{S_CB}, {w_nks*5120}")
        a.e(f"s_add_u32 s60, s60, {hex(w_off + w_ks0*5120)}")
        a.e(f"s_lshl_b32 s61, s{S_RB}, 2")
        a.e(f"s_mul_i32 s61, s61, {a_rts}")
        a.e(f"s_add_u32 s61, s61, {hex(a_off + a_ks0*1024)}")
        for n in range(6):
            a.e("s_mul_i32 s10, s9, 6")
            a.e(f"s_add_u32 s10, s10, {n}")
            a.e("s_cmp_ge_u32 s10, 9")
            a.e("s_cselect_b32 s11, 1, 0")
            a.e("s_mul_i32 s12, s11, 9")
            a.e("s_sub_u32 s10, s10, s12")
            a.e("s_mul_i32 s12, s11, 5120")
            a.e("s_lshl_b32 s13, s10, 10")
            a.e("s_add_u32 s12, s12, s13")
            a.e("s_add_u32 s12, s12, s60")
            a.e("s_sub_u32 s13, s10, 5")
            a.e(f"s_mul_i32 s13, s13, {a_rts}")
            a.e("s_lshl_b32 s11, s11, 10")
            a.e("s_add_u32 s13, s13, s11")
            a.e("s_add_u32 s13, s13, s61")
            a.e("s_movk_i32 s11, 2048")
            a.e("s_cmp_lt_u32 s10, 5")
            a.e("s_cselect_b32 s12, s12, s13")
            a.e(f"s_cselect_b32 s{54+n}, 10240, s11")
            if n & 3:
                a.e(f"s_sub_u32 s12, s12, {(n & 3)*1024}")
            a.e(f"v_add_u32 v{8+n}, s12, v7")

    segs = [(0, 10), (10, 24), (34, 10)]

    def check(tag, vval, vaddr, target, lab):
        a.wait_vm(tag)
        a.e(f"v_readfirstlane_b32 s72, v{vval}")
        a.e(f"s_cmp_ge_u32 s72, {target}")
        a.e(f"s_cbranch_scc1 {lab}_done")
        vm = list(a.vm)
        poll(a, s4(SRD_WS), vaddr, target, lab, sleep=8)
        a.vm = vm

    def dma2(c):
        sl = c % NSL2
        f, n = [sg for sg in segs if sg[0] <= c < sg[0] + sg[1]][0]
        if c == 0:
            check("pp0", 42, 40, 32, "fp_prw")
            check("pp0", 43, 41, 8, "fp_prx")
            seg_setup(WQF_OFF, 20, 0, XF_OFF, 20480, 0, 10)
        if c == 8:
            a.e(f"s_lshr_b32 s10, s{S_RB}, 1")
            a.e("s_lshl_b32 s10, s10, 7")
            a.e(f"s_add_u32 s10, s10, {hex(F_H)}")
            a.e("v_mov_b32 v40, s10")
            a.vmem(f"buffer_load_dword v42, v40, {s4(SRD_WS)}, 0 offen sc1", "pp1")
        if c == 10:
            check("pp1", 42, 40, 8, "fp_ph")
            seg_setup(W2F_OFF, 68, 20, ACT_OFF, ACT_RT, 20, 24)
        if c == 32:
            a.e(f"s_lshl_b32 s10, s{S_RB}, 7")
            a.e(f"s_add_u32 s10, s10, {hex(F_O)}")
            a.e("v_mov_b32 v40, s10")
            a.vmem(f"buffer_load_dword v42, v40, {s4(SRD_WS)}, 0 offen sc1", "pp2")
        if c == 34:
            check("pp2", 42, 40, 8, "fp_po")
            seg_setup(W2F_OFF, 68, 0, ACT_OFF, ACT_RT, 0, 10)
        a.e(f"s_add_u32 m0, s15, {sl*SLOT2}")
        for k in range(6):
            a.e(f"s_mul_i32 s{60+k}, s69, s{54+k}")
        for k in range(4):
            a.vmem(f"buffer_load_dwordx4 v{8+k}, {s4(SRD_WS)}, s{60+k} offen offset:{k*1024} sc1 lds", f"d2{c}")
        a.e(f"s_add_u32 m0, s15, {sl*SLOT2 + 4096}")
        a.e("s_add_u32 s69, s69, 1")
        for k in range(4, 6):
            a.vmem(f"buffer_load_dwordx4 v{8+k}, {s4(SRD_WS)}, s{60+k} offen offset:{(k-4)*1024} sc1 lds", f"d2{c}")
        a.e(f"s_cmp_ge_u32 s69, {n}")
        a.e("s_cselect_b32 s69, 0, s69")

    a.e("s_mul_i32 s15, s9, 6144")
    vm_keep = list(a.vm)
    dma2(0)
    dma2(1)
    a.wait_vm("dma18")
    a.e("s_barrier")
    dma2(2)
    dma2(3)
    a.wait_vm("dma19")
    a.e("s_barrier")
    a.e("s_barrier")
    a.e("s_barrier")
    a.e("s_barrier")
    dma2(4)
    dma2(5)
    issued = 6
    for c in range(44):
        a.wait_vm(f"d2{c}")
        a.e("s_barrier")
        if issued < 44:
            dma2(issued)
            issued += 1
        if c == 9:
            a.e("s_barrier")
    a.e("s_endpgm")

    a.label("fp_helper")
    a.vm = vm_keep
    a.lg = []
    a.wait_vm("dma18")
    a.e("s_barrier")
    a.wait_vm("dma19")
    a.e("s_barrier")
    a.e("s_barrier")
    a.e("s_barrier")
    a.e("s_barrier")
    for i in range(4):
        a.e(f"v_mov_b32 v{20+i}, 0")
    a.e(f"v_add_u32 v24, {IMG}, v7")
    for i in range(30):
        a.lds(f"ds_write_b128 v24, v[20:23] offset:{i*1024}", "Z")
    a.e(f"s_lshl_b32 s10, s{S_CB}, 7")
    a.e(f"s_add_u32 s10, s10, {hex(F_KV)}")
    a.e("v_mov_b32 v26, s10")
    a.e(f"s_lshl_b32 s12, s{S_CB}, 13")
    a.e(f"s_add_u32 s12, s12, {hex(PART_OFF)}")
    a.e("v_add_u32 v25, s12, v7")
    make_srd(a, SRD_T, P_GW, 1280)
    a.e(f"s_mov_b32 m0, {GWL}")
    a.e("s_nop 0")
    a.e(f"buffer_load_dwordx4 v7, {s4(SRD_T)}, 0 offen lds")
    a.e(f"buffer_load_dwordx4 v7, {s4(SRD_T)}, 0 offen offset:1024 lds")
    a.e("s_mov_b32 s60, 0")
    a.e("s_mov_b32 s61, 0")
    a.e("v_mov_b32 v30, v0")
    a.e("s_waitcnt vmcnt(0) lgkmcnt(0)")
    a.lg = []
    a.label("fh_wait")
    a.e(f"buffer_load_dword v21, v26, {s4(SRD_WS)}, 0 offen sc1")
    a.e("s_cmp_ge_u32 s60, 10")
    a.e("s_cbranch_scc1 fh_nobar0")
    a.e("s_barrier")
    a.e("s_add_u32 s60, s60, 1")
    a.label("fh_nobar0")
    a.e("s_waitcnt vmcnt(0)")
    a.e("v_readfirstlane_b32 s72, v21")
    a.e("s_cmp_ge_u32 s72, 16")
    a.e("s_cbranch_scc0 fh_wait")
    for r in range(7):
        a.e(f"buffer_load_dwordx4 {vr(64+4*r,4)}, v25, {s4(SRD_WS)}, 0 offen" + (f" offset:{1024*r}" if r < 4 else "") + " sc1")
        if r == 3:
            a.e("v_add_u32 v25, 4096, v25")
        if r >= 4:
            a.e("v_add_u32 v25, 1024, v25")
    a.label("fh_loop")
    a.e("s_cmp_ge_u32 s60, 10")
    a.e("s_cbranch_scc1 fh_round")
    a.e("s_barrier")
    a.e("s_add_u32 s60, s60, 1")
    a.label("fh_round")
    F, H_, RM, DD, E0, AD = 30, 35, 36, 37, 38, 39
    a.e(f"v_mul_u32_u24 v{H_}, 625, v{F}")
    a.e(f"v_lshrrev_b32 v{H_}, 16, v{H_}")
    a.e(f"v_mul_u32_u24 v{RM}, 105, v{H_}")
    a.e(f"v_sub_u32 v{RM}, v{F}, v{RM}")
    a.e(f"v_mul_u32_u24 v{DD}, 13108, v{RM}")
    a.e(f"v_lshrrev_b32 v{DD}, 16, v{DD}")
    a.e(f"v_mul_u32_u24 v{E0}, 5, v{DD}")
    a.e(f"v_sub_u32 v{E0}, v{RM}, v{E0}")
    a.e(f"v_lshlrev_b32 v{E0}, 2, v{E0}")
    a.e(f"v_mul_u32_u24 v{H_}, 20, v{H_}")
    a.e(f"v_add_u32 v{AD}, v{H_}, v{E0}")
    a.e(f"v_mul_u32_u24 v{AD}, 192, v{AD}")
    a.e(f"v_add_u32 v40, v{H_}, v{DD}")
    a.e(f"v_lshl_add_u32 v{AD}, v40, 1, v{AD}")
    a.e(f"v_add_u32 v{AD}, {IMG}, v{AD}")
    a.e(f"v_mul_u32_u24 v43, 192, v{H_}")
    a.e(f"v_add_u32 v40, v{H_}, v{E0}")
    a.e(f"v_lshl_add_u32 v43, v40, 1, v43")
    a.e(f"v_add_u32 v43, {IMG+15360}, v43")
    a.e(f"v_cmp_gt_u32 vcc, 420, v{F}")
    a.e("s_mov_b64 s[56:57], vcc")
    a.e(f"v_cmp_gt_u32 s[52:53], 20, v{DD}")
    a.e(f"v_cmp_eq_u32 s[54:55], 20, v{DD}")
    a.e("s_and_b64 s[52:53], s[52:53], s[56:57]")
    a.e("s_and_b64 s[54:55], s[54:55], s[56:57]")
    a.e("s_waitcnt vmcnt(0)")
    a.e("v_cvt_pk_bf16_f32 v32, v64, v65")
    a.e("v_cvt_pk_bf16_f32 v33, v66, v67")
    for k in range(24):
        a.e(f"v_mov_b32 v{64+k}, v{68+k}")
    a.e("v_lshrrev_b32 v41, 16, v32")
    a.e("v_lshrrev_b32 v42, 16, v33")
    a.e("s_mov_b64 s[66:67], exec")
    a.e("s_mov_b64 exec, s[52:53]")
    a.e(f"ds_write_b16 v{AD}, v32")
    a.e(f"ds_write_b16 v{AD}, v41 offset:192")
    a.e(f"ds_write_b16 v{AD}, v33 offset:384")
    a.e(f"ds_write_b16 v{AD}, v42 offset:576")
    a.e("s_mov_b64 exec, s[54:55]")
    a.e("s_cbranch_execz fh_noz")
    for ee in range(20):
        a.e(f"ds_write_b64 v43, v[32:33] offset:{192*ee}")
    a.label("fh_noz")
    a.e("s_mov_b64 exec, s[66:67]")
    a.e(f"v_add_u32 v{F}, 64, v{F}")
    a.e("s_add_u32 s61, s61, 1")
    a.e("s_cmp_lt_u32 s61, 7")
    a.e("s_cbranch_scc1 fh_loop")
    a.e("s_waitcnt lgkmcnt(0)")
    a.label("fh_rest")
    a.e("s_cmp_ge_u32 s60, 10")
    a.e("s_cbranch_scc1 fh_bi")
    a.e("s_barrier")
    a.e("s_add_u32 s60, s60, 1")
    a.e("s_branch fh_rest")
    a.label("fh_bi")
    a.e("s_barrier")
    a.e("s_endpgm")


def repack_issue(a):
    for i in range(4):
        a.e("s_lshl_b32 s54, s9, 2")
        a.e(f"s_add_u32 s54, s54, {i}")
        a.e("s_min_u32 s54, s54, 13")
        a.e(f"s_mul_i32 s55, s{S_RB}, 14")
        a.e("s_add_u32 s54, s54, s55")
        a.e("s_min_u32 s54, s54, 439")
        a.e("s_lshl_b32 s54, s54, 2")
        a.e("s_movk_i32 s57, 1280")
        a.e(f"s_mov_b32 s59, {hex(W2F_OFF)}")
        a.e(f"s_mov_b32 s66, {hex(640*1280)}")
        a.e("s_cmp_lt_u32 s54, 400")
        a.e(f"s_cselect_b32 s64, s{P_WQKV}, s{P_WO}")
        a.e(f"s_cselect_b32 s65, s{P_WQKV+1}, s{P_WO+1}")
        a.e("s_cselect_b32 s57, 3840, s57")
        a.e("s_cselect_b32 s58, 0, 80")
        a.e(f"s_cselect_b32 s59, {hex(WQF_OFF)}, s59")
        a.e("s_cselect_b32 s60, 20, 68")
        a.e("s_cselect_b32 s61, 0, 80")
        a.e(f"s_cselect_b32 s66, {hex(640*3840)}, s66")
        a.e("s_cmp_lt_u32 s54, 800")
        a.e(f"s_cselect_b32 s64, s64, s{P_W2}")
        a.e(f"s_cselect_b32 s65, s65, s{P_W2+1}")
        a.e("s_cselect_b32 s58, s58, 160")
        a.e(f"s_cselect_b32 s66, s66, {hex(1536*1280)}")
        a.e("s_and_b32 s65, s65, 0xffff")
        a.e("s_mov_b32 s67, 0x00020000")
        a.e("v_add_u32 v252, s54, v3")
        a.e("v_mul_u32_u24 v253, 13108, v252")
        a.e("v_lshrrev_b32 v253, 16, v253")
        a.e("v_mul_u32_u24 v254, 5, v253")
        a.e("v_sub_u32 v254, v252, v254")
        a.e("v_subrev_u32 v255, s58, v253")
        a.e("v_lshlrev_b32 v255, 3, v255")
        a.e("v_mul_lo_u32 v255, v255, s57")
        a.e(f"s_mul_i32 s62, s{S_CB}, 160")
        a.e("v_lshl_add_u32 v255, v254, 5, v255")
        a.e("v_lshrrev_b32 v29, 1, v2")
        a.e("v_lshl_add_u32 v255, v29, 2, v255")
        a.e("v_add_u32 v255, s62, v255")
        for r in range(8):
            a.e(f"s_mul_i32 s62, s57, {r}")
            a.vmem(f"buffer_load_dword v{208+8*i+r}, v255, s[64:67], s62 offen", "side")
        a.e("v_subrev_u32 v253, s61, v253")
        a.e("v_lshrrev_b32 v29, 2, v253")
        a.e(f"s_mul_i32 s62, s{S_CB}, s60")
        a.e("v_add_u32 v29, s62, v29")
        a.e("v_mul_u32_u24 v29, 5, v29")
        a.e("v_add_u32 v29, v29, v254")
        a.e("v_lshlrev_b32 v29, 10, v29")
        a.e("v_and_b32 v253, 3, v253")
        a.e("v_lshl_add_u32 v29, v253, 8, v29")
        a.e("v_lshl_add_u32 v29, v2, 4, v29")
        a.e(f"v_add_u32 v{8+i}, s59, v29")
    a.e("v_mul_u32_u24 v30, 1280, v2")
    a.e("v_lshl_add_u32 v30, v3, 4, v30")
    for i in range(3):
        a.e("s_mul_i32 s54, s9, 3")
        a.e(f"s_add_u32 s54, s54, {i}")
        a.e("s_min_u32 s54, s54, 9")
        a.e(f"s_mul_i32 s55, s{S_CB}, 10")
        a.e("s_add_u32 s54, s54, s55")
        a.e(f"s_mul_i32 s55, s{S_RB}, 80")
        a.e("s_add_u32 s54, s54, s55")
        a.e("s_mul_i32 s55, s54, 52429")
        a.e("s_lshr_b32 s55, s55, 20")
        a.e("s_mul_i32 s56, s55, 20")
        a.e("s_sub_u32 s56, s54, s56")
        a.e("s_mul_i32 s55, s55, 20480")
        a.e("s_lshl_b32 s56, s56, 6")
        a.e("s_add_u32 s55, s55, s56")
        a.vmem(f"buffer_load_dwordx4 {vr(240+4*i,4)}, v30, {s4(SRD_X)}, s55 offen", "side")
        a.e("s_lshl_b32 s54, s54, 10")
        a.e(f"s_add_u32 s54, s54, {hex(XF_OFF)}")
        a.e(f"v_lshl_add_u32 v{(12,13,27)[i]}, v0, 4, s54")
    a.e("v_and_b32 v28, 1, v0")
    a.e("s_mov_b32 s54, 0x02020202")
    a.e("v_mul_lo_u32 v28, v28, s54")
    a.e("v_add_u32 v28, 0x05040100, v28")


def repack_store(a):
    a.wait_vm("side")
    for i in range(4):
        b = 208 + 8 * i
        for j in range(4):
            a.e(f"v_perm_b32 v{252+j}, v{b+2*j+1}, v{b+2*j}, v28")
        a.vmem(f"buffer_store_dwordx4 v[252:255], v{8+i}, {s4(SRD_WS)}, 0 offen sc1", "rst")
        a.nop(2)
    for i in range(3):
        a.vmem(f"buffer_store_dwordx4 {vr(240+4*i,4)}, v{(12,13,27)[i]}, {s4(SRD_WS)}, 0 offen sc1", "rst")
    a.nop(2)


def phi4(a, c, T, out0, out1):
    p0, p1 = T, T + 1
    f = T + 2
    ex = T + 6
    if FAITH:
        a.e(f"v_cvt_pk_bf16_f32 v{p0}, v{c}, v{c+1}")
        a.e(f"v_cvt_pk_bf16_f32 v{p1}, v{c+2}, v{c+3}")
        unpack(a, f, f + 1, p0)
        unpack(a, f + 2, f + 3, p1)
        src = f
    else:
        src = c
    a.e(f"v_pk_mul_f32 {vr(ex,2)}, {vr(src,2)}, s[60:61]")
    a.e(f"v_pk_mul_f32 {vr(ex+2,2)}, {vr(src+2,2)}, s[60:61]")
    for i in range(4):
        a.e(f"v_exp_f32 v{ex+i}, v{ex+i}")
    a.e(f"v_pk_add_f32 {vr(f,2)}, {vr(src,2)}, s[62:63]")
    a.e(f"v_pk_add_f32 {vr(f+2,2)}, {vr(src+2,2)}, s[62:63]")
    for i in range(4):
        a.e(f"v_med3_f32 v{f+i}, v{f+i}, v{ex+i}, 1.0")
    if FAITH:
        a.e(f"v_cvt_pk_bf16_f32 v{p0}, v{f}, v{f+1}")
        a.e(f"v_cvt_pk_bf16_f32 v{p1}, v{f+2}, v{f+3}")
        unpack(a, f, f + 1, p0)
        unpack(a, f + 2, f + 3, p1)
    a.e(f"v_pk_add_f32 {vr(f,2)}, {vr(f,2)}, s[64:65]")
    a.e(f"v_pk_add_f32 {vr(f+2,2)}, {vr(f+2,2)}, s[64:65]")
    a.e(f"v_cvt_pk_bf16_f32 v{out0}, v{f}, v{f+1}")
    a.e(f"v_cvt_pk_bf16_f32 v{out1}, v{f+2}, v{f+3}")


def phi_consts(a):
    a.e(f"s_mov_b32 s60, {LOG2E}")
    a.e(f"s_mov_b32 s61, {LOG2E}")
    a.e("s_mov_b32 s62, 1.0")
    a.e("s_mov_b32 s63, 1.0")
    a.e("s_mov_b32 s64, 0x358637bd")
    a.e("s_mov_b32 s65, 0x358637bd")


def loop_a_cons(a, nb, arows, wfrag, afrag, acc, reads, regs, swap, cinit=None, post_repack=None):
    def bump(c):
        d = SLOT1 if ((c + 4) % NSL1) else -(NSL1 - 1) * SLOT1
        for r in regs:
            a.e(f"v_add_u32 v{r}, {d if d > 0 else hex(d & 0xffffffff)}, v{r}")

    a.e("s_barrier")
    a.stamp("a0")
    for t in range(nb):
        reads(0, t)
    for s in range(20):
        if s in (12,):
            a.stamp(f"a{s}")
        if s == RP_ISSUE and not NOREPACK:
            repack_issue(a)
        if s == RP_STORE:
            if not NOREPACK:
                    repack_store(a)
            if post_repack:
                post_repack()
        if s + 1 < 20:
            if s == 11:
                a.wait_vm("rst")
            a.e("s_barrier")
            bump(s + 1)
            if s == 11:
                lab = f"fc_norp{swap}"
                a.e("s_cmp_lg_u32 s9, 0")
                a.e(f"s_cbranch_scc1 {lab}")
                lg = list(a.lg)
                vm = list(a.vm)
                make_srd(a, SRD_T, P_DBG, 256)
                a.e("v_mov_b32 v250, 32")
                poll(a, s4(SRD_T), 250, 1, lab + "_p", tmp=251)
                a.e(f"s_lshl_b32 s10, s{S_CB}, 7")
                a.e(f"s_add_u32 s10, s10, {hex(F_RW)}")
                flag_add(a, s4(SRD_WS), "s10", 250)
                a.e(f"s_lshl_b32 s10, s{S_RB}, 7")
                a.e(f"s_add_u32 s10, s10, {hex(F_RX)}")
                flag_add(a, s4(SRD_WS), "s10", 252)
                a.label(lab)
                a.lg = lg
                a.vm = vm
        for t in range(nb):
            if s + 1 < 20:
                reads(s + 1, t)
            need = [("R", s, t)]
            if t == 0:
                need += [("A", s, r) for r in range(arows)]
            a.wait_lg(need)
            for rt in range(arows):
                d = acc(rt, t)
                cin = d if s else (cinit(t) if cinit else "0")
                if swap:
                    a.e(f"v_mfma_f32_16x16x32_bf16 {d}, {wfrag(s,t)}, {afrag(s,rt)}, {cin}")
                else:
                    a.e(f"v_mfma_f32_16x16x32_bf16 {d}, {afrag(s,rt)}, {wfrag(s,t)}, {cin}")


def gen_consumers(a):
    if RP_ISSUE < 0 and not NOREPACK:
        repack_issue(a)
    BASE0 = 4 * SLOT1
    a.e("v_lshrrev_b32 v14, 3, v2")
    a.e("v_mul_u32_u24 v14, 3, v14")
    a.e("v_xor_b32 v14, v14, v3")
    a.e("v_lshlrev_b32 v15, 6, v2")
    a.e("v_lshl_add_u32 v17, v14, 4, v15")
    a.e(f"v_add_u32 v17, {BASE0}, v17")
    a.e("s_cmp_ge_u32 s6, 2")
    a.e("s_cbranch_scc1 fc_h")
    vm0 = list(a.vm)
    a.e("v_lshrrev_b32 v19, 2, v0")
    a.e("v_mul_u32_u24 v19, 192, v19")
    a.e("v_and_b32 v20, 3, v0")
    a.e("v_lshl_add_u32 v19, v20, 3, v19")
    a.e("s_lshl_b32 s11, s8, 5")
    a.e(f"s_add_u32 s11, s11, {8192 + BASE0}")
    a.e("v_add_u32 v19, s11, v19")
    a.e("v_and_b32 v20, 1, v3")
    a.e("v_lshlrev_b32 v20, 5, v20")
    a.e("s_cmp_eq_u32 s8, 0")
    a.e("s_cselect_b32 s11, 1, -1")
    a.e("v_mul_lo_u32 v20, v20, s11")
    a.e("v_add_u32 v24, v19, v20")
    a.e("v_sub_u32 v25, v19, v20")
    a.e("s_lshl_b32 s14, s9, 11")
    a.e("v_add_u32 v26, s14, v17")
    ACC, WB, AB = 32, 112, 192

    def reads_kv(s, t):
        if t < 2:
            a.lds(f"ds_read_b128 {vr(AB+((s&1)*2+t)*4,4)}, v26 offset:{t*1024}", ("A", s, t))
        for hf in range(2):
            off = (t // 5) * 6144 + 16 * hf * 192 + (t % 5) * 32
            v = 24 if (t % 5) % 2 == 0 else 25
            a.lds(f"ds_read_b64_tr_b16 {vr(WB+((s&1)*10+t)*4+2*hf,2)}, v{v} offset:{off}", ("R", s, t))

    loop_a_cons(a, 10, 2, lambda s, t: vr(WB + ((s & 1) * 10 + t) * 4, 4),
                lambda s, rt: vr(AB + ((s & 1) * 2 + rt) * 4, 4),
                lambda rt, t: vr(ACC + (t * 2 + rt) * 4, 4), reads_kv, [24, 25, 26], False)
    a.stamp("aloop")
    a.e("s_barrier")
    phi_consts(a)
    a.nop(4)
    PK, T = 112, 152
    for t in range(5):
        for rt in range(2):
            c = ACC + (t * 2 + rt) * 4
            phi4(a, c, T + (12 if rt else 0), PK + t * 4 + rt * 2, PK + t * 4 + rt * 2 + 1)
    for t in range(5, 10):
        for rt in range(2):
            c = ACC + (t * 2 + rt) * 4
            a.e(f"v_cvt_pk_bf16_f32 v{PK+t*4+rt*2}, v{c}, v{c+1}")
            a.e(f"v_cvt_pk_bf16_f32 v{PK+t*4+rt*2+1}, v{c+2}, v{c+3}")
    ONES = 176
    for i in range(4):
        a.e(f"v_mov_b32 v{ONES+i}, 0x3f803f80")
    a.nop(2)
    D2 = 32
    pairs = [(i, j) for i in range(5) for j in range(5) if abs(i - j) <= 1]
    for (i, j) in pairs:
        a.e(f"v_mfma_f32_16x16x32_bf16 {vr(D2+(2*i+j)*4,4)}, {vr(PK+i*4,4)}, {vr(PK+(5+j)*4,4)}, 0")
    for i in range(5):
        a.e(f"v_mfma_f32_16x16x32_bf16 {vr(D2+(13+i)*4,4)}, {vr(PK+i*4,4)}, {vr(ONES,4)}, 0")
    a.e("s_mul_i32 s12, s9, 18432")
    a.e(f"s_add_u32 s12, s12, {SCR}")
    a.e("v_add_u32 v14, s12, v7")
    a.e("s_lshl_b32 s12, s9, 6")
    a.e("v_add_u32 v16, s12, v0")
    a.e("s_lshl_b32 s12, s7, 13")
    a.e(f"s_add_u32 s12, s12, {hex(PART_OFF)}")
    for it in range(7):
        b = 112 + it * 16
        I, H_, RM, DD, E_, Dg, Eg, TI, AD = [b + k for k in range(9)]
        a.e(f"v_add_u32 v{I}, {256*it}, v16")
        a.e(f"v_mul_u32_u24 v{H_}, 1249, v{I}")
        a.e(f"v_lshrrev_b32 v{H_}, 19, v{H_}")
        a.e(f"v_mul_u32_u24 v{RM}, 420, v{H_}")
        a.e(f"v_sub_u32 v{RM}, v{I}, v{RM}")
        a.e(f"v_mul_u32_u24 v{DD}, 3277, v{RM}")
        a.e(f"v_lshrrev_b32 v{DD}, 16, v{DD}")
        a.e(f"v_mul_u32_u24 v{E_}, 20, v{DD}")
        a.e(f"v_sub_u32 v{E_}, v{RM}, v{E_}")
        a.e(f"v_mul_u32_u24 v{H_}, 20, v{H_}")
        a.e(f"v_cmp_eq_u32 vcc, 20, v{DD}")
        a.e(f"v_add_u32 v{Eg}, v{H_}, v{E_}")
        a.e(f"v_add_u32 v{Dg}, v{H_}, v{DD}")
        a.e(f"v_cndmask_b32 v{Dg}, v{Dg}, v{Eg}, vcc")
        a.e(f"v_lshrrev_b32 v{TI}, 4, v{Dg}")
        a.e(f"v_lshrrev_b32 v{AD}, 4, v{Eg}")
        a.e(f"v_lshl_add_u32 v{AD}, v{TI}, 1, v{AD}")
        a.e(f"v_add_u32 v{TI}, 13, v{TI}")
        a.e(f"v_cndmask_b32 v{TI}, v{AD}, v{TI}, vcc")
        a.e(f"v_and_b32 v{Eg}, 15, v{Eg}")
        a.e(f"v_cndmask_b32 v{Eg}, v{Eg}, 0, vcc")
        a.e(f"v_bfe_u32 v{AD}, v{Dg}, 2, 2")
        a.e(f"v_lshl_add_u32 v{AD}, v{AD}, 4, v{Eg}")
        a.e(f"v_lshlrev_b32 v{AD}, 4, v{AD}")
        a.e(f"v_lshl_add_u32 v{AD}, v{TI}, 10, v{AD}")
        a.e(f"v_and_b32 v{Dg}, 3, v{Dg}")
        a.e(f"v_lshl_add_u32 v{AD}, v{Dg}, 2, v{AD}")
        if it == 6:
            a.e(f"v_cmp_gt_u32 vcc, 1680, v{I}")
            a.e("s_nop 1")
            a.e(f"v_cndmask_b32 v{AD}, 0, v{AD}, vcc")
            a.e("s_mov_b64 s[56:57], vcc")
        a.e(f"v_add_u32 v{AD}, {SCR}, v{AD}")
        a.e(f"v_lshl_add_u32 v{I}, v{I}, 2, s12")
        if it == 0:
            for k in range(18):
                a.lds(f"ds_write_b128 v14, {vr(D2+k*4,4)} offset:{k*1024}", "W")
    a.wait_lg_all()
    a.e("s_barrier")
    for it in range(7):
        b = 112 + it * 16
        for w in range(4):
            a.lds(f"ds_read_b32 v{b+10+w}, v{b+8} offset:{w*18432}", ("Q", it))
    make_srd(a, SRD_T, P_DBG, 256)
    a.e("s_lshl_b32 s10, s7, 2")
    a.e("v_mov_b32 v20, s10")
    a.wait_lg_all()
    a.e("s_barrier")
    poll(a, s4(SRD_T), 20, 4, "fc_zp")
    for it in range(7):
        b = 112 + it * 16
        a.e(f"v_add_f32 v{b+10}, v{b+10}, v{b+11}")
        a.e(f"v_add_f32 v{b+12}, v{b+12}, v{b+13}")
        a.e(f"v_add_f32 v{b+10}, v{b+10}, v{b+12}")
        if it == 6:
            a.e("s_and_saveexec_b64 s[66:67], s[56:57]")
        a.vmem(f"buffer_atomic_add_f32 v{b+10}, v{b}, {s4(SRD_WS)}, 0 offen", "st")
        if it == 6:
            a.e("s_mov_b64 exec, s[66:67]")
    a.e("s_lshl_b32 s71, s7, 7")
    a.e(f"s_add_u32 s71, s71, {hex(F_KV)}")
    a.e("s_branch fc_b")

    a.label("fc_h")
    a.vm = vm0
    a.lg = []
    a.nstamp = 1
    a.e("v_lshrrev_b32 v14, 5, v0")
    a.e("v_mul_u32_u24 v14, 3072, v14")
    a.e("v_bfe_u32 v15, v0, 2, 3")
    a.e("v_lshl_add_u32 v14, v15, 7, v14")
    a.e("v_and_b32 v16, 3, v0")
    a.e("v_lshl_add_u32 v14, v16, 3, v14")
    a.e(f"v_add_u32 v14, {8192 + BASE0}, v14")
    a.e("v_lshrrev_b32 v15, 1, v15")
    a.e("s_and_b32 s13, s9, 1")
    for t in range(6):
        a.e("s_mul_i32 s12, s13, 6")
        a.e(f"s_add_u32 s12, s12, {t}")
        a.e("s_and_b32 s11, s12, 3")
        a.e("s_lshr_b32 s12, s12, 2")
        a.e("s_lshl_b32 s12, s12, 10")
        a.e("v_xor_b32 v16, s11, v15")
        a.e(f"v_lshl_add_u32 v{20+t}, v16, 5, v14")
        a.e(f"v_add_u32 v{20+t}, s12, v{20+t}")
    a.e("s_lshr_b32 s12, s9, 1")
    a.e("s_lshl_b32 s12, s12, 12")
    a.e("v_add_u32 v26, s12, v17")
    ACCH, WBH, ABH = 32, 128, 176
    BB = 208

    def load_bias():
        make_srd(a, SRD_T, P_B1, 3072)
        a.e("s_mul_i32 s12, s7, 384")
        a.e("s_mul_i32 s11, s13, 192")
        a.e("s_add_u32 s12, s12, s11")
        a.e("v_lshl_add_u32 v28, v3, 3, s12")
        for t in range(6):
            a.vmem(f"buffer_load_dwordx2 {vr(BB+2*t,2)}, v28, {s4(SRD_T)}, 0 offen offset:{32*t}", "bias")

    def reads_h(s, t):
        if t < 4:
            a.lds(f"ds_read_b128 {vr(ABH+((s&1)*4+t)*4,4)}, v26 offset:{t*1024}", ("A", s, t))
        for hf in range(2):
            a.lds(f"ds_read_b64_tr_b16 {vr(WBH+((s&1)*6+t)*4+2*hf,2)}, v{20+t} offset:{2*hf*3072}", ("R", s, t))

    loop_a_cons(a, 6, 4, lambda s, t: vr(WBH + ((s & 1) * 6 + t) * 4, 4),
                lambda s, rt: vr(ABH + ((s & 1) * 4 + rt) * 4, 4),
                lambda rt, t: vr(ACCH + (t * 4 + rt) * 4, 4), reads_h, [20, 21, 22, 23, 24, 25, 26], True, None, load_bias)
    a.stamp("aloop")
    a.e("s_barrier")
    a.e("s_barrier")
    a.e("s_barrier")
    a.e("s_lshl_b32 s12, s5, 3")
    a.e("s_lshr_b32 s11, s9, 1")
    a.e("s_lshl_b32 s11, s11, 2")
    a.e("s_add_u32 s12, s12, s11")
    a.e(f"s_mul_i32 s12, s12, {ACT_RT}")
    a.e("s_mul_i32 s11, s7, 6")
    a.e("s_mul_i32 s10, s13, 3")
    a.e("s_add_u32 s11, s11, s10")
    a.e(f"s_add_u32 s11, s11, {20 + ACT_OFF // 1024}")
    a.e("s_lshl_b32 s11, s11, 10")
    a.e("s_add_u32 s12, s12, s11")
    a.e("v_lshrrev_b32 v14, 1, v3")
    a.e("v_lshl_add_u32 v14, v14, 4, v2")
    a.e("v_lshlrev_b32 v14, 4, v14")
    a.e("v_and_b32 v15, 1, v3")
    a.e("v_lshl_add_u32 v14, v15, 9, v14")
    for rt in range(4):
        a.e(f"v_add_u32 v{8+rt}, s12, v14")
        a.e(f"s_add_u32 s12, s12, {ACT_RT}")
    a.wait_vm("bias")
    T = 128
    for tp in range(3):
        if True:
            for h in range(2):
                t = 2 * tp + h
                unpack(a, T + 4 * h, T + 4 * h + 1, BB + 2 * t)
                unpack(a, T + 4 * h + 2, T + 4 * h + 3, BB + 2 * t + 1)
        for rt in range(4):
            O = T + 24 + ((tp * 4 + rt) % 4) * 4
            for h in range(2):
                t = 2 * tp + h
                c = ACCH + (t * 4 + rt) * 4
                p = T + 8 + h * 8
                f = p + 2
                bf = T + 4 * h
                o = O + 2 * h
                if FAITH:
                    a.e(f"v_cvt_pk_bf16_f32 v{p}, v{c}, v{c+1}")
                    a.e(f"v_cvt_pk_bf16_f32 v{p+1}, v{c+2}, v{c+3}")
                    unpack(a, f, f + 1, p)
                    unpack(a, f + 2, f + 3, p + 1)
                    a.e(f"v_pk_add_f32 {vr(f,2)}, {vr(f,2)}, {vr(bf,2)}")
                    a.e(f"v_pk_add_f32 {vr(f+2,2)}, {vr(f+2,2)}, {vr(bf+2,2)}")
                    a.e(f"v_cvt_pk_bf16_f32 v{p}, v{f}, v{f+1}")
                    a.e(f"v_cvt_pk_bf16_f32 v{p+1}, v{f+2}, v{f+3}")
                    a.e(f"v_pk_max_i16 v{p}, v{p}, 0")
                    a.e(f"v_pk_max_i16 v{p+1}, v{p+1}, 0")
                    unpack(a, f, f + 1, p)
                    unpack(a, f + 2, f + 3, p + 1)
                else:
                    a.e(f"v_pk_add_f32 {vr(f,2)}, {vr(c,2)}, {vr(bf,2)}")
                    a.e(f"v_pk_add_f32 {vr(f+2,2)}, {vr(c+2,2)}, {vr(bf+2,2)}")
                    for i in range(4):
                        a.e(f"v_max_f32 v{f+i}, 0, v{f+i}")
                a.e(f"v_pk_mul_f32 {vr(f,2)}, {vr(f,2)}, {vr(f,2)}")
                a.e(f"v_pk_mul_f32 {vr(f+2,2)}, {vr(f+2,2)}, {vr(f+2,2)}")
                a.e(f"v_cvt_pk_bf16_f32 v{o}, v{f}, v{f+1}")
                a.e(f"v_cvt_pk_bf16_f32 v{o+1}, v{f+2}, v{f+3}")
            a.nop(2)
            a.e(f"v_permlane16_swap_b32 v{O}, v{O+2}")
            a.e(f"v_permlane16_swap_b32 v{O+1}, v{O+3}")
            a.nop(1)
            a.vmem(f"buffer_store_dwordx4 {vr(O,4)}, v{8+rt}, {s4(SRD_WS)}, 0 offen offset:{tp*1024} sc1", "st")
    a.e("s_lshl_b32 s71, s5, 7")
    a.e(f"s_add_u32 s71, s71, {hex(F_H)}")

    a.label("fc_b")
    a.vm = ["st"]
    a.lg = []
    a.nstamp = 4
    a.stamp("aend")
    a.e(f"s_lshl_b32 s10, s{S_RB}, 2")
    a.e("s_add_u32 s10, s10, s9")
    a.e("s_lshl_b32 s11, s10, 4")
    a.e("v_add_u32 v4, s11, v2")
    a.e("v_lshlrev_b32 v6, 4, v3")
    a.e("s_lshl_b32 s12, s9, 10")
    a.e("s_add_u32 s12, s12, 5120")
    a.e("v_add_u32 v8, s12, v7")
    a.e("v_mov_b32 v9, v7")
    make_srd(a, SRD_X, P_B2, 1280)
    make_srd(a, 56, P_OUT, 2048 * 1280)
    a.e("s_mul_i32 s69, s73, 10")
    a.e("s_lshr_b32 s69, s69, 5")
    a.e("s_lshl_b32 s70, s69, 7")
    a.e(f"s_add_u32 s70, s70, {GWL}")
    a.e("v_add_u32 v6, s70, v6")
    ACC, WB, AB, GA, GF = 32, 64, 104, 56, 112
    a.e(f"v_mov_b32 v{GA}, 0")

    def reads(s, t):
        ks = s % 2
        if t == 0:
            a.lds(f"ds_read_b128 {vr(AB+(s&1)*4,4)}, v8 offset:{ks*9216}", ("A", s, 0))
            if s < 20:
                a.lds(f"ds_read_b128 {vr(GF+(s&1)*4,4)}, v6 offset:{ks*64}", ("A", s, 0))
        a.lds(f"ds_read_b128 {vr(WB+((s&1)*5+t)*4,4)}, v9 offset:{ks*9216+t*1024}", ("R", s, t))

    def bump(c):
        d = SLOT2 if (c % NSL2) else -(NSL2 - 1) * SLOT2
        for r in (8, 9):
            a.e(f"v_add_u32 v{r}, {d if d > 0 else hex(d & 0xffffffff)}, v{r}")
        if c < 10:
            a.e("s_add_u32 s69, s69, 1")
            a.e("s_cmp_ge_u32 s69, 10")
            a.e("s_cselect_b32 s70, -9, 1")
            a.e("s_cselect_b32 s69, 0, s69")
            a.e("s_lshl_b32 s70, s70, 7")
            a.e("v_add_u32 v6, s70, v6")

    a.e("s_barrier")
    a.stamp("b0")
    for t in range(5):
        reads(0, t)
    for s in range(20):
        if s + 1 < 20 and (s + 1) % 2 == 0:
            if s == 3:
                a.wait_vm_all()
            a.e("s_barrier")
            bump((s + 1) // 2)
            if s == 3:
                a.e("s_cmp_lg_u32 s9, 0")
                a.e("s_cbranch_scc1 fc_nopubA")
                flag_add(a, s4(SRD_WS), "s71", 58)
                a.label("fc_nopubA")
        for t in range(5):
            if s + 1 < 20:
                reads(s + 1, t)
            need = [("R", s, t)]
            if t == 0:
                need.append(("A", s, 0))
            a.wait_lg(need)
            d = vr(ACC + t * 4, 4)
            a.e(f"v_mfma_f32_16x16x32_bf16 {d}, {vr(WB+((s&1)*5+t)*4,4)}, {vr(AB+(s&1)*4,4)}, {'0' if s == 0 else d}")
            if t < 4:
                a.e(f"v_dot2_f32_bf16 v{GA}, v{AB+(s&1)*4+t}, v{GF+(s&1)*4+t}, v{GA}")
    a.stamp("bloop")
    phi_consts(a)
    PQ, T = 184, 196
    a.nop(4)
    for t in range(5):
        phi4(a, ACC + t * 4, T + (12 if t & 1 else 0), PQ + t * 2, PQ + t * 2 + 1)
    a.e(f"v_mov_b32 v{PQ+10}, 0")
    a.e(f"v_mov_b32 v{PQ+11}, 0")
    a.e("v_mul_u32_u24 v14, 192, v2")
    a.e("v_lshl_add_u32 v14, v3, 3, v14")
    a.e(f"v_add_u32 v14, {IMG}, v14")
    a.e("s_barrier")
    a.stamp("img")
    ju = [(0, 0), (1, 0), (1, 1), (2, 0), (2, 1), (3, 1), (3, 2), (4, 1), (4, 2)]
    KF = 112
    for n, (j, u) in enumerate(ju):
        for im in range(2):
            b = KF + im * 36 + n * 4
            off = im * 15360 + j * 16 * 192 + u * 64
            a.lds(f"ds_read_b64 {vr(b,2)}, v14 offset:{off}", ("F", n, im))
            a.lds(f"ds_read_b64 {vr(b+2,2)}, v14 offset:{off+32}", ("F", n, im))
    NUM = 64
    seen = set()
    for n, (j, u) in enumerate(ju):
        for im in range(2):
            d = vr(NUM + im * 20 + j * 4, 4)
            cin = d if (im, j) in seen else "0"
            seen.add((im, j))
            a.wait_lg(("F", n, im))
            a.e(f"v_mfma_f32_16x16x32_bf16 {d}, {vr(KF+im*36+n*4,4)}, {vr(PQ+u*4,4)}, {cin}")
    a.e(f"s_mul_i32 s12, s10, {ACT_RT}")
    a.e(f"s_mul_i32 s11, s{S_CB}, 2560")
    a.e("s_add_u32 s12, s12, s11")
    a.e(f"s_add_u32 s12, s12, {ACT_OFF}")
    a.e("v_lshrrev_b32 v14, 1, v3")
    a.e("v_lshl_add_u32 v14, v14, 4, v2")
    a.e("v_lshlrev_b32 v14, 4, v14")
    a.e("v_add_u32 v6, s12, v14")
    a.e("v_and_b32 v15, 1, v3")
    a.e("v_lshl_add_u32 v5, v15, 9, v6")
    a.nop(2)
    for j in range(5):
        n_ = NUM + j * 4
        d_ = NUM + 20 + j * 4
        p = T
        f = T + 4
        g = T + 8
        if FAITH:
            a.e(f"v_cvt_pk_bf16_f32 v{p}, v{n_}, v{n_+1}")
            a.e(f"v_cvt_pk_bf16_f32 v{p+1}, v{n_+2}, v{n_+3}")
            a.e(f"v_cvt_pk_bf16_f32 v{p+2}, v{d_}, v{d_+1}")
            a.e(f"v_cvt_pk_bf16_f32 v{p+3}, v{d_+2}, v{d_+3}")
            unpack(a, f, f + 1, p)
            unpack(a, f + 2, f + 3, p + 1)
            unpack(a, g, g + 1, p + 2)
            unpack(a, g + 2, g + 3, p + 3)
            a.e(f"v_pk_add_f32 {vr(g,2)}, {vr(g,2)}, s[64:65]")
            a.e(f"v_pk_add_f32 {vr(g+2,2)}, {vr(g+2,2)}, s[64:65]")
            a.e(f"v_cvt_pk_bf16_f32 v{p+2}, v{g}, v{g+1}")
            a.e(f"v_cvt_pk_bf16_f32 v{p+3}, v{g+2}, v{g+3}")
            unpack(a, g, g + 1, p + 2)
            unpack(a, g + 2, g + 3, p + 3)
            nn = f
        else:
            a.e(f"v_pk_add_f32 {vr(g,2)}, {vr(d_,2)}, s[64:65]")
            a.e(f"v_pk_add_f32 {vr(g+2,2)}, {vr(d_+2,2)}, s[64:65]")
            nn = n_
        for i in range(4):
            a.e(f"v_rcp_f32 v{g+4+i}, v{g+i}")
        a.e("s_nop 0")
        a.e(f"v_pk_mul_f32 {vr(g+8,2)}, {vr(nn,2)}, {vr(g+4,2)}")
        a.e(f"v_pk_mul_f32 {vr(g+10,2)}, {vr(nn+2,2)}, {vr(g+6,2)}")
        if FAITH:
            for i in range(4):
                a.e(f"v_fma_f32 v{f+i}, -v{g+i}, v{g+8+i}, v{f+i}")
            for i in range(4):
                a.e(f"v_fma_f32 v{g+8+i}, v{f+i}, v{g+4+i}, v{g+8+i}")
        O = T + 24 + (j // 2) * 4
        if j < 4:
            o = O + (j & 1) * 2
            a.e(f"v_cvt_pk_bf16_f32 v{o}, v{g+8}, v{g+9}")
            a.e(f"v_cvt_pk_bf16_f32 v{o+1}, v{g+10}, v{g+11}")
        else:
            a.e(f"v_cvt_pk_bf16_f32 v{O}, v{g+8}, v{g+9}")
            a.e(f"v_cvt_pk_bf16_f32 v{O+1}, v{g+10}, v{g+11}")
            a.e(f"v_mov_b32 v{O+2}, v{O}")
            a.e(f"v_mov_b32 v{O+3}, v{O+1}")
        if j & 1 or j == 4:
            a.nop(2)
            a.e(f"v_permlane16_swap_b32 v{O}, v{O+2}")
            a.e(f"v_permlane16_swap_b32 v{O+1}, v{O+3}")
            a.nop(1)
            a.vmem(f"buffer_store_dwordx4 {vr(O,4)}, v{5 if j < 4 else 6}, {s4(SRD_WS)}, 0 offen offset:{512*(j & ~1)} sc1", "st")
    a.e(f"v_mov_b32 v57, v{GA}")
    a.nop(2)
    a.e(f"v_permlane32_swap_b32 v57, v{GA}")
    a.nop(2)
    a.e(f"v_add_f32 v{GA}, v57, v{GA}")
    a.e(f"v_mov_b32 v57, v{GA}")
    a.nop(2)
    a.e(f"v_permlane16_swap_b32 v57, v{GA}")
    a.nop(2)
    a.e(f"v_add_f32 v{GA}, v57, v{GA}")
    a.e(f"v_cvt_pk_bf16_f32 v{GA}, v{GA}, v{GA}")
    a.e(f"v_lshlrev_b32 v{GA}, 16, v{GA}")
    a.e(f"v_mul_f32 v{GA}, 0xbfb8aa3b, v{GA}")
    a.e(f"v_exp_f32 v{GA}, v{GA}")
    a.e("s_nop 0")
    a.e(f"v_add_f32 v{GA}, 1.0, v{GA}")
    a.e(f"v_rcp_f32 v{GA}, v{GA}")
    a.e("s_nop 0")
    a.e(f"v_cvt_pk_bf16_f32 v{GA}, v{GA}, v{GA}")
    a.e(f"v_lshlrev_b32 v{GA}, 16, v{GA}")
    a.e(f"v_sub_f32 v57, 1.0, v{GA}")
    a.e("v_cvt_pk_bf16_f32 v57, v57, v57")
    a.e("v_lshlrev_b32 v57, 16, v57")
    ACA = 112
    B2 = 240
    a.e("s_barrier")
    bump(10)
    for t in range(5):
        reads(20, t)
    NK = 88
    for s in range(20, NK):
        if s in (44, 68):
            a.stamp(f"s{s}")
        if s == 60:
            a.e(f"s_mul_i32 s12, s{S_CB}, 160")
            a.e("v_lshl_add_u32 v28, v3, 3, s12")
            for t in range(5):
                a.vmem(f"buffer_load_dwordx2 {vr(B2+2*t,2)}, v28, {s4(SRD_X)}, 0 offen offset:{32*t}", "b2")
        if s + 1 < NK and (s + 1) % 2 == 0:
            if s == 23:
                a.wait_vm_all()
            a.e("s_barrier")
            bump((s + 1) // 2)
            if s == 23:
                a.e("s_cmp_lg_u32 s9, 0")
                a.e("s_cbranch_scc1 fc_nopubO")
                a.e(f"s_lshl_b32 s12, s{S_RB}, 7")
                a.e(f"s_add_u32 s12, s12, {hex(F_O)}")
                flag_add(a, s4(SRD_WS), "s12", 58)
                a.label("fc_nopubO")
        for t in range(5):
            if s + 1 < NK:
                reads(s + 1, t)
            need = [("R", s, t)]
            if t == 0:
                need.append(("A", s, 0))
            a.wait_lg(need)
            d = vr(ACA + (20 if s < 68 else 0) + t * 4, 4)
            cin = "0" if s in (20, 68) else d
            a.e(f"v_mfma_f32_16x16x32_bf16 {d}, {vr(WB+((s&1)*5+t)*4,4)}, {vr(AB+(s&1)*4,4)}, {cin}")
    a.stamp("cloop")
    a.e("v_mul_u32_u24 v5, 1280, v4")
    a.e("v_lshl_add_u32 v5, v3, 3, v5")
    a.e(f"s_mul_i32 s12, s{S_CB}, 160")
    a.e("v_add_u32 v5, s12, v5")
    a.wait_vm_all()
    a.nop(6)
    T = 160
    for t in range(5):
        ca = ACA + t * 4
        cb = ACA + 20 + t * 4
        p = T
        fa = T + 4
        fb = T + 8
        bb = T + 12
        a.e(f"v_cvt_pk_bf16_f32 v{p}, v{ca}, v{ca+1}")
        a.e(f"v_cvt_pk_bf16_f32 v{p+1}, v{ca+2}, v{ca+3}")
        a.e(f"v_cvt_pk_bf16_f32 v{p+2}, v{cb}, v{cb+1}")
        a.e(f"v_cvt_pk_bf16_f32 v{p+3}, v{cb+2}, v{cb+3}")
        unpack(a, fa, fa + 1, p)
        unpack(a, fa + 2, fa + 3, p + 1)
        unpack(a, fb, fb + 1, p + 2)
        unpack(a, fb + 2, fb + 3, p + 3)
        unpack(a, bb, bb + 1, B2 + 2 * t)
        unpack(a, bb + 2, bb + 3, B2 + 2 * t + 1)
        a.e(f"v_pk_add_f32 {vr(fb,2)}, {vr(fb,2)}, {vr(bb,2)}")
        a.e(f"v_pk_add_f32 {vr(fb+2,2)}, {vr(fb+2,2)}, {vr(bb+2,2)}")
        for i in range(4):
            a.e(f"v_mul_f32 v{fa+i}, v{GA}, v{fa+i}")
        a.e(f"v_cvt_pk_bf16_f32 v{p+2}, v{fb}, v{fb+1}")
        a.e(f"v_cvt_pk_bf16_f32 v{p+3}, v{fb+2}, v{fb+3}")
        a.e(f"v_cvt_pk_bf16_f32 v{p}, v{fa}, v{fa+1}")
        a.e(f"v_cvt_pk_bf16_f32 v{p+1}, v{fa+2}, v{fa+3}")
        unpack(a, fb, fb + 1, p + 2)
        unpack(a, fb + 2, fb + 3, p + 3)
        unpack(a, fa, fa + 1, p)
        unpack(a, fa + 2, fa + 3, p + 1)
        for i in range(4):
            a.e(f"v_mul_f32 v{fb+i}, v57, v{fb+i}")
        a.e(f"v_cvt_pk_bf16_f32 v{p+2}, v{fb}, v{fb+1}")
        a.e(f"v_cvt_pk_bf16_f32 v{p+3}, v{fb+2}, v{fb+3}")
        unpack(a, fb, fb + 1, p + 2)
        unpack(a, fb + 2, fb + 3, p + 3)
        a.e(f"v_pk_add_f32 {vr(fa,2)}, {vr(fa,2)}, {vr(fb,2)}")
        a.e(f"v_pk_add_f32 {vr(fa+2,2)}, {vr(fa+2,2)}, {vr(fb+2,2)}")
        o = T + 20 + t * 2
        a.e(f"v_cvt_pk_bf16_f32 v{o}, v{fa}, v{fa+1}")
        a.e(f"v_cvt_pk_bf16_f32 v{o+1}, v{fa+2}, v{fa+3}")
        a.vmem(f"buffer_store_dwordx2 {vr(o,2)}, v5, s[56:59], 0 offen offset:{32*t}", "st")
    a.stamp("end")
    a.dump_stamps()


HEADER = """; Kernarg layout for this problem (96 bytes, ptrs only, base s[0:1]):
;   0 A_x  8 A_wqkv  16 A_wo  24 B_x  32 B_w1  40 B_b1  48 B_w2  56 B_b2  64 gate_w  72 d_out  80 d_debug  88 d_ws
; @launch kernel=fused_kernel grid=(256,1,1) block=(512,1,1) lds=163840
.amdgcn_target "amdgcn-amd-amdhsa--gfx950"
.text
"""


def main():
    a = Asm()
    a.kid = 1
    gen(a)
    nm = "fused_kernel"
    out = HEADER + f".globl {nm}\n.p2align 8\n.type {nm},@function\n" + "\n".join(a.lines) + "\n"
    out += '.section .rodata,"a"\n.p2align 6\n' + kd(nm, 256, 256)
    path = sys.argv[1] if len(sys.argv) > 1 else f"cdna_kernels/{NAME}.s"
    open(path, "w").write(out)


if __name__ == "__main__":
    main()
```

```python
import sys

NAME = "gated_mix__linear_attn_block__dense_activation_squared_relu__prompt"

ACT_RT = 68 * 1024
PART_OFF = 0x900000
PART_BLK = 7168
G_OFF = 0xA00000
XF_OFF = 0xB00000
WQF_OFF = 0xE00000
W2F_OFF = 0xF00000
FLAG_OFF = 0x11F0000
WS_USED = 0x1200000


import os
STAMP = int(os.environ.get("STAMP", "0"))
STAMP_WG = int(os.environ.get("STAMP_WG", "0"))


class Asm:
    def __init__(self):
        self.lines = []
        self.vm = []
        self.lg = []
        self.nstamp = 0
        self.ndump = 0

    def e(self, s):
        self.lines.append("  " + s)

    def label(self, s):
        self.lines.append(s + ":")

    def c(self, s):
        self.lines.append("  ; " + s)

    def vmem(self, s, tag):
        self.e(s)
        self.vm.append(tag)

    def wait_vm(self, tags):
        if isinstance(tags, str):
            tags = [tags]
        last = -1
        for i, t in enumerate(self.vm):
            if t in tags:
                last = i
        if last < 0:
            return
        n = len(self.vm) - 1 - last
        n = min(n, 63)
        self.e(f"s_waitcnt vmcnt({n})")
        self.vm = self.vm[len(self.vm) - n:] if n > 0 else []

    def wait_vm_all(self):
        self.e("s_waitcnt vmcnt(0)")
        self.vm = []

    def lds(self, s, tag):
        self.e(s)
        self.lg.append(tag)

    def wait_lg(self, tags):
        if isinstance(tags, (str, tuple)):
            tags = [tags]
        last = -1
        for i, t in enumerate(self.lg):
            if t in tags:
                last = i
        if last < 0:
            return
        n = len(self.lg) - 1 - last
        n = min(n, 15)
        self.e(f"s_waitcnt lgkmcnt({n})")
        self.lg = self.lg[len(self.lg) - n:] if n > 0 else []

    def wait_lg_all(self):
        self.e("s_waitcnt lgkmcnt(0)")
        self.lg = []

    def stamp(self, name=""):
        if not STAMP:
            return
        if STAMP == 2:
            if name == "start":
                self.e("s_memrealtime s[96:97]")
                self.e("s_memtime s[92:93]")
                self.wait_lg_all()
            return
        if os.environ.get("ASTAMP") and not (name.startswith("a") or name == "start"):
            return
        if os.environ.get("ASTAMP") and name in ("aend", "aloop"):
            self.nstamp = 11
            return
        i = self.nstamp
        self.nstamp += 1
        self.e(f"s_memtime s[{80+2*i}:{81+2*i}]")
        self.wait_lg_all()

    def dump_stamps(self):
        if not STAMP:
            return
        lab = "nodump%d_%d" % (self.kid, self.ndump)
        self.ndump += 1
        if STAMP == 2:
            self.e("s_waitcnt vmcnt(0)")
            self.e("s_memrealtime s[98:99]")
            self.e("s_memtime s[94:95]")
            self.e("s_waitcnt lgkmcnt(0)")
            self.e("s_cmp_lg_u32 s9, 0")
            self.e("s_cbranch_scc1 " + lab)
            make_srd(self, 64, P_WS, 0x2000000)
            self.e("s_lshl_b32 s68, s2, 4")
            self.e(f"s_add_u32 s68, s68, {hex(0x1800000 + self.kid * 4096)}")
            self.e("v_mov_b32 v1, s68")
            self.e("s_sub_u32 s94, s94, s92")
            self.e("s_getreg_b32 s95, hwreg(HW_REG_XCC_ID)")
            for i, r in enumerate((96, 98, 94, 95)):
                self.e(f"v_mov_b32 v2, s{r}")
                self.e(f"buffer_store_dword v2, v1, s[64:67], 0 offen offset:{4*i}")
            self.label(lab)
            return
        self.e("s_waitcnt lgkmcnt(0)")
        if STAMP == 3:
            self.e("s_cmp_lg_u32 s9, 0")
            self.e("s_cbranch_scc1 " + lab)
            make_srd(self, 64, P_WS, 0x2000000)
            self.e("s_lshl_b32 s68, s2, 6")
            self.e(f"s_add_u32 s68, s68, {hex(0x1800000 - 192)}")
            self.e("v_mov_b32 v1, s68")
        else:
            self.e("s_cmp_lg_u32 s2, %d" % STAMP_WG)
            self.e("s_cbranch_scc1 " + lab)
            self.e("s_cmp_lg_u32 s9, 0")
            self.e("s_cbranch_scc1 " + lab)
            make_srd(self, 64, P_DBG, 256)
            self.e("v_mov_b32 v1, 0")
        for i in range(self.nstamp):
            self.e(f"s_sub_u32 s68, s{80+2*i}, s80")
            self.e("v_mov_b32 v2, s68")
            self.e(f"buffer_store_dword v2, v1, s[64:67], 0 offen offset:{192+4*i}")
        self.label(lab)

    def nop(self, n):
        while n > 0:
            k = min(n, 16)
            self.e(f"s_nop {k-1}")
            n -= k


def vr(b, n=1):
    return f"v{b}" if n == 1 else f"v[{b}:{b+n-1}]"


def ar(b, n=1):
    return f"a{b}" if n == 1 else f"a[{b}:{b+n-1}]"


def sr(b, n=1):
    return f"s{b}" if n == 1 else f"s[{b}:{b+n-1}]"


P_X, P_WQKV, P_WO, P_BX, P_W1, P_B1, P_W2, P_B2, P_GW, P_OUT, P_DBG, P_WS = [16 + 2 * i for i in range(12)]


def prologue_kernargs(a):
    a.e("s_load_dwordx16 s[16:31], s[0:1], 0")
    a.e("s_load_dwordx8 s[32:39], s[0:1], 64")


def make_srd(a, dst, ptr, nbytes, off=0):
    if off:
        a.e(f"s_add_u32 s{dst}, s{ptr}, {hex(off)}")
        a.e(f"s_addc_u32 s{dst+1}, s{ptr+1}, 0")
        a.e(f"s_and_b32 s{dst+1}, s{dst+1}, 0xffff")
    else:
        a.e(f"s_mov_b32 s{dst}, s{ptr}")
        a.e(f"s_and_b32 s{dst+1}, s{ptr+1}, 0xffff")
    a.e(f"s_mov_b32 s{dst+2}, {hex(nbytes)}")
    a.e(f"s_mov_b32 s{dst+3}, 0x00020000")


def kperm_vgpr(a, dst, rho, t0, t1):
    a.e(f"v_and_b32 v{dst}, 0xffffffe3, v{rho}")
    a.e(f"v_bfe_u32 v{t0}, v{rho}, 2, 2")
    a.e(f"v_lshl_or_b32 v{dst}, v{t0}, 3, v{dst}")
    a.e(f"v_bfe_u32 v{t1}, v{rho}, 4, 1")
    a.e(f"v_lshl_or_b32 v{dst}, v{t1}, 2, v{dst}")


def odd_dma_offsets(a, dsts, first_instr_sgpr_or_const, lane_v, ldw, colbytes_s, t):
    for n, d in enumerate(dsts):
        a.e(f"v_add_u32 v{t[0]}, {first_instr_sgpr_or_const}, v{lane_v}")
        if n:
            a.e(f"v_add_u32 v{t[0]}, {64*n}, v{t[0]}")
        a.e(f"v_mul_u32_u24 v{t[1]}, 6554, v{t[0]}")
        a.e(f"v_lshrrev_b32 v{t[1]}, 16, v{t[1]}")
        a.e(f"v_mul_u32_u24 v{t[2]}, 10, v{t[1]}")
        a.e(f"v_sub_u32 v{t[0]}, v{t[0]}, v{t[2]}")
        kperm_vgpr(a, t[2], t[1], t[3], d)
        a.e(f"v_mul_u32_u24 v{t[2]}, {ldw}, v{t[2]}")
        a.e(f"v_lshl_add_u32 v{d}, v{t[0]}, 4, v{t[2]}")
        a.e(f"v_add_u32 v{d}, {colbytes_s}, v{d}")


def gemm_loop(a, nks, kpc, nslots, nb, arows, wbuf, afrag, acc, tr_addr, dma_chunk, a_tag, swap, first_zero=True,
              pre_step=None, chunk_hook=None):
    nchunks = nks // kpc

    def reads(s, t):
        for hf in range(2):
            v, off = tr_addr(s, t, hf)
            b = wbuf(s & 1, t) + 2 * hf
            a.lds(f"ds_read_b64_tr_b16 {vr(b,2)}, v{v} offset:{off}", ("R", s, t))

    def new_chunk(c):
        a.wait_vm(f"dma{c}")
        a.e("s_barrier")
        nx = c - 2 + nslots
        if c >= 2 and nx < nchunks:
            dma_chunk(nx)
        if chunk_hook:
            chunk_hook(c)

    new_chunk(0)
    for t in range(nb):
        reads(0, t)
    for s in range(nks):
        if s + 1 < nks and (s + 1) % kpc == 0:
            new_chunk((s + 1) // kpc)
        if pre_step:
            pre_step(s)
        a.wait_vm(a_tag(s))
        for t in range(nb):
            if s + 1 < nks:
                reads(s + 1, t)
            a.wait_lg(("R", s, t))
            w = vr(wbuf(s & 1, t), 4)
            for rt in range(arows):
                x = afrag(s, rt)
                d = acc(rt, t)
                cin = "0" if (s == 0 and first_zero) else d
                if swap:
                    a.e(f"v_mfma_f32_16x16x32_bf16 {d}, {w}, {x}, {cin}")
                else:
                    a.e(f"v_mfma_f32_16x16x32_bf16 {d}, {x}, {w}, {cin}")


def unpack(a, lo, hi, p):
    a.e(f"v_lshlrev_b32 v{lo}, 16, v{p}")
    a.e(f"v_and_b32 v{hi}, 0xffff0000, v{p}")


LOG2E = "0x3fb8aa3b"


def phi_inplace(a, c, T, out0, out1, s_eps):
    p0, p1 = T, T + 1
    f = T + 2
    ex = T + 6
    a.e(f"v_cvt_pk_bf16_f32 v{p0}, v{c}, v{c+1}")
    a.e(f"v_cvt_pk_bf16_f32 v{p1}, v{c+2}, v{c+3}")
    unpack(a, f, f + 1, p0)
    unpack(a, f + 2, f + 3, p1)
    a.e(f"v_pk_mul_f32 {vr(ex,2)}, {vr(f,2)}, s[60:61]")
    a.e(f"v_pk_mul_f32 {vr(ex+2,2)}, {vr(f+2,2)}, s[60:61]")
    for i in range(4):
        a.e(f"v_exp_f32 v{ex+i}, v{ex+i}")
    a.e(f"v_pk_add_f32 {vr(f,2)}, {vr(f,2)}, s[62:63]")
    a.e(f"v_pk_add_f32 {vr(f+2,2)}, {vr(f+2,2)}, s[62:63]")
    for i in range(4):
        a.e(f"v_med3_f32 v{f+i}, v{f+i}, v{ex+i}, 1.0")
    a.e(f"v_cvt_pk_bf16_f32 v{p0}, v{f}, v{f+1}")
    a.e(f"v_cvt_pk_bf16_f32 v{p1}, v{f+2}, v{f+3}")
    unpack(a, f, f + 1, p0)
    unpack(a, f + 2, f + 3, p1)
    a.e(f"v_pk_add_f32 {vr(f,2)}, {vr(f,2)}, s[64:65]")
    a.e(f"v_pk_add_f32 {vr(f+2,2)}, {vr(f+2,2)}, s[64:65]")
    a.e(f"v_cvt_pk_bf16_f32 v{out0}, v{f}, v{f+1}")
    a.e(f"v_cvt_pk_bf16_f32 v{out1}, v{f+2}, v{f+3}")


def phi_consts(a):
    a.e(f"s_mov_b32 s60, {LOG2E}")
    a.e(f"s_mov_b32 s61, {LOG2E}")
    a.e("s_mov_b32 s62, 1.0")
    a.e("s_mov_b32 s63, 1.0")
    a.e("s_mov_b32 s64, 0x358637bd")
    a.e("s_mov_b32 s65, 0x358637bd")


EPS = "0x358637bd"


SLOT1 = 20480
NSL1 = 8


def side_jobs_issue(a):
    a.e("s_lshl_b32 s53, s2, 2")
    a.e("s_add_u32 s53, s53, s9")
    for i in range(2):
        sb = 54
        a.e(f"s_add_u32 s{sb}, s53, {1024*i}")
        if i == 1:
            a.e(f"s_min_u32 s{sb}, s{sb}, 1759")
        a.e(f"s_mul_i32 s55, s{sb}, 52429")
        a.e("s_lshr_b32 s55, s55, 18")
        a.e("s_mul_i32 s56, s55, 5")
        a.e(f"s_sub_u32 s56, s{sb}, s56")
        a.e("s_movk_i32 s57, 1280")
        a.e(f"s_mov_b32 s59, {hex(W2F_OFF)}")
        a.e(f"s_mov_b32 s66, {hex(640*1280)}")
        a.e("s_cmp_lt_u32 s55, 80")
        a.e(f"s_cselect_b32 s64, s{P_WQKV}, s{P_WO}")
        a.e(f"s_cselect_b32 s65, s{P_WQKV+1}, s{P_WO+1}")
        a.e("s_cselect_b32 s57, 3840, s57")
        a.e("s_cselect_b32 s58, 0, 80")
        a.e(f"s_cselect_b32 s59, {hex(WQF_OFF)}, s59")
        a.e("s_cselect_b32 s60, 20, 68")
        a.e("s_cselect_b32 s61, 0, 80")
        a.e(f"s_cselect_b32 s66, {hex(640*3840)}, s66")
        a.e("s_cmp_lt_u32 s55, 160")
        a.e(f"s_cselect_b32 s64, s64, s{P_W2}")
        a.e(f"s_cselect_b32 s65, s65, s{P_W2+1}")
        a.e("s_cselect_b32 s58, s58, 160")
        a.e(f"s_cselect_b32 s66, s66, {hex(1536*1280)}")
        a.e("s_and_b32 s65, s65, 0xffff")
        a.e("s_mov_b32 s67, 0x00020000")
        a.e("s_sub_u32 s58, s55, s58")
        a.e("s_lshl_b32 s58, s58, 3")
        a.e("s_mul_i32 s58, s58, s57")
        a.e("s_lshl_b32 s62, s56, 8")
        a.e("s_add_u32 s58, s58, s62")
        a.e(f"v_lshl_add_u32 v{228+i}, v0, 2, s58")
        for r in range(8):
            a.e(f"s_mul_i32 s62, s57, {r}")
            a.vmem(f"buffer_load_dword v{200+8*i+r}, v{228+i}, s[64:67], s62 offen", "side")
        a.e("s_sub_u32 s61, s55, s61")
        a.e("s_lshr_b32 s62, s61, 2")
        a.e("s_and_b32 s61, s61, 3")
        a.e("s_lshl_b32 s63, s56, 7")
        a.e("v_lshl_add_u32 v232, v0, 1, s63")
        a.e("v_mul_u32_u24 v233, 820, v232")
        a.e("v_lshrrev_b32 v233, 16, v233")
        a.e("v_mul_u32_u24 v234, 80, v233")
        a.e("v_sub_u32 v232, v232, v234")
        a.e("v_mul_lo_u32 v233, v233, s60")
        a.e("v_add_u32 v233, s62, v233")
        a.e("v_mul_u32_u24 v233, 5, v233")
        a.e("v_lshrrev_b32 v234, 4, v232")
        a.e("v_add_u32 v233, v233, v234")
        a.e("v_lshlrev_b32 v233, 10, v233")
        a.e("v_and_b32 v232, 15, v232")
        a.e("v_lshl_add_u32 v233, v232, 4, v233")
        a.e("s_lshl_b32 s61, s61, 8")
        a.e("s_add_u32 s61, s61, s59")
        a.e(f"v_add_u32 v{230+i}, s61, v233")
    for i in range(3):
        a.e(f"s_add_u32 s54, s53, {1024*i}")
        if i == 2:
            a.e("s_min_u32 s54, s54, 2559")
        a.e("s_mul_i32 s55, s54, 52429")
        a.e("s_lshr_b32 s55, s55, 20")
        a.e("s_mul_i32 s56, s55, 20")
        a.e("s_sub_u32 s56, s54, s56")
        a.e("s_mul_i32 s55, s55, 20480")
        a.e("s_lshl_b32 s56, s56, 6")
        a.e("s_add_u32 s55, s55, s56")
        a.e("v_mul_u32_u24 v232, 1280, v2")
        a.e("v_lshl_add_u32 v232, v3, 4, v232")
        a.vmem(f"buffer_load_dwordx4 {vr(216+4*i,4)}, v232, s[40:43], s55 offen", "side")
        a.e("s_lshl_b32 s54, s54, 10")
        a.e(f"s_add_u32 s54, s54, {hex(XF_OFF)}")
        a.e(f"v_lshl_add_u32 v{236+i}, v0, 4, s54")


def side_jobs_store(a):
    lab = "k1_noflag%d" % len(a.lines)
    a.e("s_cmp_lg_u32 s53, 0")
    a.e("s_cbranch_scc1 " + lab)
    a.e("v_lshlrev_b32 v240, 7, v0")
    a.e(f"v_add_u32 v240, {hex(FLAG_OFF)}, v240")
    a.e("v_mov_b32 v241, 0")
    a.e("buffer_store_dword v241, v240, s[48:51], 0 offen")
    a.label(lab)
    a.e("s_waitcnt vmcnt(0)")
    a.vm = []
    a.e("s_mov_b32 s54, 0x05040100")
    a.e("s_mov_b32 s55, 0x07060302")
    for i in range(2):
        b = 200 + 8 * i
        o = 240
        for j in range(4):
            a.e(f"v_perm_b32 v{o+j}, v{b+2*j+1}, v{b+2*j}, s54")
        for j in range(4):
            a.e(f"v_perm_b32 v{o+4+j}, v{b+2*j+1}, v{b+2*j}, s55")
        a.vmem(f"buffer_store_dwordx4 {vr(o,4)}, v{230+i}, s[48:51], 0 offen", "st")
        a.vmem(f"buffer_store_dwordx4 {vr(o+4,4)}, v{230+i}, s[48:51], 0 offen offset:16", "st")
        a.nop(2)
    for i in range(3):
        a.vmem(f"buffer_store_dwordx4 {vr(216+4*i,4)}, v{236+i}, s[48:51], 0 offen", "st")


def producer_loop(a, nch, nsl, dma_chunk, ramp=2, hook=None):
    issued = 0

    def issue_upto(n):
        nonlocal issued
        while issued < min(n, nch):
            dma_chunk(issued)
            issued += 1

    issue_upto(nsl - 1)
    for c in range(nch):
        a.wait_vm(f"dma{c}")
        a.e("s_barrier")
        issue_upto(min(issued + ramp, c + nsl - 1))
        if hook:
            hook(c)


def consumer_loop(a, nks, kpc, nb, arows, wfrag, afrag, acc, reads, bump, swap, zero_at=(0,), per_tile=None,
                  stamps=()):
    a.e("s_barrier")
    for t in range(nb):
        reads(0, t)
    for s in range(nks):
        if s in stamps:
            a.stamp(f"s{s}")
        if s + 1 < nks and (s + 1) % kpc == 0:
            a.e("s_barrier")
            bump((s + 1) // kpc)
        for t in range(nb):
            if s + 1 < nks:
                reads(s + 1, t)
            need = [("R", s, t)]
            if t == 0:
                need += [("A", s, r) for r in range(arows)]
            a.wait_lg(need)
            for rt in range(arows):
                d = acc(s, rt, t)
                cin = "0" if s in zero_at else d
                if swap:
                    a.e(f"v_mfma_f32_16x16x32_bf16 {d}, {wfrag(s,t)}, {afrag(s,rt)}, {cin}")
                else:
                    a.e(f"v_mfma_f32_16x16x32_bf16 {d}, {afrag(s,rt)}, {wfrag(s,t)}, {cin}")
            if per_tile:
                per_tile(s, t)


def mk_bump(a, regs, slot, nsl):
    def f(c):
        d = slot if (c % nsl) else -(nsl - 1) * slot
        for r in regs:
            a.e(f"v_add_u32 v{r}, {d if d > 0 else hex(d & 0xffffffff)}, v{r}")
    return f


def poll_counter(a, srd, voff, target, lab):
    a.label(lab)
    a.e(f"buffer_load_dword v21, v{voff}, {srd}, 0 offen sc1")
    a.e("s_waitcnt vmcnt(0)")
    a.vm = []
    a.e("v_readfirstlane_b32 s72, v21")
    a.e(f"s_cmp_ge_u32 s72, {target}")
    a.e(f"s_cbranch_scc1 {lab}_done")
    a.e("s_sleep 8")
    a.e(f"s_branch {lab}")
    a.label(lab + "_done")


def gen_k1(a):
    a.label("k1_kernel")
    a.e("s_cmp_ge_u32 s2, 256")
    a.e("s_cbranch_scc1 k1_exit")
    a.stamp("start")
    prologue_kernargs(a)
    a.e("s_and_b32 s3, s2, 7")
    a.e("s_lshr_b32 s4, s2, 3")
    a.e("s_lshr_b32 s5, s3, 2")
    a.e("s_lshl_b32 s5, s5, 3")
    a.e("s_and_b32 s6, s4, 7")
    a.e("s_add_u32 s5, s5, s6")
    a.e("s_lshr_b32 s6, s4, 3")
    a.e("s_and_b32 s7, s3, 3")
    a.e("s_lshl_b32 s7, s7, 1")
    a.e("s_and_b32 s8, s6, 1")
    a.e("s_add_u32 s7, s7, s8")
    a.e("v_lshrrev_b32 v1, 6, v0")
    a.e("v_and_b32 v0, 63, v0")
    a.e("s_nop 0")
    a.e("v_readfirstlane_b32 s9, v1")
    a.e("v_and_b32 v2, 15, v0")
    a.e("v_lshrrev_b32 v3, 4, v0")
    a.e("s_and_b32 s8, s7, 1")
    a.e("s_cmp_ge_u32 s9, 4")
    a.e("s_cbranch_scc0 k1_cons")
    a.e("s_sub_u32 s9, s9, 4")
    a.e("s_lshl_b32 s10, s5, 7")
    a.e("s_lshl_b32 s11, s9, 5")
    a.e("s_add_u32 s10, s10, s11")
    a.e("v_lshrrev_b32 v14, 2, v0")
    a.e("v_add_u32 v15, s10, v14")
    a.e("v_mul_u32_u24 v15, 1280, v15")
    a.e("v_lshrrev_b32 v14, 5, v0")
    a.e("v_mul_u32_u24 v14, 3, v14")
    a.e("v_and_b32 v16, 3, v0")
    a.e("v_xor_b32 v16, v16, v14")
    a.e("v_lshl_add_u32 v5, v16, 4, v15")
    a.e("s_lshl_b32 s14, s9, 11")
    a.e("s_mul_i32 s15, s9, 3072")
    a.e("s_add_u32 s15, s15, 8192")
    a.e("s_waitcnt lgkmcnt(0)")
    make_srd(a, 40, P_X, 2048 * 1280)
    make_srd(a, 48, P_WS, WS_USED)

    a.e("s_and_b32 s68, s5, 7")
    a.e("s_mul_i32 s68, s68, 5")
    a.e("s_lshr_b32 s68, s68, 1")
    a.e("s_mul_i32 s69, s6, 5")
    a.e("s_add_u32 s68, s68, s69")
    a.e("s_add_u32 s68, s68, s3")
    a.e("s_cmp_ge_u32 s68, 20")
    a.e("s_cselect_b32 s69, 20, 0")
    a.e("s_sub_u32 s68, s68, s69")
    a.e("s_cmp_ge_u32 s68, 20")
    a.e("s_cselect_b32 s69, 20, 0")
    a.e("s_sub_u32 s68, s68, s69")

    def adv_k():
        a.e("s_add_u32 s68, s68, 1")
        a.e("s_cmp_ge_u32 s68, 20")
        a.e("s_cselect_b32 s68, 0, s68")

    def dma_a(c):
        sl = c % NSL1
        for n in range(2):
            a.e(f"s_lshl_b32 s52, s68, 6")
            if n:
                a.e(f"s_add_u32 s52, s52, {n*16*1280}")
            a.e(f"s_add_u32 m0, s14, {sl*SLOT1 + n*1024}")
            a.e("s_nop 0")
            a.vmem(f"buffer_load_dwordx4 v5, s[40:43], s52 offen lds", f"dma{c}")

    a.e("s_cmp_ge_u32 s6, 2")
    a.e("s_cbranch_scc1 k1_ph")
    make_srd(a, 44, P_WQKV, 640 * 3840)
    a.e("s_and_b32 s12, s9, 1")
    a.e("s_mul_i32 s12, s12, 192")
    a.e("s_lshr_b32 s13, s9, 1")
    a.e("s_mul_i32 s10, s7, 160")
    a.e("s_lshl_b32 s11, s8, 5")
    a.e("s_sub_u32 s10, s10, s11")
    a.e("s_mul_i32 s11, s13, 1280")
    a.e("s_add_u32 s10, s10, s11")
    a.e("s_add_u32 s10, s10, 1280")
    DV = 8
    for n in range(3):
        d = DV + n
        a.e(f"v_add_u32 v19, s12, v0")
        if n:
            a.e(f"v_add_u32 v19, {64*n}, v19")
        a.e("v_mul_u32_u24 v20, 5462, v19")
        a.e("v_lshrrev_b32 v20, 16, v20")
        a.e("v_mul_u32_u24 v21, 12, v20")
        a.e("v_sub_u32 v19, v19, v21")
        a.e("v_bfe_u32 v21, v20, 2, 1")
        a.e("v_lshlrev_b32 v21, 1, v21")
        a.e("v_xor_b32 v19, v19, v21")
        kperm_vgpr(a, 21, 20, 22, 23)
        a.e("v_mul_u32_u24 v21, 3840, v21")
        a.e(f"v_lshl_add_u32 v{d}, v19, 4, v21")
        a.e(f"v_add_u32 v{d}, s10, v{d}")

    def dma_kv(c):
        dma_a(c)
        sl = c % NSL1
        a.e(f"s_mul_i32 s52, s68, {32*3840}")
        for n in range(3):
            a.e(f"s_add_u32 m0, s15, {sl*SLOT1 + n*1024}")
            a.e("s_nop 0")
            a.vmem(f"buffer_load_dwordx4 v{DV+n}, s[44:47], s52 offen lds", f"dma{c}")
        adv_k()

    def side_hook(c):
        if c == 0:
            side_jobs_issue(a)
        if c == 8:
            side_jobs_store(a)

    a.e("s_cmp_lg_u32 s5, 0")
    a.e("s_cbranch_scc1 k1_nozero")
    make_srd(a, 64, P_DBG, 256)
    a.e("s_lshl_b32 s10, s7, 13")
    a.e("s_lshl_b32 s11, s9, 11")
    a.e("s_add_u32 s10, s10, s11")
    a.e(f"s_add_u32 s10, s10, {hex(PART_OFF)}")
    a.e("v_lshl_add_u32 v24, v0, 4, s10")
    for i in range(4):
        a.e(f"v_mov_b32 v{28+i}, 0")
    a.e("buffer_store_dwordx4 v[28:31], v24, s[48:51], 0 offen sc1")
    a.e("buffer_store_dwordx4 v[28:31], v24, s[48:51], 0 offen offset:1024 sc1")
    a.e("s_waitcnt vmcnt(0)")
    a.e("s_lshl_b32 s10, s7, 2")
    a.e("v_mov_b32 v24, s10")
    a.e("v_mov_b32 v25, 1")
    a.e("v_cmp_eq_u32 vcc, 0, v0")
    a.e("s_and_saveexec_b64 s[54:55], vcc")
    a.e("buffer_atomic_add v25, v24, s[64:67], 0 offen sc1")
    a.e("s_mov_b64 exec, s[54:55]")
    a.e("s_waitcnt vmcnt(0)")
    a.label("k1_nozero")
    producer_loop(a, 20, NSL1, dma_kv, hook=side_hook)
    a.e("s_endpgm")
    a.label("k1_ph")
    a.vm = []
    make_srd(a, 44, P_W1, 640 * 3072)
    a.e("v_lshrrev_b32 v14, 3, v0")
    a.e("v_and_b32 v15, 3, v14")
    a.e("v_lshrrev_b32 v16, 2, v14")
    a.e("v_lshl_add_u32 v15, v16, 3, v15")
    a.e("v_mul_u32_u24 v8, 3072, v15")
    a.e("v_bfe_u32 v15, v0, 1, 2")
    a.e("v_lshrrev_b32 v16, 1, v14")
    a.e("v_xor_b32 v15, v15, v16")
    a.e("v_lshl_add_u32 v8, v15, 5, v8")
    a.e("v_and_b32 v15, 1, v0")
    a.e("v_lshl_add_u32 v8, v15, 4, v8")
    a.e("s_and_b32 s12, s9, 1")
    a.e("s_lshl_b32 s12, s12, 4")
    a.e("s_lshr_b32 s13, s9, 1")
    a.e("s_lshl_b32 s13, s13, 2")
    a.e("s_add_u32 s12, s12, s13")
    a.e("s_mul_i32 s12, s12, 3072")
    a.e("s_mul_i32 s13, s7, 384")
    a.e("s_add_u32 s12, s12, s13")
    a.e("v_add_u32 v8, s12, v8")

    def dma_h(c):
        dma_a(c)
        sl = c % NSL1
        a.e(f"s_mul_i32 s52, s68, {32*3072}")
        for cbk in range(3):
            if cbk:
                a.e(f"s_add_u32 s52, s52, 128")
            a.e(f"s_add_u32 m0, s15, {sl*SLOT1 + cbk*1024}")
            a.e("s_nop 0")
            a.vmem(f"buffer_load_dwordx4 v8, s[44:47], s52 offen lds", f"dma{c}")
        adv_k()

    producer_loop(a, 20, NSL1, dma_h, hook=side_hook)
    a.e("s_endpgm")

    a.label("k1_cons")
    a.vm = []
    a.lg = []
    a.e("v_lshrrev_b32 v14, 3, v2")
    a.e("v_mul_u32_u24 v14, 3, v14")
    a.e("v_xor_b32 v14, v14, v3")
    a.e("v_lshlrev_b32 v15, 6, v2")
    a.e("v_lshl_add_u32 v17, v14, 4, v15")
    a.e("s_waitcnt lgkmcnt(0)")
    make_srd(a, 48, P_WS, WS_USED)
    a.e("s_cmp_ge_u32 s6, 2")
    a.e("s_cbranch_scc1 k1_ch")
    a.e("v_lshrrev_b32 v19, 2, v0")
    a.e("v_mul_u32_u24 v19, 192, v19")
    a.e("v_and_b32 v20, 3, v0")
    a.e("v_lshl_add_u32 v19, v20, 3, v19")
    a.e("s_lshl_b32 s11, s8, 5")
    a.e("s_add_u32 s11, s11, 8192")
    a.e("v_add_u32 v19, s11, v19")
    a.e("v_and_b32 v20, 1, v3")
    a.e("v_lshlrev_b32 v20, 5, v20")
    a.e("s_cmp_eq_u32 s8, 0")
    a.e("s_cselect_b32 s11, 1, -1")
    a.e("v_mul_lo_u32 v20, v20, s11")
    a.e("v_add_u32 v24, v19, v20")
    a.e("v_sub_u32 v25, v19, v20")
    a.e("s_lshl_b32 s14, s9, 11")
    a.e("v_add_u32 v26, s14, v17")
    ACC = 32
    WB = 112
    AB = 192

    def reads_kv(s, t):
        if t < 2:
            a.lds(f"ds_read_b128 {vr(AB+((s&1)*2+t)*4,4)}, v26 offset:{t*1024}", ("A", s, t))
        for hf in range(2):
            off = (t // 5) * 6144 + 16 * hf * 192 + (t % 5) * 32
            v = 24 if (t % 5) % 2 == 0 else 25
            a.lds(f"ds_read_b64_tr_b16 {vr(WB+((s&1)*10+t)*4+2*hf,2)}, v{v} offset:{off}", ("R", s, t))

    consumer_loop(a, 20, 1, 10, 2, lambda s, t: vr(WB + ((s & 1) * 10 + t) * 4, 4),
                  lambda s, rt: vr(AB + ((s & 1) * 2 + rt) * 4, 4),
                  lambda s, rt, t: vr(ACC + (t * 2 + rt) * 4, 4), reads_kv,
                  mk_bump(a, [24, 25, 26], SLOT1, NSL1), False, stamps=(0, 1, 4, 8, 12, 16))
    a.stamp("loop")
    a.c("KV epilogue")
    a.nop(8)
    a.e(f"s_mov_b32 s58, {EPS}")
    phi_consts(a)
    PK = 112
    T = 152
    for t in range(5):
        for rt in range(2):
            c = ACC + (t * 2 + rt) * 4
            phi_inplace(a, c, T + (12 if rt else 0), PK + t * 4 + rt * 2, PK + t * 4 + rt * 2 + 1, "s58")
    for t in range(5, 10):
        for rt in range(2):
            c = ACC + (t * 2 + rt) * 4
            a.e(f"v_cvt_pk_bf16_f32 v{PK+t*4+rt*2}, v{c}, v{c+1}")
            a.e(f"v_cvt_pk_bf16_f32 v{PK+t*4+rt*2+1}, v{c+2}, v{c+3}")
    ONES = 176
    for i in range(4):
        a.e(f"v_mov_b32 v{ONES+i}, 0x3f803f80")
    a.nop(2)
    D2 = 32
    pairs = [(i, j) for i in range(5) for j in range(5) if abs(i - j) <= 1]
    for (i, j) in pairs:
        a.e(f"v_mfma_f32_16x16x32_bf16 {vr(D2+(2*i+j)*4,4)}, {vr(PK+i*4,4)}, {vr(PK+(5+j)*4,4)}, 0")
    for i in range(5):
        a.e(f"v_mfma_f32_16x16x32_bf16 {vr(D2+(13+i)*4,4)}, {vr(PK+i*4,4)}, {vr(ONES,4)}, 0")
    a.e("s_barrier")
    a.e("s_mul_i32 s12, s9, 18432")
    a.e("v_lshl_add_u32 v14, v0, 4, s12")
    a.nop(8)
    for k in range(18):
        a.lds(f"ds_write_b128 v14, {vr(D2+k*4,4)} offset:{k*1024}", "W")
    a.wait_lg_all()
    a.e("s_barrier")
    a.e("s_lshl_b32 s12, s9, 6")
    a.e("v_add_u32 v16, s12, v0")
    a.e("s_lshl_b32 s12, s7, 13")
    a.e(f"s_add_u32 s12, s12, {hex(PART_OFF)}")
    make_srd(a, 64, P_DBG, 256)
    a.e("s_lshl_b32 s10, s7, 2")
    a.e("v_mov_b32 v20, s10")
    poll_counter(a, "s[64:67]", 20, 4, "k1_zpoll")
    for it in range(7):
        b = 112 + it * 16
        I, H_, RM, DD, E_, Dg, Eg, TI, AD = [b + k for k in range(9)]
        a.e(f"v_add_u32 v{I}, {256*it}, v16")
        a.e(f"v_mul_u32_u24 v{H_}, 1249, v{I}")
        a.e(f"v_lshrrev_b32 v{H_}, 19, v{H_}")
        a.e(f"v_mul_u32_u24 v{RM}, 420, v{H_}")
        a.e(f"v_sub_u32 v{RM}, v{I}, v{RM}")
        a.e(f"v_mul_u32_u24 v{DD}, 3277, v{RM}")
        a.e(f"v_lshrrev_b32 v{DD}, 16, v{DD}")
        a.e(f"v_mul_u32_u24 v{E_}, 20, v{DD}")
        a.e(f"v_sub_u32 v{E_}, v{RM}, v{E_}")
        a.e(f"v_mul_u32_u24 v{H_}, 20, v{H_}")
        a.e(f"v_cmp_eq_u32 vcc, 20, v{DD}")
        a.e(f"v_add_u32 v{Eg}, v{H_}, v{E_}")
        a.e(f"v_add_u32 v{Dg}, v{H_}, v{DD}")
        a.e(f"v_cndmask_b32 v{Dg}, v{Dg}, v{Eg}, vcc")
        a.e(f"v_lshrrev_b32 v{TI}, 4, v{Dg}")
        a.e(f"v_lshrrev_b32 v{AD}, 4, v{Eg}")
        a.e(f"v_lshl_add_u32 v{AD}, v{TI}, 1, v{AD}")
        a.e(f"v_add_u32 v{TI}, 13, v{TI}")
        a.e(f"v_cndmask_b32 v{TI}, v{AD}, v{TI}, vcc")
        a.e(f"v_and_b32 v{Eg}, 15, v{Eg}")
        a.e(f"v_cndmask_b32 v{Eg}, v{Eg}, 0, vcc")
        a.e(f"v_bfe_u32 v{AD}, v{Dg}, 2, 2")
        a.e(f"v_lshl_add_u32 v{AD}, v{AD}, 4, v{Eg}")
        a.e(f"v_lshlrev_b32 v{AD}, 4, v{AD}")
        a.e(f"v_lshl_add_u32 v{AD}, v{TI}, 10, v{AD}")
        a.e(f"v_and_b32 v{Dg}, 3, v{Dg}")
        a.e(f"v_lshl_add_u32 v{AD}, v{Dg}, 2, v{AD}")
        if it == 6:
            a.e(f"v_cmp_gt_u32 vcc, 1680, v{I}")
            a.e("s_nop 1")
            a.e(f"v_cndmask_b32 v{AD}, 0, v{AD}, vcc")
        for w in range(4):
            a.lds(f"ds_read_b32 v{b+10+w}, v{AD} offset:{w*18432}", ("Q", it))
        a.e(f"v_lshl_add_u32 v{I}, v{I}, 2, s12")
    for it in range(7):
        b = 112 + it * 16
        a.wait_lg(("Q", it))
        a.e(f"v_add_f32 v{b+10}, v{b+10}, v{b+11}")
        a.e(f"v_add_f32 v{b+12}, v{b+12}, v{b+13}")
        a.e(f"v_add_f32 v{b+10}, v{b+10}, v{b+12}")
        if it == 6:
            a.e("s_and_saveexec_b64 s[60:61], vcc")
        a.vmem(f"buffer_atomic_add_f32 v{b+10}, v{b}, s[48:51], 0 offen", "st")
        if it == 6:
            a.e("s_mov_b64 exec, s[60:61]")
    a.stamp("end")
    a.dump_stamps()
    a.e("s_endpgm")

    a.label("k1_ch")
    a.vm = []
    a.lg = []
    a.nstamp = 1
    a.e("v_lshrrev_b32 v14, 5, v0")
    a.e("v_mul_u32_u24 v14, 3072, v14")
    a.e("v_bfe_u32 v15, v0, 2, 3")
    a.e("v_lshl_add_u32 v14, v15, 7, v14")
    a.e("v_and_b32 v16, 3, v0")
    a.e("v_lshl_add_u32 v14, v16, 3, v14")
    a.e("v_add_u32 v14, 8192, v14")
    a.e("v_lshrrev_b32 v15, 1, v15")
    a.e("s_and_b32 s13, s9, 1")
    for t in range(6):
        a.e(f"s_mul_i32 s12, s13, 6")
        a.e(f"s_add_u32 s12, s12, {t}")
        a.e("s_and_b32 s11, s12, 3")
        a.e("s_lshr_b32 s12, s12, 2")
        a.e("s_lshl_b32 s12, s12, 10")
        a.e("v_xor_b32 v16, s11, v15")
        a.e(f"v_lshl_add_u32 v{20+t}, v16, 5, v14")
        a.e(f"v_add_u32 v{20+t}, s12, v{20+t}")
    a.e("s_lshr_b32 s12, s9, 1")
    a.e("s_lshl_b32 s12, s12, 12")
    a.e("v_add_u32 v26, s12, v17")
    ACCH = 32
    WBH = 128
    ABH = 176
    BB = 208
    make_srd(a, 64, P_B1, 3072)
    a.e("s_mul_i32 s12, s7, 384")
    a.e("s_mul_i32 s11, s13, 192")
    a.e("s_add_u32 s12, s12, s11")
    a.e("v_lshl_add_u32 v28, v3, 3, s12")
    for t in range(6):
        a.vmem(f"buffer_load_dwordx2 {vr(BB+2*t,2)}, v28, s[64:67], 0 offen offset:{32*t}", "bias")

    def reads_h(s, t):
        if t < 4:
            a.lds(f"ds_read_b128 {vr(ABH+((s&1)*4+t)*4,4)}, v26 offset:{t*1024}", ("A", s, t))
        for hf in range(2):
            a.lds(f"ds_read_b64_tr_b16 {vr(WBH+((s&1)*6+t)*4+2*hf,2)}, v{20+t} offset:{2*hf*3072}", ("R", s, t))

    consumer_loop(a, 20, 1, 6, 4, lambda s, t: vr(WBH + ((s & 1) * 6 + t) * 4, 4),
                  lambda s, rt: vr(ABH + ((s & 1) * 4 + rt) * 4, 4),
                  lambda s, rt, t: vr(ACCH + (t * 4 + rt) * 4, 4), reads_h,
                  mk_bump(a, [20, 21, 22, 23, 24, 25, 26], SLOT1, NSL1), True, stamps=(0, 1, 4, 8, 12, 16))
    a.stamp("loop")
    a.c("H epilogue")
    a.e("s_lshl_b32 s12, s5, 3")
    a.e("s_lshr_b32 s11, s9, 1")
    a.e("s_lshl_b32 s11, s11, 2")
    a.e("s_add_u32 s12, s12, s11")
    a.e(f"s_mul_i32 s12, s12, {ACT_RT}")
    a.e("s_mul_i32 s11, s7, 6")
    a.e("s_mul_i32 s10, s13, 3")
    a.e("s_add_u32 s11, s11, s10")
    a.e("s_add_u32 s11, s11, 20")
    a.e("s_lshl_b32 s11, s11, 10")
    a.e("s_add_u32 s12, s12, s11")
    a.e("v_lshrrev_b32 v14, 1, v3")
    a.e("v_lshl_add_u32 v14, v14, 4, v2")
    a.e("v_lshlrev_b32 v14, 4, v14")
    a.e("v_and_b32 v15, 1, v3")
    a.e("v_lshl_add_u32 v14, v15, 3, v14")
    for rt in range(4):
        a.e(f"v_add_u32 v{8+rt}, s12, v14")
        a.e(f"s_add_u32 s12, s12, {ACT_RT}")
    a.wait_vm("bias")
    a.nop(4)
    T = 128
    for t in range(6):
        bf = T
        unpack(a, bf, bf + 1, BB + 2 * t)
        unpack(a, bf + 2, bf + 3, BB + 2 * t + 1)
        for rt in range(4):
            c = ACCH + (t * 4 + rt) * 4
            p = T + 4 + (rt & 1) * 8
            f = p + 2
            o = T + 20 + ((t * 4 + rt) % 8) * 2
            a.e(f"v_cvt_pk_bf16_f32 v{p}, v{c}, v{c+1}")
            a.e(f"v_cvt_pk_bf16_f32 v{p+1}, v{c+2}, v{c+3}")
            unpack(a, f, f + 1, p)
            unpack(a, f + 2, f + 3, p + 1)
            a.e(f"v_pk_add_f32 {vr(f,2)}, {vr(f,2)}, {vr(bf,2)}")
            a.e(f"v_pk_add_f32 {vr(f+2,2)}, {vr(f+2,2)}, {vr(bf+2,2)}")
            a.e(f"v_cvt_pk_bf16_f32 v{p}, v{f}, v{f+1}")
            a.e(f"v_cvt_pk_bf16_f32 v{p+1}, v{f+2}, v{f+3}")
            a.e(f"v_pk_max_i16 v{p}, v{p}, 0")
            a.e(f"v_pk_max_i16 v{p+1}, v{p+1}, 0")
            unpack(a, f, f + 1, p)
            unpack(a, f + 2, f + 3, p + 1)
            a.e(f"v_pk_mul_f32 {vr(f,2)}, {vr(f,2)}, {vr(f,2)}")
            a.e(f"v_pk_mul_f32 {vr(f+2,2)}, {vr(f+2,2)}, {vr(f+2,2)}")
            a.e(f"v_cvt_pk_bf16_f32 v{o}, v{f}, v{f+1}")
            a.e(f"v_cvt_pk_bf16_f32 v{o+1}, v{f+2}, v{f+3}")
            a.vmem(f"buffer_store_dwordx2 {vr(o,2)}, v{8+rt}, s[48:51], 0 offen offset:{(t>>1)*1024 + (t&1)*512}", "st")
    a.stamp("end")
    a.dump_stamps()
    a.label("k1_exit")
    a.e("s_endpgm")


def ids_64x80(a):
    a.e("s_and_b32 s3, s2, 7")
    a.e("s_lshr_b32 s4, s2, 3")
    a.e("s_lshr_b32 s5, s3, 1")
    a.e("s_lshl_b32 s5, s5, 3")
    a.e("s_and_b32 s6, s4, 7")
    a.e("s_add_u32 s5, s5, s6")
    a.e("s_and_b32 s7, s3, 1")
    a.e("s_lshl_b32 s7, s7, 2")
    a.e("s_lshr_b32 s6, s4, 3")
    a.e("s_add_u32 s7, s7, s6")
    a.e("v_lshrrev_b32 v1, 6, v0")
    a.e("v_and_b32 v0, 63, v0")
    a.e("s_nop 0")
    a.e("v_readfirstlane_b32 s9, v1")
    a.e("v_and_b32 v2, 15, v0")
    a.e("v_lshrrev_b32 v3, 4, v0")
    a.e("v_lshlrev_b32 v7, 4, v0")


SLOT2 = 18432


def producer_setup_64x80(a, w_off, w_nks, a_off, a_rt_stride):
    a.e(f"s_mul_i32 s12, s7, {w_nks*5120}")
    a.e(f"s_add_u32 s12, s12, {hex(w_off)}")
    a.e("s_lshl_b32 s13, s5, 2")
    a.e(f"s_mul_i32 s13, s13, {a_rt_stride}")
    a.e(f"s_add_u32 s13, s13, {hex(a_off)}")
    for n in range(6):
        a.e("s_mul_i32 s14, s9, 6")
        a.e(f"s_add_u32 s14, s14, {n}")
        a.e("s_cmp_ge_u32 s14, 9")
        a.e("s_cselect_b32 s15, 1, 0")
        a.e("s_mul_i32 s10, s15, 9")
        a.e("s_sub_u32 s14, s14, s10")
        a.e("s_mul_i32 s10, s15, 5120")
        a.e("s_lshl_b32 s11, s14, 10")
        a.e("s_add_u32 s10, s10, s11")
        a.e("s_add_u32 s10, s10, s12")
        a.e("s_sub_u32 s11, s14, 5")
        a.e(f"s_mul_i32 s11, s11, {a_rt_stride}")
        a.e("s_lshl_b32 s15, s15, 10")
        a.e("s_add_u32 s11, s11, s15")
        a.e("s_add_u32 s11, s11, s13")
        a.e("s_movk_i32 s15, 2048")
        a.e("s_cmp_lt_u32 s14, 5")
        a.e("s_cselect_b32 s10, s10, s11")
        a.e("s_cselect_b32 s15, 10240, s15")
        a.e(f"v_add_u32 v{8+n}, s10, v7")
        a.e(f"v_mov_b32 v{14+n}, s15")
    a.e("s_mul_i32 s15, s9, 6144")


def rot_64x80(a, segs):
    a.e("s_and_b32 s68, s5, 7")
    a.e("s_lshl_b32 s68, s68, 2")
    a.e("s_and_b32 s69, s7, 3")
    a.e("s_add_u32 s68, s68, s69")


def seg_start(a, n, dst):
    a.e(f"s_mul_i32 {dst}, s68, {n}")
    a.e(f"s_lshr_b32 {dst}, {dst}, 5")


def mk_dma_64x80(a, nsl, srd, segs):
    bounds = {f: n for f, n in segs}

    def dma(c):
        sl = c % nsl
        if c in bounds:
            n = bounds[c]
            seg_start(a, n, "s69")
            for k in range(6):
                a.e(f"v_mul_lo_u32 v20, v{14+k}, s69")
                a.e(f"v_add_u32 v{8+k}, v{8+k}, v20")
        for n in range(6):
            a.e(f"s_add_u32 m0, s15, {sl*SLOT2 + n*1024}")
            a.e("s_nop 0")
            a.vmem(f"buffer_load_dwordx4 v{8+n}, {srd}, 0 offen lds", f"dma{c}")
        f, n = [(f, n) for f, n in segs if f <= c < f + n][0]
        last = (c == f + n - 1)
        a.e("s_add_u32 s69, s69, 1")
        a.e(f"s_cmp_ge_u32 s69, {n}")
        if not last:
            a.e(f"s_cselect_b32 s70, {1-n & 0xffffffff:#x}, 1")
            a.e("s_cselect_b32 s69, 0, s69")
        else:
            a.e(f"s_sub_u32 s70, {n+1}, s69")
        for k in range(6):
            a.e(f"v_mul_lo_u32 v20, v{14+k}, s70")
            a.e(f"v_add_u32 v{8+k}, v{8+k}, v20")
    return dma


def producer_addr(a, w_off, w_nks, w_ks0, a_off, a_rt_stride, a_ks0):
    a.e(f"s_mul_i32 s12, s7, {w_nks*5120}")
    a.e(f"s_add_u32 s12, s12, {hex(w_off + w_ks0*5120)}")
    a.e("s_lshl_b32 s13, s5, 2")
    a.e(f"s_mul_i32 s13, s13, {a_rt_stride}")
    a.e(f"s_add_u32 s13, s13, {hex(a_off + a_ks0*1024)}")
    for n in range(6):
        a.e("s_mul_i32 s14, s9, 6")
        a.e(f"s_add_u32 s14, s14, {n}")
        a.e("s_cmp_ge_u32 s14, 9")
        a.e("s_cselect_b32 s71, 1, 0")
        a.e("s_mul_i32 s10, s71, 9")
        a.e("s_sub_u32 s14, s14, s10")
        a.e("s_mul_i32 s10, s71, 5120")
        a.e("s_lshl_b32 s11, s14, 10")
        a.e("s_add_u32 s10, s10, s11")
        a.e("s_add_u32 s10, s10, s12")
        a.e("s_sub_u32 s11, s14, 5")
        a.e(f"s_mul_i32 s11, s11, {a_rt_stride}")
        a.e("s_lshl_b32 s71, s71, 10")
        a.e("s_add_u32 s11, s11, s71")
        a.e("s_add_u32 s11, s11, s13")
        a.e("s_movk_i32 s71, 2048")
        a.e("s_cmp_lt_u32 s14, 5")
        a.e("s_cselect_b32 s10, s10, s11")
        a.e("s_cselect_b32 s71, 10240, s71")
        a.e(f"v_add_u32 v{8+n}, s10, v7")
        a.e(f"v_mov_b32 v{14+n}, s71")


def mk_dma_seg(a, nsl, srd, segs):
    def dma(c):
        sl = c % nsl
        f, n, setup, flags = [sg for sg in segs if sg[0] <= c < sg[0] + sg[1]][0]
        if c == f:
            setup()
            seg_start(a, n, "s69")
            for k in range(6):
                a.e(f"v_mul_lo_u32 v20, v{14+k}, s69")
                a.e(f"v_add_u32 v{8+k}, v{8+k}, v20")
        for k in range(6):
            a.e(f"s_add_u32 m0, s15, {sl*SLOT2 + k*1024}")
            a.e("s_nop 0")
            a.vmem(f"buffer_load_dwordx4 v{8+k}, {srd}, 0 offen{flags} lds", f"dma{c}")
        if c != f + n - 1:
            a.e("s_add_u32 s69, s69, 1")
            a.e(f"s_cmp_ge_u32 s69, {n}")
            a.e(f"s_cselect_b32 s70, {1-n & 0xffffffff:#x}, 1")
            a.e("s_cselect_b32 s69, 0, s69")
            for k in range(6):
                a.e(f"v_mul_lo_u32 v20, v{14+k}, s70")
                a.e(f"v_add_u32 v{8+k}, v{8+k}, v20")
    return dma


def gen_k2(a):
    NSL = 7
    IMG = NSL * SLOT2
    a.label("k2_kernel")
    a.e("s_cmp_ge_u32 s2, 256")
    a.e("s_cbranch_scc1 k2_exit")
    a.stamp("start")
    prologue_kernargs(a)
    ids_64x80(a)
    a.e("s_cmp_ge_u32 s9, 4")
    a.e("s_cbranch_scc0 k2_cons")
    a.e("s_sub_u32 s9, s9, 4")
    a.e("s_mul_i32 s15, s9, 6144")
    a.e("s_lshl_b32 s10, s9, 6")
    a.e("v_add_u32 v30, s10, v0")
    a.e("s_lshl_b32 s10, s5, 7")
    a.e(f"s_add_u32 s10, s10, {hex(FLAG_OFF)}")
    a.e("v_mov_b32 v31, s10")
    a.e("s_waitcnt lgkmcnt(0)")
    make_srd(a, 48, P_WS, WS_USED)
    make_srd(a, 44, P_DBG, 256)
    for i in range(4):
        a.e(f"v_mov_b32 v{20+i}, 0")
    a.e("v_lshlrev_b32 v24, 4, v30")
    a.e(f"v_add_u32 v24, {IMG}, v24")
    for i in range(10):
        a.lds(f"ds_write_b128 v24, v[20:23] offset:{i*3072}", "Z")
    a.wait_lg_all()
    a.e("s_lshl_b32 s12, s7, 13")
    a.e(f"s_add_u32 s12, s12, {hex(PART_OFF)}")
    a.e("v_lshl_add_u32 v25, v30, 4, s12")
    PL = 64

    def p_issue(r):
        a.vmem(f"buffer_load_dwordx4 {vr(PL+r*4,4)}, v25, s[48:51], 0 offen offset:{r*3072 if r < 2 else 0}" if r < 2 else
               f"buffer_load_dwordx4 {vr(PL+r*4,4)}, v26, s[48:51], 0 offen", f"P{r}")

    a.e("v_add_u32 v26, 6144, v25")

    def p_proc(r):
        a.wait_vm(f"P{r}")
        b = PL + r * 4
        a.e(f"v_cvt_pk_bf16_f32 v32, v{b}, v{b+1}")
        a.e(f"v_cvt_pk_bf16_f32 v33, v{b+2}, v{b+3}")
        F, H_, RM, DD, E0, AD = 34, 35, 36, 37, 38, 39
        a.e(f"v_add_u32 v{F}, {192*r}, v30")
        a.e(f"v_mul_u32_u24 v{H_}, 625, v{F}")
        a.e(f"v_lshrrev_b32 v{H_}, 16, v{H_}")
        a.e(f"v_mul_u32_u24 v{RM}, 105, v{H_}")
        a.e(f"v_sub_u32 v{RM}, v{F}, v{RM}")
        a.e(f"v_mul_u32_u24 v{DD}, 13108, v{RM}")
        a.e(f"v_lshrrev_b32 v{DD}, 16, v{DD}")
        a.e(f"v_mul_u32_u24 v{E0}, 5, v{DD}")
        a.e(f"v_sub_u32 v{E0}, v{RM}, v{E0}")
        a.e(f"v_lshlrev_b32 v{E0}, 2, v{E0}")
        a.e(f"v_mul_u32_u24 v{H_}, 20, v{H_}")
        a.e(f"v_add_u32 v{AD}, v{H_}, v{E0}")
        a.e(f"v_mul_u32_u24 v{AD}, 192, v{AD}")
        a.e(f"v_add_u32 v40, v{H_}, v{DD}")
        a.e(f"v_lshl_add_u32 v{AD}, v40, 1, v{AD}")
        a.e(f"v_add_u32 v{AD}, {IMG}, v{AD}")
        a.e(f"v_cmp_gt_u32 vcc, 420, v{F}")
        a.e("s_mov_b64 s[60:61], vcc")
        a.e(f"v_cmp_gt_u32 s[62:63], 20, v{DD}")
        a.e(f"v_cmp_eq_u32 s[64:65], 20, v{DD}")
        a.e("s_and_b64 s[62:63], s[62:63], s[60:61]")
        a.e("s_and_b64 s[64:65], s[64:65], s[60:61]")
        a.e("v_lshrrev_b32 v41, 16, v32")
        a.e("v_lshrrev_b32 v42, 16, v33")
        a.e("s_mov_b64 s[66:67], exec")
        a.e("s_mov_b64 exec, s[62:63]")
        a.lds(f"ds_write_b16 v{AD}, v32", "S")
        a.lds(f"ds_write_b16 v{AD}, v41 offset:192", "S")
        a.lds(f"ds_write_b16 v{AD}, v33 offset:384", "S")
        a.lds(f"ds_write_b16 v{AD}, v42 offset:576", "S")
        a.e("s_mov_b64 exec, s[66:67]")
        a.e(f"v_mul_u32_u24 v{AD}, 192, v{H_}")
        a.e(f"v_add_u32 v40, v{H_}, v{E0}")
        a.e(f"v_lshl_add_u32 v{AD}, v40, 1, v{AD}")
        a.e(f"v_add_u32 v{AD}, {IMG+15360}, v{AD}")
        a.e("s_mov_b64 exec, s[64:65]")
        for ee in range(20):
            a.lds(f"ds_write_b64 v{AD}, v[32:33] offset:{192*ee}", "S")
        a.e("s_mov_b64 exec, s[66:67]")
        a.wait_lg_all()


    def phook(c):
        if c == 0:
            for r in range(3):
                p_issue(r)
        if c in (2, 3, 4):
            p_proc(c - 2)
        if c == 9:
            a.e("s_barrier")

    def setup_a():
        poll_counter(a, "s[48:51]", 31, 8, "k2_poll")
        producer_addr(a, W2F_OFF, 68, 0, 0, ACT_RT, 0)

    rot_64x80(a, None)
    segs = [(0, 10, lambda: producer_addr(a, WQF_OFF, 20, 0, XF_OFF, 20480, 0), ""),
            (10, 24, lambda: producer_addr(a, W2F_OFF, 68, 20, 0, ACT_RT, 20), ""),
            (34, 10, setup_a, " sc1")]
    producer_loop(a, 44, NSL, mk_dma_seg(a, NSL, "s[48:51]", segs), hook=phook)
    a.e("s_endpgm")

    a.label("k2_cons")
    a.vm = []
    a.lg = []
    a.e("s_lshl_b32 s10, s5, 2")
    a.e("s_add_u32 s10, s10, s9")
    a.e("s_lshl_b32 s11, s10, 4")
    a.e("v_add_u32 v4, s11, v2")
    a.e("v_lshlrev_b32 v6, 4, v3")
    a.e("s_lshl_b32 s12, s9, 10")
    a.e("s_add_u32 s12, s12, 5120")
    a.e("v_add_u32 v8, s12, v7")
    a.e("v_mov_b32 v9, v7")
    a.e("s_waitcnt lgkmcnt(0)")
    make_srd(a, 48, P_WS, WS_USED)
    make_srd(a, 52, P_GW, 1280)
    make_srd(a, 44, P_DBG, 256)
    make_srd(a, 40, P_B2, 1280)
    make_srd(a, 56, P_OUT, 2048 * 1280)
    GF = 112
    rot_64x80(a, None)
    seg_start(a, 10, "s69")
    for c in range(10):
        a.e("s_lshl_b32 s70, s69, 7")
        for ks in range(2):
            s_ = 2 * c + ks
            a.vmem(f"buffer_load_dwordx4 {vr(GF+s_*4,4)}, v6, s[52:55], s70 offen offset:{64*ks}", f"G{s_}")
        a.e("s_add_u32 s69, s69, 1")
        a.e("s_cmp_ge_u32 s69, 10")
        a.e("s_cselect_b32 s69, 0, s69")
    a.e("s_mul_i32 s12, s7, 160")
    a.e("v_lshl_add_u32 v28, v3, 3, s12")
    B2 = 240
    for t in range(5):
        a.vmem(f"buffer_load_dwordx2 {vr(B2+2*t,2)}, v28, s[40:43], 0 offen offset:{32*t}", "b2")
    ACC = 32
    WB = 64
    AB = 104
    GA = 56
    a.e(f"v_mov_b32 v{GA}, 0")

    def reads(s, t):
        ks = s % 2
        if t == 0:
            a.lds(f"ds_read_b128 {vr(AB+(s&1)*4,4)}, v8 offset:{ks*9216}", ("A", s, 0))
        a.lds(f"ds_read_b128 {vr(WB+((s&1)*5+t)*4,4)}, v9 offset:{ks*9216+t*1024}", ("R", s, t))

    def per_tile(s, t):
        if t == 0:
            a.wait_vm(f"G{s}")
        if t < 4:
            a.e(f"v_dot2_f32_bf16 v{GA}, v{AB+(s&1)*4+t}, v{GF+s*4+t}, v{GA}")

    bump = mk_bump(a, [8, 9], SLOT2, NSL)
    consumer_loop(a, 20, 2, 5, 1, lambda s, t: vr(WB + ((s & 1) * 5 + t) * 4, 4), lambda s, rt: vr(AB + (s & 1) * 4, 4),
                  lambda s, rt, t: vr(ACC + t * 4, 4), reads, bump, True, per_tile=per_tile,
                  stamps=(0, 8))
    a.stamp("loopdone")
    a.c("phase B epilogue")
    a.e(f"s_mov_b32 s58, {EPS}")
    phi_consts(a)
    PQ = 184
    T = 196
    a.nop(6)
    for t in range(5):
        phi_inplace(a, ACC + t * 4, T + (12 if t & 1 else 0), PQ + t * 2, PQ + t * 2 + 1, "s58")
    a.e(f"v_mov_b32 v{PQ+10}, 0")
    a.e(f"v_mov_b32 v{PQ+11}, 0")
    a.e("v_mul_u32_u24 v14, 192, v2")
    a.e("v_lshl_add_u32 v14, v3, 3, v14")
    a.e(f"v_add_u32 v14, {IMG}, v14")
    a.e("s_barrier")
    a.stamp("img")
    ju = [(0, 0), (1, 0), (1, 1), (2, 0), (2, 1), (3, 1), (3, 2), (4, 1), (4, 2)]
    KF = 112
    for n, (j, u) in enumerate(ju):
        for im in range(2):
            b = KF + im * 36 + n * 4
            off = im * 15360 + j * 16 * 192 + u * 64
            a.lds(f"ds_read_b64 {vr(b,2)}, v14 offset:{off}", ("F", n, im))
            a.lds(f"ds_read_b64 {vr(b+2,2)}, v14 offset:{off+32}", ("F", n, im))
    NUM = 64
    seen = set()
    for n, (j, u) in enumerate(ju):
        for im in range(2):
            d = vr(NUM + im * 20 + j * 4, 4)
            cin = d if (im, j) in seen else "0"
            seen.add((im, j))
            a.wait_lg(("F", n, im))
            a.e(f"v_mfma_f32_16x16x32_bf16 {d}, {vr(KF+im*36+n*4,4)}, {vr(PQ+u*4,4)}, {cin}")
    a.e(f"s_mul_i32 s12, s10, {ACT_RT}")
    a.e("s_mul_i32 s11, s7, 2560")
    a.e("s_add_u32 s12, s12, s11")
    a.e("v_lshrrev_b32 v14, 1, v3")
    a.e("v_lshl_add_u32 v14, v14, 4, v2")
    a.e("v_lshlrev_b32 v14, 4, v14")
    a.e("v_add_u32 v6, s12, v14")
    a.e("v_and_b32 v15, 1, v3")
    a.e("v_lshl_add_u32 v5, v15, 9, v6")
    a.nop(4)
    for j in range(5):
        n_ = NUM + j * 4
        d_ = NUM + 20 + j * 4
        p = T
        f = T + 4
        g = T + 8
        a.e(f"v_cvt_pk_bf16_f32 v{p}, v{n_}, v{n_+1}")
        a.e(f"v_cvt_pk_bf16_f32 v{p+1}, v{n_+2}, v{n_+3}")
        a.e(f"v_cvt_pk_bf16_f32 v{p+2}, v{d_}, v{d_+1}")
        a.e(f"v_cvt_pk_bf16_f32 v{p+3}, v{d_+2}, v{d_+3}")
        unpack(a, f, f + 1, p)
        unpack(a, f + 2, f + 3, p + 1)
        unpack(a, g, g + 1, p + 2)
        unpack(a, g + 2, g + 3, p + 3)
        a.e(f"v_pk_add_f32 {vr(g,2)}, {vr(g,2)}, s[64:65]")
        a.e(f"v_pk_add_f32 {vr(g+2,2)}, {vr(g+2,2)}, s[64:65]")
        a.e(f"v_cvt_pk_bf16_f32 v{p+2}, v{g}, v{g+1}")
        a.e(f"v_cvt_pk_bf16_f32 v{p+3}, v{g+2}, v{g+3}")
        unpack(a, g, g + 1, p + 2)
        unpack(a, g + 2, g + 3, p + 3)
        for i in range(4):
            a.e(f"v_rcp_f32 v{g+4+i}, v{g+i}")
        a.e("s_nop 0")
        for i in range(4):
            a.e(f"v_mul_f32 v{g+8+i}, v{f+i}, v{g+4+i}")
        for i in range(4):
            a.e(f"v_fma_f32 v{f+i}, -v{g+i}, v{g+8+i}, v{f+i}")
        for i in range(4):
            a.e(f"v_fma_f32 v{g+8+i}, v{f+i}, v{g+4+i}, v{g+8+i}")
        O = T + 24 + (j // 2) * 4
        if j < 4:
            o = O + (j & 1) * 2
            a.e(f"v_cvt_pk_bf16_f32 v{o}, v{g+8}, v{g+9}")
            a.e(f"v_cvt_pk_bf16_f32 v{o+1}, v{g+10}, v{g+11}")
        else:
            a.e(f"v_cvt_pk_bf16_f32 v{O}, v{g+8}, v{g+9}")
            a.e(f"v_cvt_pk_bf16_f32 v{O+1}, v{g+10}, v{g+11}")
            a.e(f"v_mov_b32 v{O+2}, v{O}")
            a.e(f"v_mov_b32 v{O+3}, v{O+1}")
        if j & 1 or j == 4:
            a.nop(2)
            a.e(f"v_permlane16_swap_b32 v{O}, v{O+2}")
            a.e(f"v_permlane16_swap_b32 v{O+1}, v{O+3}")
            a.nop(1)
            a.vmem(f"buffer_store_dwordx4 {vr(O,4)}, v{5 if j < 4 else 6}, s[48:51], 0 offen offset:{512*(j & ~1)} sc1", "st")
    a.e(f"v_mov_b32 v57, v{GA}")
    a.nop(2)
    a.e(f"v_permlane32_swap_b32 v57, v{GA}")
    a.nop(2)
    a.e(f"v_add_f32 v{GA}, v57, v{GA}")
    a.e(f"v_mov_b32 v57, v{GA}")
    a.nop(2)
    a.e(f"v_permlane16_swap_b32 v57, v{GA}")
    a.nop(2)
    a.e(f"v_add_f32 v{GA}, v57, v{GA}")
    a.e(f"v_cvt_pk_bf16_f32 v{GA}, v{GA}, v{GA}")
    a.e(f"v_lshlrev_b32 v{GA}, 16, v{GA}")
    a.e(f"v_mul_f32 v{GA}, 0xbfb8aa3b, v{GA}")
    a.e(f"v_exp_f32 v{GA}, v{GA}")
    a.e("s_nop 0")
    a.e(f"v_add_f32 v{GA}, 1.0, v{GA}")
    a.e(f"v_rcp_f32 v{GA}, v{GA}")
    a.e("s_nop 0")
    a.e(f"v_cvt_pk_bf16_f32 v{GA}, v{GA}, v{GA}")
    a.e(f"v_lshlrev_b32 v{GA}, 16, v{GA}")
    a.e(f"v_sub_f32 v57, 1.0, v{GA}")
    a.e("v_cvt_pk_bf16_f32 v57, v57, v57")
    a.e("v_lshlrev_b32 v57, 16, v57")
    a.wait_vm_all()
    a.stamp("pub")
    ACA = 16
    ACA = 112

    def reads_c(s, t):
        reads(s + 20, t)

    a.e("s_barrier")
    a.e("s_cmp_lg_u32 s9, 0")
    a.e("s_cbranch_scc1 k2_nopub")
    a.e("s_lshl_b32 s12, s5, 7")
    a.e(f"s_add_u32 s12, s12, {hex(FLAG_OFF)}")
    a.e("v_mov_b32 v58, s12")
    a.e("v_mov_b32 v59, 1")
    a.e("v_cmp_eq_u32 vcc, 0, v0")
    a.e("s_and_saveexec_b64 s[66:67], vcc")
    a.e("buffer_atomic_add v59, v58, s[48:51], 0 offen sc1")
    a.e("s_mov_b64 exec, s[66:67]")
    a.label("k2_nopub")
    bump(10)
    for t in range(5):
        reads(20, t)
    NK = 88
    for s in range(20, NK):
        if s in (28, 44, 68, 80):
            a.stamp(f"s{s}")
        if s + 1 < NK and (s + 1) % 2 == 0:
            a.e("s_barrier")
            bump((s + 1) // 2)
        for t in range(5):
            if s + 1 < NK:
                reads(s + 1, t)
            need = [("R", s, t)]
            if t == 0:
                need.append(("A", s, 0))
            a.wait_lg(need)
            d = vr(ACA + (20 if s < 68 else 0) + t * 4, 4)
            cin = "0" if s in (20, 68) else d
            a.e(f"v_mfma_f32_16x16x32_bf16 {d}, {vr(WB+((s&1)*5+t)*4,4)}, {vr(AB+(s&1)*4,4)}, {cin}")
    a.stamp("loopdone")
    a.c("final epilogue")
    a.e("v_mul_u32_u24 v5, 1280, v4")
    a.e("v_lshl_add_u32 v5, v3, 3, v5")
    a.e("s_mul_i32 s12, s7, 160")
    a.e("v_add_u32 v5, s12, v5")
    a.nop(6)
    T = 160
    for t in range(5):
        ca = ACA + t * 4
        cb = ACA + 20 + t * 4
        p = T
        fa = T + 4
        fb = T + 8
        bb = T + 12
        a.e(f"v_cvt_pk_bf16_f32 v{p}, v{ca}, v{ca+1}")
        a.e(f"v_cvt_pk_bf16_f32 v{p+1}, v{ca+2}, v{ca+3}")
        a.e(f"v_cvt_pk_bf16_f32 v{p+2}, v{cb}, v{cb+1}")
        a.e(f"v_cvt_pk_bf16_f32 v{p+3}, v{cb+2}, v{cb+3}")
        unpack(a, fa, fa + 1, p)
        unpack(a, fa + 2, fa + 3, p + 1)
        unpack(a, fb, fb + 1, p + 2)
        unpack(a, fb + 2, fb + 3, p + 3)
        unpack(a, bb, bb + 1, B2 + 2 * t)
        unpack(a, bb + 2, bb + 3, B2 + 2 * t + 1)
        a.e(f"v_pk_add_f32 {vr(fb,2)}, {vr(fb,2)}, {vr(bb,2)}")
        a.e(f"v_pk_add_f32 {vr(fb+2,2)}, {vr(fb+2,2)}, {vr(bb+2,2)}")
        for i in range(4):
            a.e(f"v_mul_f32 v{fa+i}, v{GA}, v{fa+i}")
        a.e(f"v_cvt_pk_bf16_f32 v{p+2}, v{fb}, v{fb+1}")
        a.e(f"v_cvt_pk_bf16_f32 v{p+3}, v{fb+2}, v{fb+3}")
        a.e(f"v_cvt_pk_bf16_f32 v{p}, v{fa}, v{fa+1}")
        a.e(f"v_cvt_pk_bf16_f32 v{p+1}, v{fa+2}, v{fa+3}")
        unpack(a, fb, fb + 1, p + 2)
        unpack(a, fb + 2, fb + 3, p + 3)
        unpack(a, fa, fa + 1, p)
        unpack(a, fa + 2, fa + 3, p + 1)
        for i in range(4):
            a.e(f"v_mul_f32 v{fb+i}, v57, v{fb+i}")
        a.e(f"v_cvt_pk_bf16_f32 v{p+2}, v{fb}, v{fb+1}")
        a.e(f"v_cvt_pk_bf16_f32 v{p+3}, v{fb+2}, v{fb+3}")
        unpack(a, fb, fb + 1, p + 2)
        unpack(a, fb + 2, fb + 3, p + 3)
        a.e(f"v_pk_add_f32 {vr(fa,2)}, {vr(fa,2)}, {vr(fb,2)}")
        a.e(f"v_pk_add_f32 {vr(fa+2,2)}, {vr(fa+2,2)}, {vr(fb+2,2)}")
        o = T + 20 + t * 2
        a.e(f"v_cvt_pk_bf16_f32 v{o}, v{fa}, v{fa+1}")
        a.e(f"v_cvt_pk_bf16_f32 v{o+1}, v{fa+2}, v{fa+3}")
        a.vmem(f"buffer_store_dwordx2 {vr(o,2)}, v5, s[56:59], 0 offen offset:{32*t}", "st")
    a.stamp("end")
    a.dump_stamps()
    a.label("k2_exit")
    a.e("s_endpgm")


HEADER = """; Kernarg layout for this problem (96 bytes, ptrs only, base s[0:1]):
; @launch kernel=k1_kernel grid=(256,1,1) block=(512,1,1) lds=163840
; @launch kernel=k2_kernel grid=(256,1,1) block=(448,1,1) lds=159744
.amdgcn_target "amdgcn-amd-amdhsa--gfx950"
.text
"""


def kd(name, vg, acc_off, sg=102):
    return f""".amdhsa_kernel {name}
  .amdhsa_next_free_vgpr {vg}
  .amdhsa_next_free_sgpr {sg}
  .amdhsa_accum_offset {acc_off}
  .amdhsa_group_segment_fixed_size 0
  .amdhsa_kernarg_size 96
  .amdhsa_user_sgpr_count 2
  .amdhsa_user_sgpr_kernarg_segment_ptr 1
  .amdhsa_system_sgpr_workgroup_id_x 1
.end_amdhsa_kernel
"""


def main():
    for i in range(1280):
        assert (i * 6554) >> 16 == i // 10
    for i in range(1792):
        assert (i * 1249) >> 19 == i // 420, i
    for i in range(420):
        assert (i * 3277) >> 16 == i // 20
    for i in range(576):
        assert (i * 625) >> 16 == i // 105, i
    for i in range(105):
        assert (i * 13108) >> 16 == i // 5
    for i in range(768):
        assert (i * 5462) >> 16 == i // 12
    for i in range(640):
        assert (i * 820) >> 16 == i // 80
    for i in range(2560):
        assert (i * 52429) >> 18 == i // 5
        assert (i * 52429) >> 20 == i // 20
    out = [HEADER]
    for nm, fn in (("k1_kernel", gen_k1), ("k2_kernel", gen_k2)):
        a = Asm()
        a.kid = int(nm[1])
        fn(a)
        out.append(f".globl {nm}\n.p2align 8\n.type {nm},@function\n" + "\n".join(a.lines) + "\n")
    out.append('.section .rodata,"a"\n')
    for nm in ("k1_kernel", "k2_kernel"):
        out.append(".p2align 6\n" + kd(nm, 256, 256))
    path = sys.argv[1] if len(sys.argv) > 1 else f"cdna_kernels/{NAME}.s"
    open(path, "w").write("".join(out))


if __name__ == "__main__":
    main()
```

```python
import sys
import os
sys.path.insert(0, os.path.dirname(os.path.abspath(__file__)))
from gen import (Asm, vr, ar, make_srd, prologue_kernargs, kperm_vgpr, unpack, LOG2E, NAME, kd,
                 P_X, P_WQKV, P_WO, P_BX, P_W1, P_B1, P_W2, P_B2, P_GW, P_OUT, P_DBG, P_WS,
                 ACT_RT, PART_OFF, XF_OFF, WQF_OFF, W2F_OFF, FLAG_OFF, WS_USED)

FAITH = int(os.environ.get("FAITH", "1"))
INITD = int(os.environ.get("INITD", "0"))
PFA = int(os.environ.get("PFA", "0"))
PFW = int(os.environ.get("PFW", "0"))
NOSC1 = int(os.environ.get("NOSC1", "0"))
ROT = int(os.environ.get("ROT", "0"))
PUBA_DL = int(os.environ.get("PUBA_DL", "5"))
PUBO_DL = int(os.environ.get("PUBO_DL", "8"))
NOREPACK = int(os.environ.get("NOREPACK", "0"))
RP_ISSUE = int(os.environ.get("RP_ISSUE", "-1"))
RP_STORE = int(os.environ.get("RP_STORE", "2"))

ACT_OFF = 4096
BI_AFTER = int(os.environ.get("BI_AFTER", "19"))
SLOT1 = 20480
NSL1 = 8
SLOT2 = 18432
NSL2 = 7
IMG = NSL2 * SLOT2
GWL = IMG + 30720
SCR = 90112
F_RW = FLAG_OFF
F_KV = FLAG_OFF + 128 * 8
F_H = FLAG_OFF + 128 * 16
F_O = FLAG_OFF + 128 * 32
F_H2 = FLAG_OFF + 128 * 64

S_XCD, S_J, S_RBA, S_CBA, S_COLA, S_PAR, S_W = 3, 4, 5, 6, 7, 8, 9
S_RB, S_CB = 74, 75
SRD_X, SRD_W, SRD_WS, SRD_T = 40, 44, 48, 64


def s4(b):
    return f"s[{b}:{b+3}]"


def poll(a, srd, voff, target, lab, tmp=21, sleep=4):
    a.label(lab)
    a.e(f"buffer_load_dword v{tmp}, v{voff}, {srd}, 0 offen sc1")
    a.e("s_waitcnt vmcnt(0)")
    a.vm = []
    a.e(f"v_readfirstlane_b32 s72, v{tmp}")
    a.e(f"s_cmp_ge_u32 s72, {target}")
    a.e(f"s_cbranch_scc1 {lab}_done")
    a.e(f"s_sleep {sleep}")
    a.e(f"s_branch {lab}")
    a.label(lab + "_done")


def flag_add(a, srd, saddr, v0t=58):
    a.e(f"v_mov_b32 v{v0t}, {saddr}")
    a.e(f"v_mov_b32 v{v0t+1}, 1")
    a.e("s_mov_b64 exec, 1")
    a.e(f"buffer_atomic_add v{v0t+1}, v{v0t}, {srd}, 0 offen sc1")
    a.e("s_mov_b64 exec, -1")


def gen(a):
    a.label("fused_kernel")
    a.e("s_cmp_ge_u32 s2, 256")
    a.e("s_cbranch_scc1 f_exit")
    a.stamp("start")
    prologue_kernargs(a)
    a.e("s_and_b32 s3, s2, 7")
    a.e("s_lshr_b32 s4, s2, 3")
    a.e("s_lshr_b32 s5, s3, 2")
    a.e("s_lshl_b32 s5, s5, 3")
    a.e("s_and_b32 s6, s4, 7")
    a.e("s_add_u32 s5, s5, s6")
    a.e("s_lshr_b32 s6, s4, 3")
    a.e("s_and_b32 s7, s3, 3")
    a.e("s_lshl_b32 s7, s7, 1")
    a.e("s_and_b32 s8, s6, 1")
    a.e("s_add_u32 s7, s7, s8")
    a.e("s_and_b32 s8, s7, 1")
    a.e(f"s_lshr_b32 s{S_RB}, s3, 1")
    a.e(f"s_lshl_b32 s{S_RB}, s{S_RB}, 3")
    a.e("s_and_b32 s10, s4, 7")
    a.e(f"s_add_u32 s{S_RB}, s{S_RB}, s10")
    a.e(f"s_and_b32 s{S_CB}, s3, 1")
    a.e(f"s_lshl_b32 s{S_CB}, s{S_CB}, 2")
    a.e(f"s_add_u32 s{S_CB}, s{S_CB}, s6")
    a.e("v_lshrrev_b32 v1, 6, v0")
    a.e("v_and_b32 v0, 63, v0")
    a.e("s_nop 0")
    a.e("v_readfirstlane_b32 s9, v1")
    a.e("v_and_b32 v2, 15, v0")
    a.e("v_lshrrev_b32 v3, 4, v0")
    a.e("v_lshlrev_b32 v7, 4, v0")
    a.e(f"s_and_b32 s73, s{S_RB}, 7")
    a.e("s_lshl_b32 s73, s73, 2")
    a.e(f"s_and_b32 s10, s{S_CB}, 3")
    a.e("s_add_u32 s73, s73, s10")
    if ROT == 1:
        a.e("s_mov_b32 s73, 0")
    if ROT == 2:
        a.e("s_and_b32 s73, s73, 0x18")
    if ROT == 3:
        a.e(f"s_and_b32 s73, s{S_CB}, 3")
        a.e("s_lshl_b32 s73, s73, 3")
    a.e("s_waitcnt lgkmcnt(0)")
    make_srd(a, SRD_X, P_X, 2048 * 1280)
    make_srd(a, SRD_WS, P_WS, WS_USED)
    a.e("s_cmp_ge_u32 s9, 4")
    a.e("s_cbranch_scc0 f_cons")
    gen_producers(a)
    a.label("f_cons")
    a.vm = []
    a.lg = []
    gen_consumers(a)
    a.label("f_exit")
    a.e("s_endpgm")


XS = 16384
WS1 = 12288
WBASE = 65536


def gen_producers(a):
    a.e("s_sub_u32 s9, s9, 4")
    a.e("s_lshl_b32 s10, s5, 7")
    a.e("s_lshl_b32 s11, s9, 5")
    a.e("s_add_u32 s10, s10, s11")
    a.e("v_lshrrev_b32 v14, 3, v0")
    a.e("v_add_u32 v15, s10, v14")
    a.e("v_mul_u32_u24 v15, 1280, v15")
    a.e("v_lshrrev_b32 v14, 1, v14")
    a.e("v_and_b32 v16, 7, v0")
    a.e("v_xor_b32 v16, v16, v14")
    a.e("v_lshl_add_u32 v44, v16, 4, v15")
    a.e("v_xor_b32 v16, 4, v16")
    a.e("v_lshl_add_u32 v45, v16, 4, v15")
    a.e(f"v_add_u32 v45, {8*1280 - 1024}, v45")
    a.e(f"v_add_u32 v46, {16*1280 - 2048}, v44")
    a.e(f"v_add_u32 v47, {16*1280 - 2048}, v45")
    a.e("s_lshl_b32 s14, s9, 12")
    a.e("s_mul_i32 s15, s9, 3072")
    a.e(f"s_add_u32 s15, s15, {WBASE}")
    a.e("s_and_b32 s68, s5, 7")
    a.e("s_mul_i32 s69, s6, 3")
    a.e("s_add_u32 s68, s68, s69")
    a.e("s_add_u32 s68, s68, s3")
    for _ in range(2):
        a.e("s_cmp_ge_u32 s68, 10")
        a.e("s_cselect_b32 s69, 10, 0")
        a.e("s_sub_u32 s68, s68, s69")
    a.e("s_mov_b32 s70, s68")
    a.e("s_lshl_b32 s68, s68, 1")
    a.e("s_add_u32 s10, s2, s9")
    a.e("s_cmp_lg_u32 s10, 0")
    a.e("s_cbranch_scc1 fp_noflag")
    make_srd(a, SRD_T, P_DBG, 256)
    a.e("v_lshlrev_b32 v24, 7, v0")
    a.e(f"v_add_u32 v24, {hex(FLAG_OFF)}, v24")
    a.e("v_mov_b32 v25, 0")
    for i in range(3):
        a.e(f"buffer_store_dword v25, v24, {s4(SRD_WS)}, 0 offen sc1")
        a.e("v_add_u32 v24, 8192, v24")
    a.e("s_waitcnt vmcnt(0)")
    a.e("s_mov_b32 s10, 32")
    flag_add(a, s4(SRD_T), "s10", 24)
    a.label("fp_noflag")

    def dma_x(J):
        a.e("s_lshl_b32 s52, s70, 7")
        a.e(f"s_add_u32 m0, s14, {(J % 4)*XS}")
        a.e("s_add_u32 s70, s70, 1")
        for n in range(4):
            a.vmem(f"buffer_load_dwordx4 v{44+n}, {s4(SRD_X)}, s52 offen offset:{1024*n} lds", f"dx{J}")
        a.e("s_cmp_ge_u32 s70, 10")
        a.e("s_cselect_b32 s70, 0, s70")

    def adv_k():
        a.e("s_add_u32 s68, s68, 1")
        a.e("s_cmp_ge_u32 s68, 20")
        a.e("s_cselect_b32 s68, 0, s68")

    def repack_dma(tag):
        a.e("s_min_u32 s53, s9, 2")
        a.e(f"s_mul_i32 s54, s{S_RB}, 3")
        a.e("s_add_u32 s54, s54, s53")
        a.e("s_min_u32 s54, s54, 87")
        a.e("s_movk_i32 s57, 1280")
        a.e(f"s_mov_b32 s66, {hex(640*1280)}")
        a.e("s_cmp_lt_u32 s54, 20")
        a.e(f"s_cselect_b32 s64, s{P_WQKV}, s{P_WO}")
        a.e(f"s_cselect_b32 s65, s{P_WQKV+1}, s{P_WO+1}")
        a.e("s_cselect_b32 s57, 3840, s57")
        a.e("s_cselect_b32 s58, 0, 20")
        a.e(f"s_cselect_b32 s66, {hex(640*3840)}, s66")
        a.e("s_cmp_lt_u32 s54, 40")
        a.e(f"s_cselect_b32 s64, s64, s{P_W2}")
        a.e(f"s_cselect_b32 s65, s65, s{P_W2+1}")
        a.e("s_cselect_b32 s58, s58, 40")
        a.e(f"s_cselect_b32 s66, s66, {hex(1536*1280)}")
        a.e("s_and_b32 s65, s65, 0xffff")
        a.e("s_mov_b32 s67, 0x00020000")
        a.e("s_sub_u32 s58, s54, s58")
        a.e("s_lshl_b32 s58, s58, 5")
        a.e("s_mul_i32 s58, s58, s57")
        a.e(f"s_mul_i32 s59, s{S_CB}, 160")
        a.e(f"s_and_b32 s60, s{S_CB}, 1")
        a.e("s_lshl_b32 s60, s60, 5")
        a.e("s_sub_u32 s59, s59, s60")
        a.e("s_add_u32 s58, s58, s59")
        a.e("s_mul_i32 s59, s53, 6144")
        a.e(f"s_add_u32 s59, s59, {WBASE + 6*WS1}")
        for n in range(6):
            a.e(f"v_add_u32 v19, {64*n}, v0")
            a.e("v_mul_u32_u24 v20, 5462, v19")
            a.e("v_lshrrev_b32 v20, 16, v20")
            a.e("v_mul_u32_u24 v21, 12, v20")
            a.e("v_sub_u32 v19, v19, v21")
            a.e("v_bfe_u32 v21, v20, 2, 1")
            a.e("v_lshlrev_b32 v21, 1, v21")
            a.e("v_xor_b32 v19, v19, v21")
            kperm_vgpr(a, 21, 20, 22, 23)
            a.e("v_mul_lo_u32 v21, v21, s57")
            a.e("v_lshl_add_u32 v19, v19, 4, v21")
            a.e(f"s_add_u32 m0, s59, {n*1024}")
            a.e("s_nop 0")
            a.vmem("buffer_load_dwordx4 v19, s[64:67], s58 offen lds", "RP")

    def loop_a(dma_w, tag):
        wi, xi = 0, 0

        def issue_w():
            nonlocal wi, xi
            dma_w(wi)
            wi += 1

        dma_x(0); xi = 1
        issue_w(); issue_w()
        dma_x(1); xi = 2
        issue_w()
        if INITD >= 1:
            issue_w()
        repack_dma(tag)
        if INITD >= 2:
            dma_x(2); xi = 3
            issue_w(); issue_w()
        for c in range(20):
            assert xi > c // 2 and wi > c
            if c == 1:
                a.e("s_waitcnt vmcnt(%d)" % (len(a.vm) - 1 - max(i for i, t in enumerate(a.vm) if t == "RP")))
                a.vm = a.vm[max(i for i, t in enumerate(a.vm) if t == "RP") + 1:]
            a.wait_vm([f"dma{c}", f"dx{c//2}"])
            a.e("s_barrier")
            k = 0
            while k < 2:
                did = False
                if xi < 10 and (xi < 4 or c >= 2 * xi - 5) and 2 * xi <= wi + 1:
                    dma_x(xi)
                    xi += 1
                    did = True
                if wi < min(20, c + NSL1 - 1) and (wi < 6 or c >= 3):
                    issue_w()
                    did = True
                k += 1
                if not did:
                    break
            if c == 15:
                a.e(f"s_lshl_b32 s10, s{S_CB}, 7")
                a.e(f"s_add_u32 s10, s10, {hex(F_RW)}")
                a.e("v_mov_b32 v40, s10")
            if c == 18:
                a.vmem(f"buffer_load_dword v42, v40, {s4(SRD_WS)}, 0 offen sc1", "pp0")
        assert wi == 20 and xi == 10
        if tag == "kv":
            a.e("s_branch fp_tail")

    a.e("s_cmp_ge_u32 s6, 2")
    a.e("s_cbranch_scc1 fp_h")
    make_srd(a, SRD_W, P_WQKV, 640 * 3840)
    a.e("s_and_b32 s12, s9, 1")
    a.e("s_mul_i32 s12, s12, 192")
    a.e("s_lshr_b32 s13, s9, 1")
    a.e("s_mul_i32 s10, s7, 160")
    a.e("s_lshl_b32 s11, s8, 5")
    a.e("s_sub_u32 s10, s10, s11")
    a.e("s_mul_i32 s11, s13, 1280")
    a.e("s_add_u32 s10, s10, s11")
    a.e("s_add_u32 s10, s10, 1280")
    for n in range(3):
        d = 8 + n
        a.e("v_add_u32 v19, s12, v0")
        if n:
            a.e(f"v_add_u32 v19, {64*n}, v19")
        a.e("v_mul_u32_u24 v20, 5462, v19")
        a.e("v_lshrrev_b32 v20, 16, v20")
        a.e("v_mul_u32_u24 v21, 12, v20")
        a.e("v_sub_u32 v19, v19, v21")
        a.e("v_bfe_u32 v21, v20, 2, 1")
        a.e("v_lshlrev_b32 v21, 1, v21")
        a.e("v_xor_b32 v19, v19, v21")
        kperm_vgpr(a, 21, 20, 22, 23)
        a.e("v_mul_u32_u24 v21, 3840, v21")
        a.e(f"v_lshl_add_u32 v{d}, v19, 4, v21")
        a.e(f"v_add_u32 v{d}, s10, v{d}")
        if n:
            a.e(f"v_subrev_u32 v{d}, {1024*n}, v{d}")
    a.e("s_cmp_lg_u32 s5, 0")
    a.e("s_cbranch_scc1 fp_nozero")
    make_srd(a, SRD_T, P_DBG, 256)
    a.e("s_lshl_b32 s10, s7, 13")
    a.e("s_lshl_b32 s11, s9, 11")
    a.e("s_add_u32 s10, s10, s11")
    a.e(f"s_add_u32 s10, s10, {hex(PART_OFF)}")
    a.e("v_lshl_add_u32 v24, v0, 4, s10")
    for i in range(4):
        a.e(f"v_mov_b32 v{28+i}, 0")
    a.e(f"buffer_store_dwordx4 v[28:31], v24, {s4(SRD_WS)}, 0 offen sc1")
    a.e(f"buffer_store_dwordx4 v[28:31], v24, {s4(SRD_WS)}, 0 offen offset:1024 sc1")
    a.e("s_waitcnt vmcnt(0)")
    a.e("s_lshl_b32 s10, s7, 2")
    flag_add(a, s4(SRD_T), "s10", 24)
    a.label("fp_nozero")

    def dma_kv(c):
        a.e(f"s_mul_i32 s52, s68, {32*3840}")
        a.e(f"s_add_u32 m0, s15, {(c % NSL1)*WS1}")
        adv_k()
        for n in range(3):
            a.vmem(f"buffer_load_dwordx4 v{8+n}, {s4(SRD_W)}, s52 offen offset:{1024*n} lds", f"dma{c}")

    loop_a(dma_kv, "kv")
    vm_after = list(a.vm)
    a.label("fp_h")
    a.vm = []
    make_srd(a, SRD_W, P_W1, 640 * 3072)
    a.e("v_lshrrev_b32 v14, 3, v0")
    a.e("v_and_b32 v15, 3, v14")
    a.e("v_lshrrev_b32 v16, 2, v14")
    a.e("v_lshl_add_u32 v15, v16, 3, v15")
    a.e("v_mul_u32_u24 v8, 3072, v15")
    a.e("v_bfe_u32 v15, v0, 1, 2")
    a.e("v_lshrrev_b32 v16, 1, v14")
    a.e("v_xor_b32 v15, v15, v16")
    a.e("v_lshl_add_u32 v8, v15, 5, v8")
    a.e("v_and_b32 v15, 1, v0")
    a.e("v_lshl_add_u32 v8, v15, 4, v8")
    a.e("s_and_b32 s12, s9, 1")
    a.e("s_lshl_b32 s12, s12, 4")
    a.e("s_lshr_b32 s13, s9, 1")
    a.e("s_lshl_b32 s13, s13, 2")
    a.e("s_add_u32 s12, s12, s13")
    a.e("s_mul_i32 s12, s12, 3072")
    a.e("s_mul_i32 s13, s7, 384")
    a.e("s_add_u32 s12, s12, s13")
    a.e("v_add_u32 v8, s12, v8")

    def dma_h(c):
        a.e(f"s_mul_i32 s52, s68, {32*3072}")
        for cbk in range(3):
            a.e(f"s_add_u32 m0, s15, {(c % NSL1)*WS1 + cbk*1024}")
            if cbk == 0:
                adv_k()
            else:
                a.e("s_add_u32 s52, s52, 128")
            a.vmem(f"buffer_load_dwordx4 v8, {s4(SRD_W)}, s52 offen lds", f"dma{c}")

    loop_a(dma_h, "h")
    assert a.vm == vm_after
    a.label("fp_tail")
    a.e("s_barrier")
    a.e("s_cmp_eq_u32 s9, 3")
    a.e("s_cbranch_scc1 fp_helper")
    a.e("s_cmp_eq_u32 s9, 1")
    a.e("s_cbranch_scc1 fp_p1")
    a.e("s_cmp_eq_u32 s9, 2")
    a.e("s_cbranch_scc1 fp_p2")
    vm_keep = list(a.vm)

    segs = [(0, 10), (10, 24), (34, 10)]

    def gen_p(P):
        items = [("W", i) if i < 10 else ("A", i - 10) for i in range(6 * P, 6 * P + 6)]
        lab = f"fp{P}"

        def check(tag, vval, vaddr, target, lb):
            a.wait_vm(tag)
            a.e(f"v_readfirstlane_b32 s72, v{vval}")
            a.e(f"s_cmp_ge_u32 s72, {target}")
            a.e(f"s_cbranch_scc1 {lb}_done")
            vm = list(a.vm)
            poll(a, s4(SRD_WS), vaddr, target, lb, sleep=8)
            a.vm = vm

        def seg_setup(seg):
            n = segs[seg][1]
            if seg == 1:
                a.e("s_lshr_b32 s69, s73, 2")
                a.e("s_mul_i32 s69, s69, 3")
            else:
                a.e(f"s_mul_i32 s69, s73, {n}")
                a.e("s_lshr_b32 s69, s69, 5")
            w_off, w_nks, ks0 = [(WQF_OFF, 20, 0), (W2F_OFF, 68, 20), (W2F_OFF, 68, 0)][seg]
            a.e(f"s_mul_i32 s60, s{S_CB}, {w_nks*5120}")
            a.e(f"s_add_u32 s60, s60, {hex(w_off + ks0*5120)}")
            if seg == 0:
                a.e(f"s_lshl_b32 s61, s{S_RB}, 6")
                a.e("v_lshrrev_b32 v14, 3, v0")
                a.e("v_add_u32 v15, s61, v14")
                a.e("v_mul_u32_u24 v15, 1280, v15")
                a.e("v_lshrrev_b32 v14, 1, v14")
                a.e("v_and_b32 v16, 7, v0")
                a.e("v_xor_b32 v16, v16, v14")
                a.e("v_lshl_add_u32 v17, v16, 4, v15")
                a.e("v_xor_b32 v16, 4, v16")
                a.e("v_lshl_add_u32 v18, v16, 4, v15")
            else:
                a.e(f"s_lshl_b32 s61, s{S_RB}, 2")
                a.e(f"s_mul_i32 s61, s61, {ACT_RT}")
                a.e(f"s_add_u32 s61, s61, {hex(ACT_OFF + ks0*1024)}")
            for k, (ty, i) in enumerate(items):
                comp = (k & 3) * 1024
                if ty == "W":
                    a.e(f"s_add_u32 s10, s60, {hex((i*1024 - comp) & 0xffffffff)}")
                    a.e(f"v_add_u32 v{8+k}, s10, v7")
                elif seg == 0:
                    a.e(f"v_add_u32 v{8+k}, {i*8*1280}, v{17 + (i & 1)}")
                else:
                    ks, rt = i // 4, i % 4
                    a.e(f"s_add_u32 s10, s61, {hex((rt*ACT_RT + ks*1024 - comp) & 0xffffffff)}")
                    a.e(f"v_add_u32 v{8+k}, s10, v7")

        def dma2(c):
            sl = c % NSL2
            seg = [i for i, sg in enumerate(segs) if sg[0] <= c < sg[0] + sg[1]][0]
            n = segs[seg][1]
            has_a = any(ty == "A" for ty, _ in items)
            has_w = any(ty == "W" for ty, _ in items)
            if c == 0:
                if has_w:
                    check("pp0", 42, 40, 32, lab + "_rw")
                seg_setup(0)
            if has_a and c in range(8, 32, 3):
                g = (c - 8) // 3
                a.e("s_lshr_b32 s10, s73, 2")
                a.e(f"s_add_u32 s10, s10, {g}")
                a.e("s_and_b32 s10, s10, 7")
                a.e(f"s_lshr_b32 s11, s{S_RB}, 1")
                a.e("s_lshl_b32 s11, s11, 3")
                a.e("s_add_u32 s10, s10, s11")
                a.e("s_lshl_b32 s10, s10, 7")
                a.e(f"s_add_u32 s10, s10, {hex(F_H2)}")
                a.e("v_mov_b32 v40, s10")
                a.vmem(f"buffer_load_dword v42, v40, {s4(SRD_WS)}, 0 offen sc1", f"pp1{g}")
            if has_a and c in range(10, 34, 3):
                g = (c - 10) // 3
                check(f"pp1{g}", 42, 40, 4, lab + f"_h{g}")
            if c == 10:
                seg_setup(1)
            if c == 32 and has_a:
                a.e(f"s_lshl_b32 s10, s{S_RB}, 7")
                a.e(f"s_add_u32 s10, s10, {hex(F_O)}")
                a.e("v_mov_b32 v40, s10")
                a.vmem(f"buffer_load_dword v42, v40, {s4(SRD_WS)}, 0 offen sc1", "pp2")
            if c == 34:
                if has_a:
                    check("pp2", 42, 40, 32, lab + "_o")
                seg_setup(2)
            if has_w:
                a.e("s_mul_i32 s62, s69, 10240")
            if has_a:
                a.e(f"s_lshl_b32 s63, s69, {7 if seg == 0 else 11}")
            base = sl * SLOT2 + 6 * P * 1024
            cur_m0 = None
            for k, (ty, i) in enumerate(items):
                raw = (ty == "A" and seg == 0)
                m0v = base + (k * 1024 if raw else (k & ~3) * 1024)
                off = 0 if raw else (k & 3) * 1024
                if m0v != cur_m0:
                    a.e(f"s_mov_b32 m0, {m0v}")
                    a.e("s_nop 0")
                    cur_m0 = m0v
                srd = s4(SRD_X) if raw else s4(SRD_WS)
                so = "s62" if ty == "W" else "s63"
                fl = "" if (raw or NOSC1) else " sc1"
                a.vmem(f"buffer_load_dwordx4 v{8+k}, {srd}, {so} offen offset:{off}{fl} lds", f"d2{c}")
            a.e("s_add_u32 s69, s69, 1")
            a.e(f"s_cmp_ge_u32 s69, {n}")
            a.e("s_cselect_b32 s69, 0, s69")

        for c in range(4):
            dma2(c)
        a.e("s_barrier")
        a.e("s_barrier")
        dma2(4)
        dma2(5)
        issued = 6
        for c in range(44):
            a.wait_vm(f"d2{c}")
            a.e("s_barrier")
            if issued < 44 and (issued < NSL2 or issued <= c + NSL2 - 2):
                dma2(issued)
                issued += 1
            if c == BI_AFTER:
                a.e("s_barrier")
        a.e("s_endpgm")

    gen_p(0)
    a.label("fp_p1")
    a.vm = list(vm_keep)
    gen_p(1)
    a.label("fp_p2")
    a.vm = list(vm_keep)
    gen_p(2)

    a.label("fp_helper")
    a.vm = []
    a.lg = []
    a.e("s_barrier")
    a.e("s_barrier")
    if PFW:
        a.e("s_waitcnt vmcnt(0)")
        a.e("v_readfirstlane_b32 s72, v42")
        a.e("s_cmp_ge_u32 s72, 32")
        a.e("s_cbranch_scc0 fh_nopfw")
        a.e(f"s_and_b32 s10, s{S_RB}, 7")
        a.e("v_lshlrev_b32 v50, 7, v0")
        a.e(f"s_mul_i32 s11, s{S_CB}, {68*5120}")
        a.e(f"s_mul_i32 s12, s10, {68*5120//8}")
        a.e("s_add_u32 s11, s11, s12")
        a.e(f"s_add_u32 s11, s11, {hex(W2F_OFF)}")
        for i in range(6):
            a.e(f"buffer_load_dword v{52+i}, v50, {s4(SRD_WS)}, s11 offen")
            a.e("s_add_u32 s11, s11, 8192" if i < 4 else f"s_add_u32 s11, s11, {43520 - 5*8192}")
        a.label("fh_nopfw")
    for i in range(4):
        a.e(f"v_mov_b32 v{20+i}, 0")
    a.e(f"v_add_u32 v24, {IMG}, v7")
    for i in range(30):
        a.lds(f"ds_write_b128 v24, v[20:23] offset:{i*1024}", "Z")
    a.e(f"s_lshl_b32 s10, s{S_CB}, 7")
    a.e(f"s_add_u32 s10, s10, {hex(F_KV)}")
    a.e("v_mov_b32 v26, s10")
    a.e(f"s_lshl_b32 s12, s{S_CB}, 13")
    a.e(f"s_add_u32 s12, s12, {hex(PART_OFF)}")
    a.e("v_add_u32 v25, s12, v7")
    make_srd(a, SRD_T, P_GW, 1280)
    a.e(f"s_mov_b32 m0, {GWL}")
    a.e("s_nop 0")
    a.e(f"buffer_load_dwordx4 v7, {s4(SRD_T)}, 0 offen lds")
    a.e(f"buffer_load_dwordx4 v7, {s4(SRD_T)}, 0 offen offset:1024 lds")
    a.e("s_mov_b32 s60, 0")
    a.e("s_mov_b32 s61, 0")
    a.e("v_mov_b32 v30, v0")
    a.e("s_waitcnt vmcnt(0) lgkmcnt(0)")
    a.lg = []
    for i in range(8):
        a.e("s_barrier")
    a.e("s_mov_b32 s60, 8")
    a.label("fh_wait")
    a.e(f"buffer_load_dword v21, v26, {s4(SRD_WS)}, 0 offen sc1")
    for i in range(2):
        a.e("s_cmp_ge_u32 s60, %d" % (BI_AFTER + 1))
        a.e(f"s_cbranch_scc1 fh_nobar{i}")
        a.e("s_barrier")
        a.e("s_add_u32 s60, s60, 1")
        a.label(f"fh_nobar{i}")
    a.e("s_waitcnt vmcnt(0)")
    a.e("v_readfirstlane_b32 s72, v21")
    a.e("s_cmp_ge_u32 s72, 64")
    a.e("s_cbranch_scc0 fh_wait")
    for r in range(7):
        a.e(f"buffer_load_dwordx4 {vr(64+4*r,4)}, v25, {s4(SRD_WS)}, 0 offen" + (f" offset:{1024*r}" if r < 4 else "") + " sc1")
        if r == 3:
            a.e("v_add_u32 v25, 4096, v25")
        if r >= 4:
            a.e("v_add_u32 v25, 1024, v25")
    a.e("s_cmp_ge_u32 s60, %d" % (BI_AFTER + 1))
    a.e("s_cbranch_scc1 fh_loop")
    a.e("s_barrier")
    a.e("s_add_u32 s60, s60, 1")
    a.label("fh_loop")
    a.e("s_cmp_ge_u32 s60, %d" % (BI_AFTER + 1) + "")
    a.e("s_cbranch_scc1 fh_round")
    a.e("s_barrier")
    a.e("s_add_u32 s60, s60, 1")
    a.label("fh_round")
    F, H_, RM, DD, E0, AD = 30, 35, 36, 37, 38, 39
    a.e(f"v_mul_u32_u24 v{H_}, 625, v{F}")
    a.e(f"v_lshrrev_b32 v{H_}, 16, v{H_}")
    a.e(f"v_mul_u32_u24 v{RM}, 105, v{H_}")
    a.e(f"v_sub_u32 v{RM}, v{F}, v{RM}")
    a.e(f"v_mul_u32_u24 v{DD}, 13108, v{RM}")
    a.e(f"v_lshrrev_b32 v{DD}, 16, v{DD}")
    a.e(f"v_mul_u32_u24 v{E0}, 5, v{DD}")
    a.e(f"v_sub_u32 v{E0}, v{RM}, v{E0}")
    a.e(f"v_lshlrev_b32 v{E0}, 2, v{E0}")
    a.e(f"v_mul_u32_u24 v{H_}, 20, v{H_}")
    a.e(f"v_add_u32 v{AD}, v{H_}, v{E0}")
    a.e(f"v_mul_u32_u24 v{AD}, 192, v{AD}")
    a.e(f"v_add_u32 v40, v{H_}, v{DD}")
    a.e(f"v_lshl_add_u32 v{AD}, v40, 1, v{AD}")
    a.e(f"v_add_u32 v{AD}, {IMG}, v{AD}")
    a.e(f"v_mul_u32_u24 v43, 192, v{H_}")
    a.e(f"v_add_u32 v40, v{H_}, v{E0}")
    a.e(f"v_lshl_add_u32 v43, v40, 1, v43")
    a.e(f"v_add_u32 v43, {IMG+15360}, v43")
    a.e(f"v_cmp_gt_u32 vcc, 420, v{F}")
    a.e("s_mov_b64 s[56:57], vcc")
    a.e(f"v_cmp_gt_u32 s[52:53], 20, v{DD}")
    a.e(f"v_cmp_eq_u32 s[54:55], 20, v{DD}")
    a.e("s_and_b64 s[52:53], s[52:53], s[56:57]")
    a.e("s_and_b64 s[54:55], s[54:55], s[56:57]")
    a.e("s_waitcnt vmcnt(0)")
    a.e("v_cvt_pk_bf16_f32 v32, v64, v65")
    a.e("v_cvt_pk_bf16_f32 v33, v66, v67")
    for k in range(24):
        a.e(f"v_mov_b32 v{64+k}, v{68+k}")
    a.e("v_lshrrev_b32 v41, 16, v32")
    a.e("v_lshrrev_b32 v42, 16, v33")
    a.e("s_mov_b64 s[66:67], exec")
    a.e("s_mov_b64 exec, s[52:53]")
    a.e(f"ds_write_b16 v{AD}, v32")
    a.e(f"ds_write_b16 v{AD}, v41 offset:192")
    a.e(f"ds_write_b16 v{AD}, v33 offset:384")
    a.e(f"ds_write_b16 v{AD}, v42 offset:576")
    a.e("s_mov_b64 exec, s[54:55]")
    a.e("s_cbranch_execz fh_noz")
    for ee in range(20):
        a.e(f"ds_write_b64 v43, v[32:33] offset:{192*ee}")
    a.label("fh_noz")
    a.e("s_mov_b64 exec, s[66:67]")
    a.e(f"v_add_u32 v{F}, 64, v{F}")
    a.e("s_add_u32 s61, s61, 1")
    a.e("s_cmp_lt_u32 s61, 7")
    a.e("s_cbranch_scc1 fh_loop")
    a.e("s_waitcnt lgkmcnt(0)")
    a.label("fh_rest")
    a.e("s_cmp_ge_u32 s60, %d" % (BI_AFTER + 1) + "")
    a.e("s_cbranch_scc1 fh_bi")
    a.e("s_barrier")
    a.e("s_add_u32 s60, s60, 1")
    a.e("s_branch fh_rest")
    a.label("fh_bi")
    a.e("s_barrier")
    a.e("s_endpgm")


def repack_issue(a):
    a.e("s_min_u32 s53, s9, 2")
    a.e(f"s_mul_i32 s54, s{S_RB}, 3")
    a.e("s_add_u32 s54, s54, s53")
    a.e("s_min_u32 s54, s54, 87")
    a.e(f"s_mov_b32 s59, {hex(W2F_OFF)}")
    a.e("s_cmp_lt_u32 s54, 20")
    a.e(f"s_cselect_b32 s59, {hex(WQF_OFF)}, s59")
    a.e("s_cselect_b32 s60, 20, 68")
    a.e("s_cselect_b32 s61, 0, 20")
    a.e("s_sub_u32 s54, s54, s61")
    a.e(f"s_mul_i32 s60, s60, s{S_CB}")
    a.e("s_add_u32 s54, s54, s60")
    a.e("s_mul_i32 s54, s54, 5120")
    a.e("s_add_u32 s54, s54, s59")
    a.e("v_add_u32 v10, s54, v7")
    a.e("v_lshrrev_b32 v12, 2, v0")
    a.e("v_mul_u32_u24 v12, 192, v12")
    a.e("v_and_b32 v13, 3, v0")
    a.e("v_lshl_add_u32 v12, v13, 3, v12")
    a.e(f"s_and_b32 s60, s{S_CB}, 1")
    a.e("s_lshl_b32 s61, s60, 5")
    a.e("s_mul_i32 s59, s53, 6144")
    a.e("s_add_u32 s61, s61, s59")
    a.e(f"s_add_u32 s61, s61, {WBASE + 6*WS1}")
    a.e("v_add_u32 v12, s61, v12")
    a.e("v_and_b32 v13, 1, v3")
    a.e("v_lshlrev_b32 v13, 5, v13")
    a.e("s_cmp_eq_u32 s60, 0")
    a.e("s_cselect_b32 s61, 1, -1")
    a.e("v_mul_lo_u32 v13, v13, s61")
    a.e("v_add_u32 v8, v12, v13")
    a.e("v_sub_u32 v9, v12, v13")


def repack_reads(a):
    for t in range(5):
        for hf in range(2):
            a.lds(f"ds_read_b64_tr_b16 {vr(208+t*4+2*hf,2)}, v{8 + (t & 1)} offset:{16*hf*192 + t*32}", "RPR")


def repack_store(a):
    a.wait_lg("RPR")
    for t in range(4):
        a.vmem(f"buffer_store_dwordx4 {vr(208+4*t,4)}, v10, {s4(SRD_WS)}, 0 offen offset:{1024*t} sc1", "rst")
    a.e("v_add_u32 v10, 4096, v10")
    a.vmem(f"buffer_store_dwordx4 {vr(224,4)}, v10, {s4(SRD_WS)}, 0 offen sc1", "rst")
    a.nop(2)


def phi4(a, c, T, out0, out1):
    p0, p1 = T, T + 1
    f = T + 2
    ex = T + 6
    if FAITH:
        a.e(f"v_cvt_pk_bf16_f32 v{p0}, v{c}, v{c+1}")
        a.e(f"v_cvt_pk_bf16_f32 v{p1}, v{c+2}, v{c+3}")
        unpack(a, f, f + 1, p0)
        unpack(a, f + 2, f + 3, p1)
        src = f
    else:
        src = c
    a.e(f"v_pk_mul_f32 {vr(ex,2)}, {vr(src,2)}, s[60:61]")
    a.e(f"v_pk_mul_f32 {vr(ex+2,2)}, {vr(src+2,2)}, s[60:61]")
    for i in range(4):
        a.e(f"v_exp_f32 v{ex+i}, v{ex+i}")
    a.e(f"v_pk_add_f32 {vr(f,2)}, {vr(src,2)}, s[62:63]")
    a.e(f"v_pk_add_f32 {vr(f+2,2)}, {vr(src+2,2)}, s[62:63]")
    for i in range(4):
        a.e(f"v_med3_f32 v{f+i}, v{f+i}, v{ex+i}, 1.0")
    if FAITH:
        a.e(f"v_cvt_pk_bf16_f32 v{p0}, v{f}, v{f+1}")
        a.e(f"v_cvt_pk_bf16_f32 v{p1}, v{f+2}, v{f+3}")
        unpack(a, f, f + 1, p0)
        unpack(a, f + 2, f + 3, p1)
    a.e(f"v_pk_add_f32 {vr(f,2)}, {vr(f,2)}, s[64:65]")
    a.e(f"v_pk_add_f32 {vr(f+2,2)}, {vr(f+2,2)}, s[64:65]")
    a.e(f"v_cvt_pk_bf16_f32 v{out0}, v{f}, v{f+1}")
    a.e(f"v_cvt_pk_bf16_f32 v{out1}, v{f+2}, v{f+3}")


def phi_consts(a):
    a.e(f"s_mov_b32 s60, {LOG2E}")
    a.e(f"s_mov_b32 s61, {LOG2E}")
    a.e("s_mov_b32 s62, 1.0")
    a.e("s_mov_b32 s63, 1.0")
    a.e("s_mov_b32 s64, 0x358637bd")
    a.e("s_mov_b32 s65, 0x358637bd")


def loop_a_cons(a, nb, arows, wfrag, afrag, acc, reads, regs, swap, cinit=None, post_repack=None):
    def bump(c):
        pass

    make_srd(a, SRD_T, P_DBG, 256)
    a.e("v_mov_b32 v254, 32")
    a.e("s_barrier")
    a.stamp("a0")
    for t in range(nb):
        reads(0, t)
    for s in range(20):
        if os.environ.get("ASTAMP") and s in (2, 4, 6, 8, 10, 12, 14, 16, 18):
            a.stamp(f"a{s}")
        if s == 1:
            repack_reads(a)
        if s == 2:
            a.vmem(f"buffer_load_dword v255, v254, {s4(SRD_T)}, 0 offen sc1", "rst")
            repack_store(a)
            if post_repack:
                post_repack()
        if s + 1 < 20:
            if s == 11:
                a.wait_vm("rst")
            a.e("s_barrier")
            bump(s + 1)
            if s == 11:
                lab = f"fc_norp{swap}"
                a.e("s_cmp_lg_u32 s9, 0")
                a.e(f"s_cbranch_scc1 {lab}")
                lg = list(a.lg)
                vm = list(a.vm)
                a.e("v_readfirstlane_b32 s72, v255")
                a.e("s_cmp_ge_u32 s72, 1")
                a.e(f"s_cbranch_scc1 {lab}_p_done")
                make_srd(a, SRD_T, P_DBG, 256)
                poll(a, s4(SRD_T), 254, 1, lab + "_p", tmp=255)
                a.e(f"s_lshl_b32 s10, s{S_CB}, 7")
                a.e(f"s_add_u32 s10, s10, {hex(F_RW)}")
                flag_add(a, s4(SRD_WS), "s10", 254)
                a.label(lab)
                a.lg = lg
                a.vm = vm
        for t in range(nb):
            if s + 1 < 20:
                reads(s + 1, t)
            need = [("R", s, t)]
            if t == 0:
                need += [("A", s, r) for r in range(arows)]
            a.wait_lg(need)
            for rt in range(arows):
                d = acc(rt, t)
                cin = d if s else (cinit(t) if cinit else "0")
                if swap:
                    a.e(f"v_mfma_f32_16x16x32_bf16 {d}, {wfrag(s,t)}, {afrag(s,rt)}, {cin}")
                else:
                    a.e(f"v_mfma_f32_16x16x32_bf16 {d}, {afrag(s,rt)}, {wfrag(s,t)}, {cin}")


def prefetch_a(a):
    a.e("s_lshl_b32 s53, s4, 2")
    a.e("s_add_u32 s53, s53, s9")
    a.e("s_lshr_b32 s54, s3, 2")
    a.e(f"s_mul_i32 s54, s54, {1024*1280}")
    a.e(f"s_mul_i32 s55, s53, {80*128}")
    a.e("s_add_u32 s54, s54, s55")
    a.e("v_lshlrev_b32 v32, 7, v0")
    a.e(f"buffer_load_dword v250, v32, {s4(SRD_X)}, s54 offen")
    a.e("v_and_b32 v33, 15, v0")
    a.e("v_lshlrev_b32 v33, 7, v33")
    a.e("s_add_u32 s54, s54, 8192")
    a.e(f"buffer_load_dword v251, v33, {s4(SRD_X)}, s54 offen")
    a.e("s_and_b32 s56, s3, 3")
    make_srd(a, SRD_T, P_WQKV, 640 * 3840)
    a.e("v_min_u32 v32, 39, v0")
    a.e("v_lshrrev_b32 v33, 3, v32")
    a.e("s_mul_i32 s54, s53, 5")
    a.e("v_add_u32 v33, s54, v33")
    a.e("v_mul_u32_u24 v33, 3840, v33")
    a.e("v_bfe_u32 v34, v32, 2, 1")
    a.e("v_mul_u32_u24 v34, 1280, v34")
    a.e("v_add_u32 v33, v33, v34")
    a.e("v_and_b32 v34, 3, v32")
    a.e("v_mul_u32_u24 v34, 106, v34")
    a.e("v_and_b32 v34, 0xfffffffc, v34")
    a.e("v_add_u32 v33, v33, v34")
    a.e("s_mul_i32 s54, s56, 320")
    a.e("s_add_u32 s54, s54, 1280")
    a.e(f"buffer_load_dword v252, v33, {s4(SRD_T)}, s54 offen")
    make_srd(a, SRD_T, P_W1, 640 * 3072)
    a.e("v_min_u32 v32, 29, v0")
    a.e("v_mul_u32_u24 v33, 10923, v32")
    a.e("v_lshrrev_b32 v33, 16, v33")
    a.e("v_mul_u32_u24 v34, 6, v33")
    a.e("v_sub_u32 v34, v32, v34")
    a.e("s_mul_i32 s54, s53, 5")
    a.e("v_add_u32 v33, s54, v33")
    a.e("v_mul_u32_u24 v33, 3072, v33")
    a.e("v_lshl_add_u32 v33, v34, 7, v33")
    a.e("s_mul_i32 s54, s56, 768")
    a.e(f"buffer_load_dword v253, v33, {s4(SRD_T)}, s54 offen")


def gen_consumers(a):
    if PFA:
        prefetch_a(a)
    repack_issue(a)
    a.e("v_lshrrev_b32 v14, 1, v2")
    a.e("v_xor_b32 v14, v14, v3")
    a.e("v_lshlrev_b32 v15, 7, v2")
    a.e("v_lshl_add_u32 v17, v14, 4, v15")
    a.e("s_cmp_ge_u32 s6, 2")
    a.e("s_cbranch_scc1 fc_h")
    vm0 = list(a.vm)
    a.e("v_lshrrev_b32 v19, 2, v0")
    a.e("v_mul_u32_u24 v19, 192, v19")
    a.e("v_and_b32 v20, 3, v0")
    a.e("v_lshl_add_u32 v19, v20, 3, v19")
    a.e("s_lshl_b32 s11, s8, 5")
    a.e(f"s_add_u32 s11, s11, {WBASE}")
    a.e("v_add_u32 v19, s11, v19")
    a.e("v_and_b32 v20, 1, v3")
    a.e("v_lshlrev_b32 v20, 5, v20")
    a.e("s_cmp_eq_u32 s8, 0")
    a.e("s_cselect_b32 s11, 1, -1")
    a.e("v_mul_lo_u32 v20, v20, s11")
    a.e("v_add_u32 v24, v19, v20")
    a.e("v_sub_u32 v25, v19, v20")
    a.e(f"v_add_u32 v18, {4*WS1}, v24")
    a.e(f"v_add_u32 v19, {4*WS1}, v25")
    a.e("s_lshl_b32 s14, s9, 12")
    a.e("v_add_u32 v26, s14, v17")
    a.e("v_xor_b32 v27, 64, v26")
    ACC, WB, AB = 32, 112, 192
    if PFA:
        a.e("s_waitcnt vmcnt(0)")
    a.e("s_lshl_b32 s12, s9, 6")
    a.e("v_add_u32 v16, s12, v0")
    a.e("s_lshl_b32 s12, s7, 13")
    a.e(f"s_add_u32 s12, s12, {hex(PART_OFF)}")
    for it in range(7):
        I, H_, RM, DD, E_, Dg, Eg, TI = [32 + k for k in range(8)]
        AD = 240 + it
        a.e(f"v_add_u32 v{I}, {256*it}, v16")
        a.e(f"v_mul_u32_u24 v{H_}, 1249, v{I}")
        a.e(f"v_lshrrev_b32 v{H_}, 19, v{H_}")
        a.e(f"v_mul_u32_u24 v{RM}, 420, v{H_}")
        a.e(f"v_sub_u32 v{RM}, v{I}, v{RM}")
        a.e(f"v_mul_u32_u24 v{DD}, 3277, v{RM}")
        a.e(f"v_lshrrev_b32 v{DD}, 16, v{DD}")
        a.e(f"v_mul_u32_u24 v{E_}, 20, v{DD}")
        a.e(f"v_sub_u32 v{E_}, v{RM}, v{E_}")
        a.e(f"v_mul_u32_u24 v{H_}, 20, v{H_}")
        a.e(f"v_cmp_eq_u32 vcc, 20, v{DD}")
        a.e(f"v_add_u32 v{Eg}, v{H_}, v{E_}")
        a.e(f"v_add_u32 v{Dg}, v{H_}, v{DD}")
        a.e(f"v_cndmask_b32 v{Dg}, v{Dg}, v{Eg}, vcc")
        a.e(f"v_lshrrev_b32 v{TI}, 4, v{Dg}")
        a.e(f"v_lshrrev_b32 v{AD}, 4, v{Eg}")
        a.e(f"v_lshl_add_u32 v{AD}, v{TI}, 1, v{AD}")
        a.e(f"v_add_u32 v{TI}, 13, v{TI}")
        a.e(f"v_cndmask_b32 v{TI}, v{AD}, v{TI}, vcc")
        a.e(f"v_and_b32 v{Eg}, 15, v{Eg}")
        a.e(f"v_cndmask_b32 v{Eg}, v{Eg}, 0, vcc")
        a.e(f"v_bfe_u32 v{AD}, v{Dg}, 2, 2")
        a.e(f"v_lshl_add_u32 v{AD}, v{AD}, 4, v{Eg}")
        a.e(f"v_lshlrev_b32 v{AD}, 4, v{AD}")
        a.e(f"v_lshl_add_u32 v{AD}, v{TI}, 10, v{AD}")
        a.e(f"v_and_b32 v{Dg}, 3, v{Dg}")
        a.e(f"v_lshl_add_u32 v{AD}, v{Dg}, 2, v{AD}")
        if it == 6:
            a.e(f"v_cmp_gt_u32 vcc, 1680, v{I}")
            a.e("s_nop 1")
            a.e(f"v_cndmask_b32 v{AD}, 0, v{AD}, vcc")
            a.e("s_mov_b64 s[50+28:51+28], vcc".replace("50+28:51+28", "78:79"))
        a.e(f"v_add_u32 v{AD}, {SCR}, v{AD}")
        a.e(f"v_lshl_add_u32 v{247+it}, v{I}, 2, s12")

    def reads_kv(s, t):
        if t < 2:
            a.lds(f"ds_read_b128 {vr(AB+((s&1)*2+t)*4,4)}, v{26+(s&1)} offset:{t*2048 + ((s//2)%4)*XS}", ("A", s, t))
        for hf in range(2):
            sl = s % NSL1
            off = (t // 5) * 6144 + 16 * hf * 192 + (t % 5) * 32 + (sl % 4) * WS1
            v = (24 if sl < 4 else 18) + ((t % 5) % 2)
            a.lds(f"ds_read_b64_tr_b16 {vr(WB+((s&1)*10+t)*4+2*hf,2)}, v{v} offset:{off}", ("R", s, t))

    loop_a_cons(a, 10, 2, lambda s, t: vr(WB + ((s & 1) * 10 + t) * 4, 4),
                lambda s, rt: vr(AB + ((s & 1) * 2 + rt) * 4, 4),
                lambda rt, t: vr(ACC + (t * 2 + rt) * 4, 4), reads_kv, [24, 25], False)
    a.stamp("aloop")
    a.e("s_barrier")
    phi_consts(a)
    a.nop(4)
    PK, T = 112, 152
    for t in range(5):
        for rt in range(2):
            c = ACC + (t * 2 + rt) * 4
            phi4(a, c, T + (12 if rt else 0), PK + t * 4 + rt * 2, PK + t * 4 + rt * 2 + 1)
    for t in range(5, 10):
        for rt in range(2):
            c = ACC + (t * 2 + rt) * 4
            a.e(f"v_cvt_pk_bf16_f32 v{PK+t*4+rt*2}, v{c}, v{c+1}")
            a.e(f"v_cvt_pk_bf16_f32 v{PK+t*4+rt*2+1}, v{c+2}, v{c+3}")
    ONES = 176
    for i in range(4):
        a.e(f"v_mov_b32 v{ONES+i}, 0x3f803f80")
    a.nop(2)
    D2 = 32
    pairs = [(i, j) for i in range(5) for j in range(5) if abs(i - j) <= 1]
    for (i, j) in pairs:
        a.e(f"v_mfma_f32_16x16x32_bf16 {vr(D2+(2*i+j)*4,4)}, {vr(PK+i*4,4)}, {vr(PK+(5+j)*4,4)}, 0")
    for i in range(5):
        a.e(f"v_mfma_f32_16x16x32_bf16 {vr(D2+(13+i)*4,4)}, {vr(PK+i*4,4)}, {vr(ONES,4)}, 0")
    a.e("s_mul_i32 s12, s9, 18432")
    a.e(f"s_add_u32 s12, s12, {SCR}")
    a.e("v_add_u32 v14, s12, v7")
    make_srd(a, SRD_T, P_DBG, 256)
    a.e("s_lshl_b32 s10, s7, 2")
    a.e("v_mov_b32 v20, s10")
    a.vmem(f"buffer_load_dword v22, v20, {s4(SRD_T)}, 0 offen sc1", "zp")
    a.nop(2)
    for k in range(18):
        a.lds(f"ds_write_b128 v14, {vr(D2+k*4,4)} offset:{k*1024}", "W")
    a.wait_lg_all()
    a.e("s_barrier")
    for it in range(7):
        b = 112 + it * 4
        for w in range(4):
            a.lds(f"ds_read_b32 v{b+w}, v{240+it} offset:{w*18432}", ("Q", it))
    a.wait_lg_all()
    a.e("s_barrier")
    a.wait_vm("zp")
    a.e("v_readfirstlane_b32 s72, v22")
    a.e("s_cmp_ge_u32 s72, 4")
    a.e("s_cbranch_scc1 fc_zp_done")
    poll(a, s4(SRD_T), 20, 4, "fc_zp")
    for it in range(7):
        b = 112 + it * 4
        a.e(f"v_add_f32 v{b}, v{b}, v{b+1}")
        a.e(f"v_add_f32 v{b+2}, v{b+2}, v{b+3}")
        a.e(f"v_add_f32 v{b}, v{b}, v{b+2}")
        if it == 6:
            a.e("s_mov_b64 exec, s[78:79]")
        a.vmem(f"buffer_atomic_add_f32 v{b}, v{247+it}, {s4(SRD_WS)}, 0 offen sc0 sc1", "st")
        if it == 6:
            a.e("s_mov_b64 exec, -1")
    a.e("s_lshl_b32 s71, s7, 7")
    a.e(f"s_add_u32 s71, s71, {hex(F_KV)}")
    a.e("s_branch fc_b")

    a.label("fc_h")
    a.vm = vm0
    a.lg = []
    a.nstamp = 1
    a.e("v_lshrrev_b32 v14, 5, v0")
    a.e("v_mul_u32_u24 v14, 3072, v14")
    a.e("v_bfe_u32 v15, v0, 2, 3")
    a.e("v_lshl_add_u32 v14, v15, 7, v14")
    a.e("v_and_b32 v16, 3, v0")
    a.e("v_lshl_add_u32 v14, v16, 3, v14")
    a.e(f"v_add_u32 v14, {WBASE}, v14")
    a.e("v_lshrrev_b32 v15, 1, v15")
    a.e("s_and_b32 s13, s9, 1")
    for t in range(6):
        a.e("s_mul_i32 s12, s13, 6")
        a.e(f"s_add_u32 s12, s12, {t}")
        a.e("s_and_b32 s11, s12, 3")
        a.e("s_lshr_b32 s12, s12, 2")
        a.e("s_lshl_b32 s12, s12, 10")
        a.e("v_xor_b32 v16, s11, v15")
        a.e(f"v_lshl_add_u32 v{20+t}, v16, 5, v14")
        a.e(f"v_add_u32 v{20+t}, s12, v{20+t}")
        a.e(f"v_add_u32 v{240+t}, {4*WS1}, v{20+t}")
    a.e("s_lshr_b32 s12, s9, 1")
    a.e("s_lshl_b32 s12, s12, 13")
    a.e("v_add_u32 v26, s12, v17")
    a.e("v_xor_b32 v27, 64, v26")
    ACCH, WBH, ABH = 32, 128, 176
    BB = 228

    def load_bias():
        make_srd(a, SRD_T, P_B1, 3072)
        a.e("s_mul_i32 s12, s7, 384")
        a.e("s_mul_i32 s11, s13, 192")
        a.e("s_add_u32 s12, s12, s11")
        a.e("v_lshl_add_u32 v28, v3, 3, s12")
        for t in range(6):
            a.vmem(f"buffer_load_dwordx2 {vr(BB+2*t,2)}, v28, {s4(SRD_T)}, 0 offen offset:{32*t}", "bias")

    def reads_h(s, t):
        if t < 4:
            a.lds(f"ds_read_b128 {vr(ABH+((s&1)*4+t)*4,4)}, v{26+(s&1)} offset:{t*2048 + ((s//2)%4)*XS}", ("A", s, t))
        for hf in range(2):
            sl = s % NSL1
            a.lds(f"ds_read_b64_tr_b16 {vr(WBH+((s&1)*6+t)*4+2*hf,2)}, v{(20 if sl < 4 else 240)+t} offset:{2*hf*3072 + (sl%4)*WS1}", ("R", s, t))

    loop_a_cons(a, 6, 4, lambda s, t: vr(WBH + ((s & 1) * 6 + t) * 4, 4),
                lambda s, rt: vr(ABH + ((s & 1) * 4 + rt) * 4, 4),
                lambda rt, t: vr(ACCH + (t * 4 + rt) * 4, 4), reads_h, [20, 21, 22, 23, 24, 25], True, None, load_bias)
    a.stamp("aloop")
    a.e("s_barrier")
    a.e("s_lshl_b32 s12, s5, 3")
    a.e("s_lshr_b32 s11, s9, 1")
    a.e("s_lshl_b32 s11, s11, 2")
    a.e("s_add_u32 s12, s12, s11")
    a.e(f"s_mul_i32 s12, s12, {ACT_RT}")
    a.e("s_mul_i32 s11, s7, 6")
    a.e("s_mul_i32 s10, s13, 3")
    a.e("s_add_u32 s11, s11, s10")
    a.e(f"s_add_u32 s11, s11, {20 + ACT_OFF // 1024}")
    a.e("s_lshl_b32 s11, s11, 10")
    a.e("s_add_u32 s12, s12, s11")
    a.e("v_lshrrev_b32 v14, 1, v3")
    a.e("v_lshl_add_u32 v14, v14, 4, v2")
    a.e("v_lshlrev_b32 v14, 4, v14")
    a.e("v_and_b32 v15, 1, v3")
    a.e("v_lshl_add_u32 v14, v15, 9, v14")
    for rt in range(4):
        a.e(f"v_add_u32 v{8+rt}, s12, v14")
        a.e(f"s_add_u32 s12, s12, {ACT_RT}")
    a.wait_vm("bias")
    T = 128
    for tp in range(3):
        if tp == 2:
            a.e("s_barrier")
            a.e("s_barrier")
        if True:
            for h in range(2):
                t = 2 * tp + h
                unpack(a, T + 4 * h, T + 4 * h + 1, BB + 2 * t)
                unpack(a, T + 4 * h + 2, T + 4 * h + 3, BB + 2 * t + 1)
        for rt in range(4):
            O = T + 24 + ((tp * 4 + rt) % 4) * 4
            for h in range(2):
                t = 2 * tp + h
                c = ACCH + (t * 4 + rt) * 4
                p = T + 8 + h * 8
                f = p + 2
                bf = T + 4 * h
                o = O + 2 * h
                if FAITH:
                    a.e(f"v_cvt_pk_bf16_f32 v{p}, v{c}, v{c+1}")
                    a.e(f"v_cvt_pk_bf16_f32 v{p+1}, v{c+2}, v{c+3}")
                    unpack(a, f, f + 1, p)
                    unpack(a, f + 2, f + 3, p + 1)
                    a.e(f"v_pk_add_f32 {vr(f,2)}, {vr(f,2)}, {vr(bf,2)}")
                    a.e(f"v_pk_add_f32 {vr(f+2,2)}, {vr(f+2,2)}, {vr(bf+2,2)}")
                    a.e(f"v_cvt_pk_bf16_f32 v{p}, v{f}, v{f+1}")
                    a.e(f"v_cvt_pk_bf16_f32 v{p+1}, v{f+2}, v{f+3}")
                    a.e(f"v_pk_max_i16 v{p}, v{p}, 0")
                    a.e(f"v_pk_max_i16 v{p+1}, v{p+1}, 0")
                    unpack(a, f, f + 1, p)
                    unpack(a, f + 2, f + 3, p + 1)
                else:
                    a.e(f"v_pk_add_f32 {vr(f,2)}, {vr(c,2)}, {vr(bf,2)}")
                    a.e(f"v_pk_add_f32 {vr(f+2,2)}, {vr(c+2,2)}, {vr(bf+2,2)}")
                    for i in range(4):
                        a.e(f"v_max_f32 v{f+i}, 0, v{f+i}")
                a.e(f"v_pk_mul_f32 {vr(f,2)}, {vr(f,2)}, {vr(f,2)}")
                a.e(f"v_pk_mul_f32 {vr(f+2,2)}, {vr(f+2,2)}, {vr(f+2,2)}")
                a.e(f"v_cvt_pk_bf16_f32 v{o}, v{f}, v{f+1}")
                a.e(f"v_cvt_pk_bf16_f32 v{o+1}, v{f+2}, v{f+3}")
            a.nop(2)
            a.e(f"v_permlane16_swap_b32 v{O}, v{O+2}")
            a.e(f"v_permlane16_swap_b32 v{O+1}, v{O+3}")
            a.nop(1)
            a.vmem(f"buffer_store_dwordx4 {vr(O,4)}, v{8+rt}, {s4(SRD_WS)}, 0 offen offset:{tp*1024} sc1", "st")
    a.e("s_lshl_b32 s71, s5, 3")
    a.e("s_add_u32 s71, s71, s7")
    a.e("s_lshl_b32 s71, s71, 7")
    a.e(f"s_add_u32 s71, s71, {hex(F_H2)}")

    a.label("fc_b")
    a.vm = ["st"]
    a.lg = []
    a.nstamp = 11 if os.environ.get("ASTAMP") else 3
    a.stamp("aend")
    a.e(f"s_lshl_b32 s10, s{S_RB}, 2")
    a.e("s_add_u32 s10, s10, s9")
    a.e("s_lshl_b32 s11, s10, 4")
    a.e("v_add_u32 v4, s11, v2")
    a.e("v_lshlrev_b32 v6, 4, v3")
    a.e("s_lshl_b32 s12, s9, 10")
    a.e("s_add_u32 s12, s12, 10240")
    a.e("v_add_u32 v8, s12, v7")
    a.e("v_mov_b32 v9, v7")
    a.e("s_lshl_b32 s12, s9, 11")
    a.e("s_add_u32 s12, s12, 10240")
    a.e("v_add_u32 v10, s12, v17")
    a.e("v_xor_b32 v11, 64, v10")
    make_srd(a, SRD_X, P_B2, 1280)
    make_srd(a, 56, P_OUT, 2048 * 1280)
    a.e("s_mul_i32 s69, s73, 10")
    a.e("s_lshr_b32 s69, s69, 5")
    a.e("s_lshl_b32 s70, s69, 7")
    a.e(f"s_add_u32 s70, s70, {GWL}")
    a.e("v_add_u32 v6, s70, v6")
    ACC, WB, AB, GA, GF = 32, 64, 104, 56, 152
    ACA = 112
    B2 = 240
    a.e(f"v_mov_b32 v{GA}, 0")

    def reads(s, t):
        ks = s % 2
        if t == 0:
            if s < 20:
                a.lds(f"ds_read_b128 {vr(AB+(s&1)*4,4)}, v{10+ks}", ("A", s, 0))
                a.lds(f"ds_read_b128 {vr(GF+(s&1)*4,4)}, v6 offset:{ks*64}", ("A", s, 0))
            else:
                a.lds(f"ds_read_b128 {vr(AB+(s&1)*4,4)}, v8 offset:{ks*4096}", ("A", s, 0))
        a.lds(f"ds_read_b128 {vr(WB+((s&1)*5+t)*4,4)}, v9 offset:{ks*5120+t*1024}", ("R", s, t))

    def bump(c):
        d = SLOT2 if (c % NSL2) else -(NSL2 - 1) * SLOT2
        for r in ((8, 9, 10, 11) if c < 10 else (8, 9)):
            a.e(f"v_add_u32 v{r}, {d if d > 0 else hex(d & 0xffffffff)}, v{r}")
        if c < 10:
            a.e("s_add_u32 s69, s69, 1")
            a.e("s_cmp_ge_u32 s69, 10")
            a.e("s_cselect_b32 s70, -9, 1")
            a.e("s_cselect_b32 s69, 0, s69")
            a.e("s_lshl_b32 s70, s70, 7")
            a.e("v_add_u32 v6, s70, v6")

    def b_epilogue():
        a.stamp("bep")
        phi_consts(a)
        PQ, T = 152, 212
        for t in range(5):
            phi4(a, ACC + t * 4, T + (12 if t & 1 else 0), PQ + t * 2, PQ + t * 2 + 1)
        a.e(f"v_mov_b32 v{PQ+10}, 0")
        a.e(f"v_mov_b32 v{PQ+11}, 0")
        a.e("v_mul_u32_u24 v14, 192, v2")
        a.e("v_lshl_add_u32 v14, v3, 3, v14")
        a.e(f"v_add_u32 v14, {IMG}, v14")
        a.e(f"s_mul_i32 s12, s10, {ACT_RT}")
        a.e(f"s_mul_i32 s11, s{S_CB}, 2560")
        a.e("s_add_u32 s12, s12, s11")
        a.e(f"s_add_u32 s12, s12, {ACT_OFF}")
        a.e("v_lshrrev_b32 v15, 1, v3")
        a.e("v_lshl_add_u32 v15, v15, 4, v2")
        a.e("v_lshlrev_b32 v15, 4, v15")
        a.e("v_add_u32 v13, s12, v15")
        a.e("v_and_b32 v15, 1, v3")
        a.e("v_lshl_add_u32 v12, v15, 9, v13")
        a.e("s_barrier")
        us = {0: [0], 1: [0, 1], 2: [0, 1], 3: [1, 2], 4: [1, 2]}

        def fr(j):
            kf = 164 + (j & 1) * 16
            for im in range(2):
                for n, u in enumerate(us[j]):
                    b = kf + im * 8 + n * 4
                    off = im * 15360 + j * 16 * 192 + u * 64
                    a.lds(f"ds_read_b64 {vr(b,2)}, v14 offset:{off}", ("F", j))
                    a.lds(f"ds_read_b64 {vr(b+2,2)}, v14 offset:{off+32}", ("F", j))

        def mm(j):
            kf = 164 + (j & 1) * 16
            nd = 196 + (j & 1) * 8
            a.wait_lg(("F", j))
            for im in range(2):
                for n, u in enumerate(us[j]):
                    d = vr(nd + im * 4, 4)
                    a.e(f"v_mfma_f32_16x16x32_bf16 {d}, {vr(kf+im*8+n*4,4)}, {vr(PQ+u*4,4)}, {d if n else '0'}")

        fr(0)
        fr(1)
        mm(0)
        for j in range(5):
            if j + 1 < 5:
                mm(j + 1)
            else:
                a.nop(8)
            if j + 2 < 5:
                fr(j + 2)
            if j == 0:
                a.nop(4)
            n_ = 196 + (j & 1) * 8
            d_ = n_ + 4
            p = T
            f = T + 4
            g = T + 8
            if FAITH:
                a.e(f"v_cvt_pk_bf16_f32 v{p}, v{n_}, v{n_+1}")
                a.e(f"v_cvt_pk_bf16_f32 v{p+1}, v{n_+2}, v{n_+3}")
                a.e(f"v_cvt_pk_bf16_f32 v{p+2}, v{d_}, v{d_+1}")
                a.e(f"v_cvt_pk_bf16_f32 v{p+3}, v{d_+2}, v{d_+3}")
                unpack(a, f, f + 1, p)
                unpack(a, f + 2, f + 3, p + 1)
                unpack(a, g, g + 1, p + 2)
                unpack(a, g + 2, g + 3, p + 3)
                a.e(f"v_pk_add_f32 {vr(g,2)}, {vr(g,2)}, s[64:65]")
                a.e(f"v_pk_add_f32 {vr(g+2,2)}, {vr(g+2,2)}, s[64:65]")
                a.e(f"v_cvt_pk_bf16_f32 v{p+2}, v{g}, v{g+1}")
                a.e(f"v_cvt_pk_bf16_f32 v{p+3}, v{g+2}, v{g+3}")
                unpack(a, g, g + 1, p + 2)
                unpack(a, g + 2, g + 3, p + 3)
            else:
                a.e(f"v_pk_add_f32 {vr(g,2)}, {vr(d_,2)}, s[64:65]")
                a.e(f"v_pk_add_f32 {vr(g+2,2)}, {vr(d_+2,2)}, s[64:65]")
                for i in range(4):
                    a.e(f"v_mov_b32 v{f+i}, v{n_+i}")
            for i in range(4):
                a.e(f"v_rcp_f32 v{g+4+i}, v{g+i}")
            a.e("s_nop 0")
            a.e(f"v_pk_mul_f32 {vr(g+8,2)}, {vr(f,2)}, {vr(g+4,2)}")
            a.e(f"v_pk_mul_f32 {vr(g+10,2)}, {vr(f+2,2)}, {vr(g+6,2)}")
            if FAITH:
                for i in range(4):
                    a.e(f"v_fma_f32 v{f+i}, -v{g+i}, v{g+8+i}, v{f+i}")
                for i in range(4):
                    a.e(f"v_fma_f32 v{g+8+i}, v{f+i}, v{g+4+i}, v{g+8+i}")
            O = T + 24 + (j // 2) * 4
            if j < 4:
                o = O + (j & 1) * 2
                a.e(f"v_cvt_pk_bf16_f32 v{o}, v{g+8}, v{g+9}")
                a.e(f"v_cvt_pk_bf16_f32 v{o+1}, v{g+10}, v{g+11}")
            else:
                a.e(f"v_cvt_pk_bf16_f32 v{O}, v{g+8}, v{g+9}")
                a.e(f"v_cvt_pk_bf16_f32 v{O+1}, v{g+10}, v{g+11}")
                a.e(f"v_mov_b32 v{O+2}, v{O}")
                a.e(f"v_mov_b32 v{O+3}, v{O+1}")
            if j & 1 or j == 4:
                a.nop(2)
                a.e(f"v_permlane16_swap_b32 v{O}, v{O+2}")
                a.e(f"v_permlane16_swap_b32 v{O+1}, v{O+3}")
                a.nop(1)
                a.vmem(f"buffer_store_dwordx4 {vr(O,4)}, v{12 if j < 4 else 13}, {s4(SRD_WS)}, 0 offen offset:{512*(j & ~1)} sc1", "st")
        a.e(f"v_mov_b32 v57, v{GA}")
        a.nop(2)
        a.e(f"v_permlane32_swap_b32 v57, v{GA}")
        a.nop(2)
        a.e(f"v_add_f32 v{GA}, v57, v{GA}")
        a.e(f"v_mov_b32 v57, v{GA}")
        a.nop(2)
        a.e(f"v_permlane16_swap_b32 v57, v{GA}")
        a.nop(2)
        a.e(f"v_add_f32 v{GA}, v57, v{GA}")
        a.e(f"v_cvt_pk_bf16_f32 v{GA}, v{GA}, v{GA}")
        a.e(f"v_lshlrev_b32 v{GA}, 16, v{GA}")
        a.e(f"v_mul_f32 v{GA}, 0xbfb8aa3b, v{GA}")
        a.e(f"v_exp_f32 v{GA}, v{GA}")
        a.e("s_nop 0")
        a.e(f"v_add_f32 v{GA}, 1.0, v{GA}")
        a.e(f"v_rcp_f32 v{GA}, v{GA}")
        a.e("s_nop 0")
        a.e(f"v_cvt_pk_bf16_f32 v{GA}, v{GA}, v{GA}")
        a.e(f"v_lshlrev_b32 v{GA}, 16, v{GA}")
        a.e(f"v_sub_f32 v57, 1.0, v{GA}")
        a.e("v_cvt_pk_bf16_f32 v57, v57, v57")
        a.e("v_lshlrev_b32 v57, 16, v57")
        a.e(f"s_lshl_b32 s71, s{S_RB}, 7")
        a.e(f"s_add_u32 s71, s71, {hex(F_O)}")
        a.e("s_mov_b32 s77, 0")
        a.stamp("bep_end")

    a.e("s_mov_b32 s77, 0")
    a.e("s_barrier")
    a.stamp("b0")
    for t in range(5):
        reads(0, t)
    NK = 88
    for s in range(NK):
        if s in (20, 68):
            a.stamp(f"s{s}")
        if s == 70:
            a.e(f"s_mul_i32 s12, s{S_CB}, 160")
            a.e("v_lshl_add_u32 v28, v3, 3, s12")
            for t in range(5):
                a.vmem(f"buffer_load_dwordx2 {vr(B2+2*t,2)}, v28, {s4(SRD_X)}, 0 offen offset:{32*t}", "b2")
        if s + 1 < NK and (s + 1) % 2 == 0:
            c = (s + 1) // 2
            a.e("s_barrier")
            bump(c)
            win = None
            if 1 <= c <= PUBA_DL:
                win = (c == PUBA_DL)
            if BI_AFTER + 1 <= c <= BI_AFTER + PUBO_DL:
                win = (c == BI_AFTER + PUBO_DL)
            if win is not None:
                lab = f"fc_pub{c}"
                a.e("s_cmp_lg_u32 s77, 0")
                a.e(f"s_cbranch_scc1 {lab}")
                if win:
                    a.e("s_waitcnt vmcnt(0)")
                else:
                    a.e("s_getreg_b32 s72, hwreg(HW_REG_IB_STS)")
                    a.e("s_and_b32 s72, s72, 0xc0000f")
                    a.e(f"s_cbranch_scc1 {lab}")
                flag_add(a, s4(SRD_WS), "s71", 58)
                a.e("s_mov_b32 s77, 1")
                a.label(lab)
            if c == BI_AFTER:
                b_epilogue()
        for t in range(5):
            if s + 1 < NK:
                reads(s + 1, t)
            need = [("R", s, t)]
            if t == 0:
                need.append(("A", s, 0))
            a.wait_lg(need)
            if s < 20:
                d = vr(ACC + t * 4, 4)
            else:
                d = vr(ACA + (20 if s < 68 else 0) + t * 4, 4)
            cin = "0" if s in (0, 20, 68) else d
            a.e(f"v_mfma_f32_16x16x32_bf16 {d}, {vr(WB+((s&1)*5+t)*4,4)}, {vr(AB+(s&1)*4,4)}, {cin}")
            if s < 20 and t < 4:
                a.e(f"v_dot2_f32_bf16 v{GA}, v{AB+(s&1)*4+t}, v{GF+(s&1)*4+t}, v{GA}")
    a.stamp("cloop")
    a.e("v_mul_u32_u24 v5, 1280, v4")
    a.e("v_lshl_add_u32 v5, v3, 3, v5")
    a.e(f"s_mul_i32 s12, s{S_CB}, 160")
    a.e("v_add_u32 v5, s12, v5")
    a.wait_vm_all()
    a.nop(6)
    T = 160
    for t in range(5):
        ca = ACA + t * 4
        cb = ACA + 20 + t * 4
        p = T
        fa = T + 4
        fb = T + 8
        bb = T + 12
        a.e(f"v_cvt_pk_bf16_f32 v{p}, v{ca}, v{ca+1}")
        a.e(f"v_cvt_pk_bf16_f32 v{p+1}, v{ca+2}, v{ca+3}")
        a.e(f"v_cvt_pk_bf16_f32 v{p+2}, v{cb}, v{cb+1}")
        a.e(f"v_cvt_pk_bf16_f32 v{p+3}, v{cb+2}, v{cb+3}")
        unpack(a, fa, fa + 1, p)
        unpack(a, fa + 2, fa + 3, p + 1)
        unpack(a, fb, fb + 1, p + 2)
        unpack(a, fb + 2, fb + 3, p + 3)
        unpack(a, bb, bb + 1, B2 + 2 * t)
        unpack(a, bb + 2, bb + 3, B2 + 2 * t + 1)
        a.e(f"v_pk_add_f32 {vr(fb,2)}, {vr(fb,2)}, {vr(bb,2)}")
        a.e(f"v_pk_add_f32 {vr(fb+2,2)}, {vr(fb+2,2)}, {vr(bb+2,2)}")
        for i in range(4):
            a.e(f"v_mul_f32 v{fa+i}, v{GA}, v{fa+i}")
        a.e(f"v_cvt_pk_bf16_f32 v{p+2}, v{fb}, v{fb+1}")
        a.e(f"v_cvt_pk_bf16_f32 v{p+3}, v{fb+2}, v{fb+3}")
        a.e(f"v_cvt_pk_bf16_f32 v{p}, v{fa}, v{fa+1}")
        a.e(f"v_cvt_pk_bf16_f32 v{p+1}, v{fa+2}, v{fa+3}")
        unpack(a, fb, fb + 1, p + 2)
        unpack(a, fb + 2, fb + 3, p + 3)
        unpack(a, fa, fa + 1, p)
        unpack(a, fa + 2, fa + 3, p + 1)
        for i in range(4):
            a.e(f"v_mul_f32 v{fb+i}, v57, v{fb+i}")
        a.e(f"v_cvt_pk_bf16_f32 v{p+2}, v{fb}, v{fb+1}")
        a.e(f"v_cvt_pk_bf16_f32 v{p+3}, v{fb+2}, v{fb+3}")
        unpack(a, fb, fb + 1, p + 2)
        unpack(a, fb + 2, fb + 3, p + 3)
        a.e(f"v_pk_add_f32 {vr(fa,2)}, {vr(fa,2)}, {vr(fb,2)}")
        a.e(f"v_pk_add_f32 {vr(fa+2,2)}, {vr(fa+2,2)}, {vr(fb+2,2)}")
        o = T + 20 + t * 2
        a.e(f"v_cvt_pk_bf16_f32 v{o}, v{fa}, v{fa+1}")
        a.e(f"v_cvt_pk_bf16_f32 v{o+1}, v{fa+2}, v{fa+3}")
        a.vmem(f"buffer_store_dwordx2 {vr(o,2)}, v5, s[56:59], 0 offen offset:{32*t}", "st")
    a.stamp("end")
    a.dump_stamps()


HEADER = """; Kernarg layout for this problem (96 bytes, ptrs only, base s[0:1]):
;   0 A_x  8 A_wqkv  16 A_wo  24 B_x  32 B_w1  40 B_b1  48 B_w2  56 B_b2  64 gate_w  72 d_out  80 d_debug  88 d_ws
; @launch kernel=fused_kernel grid=(256,1,1) block=(512,1,1) lds=163840
.amdgcn_target "amdgcn-amd-amdhsa--gfx950"
.text
"""


def main():
    a = Asm()
    a.kid = 1
    gen(a)
    nm = "fused_kernel"
    out = HEADER + f".globl {nm}\n.p2align 8\n.type {nm},@function\n" + "\n".join(a.lines) + "\n"
    out += '.section .rodata,"a"\n.p2align 6\n' + kd(nm, 256, 256)
    path = sys.argv[1] if len(sys.argv) > 1 else f"cdna_kernels/{NAME}.s"
    open(path, "w").write(out)


if __name__ == "__main__":
    main()
```

```python
import sys
import os
sys.path.insert(0, os.path.dirname(os.path.abspath(__file__)))
from gen import (Asm, vr, ar, make_srd, prologue_kernargs, kperm_vgpr, unpack, LOG2E, NAME, kd,
                 P_X, P_WQKV, P_WO, P_BX, P_W1, P_B1, P_W2, P_B2, P_GW, P_OUT, P_DBG, P_WS,
                 ACT_RT, PART_OFF, XF_OFF, WQF_OFF, W2F_OFF, FLAG_OFF, WS_USED)

FAITH = int(os.environ.get("FAITH", "1"))
FAITH_H = int(os.environ.get("FAITH_H", str(FAITH)))
INITD = int(os.environ.get("INITD", "0"))
RWPUB = int(os.environ.get("RWPUB", "7"))
PFE = int(os.environ.get("PFE", "0"))
PFA = int(os.environ.get("PFA", "0"))
PFW = int(os.environ.get("PFW", "0"))
NOSC1 = int(os.environ.get("NOSC1", "0"))
ROT = int(os.environ.get("ROT", "0"))
PUBA_DL = int(os.environ.get("PUBA_DL", "5"))
PUBO_DL = int(os.environ.get("PUBO_DL", "8"))
NOREPACK = int(os.environ.get("NOREPACK", "0"))
RP_ISSUE = int(os.environ.get("RP_ISSUE", "-1"))
RP_STORE = int(os.environ.get("RP_STORE", "2"))

ACT_OFF = 4096
BI_AFTER = int(os.environ.get("BI_AFTER", "19"))
SLOT1 = 20480
NSL1 = 8
SLOT2 = 18432
NSL2 = 7
IMG = NSL2 * SLOT2
GWL = IMG + 30720
SCR = 90112
F_RW = FLAG_OFF
F_KV = FLAG_OFF + 128 * 8
F_H = FLAG_OFF + 128 * 16
F_O = FLAG_OFF + 128 * 32
F_H2 = FLAG_OFF + 128 * 64

S_XCD, S_J, S_RBA, S_CBA, S_COLA, S_PAR, S_W = 3, 4, 5, 6, 7, 8, 9
S_RB, S_CB = 74, 75
SRD_X, SRD_W, SRD_WS, SRD_T = 40, 44, 48, 64


def s4(b):
    return f"s[{b}:{b+3}]"


def poll(a, srd, voff, target, lab, tmp=21, sleep=4):
    a.label(lab)
    a.e(f"buffer_load_dword v{tmp}, v{voff}, {srd}, 0 offen sc1")
    a.e("s_waitcnt vmcnt(0)")
    a.vm = []
    a.e(f"v_readfirstlane_b32 s72, v{tmp}")
    a.e(f"s_cmp_ge_u32 s72, {target}")
    a.e(f"s_cbranch_scc1 {lab}_done")
    a.e(f"s_sleep {sleep}")
    a.e(f"s_branch {lab}")
    a.label(lab + "_done")


def flag_add(a, srd, saddr, v0t=58):
    a.e(f"v_mov_b32 v{v0t}, {saddr}")
    a.e(f"v_mov_b32 v{v0t+1}, 1")
    a.e("s_mov_b64 exec, 1")
    a.e(f"buffer_atomic_add v{v0t+1}, v{v0t}, {srd}, 0 offen sc1")
    a.e("s_mov_b64 exec, -1")


def gen(a):
    a.label("fused_kernel")
    a.e("s_cmp_ge_u32 s2, 256")
    a.e("s_cbranch_scc1 f_exit")
    a.stamp("start")
    prologue_kernargs(a)
    a.e("s_and_b32 s3, s2, 7")
    a.e("s_lshr_b32 s4, s2, 3")
    a.e("s_lshr_b32 s5, s3, 2")
    a.e("s_lshl_b32 s5, s5, 3")
    a.e("s_and_b32 s6, s4, 7")
    a.e("s_add_u32 s5, s5, s6")
    a.e("s_lshr_b32 s6, s4, 3")
    a.e("s_and_b32 s7, s3, 3")
    a.e("s_lshl_b32 s7, s7, 1")
    a.e("s_and_b32 s8, s6, 1")
    a.e("s_add_u32 s7, s7, s8")
    a.e("s_and_b32 s8, s7, 1")
    a.e(f"s_lshr_b32 s{S_RB}, s3, 1")
    a.e(f"s_lshl_b32 s{S_RB}, s{S_RB}, 3")
    a.e("s_and_b32 s10, s4, 7")
    a.e(f"s_add_u32 s{S_RB}, s{S_RB}, s10")
    a.e(f"s_and_b32 s{S_CB}, s3, 1")
    a.e(f"s_lshl_b32 s{S_CB}, s{S_CB}, 2")
    a.e(f"s_add_u32 s{S_CB}, s{S_CB}, s6")
    a.e("v_lshrrev_b32 v1, 6, v0")
    a.e("v_and_b32 v0, 63, v0")
    a.e("s_nop 0")
    a.e("v_readfirstlane_b32 s9, v1")
    a.e("v_and_b32 v2, 15, v0")
    a.e("v_lshrrev_b32 v3, 4, v0")
    a.e("v_lshlrev_b32 v7, 4, v0")
    a.e(f"s_and_b32 s73, s{S_RB}, 7")
    a.e("s_lshl_b32 s73, s73, 2")
    a.e(f"s_and_b32 s10, s{S_CB}, 3")
    a.e("s_add_u32 s73, s73, s10")
    if ROT == 1:
        a.e("s_mov_b32 s73, 0")
    if ROT == 2:
        a.e("s_and_b32 s73, s73, 0x18")
    if ROT == 3:
        a.e(f"s_and_b32 s73, s{S_CB}, 3")
        a.e("s_lshl_b32 s73, s73, 3")
    a.e("s_waitcnt lgkmcnt(0)")
    make_srd(a, SRD_X, P_X, 2048 * 1280)
    make_srd(a, SRD_WS, P_WS, WS_USED)
    a.e("s_cmp_ge_u32 s9, 4")
    a.e("s_cbranch_scc0 f_cons")
    gen_producers(a)
    a.label("f_cons")
    a.vm = []
    a.lg = []
    gen_consumers(a)
    a.label("f_exit")
    a.e("s_endpgm")


XS = 16384
WS1 = 12288
WBASE = 65536


def gen_producers(a):
    a.e("s_sub_u32 s9, s9, 4")
    a.e("s_lshl_b32 s10, s5, 7")
    a.e("s_lshl_b32 s11, s9, 5")
    a.e("s_add_u32 s10, s10, s11")
    a.e("v_lshrrev_b32 v14, 3, v0")
    a.e("v_add_u32 v15, s10, v14")
    a.e("v_mul_u32_u24 v15, 1280, v15")
    a.e("v_lshrrev_b32 v14, 1, v14")
    a.e("v_and_b32 v16, 7, v0")
    a.e("v_xor_b32 v16, v16, v14")
    a.e("v_lshl_add_u32 v44, v16, 4, v15")
    a.e("v_xor_b32 v16, 4, v16")
    a.e("v_lshl_add_u32 v45, v16, 4, v15")
    a.e(f"v_add_u32 v45, {8*1280 - 1024}, v45")
    a.e(f"v_add_u32 v46, {16*1280 - 2048}, v44")
    a.e(f"v_add_u32 v47, {16*1280 - 2048}, v45")
    a.e("s_lshl_b32 s14, s9, 12")
    a.e("s_mul_i32 s15, s9, 3072")
    a.e(f"s_add_u32 s15, s15, {WBASE}")
    a.e("s_and_b32 s68, s5, 7")
    a.e("s_mul_i32 s69, s6, 3")
    a.e("s_add_u32 s68, s68, s69")
    a.e("s_add_u32 s68, s68, s3")
    for _ in range(2):
        a.e("s_cmp_ge_u32 s68, 10")
        a.e("s_cselect_b32 s69, 10, 0")
        a.e("s_sub_u32 s68, s68, s69")
    a.e("s_mov_b32 s70, s68")
    a.e("s_lshl_b32 s68, s68, 1")
    a.e("s_add_u32 s10, s2, s9")
    a.e("s_cmp_lg_u32 s10, 0")
    a.e("s_cbranch_scc1 fp_noflag")
    make_srd(a, SRD_T, P_DBG, 256)
    a.e("v_lshlrev_b32 v24, 7, v0")
    a.e(f"v_add_u32 v24, {hex(FLAG_OFF)}, v24")
    a.e("v_mov_b32 v25, 0")
    for i in range(3):
        a.e(f"buffer_store_dword v25, v24, {s4(SRD_WS)}, 0 offen sc1")
        a.e("v_add_u32 v24, 8192, v24")
    a.e("s_waitcnt vmcnt(0)")
    a.e("s_mov_b32 s10, 32")
    flag_add(a, s4(SRD_T), "s10", 24)
    a.label("fp_noflag")

    def dma_x(J):
        a.e("s_lshl_b32 s52, s70, 7")
        a.e(f"s_add_u32 m0, s14, {(J % 4)*XS}")
        a.e("s_add_u32 s70, s70, 1")
        for n in range(4):
            a.vmem(f"buffer_load_dwordx4 v{44+n}, {s4(SRD_X)}, s52 offen offset:{1024*n} lds", f"dx{J}")
        a.e("s_cmp_ge_u32 s70, 10")
        a.e("s_cselect_b32 s70, 0, s70")

    def adv_k():
        a.e("s_add_u32 s68, s68, 1")
        a.e("s_cmp_ge_u32 s68, 20")
        a.e("s_cselect_b32 s68, 0, s68")

    def repack_dma(tag):
        a.e("s_min_u32 s53, s9, 2")
        a.e(f"s_mul_i32 s54, s{S_RB}, 3")
        a.e("s_add_u32 s54, s54, s53")
        a.e("s_min_u32 s54, s54, 87")
        a.e("s_movk_i32 s57, 1280")
        a.e(f"s_mov_b32 s66, {hex(640*1280)}")
        a.e("s_cmp_lt_u32 s54, 20")
        a.e(f"s_cselect_b32 s64, s{P_WQKV}, s{P_WO}")
        a.e(f"s_cselect_b32 s65, s{P_WQKV+1}, s{P_WO+1}")
        a.e("s_cselect_b32 s57, 3840, s57")
        a.e("s_cselect_b32 s58, 0, 20")
        a.e(f"s_cselect_b32 s66, {hex(640*3840)}, s66")
        a.e("s_cmp_lt_u32 s54, 40")
        a.e(f"s_cselect_b32 s64, s64, s{P_W2}")
        a.e(f"s_cselect_b32 s65, s65, s{P_W2+1}")
        a.e("s_cselect_b32 s58, s58, 40")
        a.e(f"s_cselect_b32 s66, s66, {hex(1536*1280)}")
        a.e("s_and_b32 s65, s65, 0xffff")
        a.e("s_mov_b32 s67, 0x00020000")
        a.e("s_sub_u32 s58, s54, s58")
        a.e("s_lshl_b32 s58, s58, 5")
        a.e("s_mul_i32 s58, s58, s57")
        a.e(f"s_mul_i32 s59, s{S_CB}, 160")
        a.e(f"s_and_b32 s60, s{S_CB}, 1")
        a.e("s_lshl_b32 s60, s60, 5")
        a.e("s_sub_u32 s59, s59, s60")
        a.e("s_add_u32 s58, s58, s59")
        a.e("s_mul_i32 s59, s53, 6144")
        a.e(f"s_add_u32 s59, s59, {WBASE + 6*WS1}")
        for n in range(6):
            a.e(f"v_add_u32 v19, {64*n}, v0")
            a.e("v_mul_u32_u24 v20, 5462, v19")
            a.e("v_lshrrev_b32 v20, 16, v20")
            a.e("v_mul_u32_u24 v21, 12, v20")
            a.e("v_sub_u32 v19, v19, v21")
            a.e("v_bfe_u32 v21, v20, 2, 1")
            a.e("v_lshlrev_b32 v21, 1, v21")
            a.e("v_xor_b32 v19, v19, v21")
            kperm_vgpr(a, 21, 20, 22, 23)
            a.e("v_mul_lo_u32 v21, v21, s57")
            a.e("v_lshl_add_u32 v19, v19, 4, v21")
            a.e(f"s_add_u32 m0, s59, {n*1024}")
            a.e("s_nop 0")
            a.vmem("buffer_load_dwordx4 v19, s[64:67], s58 offen lds", "RP")

    def loop_a(dma_w, tag):
        wi, xi = 0, 0

        def issue_w():
            nonlocal wi, xi
            dma_w(wi)
            wi += 1

        dma_x(0); xi = 1
        issue_w(); issue_w()
        dma_x(1); xi = 2
        issue_w()
        if INITD >= 1:
            issue_w()
        repack_dma(tag)
        if INITD >= 2:
            dma_x(2); xi = 3
            issue_w(); issue_w()
        for c in range(20):
            assert xi > c // 2 and wi > c
            if c == 1:
                a.e("s_waitcnt vmcnt(%d)" % (len(a.vm) - 1 - max(i for i, t in enumerate(a.vm) if t == "RP")))
                a.vm = a.vm[max(i for i, t in enumerate(a.vm) if t == "RP") + 1:]
            a.wait_vm([f"dma{c}", f"dx{c//2}"])
            a.e("s_barrier")
            k = 0
            while k < 2:
                did = False
                if xi < 10 and (xi < 4 or c >= 2 * xi - 5) and 2 * xi <= wi + 1:
                    dma_x(xi)
                    xi += 1
                    did = True
                if wi < min(20, c + NSL1 - 1) and (wi < 6 or c >= 3):
                    issue_w()
                    did = True
                k += 1
                if not did:
                    break
            if c == 9:
                a.e(f"s_lshl_b32 s10, s{S_CB}, 7")
                a.e(f"s_add_u32 s10, s10, {hex(F_RW)}")
                a.e("v_mov_b32 v40, s10")
                a.e("s_mov_b32 s77, 0")
            if PFE and c in (11, 14):
                a.vmem(f"buffer_load_dword v43, v40, {s4(SRD_WS)}, 0 offen sc1", f"pe{c}")
            if PFE and c in (13, 16):
                lab = f"fp_pf{tag}{c}"
                a.wait_vm(f"pe{c-2}")
                a.e("v_readfirstlane_b32 s72, v43")
                a.e("s_cmp_lt_u32 s72, 32")
                a.e(f"s_cbranch_scc1 {lab}")
                a.e("s_cmp_lg_u32 s77, 0")
                a.e(f"s_cbranch_scc1 {lab}")
                a.e("s_mov_b32 s77, 1")
                a.e(f"s_and_b32 s10, s{S_RB}, 7")
                a.e("s_lshl_b32 s10, s10, 2")
                a.e("s_add_u32 s10, s10, s9")
                a.e("v_lshlrev_b32 v50, 7, v0")
                a.e(f"s_mul_i32 s11, s{S_CB}, {68*5120}")
                a.e(f"s_mul_i32 s12, s10, {68*5120//32}")
                a.e("s_add_u32 s11, s11, s12")
                a.e(f"s_add_u32 s11, s11, {hex(W2F_OFF)}")
                a.e(f"buffer_load_dword v52, v50, {s4(SRD_WS)}, s11 offen")
                a.e(f"s_add_u32 s11, s11, {10880 - 8192}")
                a.e(f"buffer_load_dword v53, v50, {s4(SRD_WS)}, s11 offen")
                a.e("v_min_u32 v51, 24, v0")
                a.e("v_lshlrev_b32 v51, 7, v51")
                a.e(f"s_mul_i32 s11, s{S_CB}, 102400")
                a.e("s_mul_i32 s12, s10, 3200")
                a.e("s_add_u32 s11, s11, s12")
                a.e(f"s_add_u32 s11, s11, {hex(WQF_OFF)}")
                a.e(f"buffer_load_dword v54, v51, {s4(SRD_WS)}, s11 offen")
                a.label(lab)
            if c == 18:
                a.vmem(f"buffer_load_dword v42, v40, {s4(SRD_WS)}, 0 offen sc1", "pp0")
        assert wi == 20 and xi == 10
        if tag == "kv":
            a.e("s_branch fp_tail")

    a.e("s_cmp_ge_u32 s6, 2")
    a.e("s_cbranch_scc1 fp_h")
    make_srd(a, SRD_W, P_WQKV, 640 * 3840)
    a.e("s_and_b32 s12, s9, 1")
    a.e("s_mul_i32 s12, s12, 192")
    a.e("s_lshr_b32 s13, s9, 1")
    a.e("s_mul_i32 s10, s7, 160")
    a.e("s_lshl_b32 s11, s8, 5")
    a.e("s_sub_u32 s10, s10, s11")
    a.e("s_mul_i32 s11, s13, 1280")
    a.e("s_add_u32 s10, s10, s11")
    a.e("s_add_u32 s10, s10, 1280")
    for n in range(3):
        d = 8 + n
        a.e("v_add_u32 v19, s12, v0")
        if n:
            a.e(f"v_add_u32 v19, {64*n}, v19")
        a.e("v_mul_u32_u24 v20, 5462, v19")
        a.e("v_lshrrev_b32 v20, 16, v20")
        a.e("v_mul_u32_u24 v21, 12, v20")
        a.e("v_sub_u32 v19, v19, v21")
        a.e("v_bfe_u32 v21, v20, 2, 1")
        a.e("v_lshlrev_b32 v21, 1, v21")
        a.e("v_xor_b32 v19, v19, v21")
        kperm_vgpr(a, 21, 20, 22, 23)
        a.e("v_mul_u32_u24 v21, 3840, v21")
        a.e(f"v_lshl_add_u32 v{d}, v19, 4, v21")
        a.e(f"v_add_u32 v{d}, s10, v{d}")
        if n:
            a.e(f"v_subrev_u32 v{d}, {1024*n}, v{d}")
    a.e("s_cmp_lg_u32 s5, 0")
    a.e("s_cbranch_scc1 fp_nozero")
    make_srd(a, SRD_T, P_DBG, 256)
    a.e("s_lshl_b32 s10, s7, 13")
    a.e("s_lshl_b32 s11, s9, 11")
    a.e("s_add_u32 s10, s10, s11")
    a.e(f"s_add_u32 s10, s10, {hex(PART_OFF)}")
    a.e("v_lshl_add_u32 v24, v0, 4, s10")
    for i in range(4):
        a.e(f"v_mov_b32 v{28+i}, 0")
    a.e(f"buffer_store_dwordx4 v[28:31], v24, {s4(SRD_WS)}, 0 offen sc1")
    a.e(f"buffer_store_dwordx4 v[28:31], v24, {s4(SRD_WS)}, 0 offen offset:1024 sc1")
    a.e("s_waitcnt vmcnt(0)")
    a.e("s_lshl_b32 s10, s7, 2")
    flag_add(a, s4(SRD_T), "s10", 24)
    a.label("fp_nozero")

    def dma_kv(c):
        a.e(f"s_mul_i32 s52, s68, {32*3840}")
        a.e(f"s_add_u32 m0, s15, {(c % NSL1)*WS1}")
        adv_k()
        for n in range(3):
            a.vmem(f"buffer_load_dwordx4 v{8+n}, {s4(SRD_W)}, s52 offen offset:{1024*n} lds", f"dma{c}")

    loop_a(dma_kv, "kv")
    vm_after = list(a.vm)
    a.label("fp_h")
    a.vm = []
    make_srd(a, SRD_W, P_W1, 640 * 3072)
    a.e("v_lshrrev_b32 v14, 3, v0")
    a.e("v_and_b32 v15, 3, v14")
    a.e("v_lshrrev_b32 v16, 2, v14")
    a.e("v_lshl_add_u32 v15, v16, 3, v15")
    a.e("v_mul_u32_u24 v8, 3072, v15")
    a.e("v_bfe_u32 v15, v0, 1, 2")
    a.e("v_lshrrev_b32 v16, 1, v14")
    a.e("v_xor_b32 v15, v15, v16")
    a.e("v_lshl_add_u32 v8, v15, 5, v8")
    a.e("v_and_b32 v15, 1, v0")
    a.e("v_lshl_add_u32 v8, v15, 4, v8")
    a.e("s_and_b32 s12, s9, 1")
    a.e("s_lshl_b32 s12, s12, 4")
    a.e("s_lshr_b32 s13, s9, 1")
    a.e("s_lshl_b32 s13, s13, 2")
    a.e("s_add_u32 s12, s12, s13")
    a.e("s_mul_i32 s12, s12, 3072")
    a.e("s_mul_i32 s13, s7, 384")
    a.e("s_add_u32 s12, s12, s13")
    a.e("v_add_u32 v8, s12, v8")

    def dma_h(c):
        a.e(f"s_mul_i32 s52, s68, {32*3072}")
        for cbk in range(3):
            a.e(f"s_add_u32 m0, s15, {(c % NSL1)*WS1 + cbk*1024}")
            if cbk == 0:
                adv_k()
            else:
                a.e("s_add_u32 s52, s52, 128")
            a.vmem(f"buffer_load_dwordx4 v8, {s4(SRD_W)}, s52 offen lds", f"dma{c}")

    loop_a(dma_h, "h")
    assert a.vm == vm_after
    a.label("fp_tail")
    a.e("s_barrier")
    a.e("s_cmp_eq_u32 s9, 3")
    a.e("s_cbranch_scc1 fp_helper")
    a.e("s_cmp_eq_u32 s9, 1")
    a.e("s_cbranch_scc1 fp_p1")
    a.e("s_cmp_eq_u32 s9, 2")
    a.e("s_cbranch_scc1 fp_p2")
    vm_keep = list(a.vm)

    segs = [(0, 10), (10, 24), (34, 10)]

    def gen_p(P):
        items = [("W", i) if i < 10 else ("A", i - 10) for i in range(6 * P, 6 * P + 6)]
        lab = f"fp{P}"

        def check(tag, vval, vaddr, target, lb):
            a.wait_vm(tag)
            a.e(f"v_readfirstlane_b32 s72, v{vval}")
            a.e(f"s_cmp_ge_u32 s72, {target}")
            a.e(f"s_cbranch_scc1 {lb}_done")
            vm = list(a.vm)
            poll(a, s4(SRD_WS), vaddr, target, lb, sleep=8)
            a.vm = vm

        def seg_setup(seg):
            n = segs[seg][1]
            if seg == 1:
                a.e("s_lshr_b32 s69, s73, 2")
                a.e("s_mul_i32 s69, s69, 3")
            else:
                a.e(f"s_mul_i32 s69, s73, {n}")
                a.e("s_lshr_b32 s69, s69, 5")
            w_off, w_nks, ks0 = [(WQF_OFF, 20, 0), (W2F_OFF, 68, 20), (W2F_OFF, 68, 0)][seg]
            a.e(f"s_mul_i32 s60, s{S_CB}, {w_nks*5120}")
            a.e(f"s_add_u32 s60, s60, {hex(w_off + ks0*5120)}")
            if seg == 0:
                a.e(f"s_lshl_b32 s61, s{S_RB}, 6")
                a.e("v_lshrrev_b32 v14, 3, v0")
                a.e("v_add_u32 v15, s61, v14")
                a.e("v_mul_u32_u24 v15, 1280, v15")
                a.e("v_lshrrev_b32 v14, 1, v14")
                a.e("v_and_b32 v16, 7, v0")
                a.e("v_xor_b32 v16, v16, v14")
                a.e("v_lshl_add_u32 v17, v16, 4, v15")
                a.e("v_xor_b32 v16, 4, v16")
                a.e("v_lshl_add_u32 v18, v16, 4, v15")
            else:
                a.e(f"s_lshl_b32 s61, s{S_RB}, 2")
                a.e(f"s_mul_i32 s61, s61, {ACT_RT}")
                a.e(f"s_add_u32 s61, s61, {hex(ACT_OFF + ks0*1024)}")
            for k, (ty, i) in enumerate(items):
                comp = (k & 3) * 1024
                if ty == "W":
                    a.e(f"s_add_u32 s10, s60, {hex((i*1024 - comp) & 0xffffffff)}")
                    a.e(f"v_add_u32 v{8+k}, s10, v7")
                elif seg == 0:
                    a.e(f"v_add_u32 v{8+k}, {i*8*1280}, v{17 + (i & 1)}")
                else:
                    ks, rt = i // 4, i % 4
                    a.e(f"s_add_u32 s10, s61, {hex((rt*ACT_RT + ks*1024 - comp) & 0xffffffff)}")
                    a.e(f"v_add_u32 v{8+k}, s10, v7")

        def dma2(c):
            sl = c % NSL2
            seg = [i for i, sg in enumerate(segs) if sg[0] <= c < sg[0] + sg[1]][0]
            n = segs[seg][1]
            has_a = any(ty == "A" for ty, _ in items)
            has_w = any(ty == "W" for ty, _ in items)
            if c == 0:
                if has_w:
                    check("pp0", 42, 40, 32, lab + "_rw")
                seg_setup(0)
            if has_a and c in range(8, 32, 3):
                g = (c - 8) // 3
                a.e("s_lshr_b32 s10, s73, 2")
                a.e(f"s_add_u32 s10, s10, {g}")
                a.e("s_and_b32 s10, s10, 7")
                a.e(f"s_lshr_b32 s11, s{S_RB}, 1")
                a.e("s_lshl_b32 s11, s11, 3")
                a.e("s_add_u32 s10, s10, s11")
                a.e("s_lshl_b32 s10, s10, 7")
                a.e(f"s_add_u32 s10, s10, {hex(F_H2)}")
                a.e("v_mov_b32 v40, s10")
                a.vmem(f"buffer_load_dword v42, v40, {s4(SRD_WS)}, 0 offen sc1", f"pp1{g}")
            if has_a and c in range(10, 34, 3):
                g = (c - 10) // 3
                check(f"pp1{g}", 42, 40, 4, lab + f"_h{g}")
            if c == 10:
                seg_setup(1)
            if c == 32 and has_a:
                a.e(f"s_lshl_b32 s10, s{S_RB}, 7")
                a.e(f"s_add_u32 s10, s10, {hex(F_O)}")
                a.e("v_mov_b32 v40, s10")
                a.vmem(f"buffer_load_dword v42, v40, {s4(SRD_WS)}, 0 offen sc1", "pp2")
            if c == 34:
                if has_a:
                    check("pp2", 42, 40, 32, lab + "_o")
                seg_setup(2)
            if has_w:
                a.e("s_mul_i32 s62, s69, 10240")
            if has_a:
                a.e(f"s_lshl_b32 s63, s69, {7 if seg == 0 else 11}")
            base = sl * SLOT2 + 6 * P * 1024
            cur_m0 = None
            for k, (ty, i) in enumerate(items):
                raw = (ty == "A" and seg == 0)
                m0v = base + (k * 1024 if raw else (k & ~3) * 1024)
                off = 0 if raw else (k & 3) * 1024
                if m0v != cur_m0:
                    a.e(f"s_mov_b32 m0, {m0v}")
                    a.e("s_nop 0")
                    cur_m0 = m0v
                srd = s4(SRD_X) if raw else s4(SRD_WS)
                so = "s62" if ty == "W" else "s63"
                fl = "" if (raw or NOSC1) else " sc1"
                a.vmem(f"buffer_load_dwordx4 v{8+k}, {srd}, {so} offen offset:{off}{fl} lds", f"d2{c}")
            a.e("s_add_u32 s69, s69, 1")
            a.e(f"s_cmp_ge_u32 s69, {n}")
            a.e("s_cselect_b32 s69, 0, s69")

        for c in range(4):
            dma2(c)
        a.e("s_cmp_ge_u32 s6, 2")
        a.e(f"s_cbranch_scc1 {lab}_noe")
        a.e("s_barrier")
        a.e("s_barrier")
        a.label(f"{lab}_noe")
        dma2(4)
        dma2(5)
        issued = 6
        for c in range(44):
            a.wait_vm(f"d2{c}")
            a.e("s_barrier")
            if issued < 44 and (issued < NSL2 or issued <= c + NSL2 - 2):
                dma2(issued)
                issued += 1
            if c == BI_AFTER:
                a.e("s_barrier")
        a.e("s_endpgm")

    gen_p(0)
    a.label("fp_p1")
    a.vm = list(vm_keep)
    gen_p(1)
    a.label("fp_p2")
    a.vm = list(vm_keep)
    gen_p(2)

    a.label("fp_helper")
    a.vm = []
    a.lg = []
    a.e("s_cmp_ge_u32 s6, 2")
    a.e("s_cbranch_scc1 fh_noe")
    a.e("s_barrier")
    a.e("s_barrier")
    a.label("fh_noe")
    if PFW:
        a.e("s_waitcnt vmcnt(0)")
        a.e("v_readfirstlane_b32 s72, v42")
        a.e("s_cmp_ge_u32 s72, 32")
        a.e("s_cbranch_scc0 fh_nopfw")
        a.e(f"s_and_b32 s10, s{S_RB}, 7")
        a.e("v_lshlrev_b32 v50, 7, v0")
        a.e(f"s_mul_i32 s11, s{S_CB}, {68*5120}")
        a.e(f"s_mul_i32 s12, s10, {68*5120//8}")
        a.e("s_add_u32 s11, s11, s12")
        a.e(f"s_add_u32 s11, s11, {hex(W2F_OFF)}")
        for i in range(6):
            a.e(f"buffer_load_dword v{52+i}, v50, {s4(SRD_WS)}, s11 offen")
            a.e("s_add_u32 s11, s11, 8192" if i < 4 else f"s_add_u32 s11, s11, {43520 - 5*8192}")
        a.label("fh_nopfw")
    for i in range(4):
        a.e(f"v_mov_b32 v{20+i}, 0")
    a.e(f"v_add_u32 v24, {IMG}, v7")
    for i in range(30):
        a.lds(f"ds_write_b128 v24, v[20:23] offset:{i*1024}", "Z")
    a.e(f"s_lshl_b32 s10, s{S_CB}, 7")
    a.e(f"s_add_u32 s10, s10, {hex(F_KV)}")
    a.e("v_mov_b32 v26, s10")
    a.e(f"s_lshl_b32 s12, s{S_CB}, 13")
    a.e(f"s_add_u32 s12, s12, {hex(PART_OFF)}")
    a.e("v_add_u32 v25, s12, v7")
    make_srd(a, SRD_T, P_GW, 1280)
    a.e(f"s_mov_b32 m0, {GWL}")
    a.e("s_nop 0")
    a.e(f"buffer_load_dwordx4 v7, {s4(SRD_T)}, 0 offen lds")
    a.e(f"buffer_load_dwordx4 v7, {s4(SRD_T)}, 0 offen offset:1024 lds")
    a.e("s_mov_b32 s60, 0")
    a.e("s_mov_b32 s61, 0")
    a.e("v_mov_b32 v30, v0")
    a.e("s_waitcnt vmcnt(0) lgkmcnt(0)")
    a.lg = []
    for i in range(8):
        a.e("s_barrier")
    a.e("s_mov_b32 s60, 8")
    a.label("fh_wait")
    a.e(f"buffer_load_dword v21, v26, {s4(SRD_WS)}, 0 offen sc1")
    for i in range(2):
        a.e("s_cmp_ge_u32 s60, %d" % (BI_AFTER + 1))
        a.e(f"s_cbranch_scc1 fh_nobar{i}")
        a.e("s_barrier")
        a.e("s_add_u32 s60, s60, 1")
        a.label(f"fh_nobar{i}")
    a.e("s_waitcnt vmcnt(0)")
    a.e("v_readfirstlane_b32 s72, v21")
    a.e("s_cmp_ge_u32 s72, 64")
    a.e("s_cbranch_scc0 fh_wait")
    for r in range(7):
        a.e(f"buffer_load_dwordx4 {vr(64+4*r,4)}, v25, {s4(SRD_WS)}, 0 offen" + (f" offset:{1024*r}" if r < 4 else "") + " sc1")
        if r == 3:
            a.e("v_add_u32 v25, 4096, v25")
        if r >= 4:
            a.e("v_add_u32 v25, 1024, v25")
    a.e("s_cmp_ge_u32 s60, %d" % (BI_AFTER + 1))
    a.e("s_cbranch_scc1 fh_loop")
    a.e("s_barrier")
    a.e("s_add_u32 s60, s60, 1")
    a.label("fh_loop")
    a.e("s_cmp_ge_u32 s60, %d" % (BI_AFTER + 1) + "")
    a.e("s_cbranch_scc1 fh_round")
    a.e("s_barrier")
    a.e("s_add_u32 s60, s60, 1")
    a.label("fh_round")
    F, H_, RM, DD, E0, AD = 30, 35, 36, 37, 38, 39
    a.e(f"v_mul_u32_u24 v{H_}, 625, v{F}")
    a.e(f"v_lshrrev_b32 v{H_}, 16, v{H_}")
    a.e(f"v_mul_u32_u24 v{RM}, 105, v{H_}")
    a.e(f"v_sub_u32 v{RM}, v{F}, v{RM}")
    a.e(f"v_mul_u32_u24 v{DD}, 13108, v{RM}")
    a.e(f"v_lshrrev_b32 v{DD}, 16, v{DD}")
    a.e(f"v_mul_u32_u24 v{E0}, 5, v{DD}")
    a.e(f"v_sub_u32 v{E0}, v{RM}, v{E0}")
    a.e(f"v_lshlrev_b32 v{E0}, 2, v{E0}")
    a.e(f"v_mul_u32_u24 v{H_}, 20, v{H_}")
    a.e(f"v_add_u32 v{AD}, v{H_}, v{E0}")
    a.e(f"v_mul_u32_u24 v{AD}, 192, v{AD}")
    a.e(f"v_add_u32 v40, v{H_}, v{DD}")
    a.e(f"v_lshl_add_u32 v{AD}, v40, 1, v{AD}")
    a.e(f"v_add_u32 v{AD}, {IMG}, v{AD}")
    a.e(f"v_mul_u32_u24 v43, 192, v{H_}")
    a.e(f"v_add_u32 v40, v{H_}, v{E0}")
    a.e(f"v_lshl_add_u32 v43, v40, 1, v43")
    a.e(f"v_add_u32 v43, {IMG+15360}, v43")
    a.e(f"v_cmp_gt_u32 vcc, 420, v{F}")
    a.e("s_mov_b64 s[56:57], vcc")
    a.e(f"v_cmp_gt_u32 s[52:53], 20, v{DD}")
    a.e(f"v_cmp_eq_u32 s[54:55], 20, v{DD}")
    a.e("s_and_b64 s[52:53], s[52:53], s[56:57]")
    a.e("s_and_b64 s[54:55], s[54:55], s[56:57]")
    a.e("s_waitcnt vmcnt(0)")
    a.e("v_cvt_pk_bf16_f32 v32, v64, v65")
    a.e("v_cvt_pk_bf16_f32 v33, v66, v67")
    for k in range(24):
        a.e(f"v_mov_b32 v{64+k}, v{68+k}")
    a.e("v_lshrrev_b32 v41, 16, v32")
    a.e("v_lshrrev_b32 v42, 16, v33")
    a.e("s_mov_b64 s[66:67], exec")
    a.e("s_mov_b64 exec, s[52:53]")
    a.e(f"ds_write_b16 v{AD}, v32")
    a.e(f"ds_write_b16 v{AD}, v41 offset:192")
    a.e(f"ds_write_b16 v{AD}, v33 offset:384")
    a.e(f"ds_write_b16 v{AD}, v42 offset:576")
    a.e("s_mov_b64 exec, s[54:55]")
    a.e("s_cbranch_execz fh_noz")
    for ee in range(20):
        a.e(f"ds_write_b64 v43, v[32:33] offset:{192*ee}")
    a.label("fh_noz")
    a.e("s_mov_b64 exec, s[66:67]")
    a.e(f"v_add_u32 v{F}, 64, v{F}")
    a.e("s_add_u32 s61, s61, 1")
    a.e("s_cmp_lt_u32 s61, 7")
    a.e("s_cbranch_scc1 fh_loop")
    a.e("s_waitcnt lgkmcnt(0)")
    a.label("fh_rest")
    a.e("s_cmp_ge_u32 s60, %d" % (BI_AFTER + 1) + "")
    a.e("s_cbranch_scc1 fh_bi")
    a.e("s_barrier")
    a.e("s_add_u32 s60, s60, 1")
    a.e("s_branch fh_rest")
    a.label("fh_bi")
    a.e("s_barrier")
    a.e("s_endpgm")


def repack_issue(a):
    a.e("s_min_u32 s53, s9, 2")
    a.e(f"s_mul_i32 s54, s{S_RB}, 3")
    a.e("s_add_u32 s54, s54, s53")
    a.e("s_min_u32 s54, s54, 87")
    a.e(f"s_mov_b32 s59, {hex(W2F_OFF)}")
    a.e("s_cmp_lt_u32 s54, 20")
    a.e(f"s_cselect_b32 s59, {hex(WQF_OFF)}, s59")
    a.e("s_cselect_b32 s60, 20, 68")
    a.e("s_cselect_b32 s61, 0, 20")
    a.e("s_sub_u32 s54, s54, s61")
    a.e(f"s_mul_i32 s60, s60, s{S_CB}")
    a.e("s_add_u32 s54, s54, s60")
    a.e("s_mul_i32 s54, s54, 5120")
    a.e("s_add_u32 s54, s54, s59")
    a.e("v_add_u32 v10, s54, v7")
    a.e("v_lshrrev_b32 v12, 2, v0")
    a.e("v_mul_u32_u24 v12, 192, v12")
    a.e("v_and_b32 v13, 3, v0")
    a.e("v_lshl_add_u32 v12, v13, 3, v12")
    a.e(f"s_and_b32 s60, s{S_CB}, 1")
    a.e("s_lshl_b32 s61, s60, 5")
    a.e("s_mul_i32 s59, s53, 6144")
    a.e("s_add_u32 s61, s61, s59")
    a.e(f"s_add_u32 s61, s61, {WBASE + 6*WS1}")
    a.e("v_add_u32 v12, s61, v12")
    a.e("v_and_b32 v13, 1, v3")
    a.e("v_lshlrev_b32 v13, 5, v13")
    a.e("s_cmp_eq_u32 s60, 0")
    a.e("s_cselect_b32 s61, 1, -1")
    a.e("v_mul_lo_u32 v13, v13, s61")
    a.e("v_add_u32 v8, v12, v13")
    a.e("v_sub_u32 v9, v12, v13")


def repack_reads(a):
    for t in range(5):
        for hf in range(2):
            a.lds(f"ds_read_b64_tr_b16 {vr(208+t*4+2*hf,2)}, v{8 + (t & 1)} offset:{16*hf*192 + t*32}", "RPR")


def repack_store(a):
    a.wait_lg("RPR")
    for t in range(4):
        a.vmem(f"buffer_store_dwordx4 {vr(208+4*t,4)}, v10, {s4(SRD_WS)}, 0 offen offset:{1024*t} sc1", "rst")
    a.e("v_add_u32 v10, 4096, v10")
    a.vmem(f"buffer_store_dwordx4 {vr(224,4)}, v10, {s4(SRD_WS)}, 0 offen sc1", "rst")
    a.nop(2)


def phi4(a, c, T, out0, out1):
    p0, p1 = T, T + 1
    f = T + 2
    ex = T + 6
    if FAITH:
        a.e(f"v_cvt_pk_bf16_f32 v{p0}, v{c}, v{c+1}")
        a.e(f"v_cvt_pk_bf16_f32 v{p1}, v{c+2}, v{c+3}")
        unpack(a, f, f + 1, p0)
        unpack(a, f + 2, f + 3, p1)
        src = f
    else:
        src = c
    a.e(f"v_pk_mul_f32 {vr(ex,2)}, {vr(src,2)}, s[60:61]")
    a.e(f"v_pk_mul_f32 {vr(ex+2,2)}, {vr(src+2,2)}, s[60:61]")
    for i in range(4):
        a.e(f"v_exp_f32 v{ex+i}, v{ex+i}")
    a.e(f"v_pk_add_f32 {vr(f,2)}, {vr(src,2)}, s[62:63]")
    a.e(f"v_pk_add_f32 {vr(f+2,2)}, {vr(src+2,2)}, s[62:63]")
    for i in range(4):
        a.e(f"v_med3_f32 v{f+i}, v{f+i}, v{ex+i}, 1.0")
    if FAITH:
        a.e(f"v_cvt_pk_bf16_f32 v{p0}, v{f}, v{f+1}")
        a.e(f"v_cvt_pk_bf16_f32 v{p1}, v{f+2}, v{f+3}")
        unpack(a, f, f + 1, p0)
        unpack(a, f + 2, f + 3, p1)
    a.e(f"v_pk_add_f32 {vr(f,2)}, {vr(f,2)}, s[64:65]")
    a.e(f"v_pk_add_f32 {vr(f+2,2)}, {vr(f+2,2)}, s[64:65]")
    a.e(f"v_cvt_pk_bf16_f32 v{out0}, v{f}, v{f+1}")
    a.e(f"v_cvt_pk_bf16_f32 v{out1}, v{f+2}, v{f+3}")


def phi_consts(a):
    a.e(f"s_mov_b32 s60, {LOG2E}")
    a.e(f"s_mov_b32 s61, {LOG2E}")
    a.e("s_mov_b32 s62, 1.0")
    a.e("s_mov_b32 s63, 1.0")
    a.e("s_mov_b32 s64, 0x358637bd")
    a.e("s_mov_b32 s65, 0x358637bd")


def loop_a_cons(a, nb, arows, wfrag, afrag, acc, reads, regs, swap, cinit=None, post_repack=None):
    def bump(c):
        pass

    make_srd(a, SRD_T, P_DBG, 256)
    a.e("v_mov_b32 v254, 32")
    a.e("s_barrier")
    a.stamp("a0")
    for t in range(nb):
        reads(0, t)
    for s in range(20):
        if os.environ.get("ASTAMP") and s in (2, 4, 6, 8, 10, 12, 14, 16, 18):
            a.stamp(f"a{s}")
        if s == 1:
            repack_reads(a)
        if s == 2:
            a.vmem(f"buffer_load_dword v255, v254, {s4(SRD_T)}, 0 offen sc1", "rst")
            repack_store(a)
            if post_repack:
                post_repack()
        if s + 1 < 20:
            if s == RWPUB:
                a.wait_vm("rst")
            a.e("s_barrier")
            bump(s + 1)
            if s == RWPUB:
                lab = f"fc_norp{swap}"
                a.e("s_cmp_lg_u32 s9, 0")
                a.e(f"s_cbranch_scc1 {lab}")
                lg = list(a.lg)
                vm = list(a.vm)
                a.e("v_readfirstlane_b32 s72, v255")
                a.e("s_cmp_ge_u32 s72, 1")
                a.e(f"s_cbranch_scc1 {lab}_p_done")
                make_srd(a, SRD_T, P_DBG, 256)
                poll(a, s4(SRD_T), 254, 1, lab + "_p", tmp=255)
                a.e(f"s_lshl_b32 s10, s{S_CB}, 7")
                a.e(f"s_add_u32 s10, s10, {hex(F_RW)}")
                flag_add(a, s4(SRD_WS), "s10", 254)
                a.label(lab)
                a.lg = lg
                a.vm = vm
        for t in range(nb):
            if s + 1 < 20:
                reads(s + 1, t)
            need = [("R", s, t)]
            if t == 0:
                need += [("A", s, r) for r in range(arows)]
            a.wait_lg(need)
            for rt in range(arows):
                d = acc(rt, t)
                cin = d if s else (cinit(t) if cinit else "0")
                if swap:
                    a.e(f"v_mfma_f32_16x16x32_bf16 {d}, {wfrag(s,t)}, {afrag(s,rt)}, {cin}")
                else:
                    a.e(f"v_mfma_f32_16x16x32_bf16 {d}, {afrag(s,rt)}, {wfrag(s,t)}, {cin}")


def prefetch_a(a):
    a.e("s_lshl_b32 s53, s4, 2")
    a.e("s_add_u32 s53, s53, s9")
    a.e("s_lshr_b32 s54, s3, 2")
    a.e(f"s_mul_i32 s54, s54, {1024*1280}")
    a.e(f"s_mul_i32 s55, s53, {80*128}")
    a.e("s_add_u32 s54, s54, s55")
    a.e("v_lshlrev_b32 v32, 7, v0")
    a.e(f"buffer_load_dword v250, v32, {s4(SRD_X)}, s54 offen")
    a.e("v_and_b32 v33, 15, v0")
    a.e("v_lshlrev_b32 v33, 7, v33")
    a.e("s_add_u32 s54, s54, 8192")
    a.e(f"buffer_load_dword v251, v33, {s4(SRD_X)}, s54 offen")
    a.e("s_and_b32 s56, s3, 3")
    make_srd(a, SRD_T, P_WQKV, 640 * 3840)
    a.e("v_min_u32 v32, 39, v0")
    a.e("v_lshrrev_b32 v33, 3, v32")
    a.e("s_mul_i32 s54, s53, 5")
    a.e("v_add_u32 v33, s54, v33")
    a.e("v_mul_u32_u24 v33, 3840, v33")
    a.e("v_bfe_u32 v34, v32, 2, 1")
    a.e("v_mul_u32_u24 v34, 1280, v34")
    a.e("v_add_u32 v33, v33, v34")
    a.e("v_and_b32 v34, 3, v32")
    a.e("v_mul_u32_u24 v34, 106, v34")
    a.e("v_and_b32 v34, 0xfffffffc, v34")
    a.e("v_add_u32 v33, v33, v34")
    a.e("s_mul_i32 s54, s56, 320")
    a.e("s_add_u32 s54, s54, 1280")
    a.e(f"buffer_load_dword v252, v33, {s4(SRD_T)}, s54 offen")
    make_srd(a, SRD_T, P_W1, 640 * 3072)
    a.e("v_min_u32 v32, 29, v0")
    a.e("v_mul_u32_u24 v33, 10923, v32")
    a.e("v_lshrrev_b32 v33, 16, v33")
    a.e("v_mul_u32_u24 v34, 6, v33")
    a.e("v_sub_u32 v34, v32, v34")
    a.e("s_mul_i32 s54, s53, 5")
    a.e("v_add_u32 v33, s54, v33")
    a.e("v_mul_u32_u24 v33, 3072, v33")
    a.e("v_lshl_add_u32 v33, v34, 7, v33")
    a.e("s_mul_i32 s54, s56, 768")
    a.e(f"buffer_load_dword v253, v33, {s4(SRD_T)}, s54 offen")


def gen_consumers(a):
    if PFA:
        prefetch_a(a)
    repack_issue(a)
    a.e("v_lshrrev_b32 v14, 1, v2")
    a.e("v_xor_b32 v14, v14, v3")
    a.e("v_lshlrev_b32 v15, 7, v2")
    a.e("v_lshl_add_u32 v17, v14, 4, v15")
    a.e("s_cmp_ge_u32 s6, 2")
    a.e("s_cbranch_scc1 fc_h")
    vm0 = list(a.vm)
    a.e("v_lshrrev_b32 v19, 2, v0")
    a.e("v_mul_u32_u24 v19, 192, v19")
    a.e("v_and_b32 v20, 3, v0")
    a.e("v_lshl_add_u32 v19, v20, 3, v19")
    a.e("s_lshl_b32 s11, s8, 5")
    a.e(f"s_add_u32 s11, s11, {WBASE}")
    a.e("v_add_u32 v19, s11, v19")
    a.e("v_and_b32 v20, 1, v3")
    a.e("v_lshlrev_b32 v20, 5, v20")
    a.e("s_cmp_eq_u32 s8, 0")
    a.e("s_cselect_b32 s11, 1, -1")
    a.e("v_mul_lo_u32 v20, v20, s11")
    a.e("v_add_u32 v24, v19, v20")
    a.e("v_sub_u32 v25, v19, v20")
    a.e(f"v_add_u32 v18, {4*WS1}, v24")
    a.e(f"v_add_u32 v19, {4*WS1}, v25")
    a.e("s_lshl_b32 s14, s9, 12")
    a.e("v_add_u32 v26, s14, v17")
    a.e("v_xor_b32 v27, 64, v26")
    ACC, WB, AB = 32, 112, 192
    if PFA:
        a.e("s_waitcnt vmcnt(0)")
    a.e("s_lshl_b32 s12, s9, 6")
    a.e("v_add_u32 v16, s12, v0")
    a.e("s_lshl_b32 s12, s7, 13")
    a.e(f"s_add_u32 s12, s12, {hex(PART_OFF)}")
    for it in range(7):
        I, H_, RM, DD, E_, Dg, Eg, TI = [32 + k for k in range(8)]
        AD = 240 + it
        a.e(f"v_add_u32 v{I}, {256*it}, v16")
        a.e(f"v_mul_u32_u24 v{H_}, 1249, v{I}")
        a.e(f"v_lshrrev_b32 v{H_}, 19, v{H_}")
        a.e(f"v_mul_u32_u24 v{RM}, 420, v{H_}")
        a.e(f"v_sub_u32 v{RM}, v{I}, v{RM}")
        a.e(f"v_mul_u32_u24 v{DD}, 3277, v{RM}")
        a.e(f"v_lshrrev_b32 v{DD}, 16, v{DD}")
        a.e(f"v_mul_u32_u24 v{E_}, 20, v{DD}")
        a.e(f"v_sub_u32 v{E_}, v{RM}, v{E_}")
        a.e(f"v_mul_u32_u24 v{H_}, 20, v{H_}")
        a.e(f"v_cmp_eq_u32 vcc, 20, v{DD}")
        a.e(f"v_add_u32 v{Eg}, v{H_}, v{E_}")
        a.e(f"v_add_u32 v{Dg}, v{H_}, v{DD}")
        a.e(f"v_cndmask_b32 v{Dg}, v{Dg}, v{Eg}, vcc")
        a.e(f"v_lshrrev_b32 v{TI}, 4, v{Dg}")
        a.e(f"v_lshrrev_b32 v{AD}, 4, v{Eg}")
        a.e(f"v_lshl_add_u32 v{AD}, v{TI}, 1, v{AD}")
        a.e(f"v_add_u32 v{TI}, 13, v{TI}")
        a.e(f"v_cndmask_b32 v{TI}, v{AD}, v{TI}, vcc")
        a.e(f"v_and_b32 v{Eg}, 15, v{Eg}")
        a.e(f"v_cndmask_b32 v{Eg}, v{Eg}, 0, vcc")
        a.e(f"v_bfe_u32 v{AD}, v{Dg}, 2, 2")
        a.e(f"v_lshl_add_u32 v{AD}, v{AD}, 4, v{Eg}")
        a.e(f"v_lshlrev_b32 v{AD}, 4, v{AD}")
        a.e(f"v_lshl_add_u32 v{AD}, v{TI}, 10, v{AD}")
        a.e(f"v_and_b32 v{Dg}, 3, v{Dg}")
        a.e(f"v_lshl_add_u32 v{AD}, v{Dg}, 2, v{AD}")
        if it == 6:
            a.e(f"v_cmp_gt_u32 vcc, 1680, v{I}")
            a.e("s_nop 1")
            a.e(f"v_cndmask_b32 v{AD}, 0, v{AD}, vcc")
            a.e("s_mov_b64 s[50+28:51+28], vcc".replace("50+28:51+28", "78:79"))
        a.e(f"v_add_u32 v{AD}, {SCR}, v{AD}")
        a.e(f"v_lshl_add_u32 v{247+it}, v{I}, 2, s12")

    def reads_kv(s, t):
        if t < 2:
            a.lds(f"ds_read_b128 {vr(AB+((s&1)*2+t)*4,4)}, v{26+(s&1)} offset:{t*2048 + ((s//2)%4)*XS}", ("A", s, t))
        for hf in range(2):
            sl = s % NSL1
            off = (t // 5) * 6144 + 16 * hf * 192 + (t % 5) * 32 + (sl % 4) * WS1
            v = (24 if sl < 4 else 18) + ((t % 5) % 2)
            a.lds(f"ds_read_b64_tr_b16 {vr(WB+((s&1)*10+t)*4+2*hf,2)}, v{v} offset:{off}", ("R", s, t))

    loop_a_cons(a, 10, 2, lambda s, t: vr(WB + ((s & 1) * 10 + t) * 4, 4),
                lambda s, rt: vr(AB + ((s & 1) * 2 + rt) * 4, 4),
                lambda rt, t: vr(ACC + (t * 2 + rt) * 4, 4), reads_kv, [24, 25], False)
    a.stamp("aloop")
    a.e("s_barrier")
    phi_consts(a)
    a.nop(4)
    PK, T = 112, 152
    for t in range(5):
        for rt in range(2):
            c = ACC + (t * 2 + rt) * 4
            phi4(a, c, T + (12 if rt else 0), PK + t * 4 + rt * 2, PK + t * 4 + rt * 2 + 1)
    for t in range(5, 10):
        for rt in range(2):
            c = ACC + (t * 2 + rt) * 4
            a.e(f"v_cvt_pk_bf16_f32 v{PK+t*4+rt*2}, v{c}, v{c+1}")
            a.e(f"v_cvt_pk_bf16_f32 v{PK+t*4+rt*2+1}, v{c+2}, v{c+3}")
    ONES = 176
    for i in range(4):
        a.e(f"v_mov_b32 v{ONES+i}, 0x3f803f80")
    a.nop(2)
    D2 = 32
    pairs = [(i, j) for i in range(5) for j in range(5) if abs(i - j) <= 1]
    for (i, j) in pairs:
        a.e(f"v_mfma_f32_16x16x32_bf16 {vr(D2+(2*i+j)*4,4)}, {vr(PK+i*4,4)}, {vr(PK+(5+j)*4,4)}, 0")
    for i in range(5):
        a.e(f"v_mfma_f32_16x16x32_bf16 {vr(D2+(13+i)*4,4)}, {vr(PK+i*4,4)}, {vr(ONES,4)}, 0")
    a.e("s_mul_i32 s12, s9, 18432")
    a.e(f"s_add_u32 s12, s12, {SCR}")
    a.e("v_add_u32 v14, s12, v7")
    make_srd(a, SRD_T, P_DBG, 256)
    a.e("s_lshl_b32 s10, s7, 2")
    a.e("v_mov_b32 v20, s10")
    a.vmem(f"buffer_load_dword v22, v20, {s4(SRD_T)}, 0 offen sc1", "zp")
    a.nop(2)
    for k in range(18):
        a.lds(f"ds_write_b128 v14, {vr(D2+k*4,4)} offset:{k*1024}", "W")
    a.wait_lg_all()
    a.e("s_barrier")
    for it in range(7):
        b = 112 + it * 4
        for w in range(4):
            a.lds(f"ds_read_b32 v{b+w}, v{240+it} offset:{w*18432}", ("Q", it))
    a.wait_lg_all()
    a.e("s_barrier")
    a.wait_vm("zp")
    a.e("v_readfirstlane_b32 s72, v22")
    a.e("s_cmp_ge_u32 s72, 4")
    a.e("s_cbranch_scc1 fc_zp_done")
    poll(a, s4(SRD_T), 20, 4, "fc_zp")
    for it in range(7):
        b = 112 + it * 4
        a.e(f"v_add_f32 v{b}, v{b}, v{b+1}")
        a.e(f"v_add_f32 v{b+2}, v{b+2}, v{b+3}")
        a.e(f"v_add_f32 v{b}, v{b}, v{b+2}")
        if it == 6:
            a.e("s_mov_b64 exec, s[78:79]")
        a.vmem(f"buffer_atomic_add_f32 v{b}, v{247+it}, {s4(SRD_WS)}, 0 offen sc0 sc1", "st")
        if it == 6:
            a.e("s_mov_b64 exec, -1")
    a.e("s_lshl_b32 s71, s7, 7")
    a.e(f"s_add_u32 s71, s71, {hex(F_KV)}")
    a.e("s_branch fc_b")

    a.label("fc_h")
    a.vm = vm0
    a.lg = []
    a.nstamp = 1
    a.e("v_lshrrev_b32 v14, 5, v0")
    a.e("v_mul_u32_u24 v14, 3072, v14")
    a.e("v_bfe_u32 v15, v0, 2, 3")
    a.e("v_lshl_add_u32 v14, v15, 7, v14")
    a.e("v_and_b32 v16, 3, v0")
    a.e("v_lshl_add_u32 v14, v16, 3, v14")
    a.e(f"v_add_u32 v14, {WBASE}, v14")
    a.e("v_lshrrev_b32 v15, 1, v15")
    a.e("s_and_b32 s13, s9, 1")
    for t in range(6):
        a.e("s_mul_i32 s12, s13, 6")
        a.e(f"s_add_u32 s12, s12, {t}")
        a.e("s_and_b32 s11, s12, 3")
        a.e("s_lshr_b32 s12, s12, 2")
        a.e("s_lshl_b32 s12, s12, 10")
        a.e("v_xor_b32 v16, s11, v15")
        a.e(f"v_lshl_add_u32 v{20+t}, v16, 5, v14")
        a.e(f"v_add_u32 v{20+t}, s12, v{20+t}")
        a.e(f"v_add_u32 v{240+t}, {4*WS1}, v{20+t}")
    a.e("s_lshr_b32 s12, s9, 1")
    a.e("s_lshl_b32 s12, s12, 13")
    a.e("v_add_u32 v26, s12, v17")
    a.e("v_xor_b32 v27, 64, v26")
    ACCH, WBH, ABH = 32, 128, 176
    BB = 228

    def load_bias():
        make_srd(a, SRD_T, P_B1, 3072)
        a.e("s_mul_i32 s12, s7, 384")
        a.e("s_mul_i32 s11, s13, 192")
        a.e("s_add_u32 s12, s12, s11")
        a.e("v_lshl_add_u32 v28, v3, 3, s12")
        for t in range(6):
            a.vmem(f"buffer_load_dwordx2 {vr(BB+2*t,2)}, v28, {s4(SRD_T)}, 0 offen offset:{32*t}", "bias")

    def reads_h(s, t):
        if t < 4:
            a.lds(f"ds_read_b128 {vr(ABH+((s&1)*4+t)*4,4)}, v{26+(s&1)} offset:{t*2048 + ((s//2)%4)*XS}", ("A", s, t))
        for hf in range(2):
            sl = s % NSL1
            a.lds(f"ds_read_b64_tr_b16 {vr(WBH+((s&1)*6+t)*4+2*hf,2)}, v{(20 if sl < 4 else 240)+t} offset:{2*hf*3072 + (sl%4)*WS1}", ("R", s, t))

    loop_a_cons(a, 6, 4, lambda s, t: vr(WBH + ((s & 1) * 6 + t) * 4, 4),
                lambda s, rt: vr(ABH + ((s & 1) * 4 + rt) * 4, 4),
                lambda rt, t: vr(ACCH + (t * 4 + rt) * 4, 4), reads_h, [20, 21, 22, 23, 24, 25], True, None, load_bias)
    a.stamp("aloop")
    a.e("s_barrier")
    a.e("s_lshl_b32 s12, s5, 3")
    a.e("s_lshr_b32 s11, s9, 1")
    a.e("s_lshl_b32 s11, s11, 2")
    a.e("s_add_u32 s12, s12, s11")
    a.e(f"s_mul_i32 s12, s12, {ACT_RT}")
    a.e("s_mul_i32 s11, s7, 6")
    a.e("s_mul_i32 s10, s13, 3")
    a.e("s_add_u32 s11, s11, s10")
    a.e(f"s_add_u32 s11, s11, {20 + ACT_OFF // 1024}")
    a.e("s_lshl_b32 s11, s11, 10")
    a.e("s_add_u32 s12, s12, s11")
    a.e("v_lshrrev_b32 v14, 1, v3")
    a.e("v_lshl_add_u32 v14, v14, 4, v2")
    a.e("v_lshlrev_b32 v14, 4, v14")
    a.e("v_and_b32 v15, 1, v3")
    a.e("v_lshl_add_u32 v14, v15, 9, v14")
    for rt in range(4):
        a.e(f"v_add_u32 v{8+rt}, s12, v14")
        a.e(f"s_add_u32 s12, s12, {ACT_RT}")
    a.wait_vm("bias")
    T = 128
    for tp in range(3):
        if True:
            for h in range(2):
                t = 2 * tp + h
                unpack(a, T + 4 * h, T + 4 * h + 1, BB + 2 * t)
                unpack(a, T + 4 * h + 2, T + 4 * h + 3, BB + 2 * t + 1)
        for rt in range(4):
            O = T + 24 + ((tp * 4 + rt) % 4) * 4
            for h in range(2):
                t = 2 * tp + h
                c = ACCH + (t * 4 + rt) * 4
                p = T + 8 + h * 8
                f = p + 2
                bf = T + 4 * h
                o = O + 2 * h
                if FAITH_H:
                    a.e(f"v_cvt_pk_bf16_f32 v{p}, v{c}, v{c+1}")
                    a.e(f"v_cvt_pk_bf16_f32 v{p+1}, v{c+2}, v{c+3}")
                    unpack(a, f, f + 1, p)
                    unpack(a, f + 2, f + 3, p + 1)
                    a.e(f"v_pk_add_f32 {vr(f,2)}, {vr(f,2)}, {vr(bf,2)}")
                    a.e(f"v_pk_add_f32 {vr(f+2,2)}, {vr(f+2,2)}, {vr(bf+2,2)}")
                    a.e(f"v_cvt_pk_bf16_f32 v{p}, v{f}, v{f+1}")
                    a.e(f"v_cvt_pk_bf16_f32 v{p+1}, v{f+2}, v{f+3}")
                    a.e(f"v_pk_max_i16 v{p}, v{p}, 0")
                    a.e(f"v_pk_max_i16 v{p+1}, v{p+1}, 0")
                    unpack(a, f, f + 1, p)
                    unpack(a, f + 2, f + 3, p + 1)
                else:
                    a.e(f"v_pk_add_f32 {vr(f,2)}, {vr(c,2)}, {vr(bf,2)}")
                    a.e(f"v_pk_add_f32 {vr(f+2,2)}, {vr(c+2,2)}, {vr(bf+2,2)}")
                    for i in range(4):
                        a.e(f"v_max_f32 v{f+i}, 0, v{f+i}")
                a.e(f"v_pk_mul_f32 {vr(f,2)}, {vr(f,2)}, {vr(f,2)}")
                a.e(f"v_pk_mul_f32 {vr(f+2,2)}, {vr(f+2,2)}, {vr(f+2,2)}")
                a.e(f"v_cvt_pk_bf16_f32 v{o}, v{f}, v{f+1}")
                a.e(f"v_cvt_pk_bf16_f32 v{o+1}, v{f+2}, v{f+3}")
            a.nop(2)
            a.e(f"v_permlane16_swap_b32 v{O}, v{O+2}")
            a.e(f"v_permlane16_swap_b32 v{O+1}, v{O+3}")
            a.nop(1)
            a.vmem(f"buffer_store_dwordx4 {vr(O,4)}, v{8+rt}, {s4(SRD_WS)}, 0 offen offset:{tp*1024} sc1", "st")
    a.e("s_lshl_b32 s71, s5, 3")
    a.e("s_add_u32 s71, s71, s7")
    a.e("s_lshl_b32 s71, s71, 7")
    a.e(f"s_add_u32 s71, s71, {hex(F_H2)}")

    a.label("fc_b")
    a.vm = ["st"]
    a.lg = []
    a.nstamp = 11 if os.environ.get("ASTAMP") else 3
    a.stamp("aend")
    a.e(f"s_lshl_b32 s10, s{S_RB}, 2")
    a.e("s_add_u32 s10, s10, s9")
    a.e("s_lshl_b32 s11, s10, 4")
    a.e("v_add_u32 v4, s11, v2")
    a.e("v_lshlrev_b32 v6, 4, v3")
    a.e("s_lshl_b32 s12, s9, 10")
    a.e("s_add_u32 s12, s12, 10240")
    a.e("v_add_u32 v8, s12, v7")
    a.e("v_mov_b32 v9, v7")
    a.e("s_lshl_b32 s12, s9, 11")
    a.e("s_add_u32 s12, s12, 10240")
    a.e("v_add_u32 v10, s12, v17")
    a.e("v_xor_b32 v11, 64, v10")
    make_srd(a, SRD_X, P_B2, 1280)
    make_srd(a, 56, P_OUT, 2048 * 1280)
    a.e("s_mul_i32 s69, s73, 10")
    a.e("s_lshr_b32 s69, s69, 5")
    a.e("s_lshl_b32 s70, s69, 7")
    a.e(f"s_add_u32 s70, s70, {GWL}")
    a.e("v_add_u32 v6, s70, v6")
    ACC, WB, AB, GA, GF = 32, 64, 104, 56, 152
    ACA = 112
    B2 = 240
    a.e(f"v_mov_b32 v{GA}, 0")

    def reads(s, t):
        ks = s % 2
        if t == 0:
            if s < 20:
                a.lds(f"ds_read_b128 {vr(AB+(s&1)*4,4)}, v{10+ks}", ("A", s, 0))
                a.lds(f"ds_read_b128 {vr(GF+(s&1)*4,4)}, v6 offset:{ks*64}", ("A", s, 0))
            else:
                a.lds(f"ds_read_b128 {vr(AB+(s&1)*4,4)}, v8 offset:{ks*4096}", ("A", s, 0))
        a.lds(f"ds_read_b128 {vr(WB+((s&1)*5+t)*4,4)}, v9 offset:{ks*5120+t*1024}", ("R", s, t))

    def bump(c):
        d = SLOT2 if (c % NSL2) else -(NSL2 - 1) * SLOT2
        for r in ((8, 9, 10, 11) if c < 10 else (8, 9)):
            a.e(f"v_add_u32 v{r}, {d if d > 0 else hex(d & 0xffffffff)}, v{r}")
        if c < 10:
            a.e("s_add_u32 s69, s69, 1")
            a.e("s_cmp_ge_u32 s69, 10")
            a.e("s_cselect_b32 s70, -9, 1")
            a.e("s_cselect_b32 s69, 0, s69")
            a.e("s_lshl_b32 s70, s70, 7")
            a.e("v_add_u32 v6, s70, v6")

    def b_epilogue():
        a.stamp("bep")
        phi_consts(a)
        PQ, T = 152, 212
        for t in range(5):
            phi4(a, ACC + t * 4, T + (12 if t & 1 else 0), PQ + t * 2, PQ + t * 2 + 1)
        a.e(f"v_mov_b32 v{PQ+10}, 0")
        a.e(f"v_mov_b32 v{PQ+11}, 0")
        a.e("v_mul_u32_u24 v14, 192, v2")
        a.e("v_lshl_add_u32 v14, v3, 3, v14")
        a.e(f"v_add_u32 v14, {IMG}, v14")
        a.e(f"s_mul_i32 s12, s10, {ACT_RT}")
        a.e(f"s_mul_i32 s11, s{S_CB}, 2560")
        a.e("s_add_u32 s12, s12, s11")
        a.e(f"s_add_u32 s12, s12, {ACT_OFF}")
        a.e("v_lshrrev_b32 v15, 1, v3")
        a.e("v_lshl_add_u32 v15, v15, 4, v2")
        a.e("v_lshlrev_b32 v15, 4, v15")
        a.e("v_add_u32 v13, s12, v15")
        a.e("v_and_b32 v15, 1, v3")
        a.e("v_lshl_add_u32 v12, v15, 9, v13")
        a.e("s_barrier")
        us = {0: [0], 1: [0, 1], 2: [0, 1], 3: [1, 2], 4: [1, 2]}

        def fr(j):
            kf = 164 + (j & 1) * 16
            for im in range(2):
                for n, u in enumerate(us[j]):
                    b = kf + im * 8 + n * 4
                    off = im * 15360 + j * 16 * 192 + u * 64
                    a.lds(f"ds_read_b64 {vr(b,2)}, v14 offset:{off}", ("F", j))
                    a.lds(f"ds_read_b64 {vr(b+2,2)}, v14 offset:{off+32}", ("F", j))

        def mm(j):
            kf = 164 + (j & 1) * 16
            nd = 196 + (j & 1) * 8
            a.wait_lg(("F", j))
            for im in range(2):
                for n, u in enumerate(us[j]):
                    d = vr(nd + im * 4, 4)
                    a.e(f"v_mfma_f32_16x16x32_bf16 {d}, {vr(kf+im*8+n*4,4)}, {vr(PQ+u*4,4)}, {d if n else '0'}")

        fr(0)
        fr(1)
        mm(0)
        for j in range(5):
            if j + 1 < 5:
                mm(j + 1)
            else:
                a.nop(8)
            if j + 2 < 5:
                fr(j + 2)
            if j == 0:
                a.nop(4)
            n_ = 196 + (j & 1) * 8
            d_ = n_ + 4
            p = T
            f = T + 4
            g = T + 8
            if FAITH:
                a.e(f"v_cvt_pk_bf16_f32 v{p}, v{n_}, v{n_+1}")
                a.e(f"v_cvt_pk_bf16_f32 v{p+1}, v{n_+2}, v{n_+3}")
                a.e(f"v_cvt_pk_bf16_f32 v{p+2}, v{d_}, v{d_+1}")
                a.e(f"v_cvt_pk_bf16_f32 v{p+3}, v{d_+2}, v{d_+3}")
                unpack(a, f, f + 1, p)
                unpack(a, f + 2, f + 3, p + 1)
                unpack(a, g, g + 1, p + 2)
                unpack(a, g + 2, g + 3, p + 3)
                a.e(f"v_pk_add_f32 {vr(g,2)}, {vr(g,2)}, s[64:65]")
                a.e(f"v_pk_add_f32 {vr(g+2,2)}, {vr(g+2,2)}, s[64:65]")
                a.e(f"v_cvt_pk_bf16_f32 v{p+2}, v{g}, v{g+1}")
                a.e(f"v_cvt_pk_bf16_f32 v{p+3}, v{g+2}, v{g+3}")
                unpack(a, g, g + 1, p + 2)
                unpack(a, g + 2, g + 3, p + 3)
            else:
                a.e(f"v_pk_add_f32 {vr(g,2)}, {vr(d_,2)}, s[64:65]")
                a.e(f"v_pk_add_f32 {vr(g+2,2)}, {vr(d_+2,2)}, s[64:65]")
                for i in range(4):
                    a.e(f"v_mov_b32 v{f+i}, v{n_+i}")
            for i in range(4):
                a.e(f"v_rcp_f32 v{g+4+i}, v{g+i}")
            a.e("s_nop 0")
            a.e(f"v_pk_mul_f32 {vr(g+8,2)}, {vr(f,2)}, {vr(g+4,2)}")
            a.e(f"v_pk_mul_f32 {vr(g+10,2)}, {vr(f+2,2)}, {vr(g+6,2)}")
            if FAITH:
                for i in range(4):
                    a.e(f"v_fma_f32 v{f+i}, -v{g+i}, v{g+8+i}, v{f+i}")
                for i in range(4):
                    a.e(f"v_fma_f32 v{g+8+i}, v{f+i}, v{g+4+i}, v{g+8+i}")
            O = T + 24 + (j // 2) * 4
            if j < 4:
                o = O + (j & 1) * 2
                a.e(f"v_cvt_pk_bf16_f32 v{o}, v{g+8}, v{g+9}")
                a.e(f"v_cvt_pk_bf16_f32 v{o+1}, v{g+10}, v{g+11}")
            else:
                a.e(f"v_cvt_pk_bf16_f32 v{O}, v{g+8}, v{g+9}")
                a.e(f"v_cvt_pk_bf16_f32 v{O+1}, v{g+10}, v{g+11}")
                a.e(f"v_mov_b32 v{O+2}, v{O}")
                a.e(f"v_mov_b32 v{O+3}, v{O+1}")
            if j & 1 or j == 4:
                a.nop(2)
                a.e(f"v_permlane16_swap_b32 v{O}, v{O+2}")
                a.e(f"v_permlane16_swap_b32 v{O+1}, v{O+3}")
                a.nop(1)
                a.vmem(f"buffer_store_dwordx4 {vr(O,4)}, v{12 if j < 4 else 13}, {s4(SRD_WS)}, 0 offen offset:{512*(j & ~1)} sc1", "st")
        a.e(f"v_mov_b32 v57, v{GA}")
        a.nop(2)
        a.e(f"v_permlane32_swap_b32 v57, v{GA}")
        a.nop(2)
        a.e(f"v_add_f32 v{GA}, v57, v{GA}")
        a.e(f"v_mov_b32 v57, v{GA}")
        a.nop(2)
        a.e(f"v_permlane16_swap_b32 v57, v{GA}")
        a.nop(2)
        a.e(f"v_add_f32 v{GA}, v57, v{GA}")
        a.e(f"v_cvt_pk_bf16_f32 v{GA}, v{GA}, v{GA}")
        a.e(f"v_lshlrev_b32 v{GA}, 16, v{GA}")
        a.e(f"v_mul_f32 v{GA}, 0xbfb8aa3b, v{GA}")
        a.e(f"v_exp_f32 v{GA}, v{GA}")
        a.e("s_nop 0")
        a.e(f"v_add_f32 v{GA}, 1.0, v{GA}")
        a.e(f"v_rcp_f32 v{GA}, v{GA}")
        a.e("s_nop 0")
        a.e(f"v_cvt_pk_bf16_f32 v{GA}, v{GA}, v{GA}")
        a.e(f"v_lshlrev_b32 v{GA}, 16, v{GA}")
        a.e(f"v_sub_f32 v57, 1.0, v{GA}")
        a.e("v_cvt_pk_bf16_f32 v57, v57, v57")
        a.e("v_lshlrev_b32 v57, 16, v57")
        a.e(f"s_lshl_b32 s71, s{S_RB}, 7")
        a.e(f"s_add_u32 s71, s71, {hex(F_O)}")
        a.e("s_mov_b32 s77, 0")
        a.stamp("bep_end")

    a.e("s_mov_b32 s77, 0")
    a.e("s_barrier")
    a.stamp("b0")
    for t in range(5):
        reads(0, t)
    NK = 88
    for s in range(NK):
        if s in (20, 68):
            a.stamp(f"s{s}")
        if s == 70:
            a.e(f"s_mul_i32 s12, s{S_CB}, 160")
            a.e("v_lshl_add_u32 v28, v3, 3, s12")
            for t in range(5):
                a.vmem(f"buffer_load_dwordx2 {vr(B2+2*t,2)}, v28, {s4(SRD_X)}, 0 offen offset:{32*t}", "b2")
        if s + 1 < NK and (s + 1) % 2 == 0:
            c = (s + 1) // 2
            a.e("s_barrier")
            bump(c)
            win = None
            if 1 <= c <= PUBA_DL:
                win = (c == PUBA_DL)
            if BI_AFTER + 1 <= c <= BI_AFTER + PUBO_DL:
                win = (c == BI_AFTER + PUBO_DL)
            if win is not None:
                lab = f"fc_pub{c}"
                a.e("s_cmp_lg_u32 s77, 0")
                a.e(f"s_cbranch_scc1 {lab}")
                if win:
                    a.e("s_waitcnt vmcnt(0)")
                else:
                    a.e("s_getreg_b32 s72, hwreg(HW_REG_IB_STS)")
                    a.e("s_and_b32 s72, s72, 0xc0000f")
                    a.e(f"s_cbranch_scc1 {lab}")
                flag_add(a, s4(SRD_WS), "s71", 58)
                a.e("s_mov_b32 s77, 1")
                a.label(lab)
            if c == BI_AFTER:
                b_epilogue()
        for t in range(5):
            if s + 1 < NK:
                reads(s + 1, t)
            need = [("R", s, t)]
            if t == 0:
                need.append(("A", s, 0))
            a.wait_lg(need)
            if s < 20:
                d = vr(ACC + t * 4, 4)
            else:
                d = vr(ACA + (20 if s < 68 else 0) + t * 4, 4)
            cin = "0" if s in (0, 20, 68) else d
            a.e(f"v_mfma_f32_16x16x32_bf16 {d}, {vr(WB+((s&1)*5+t)*4,4)}, {vr(AB+(s&1)*4,4)}, {cin}")
            if s < 20 and t < 4:
                a.e(f"v_dot2_f32_bf16 v{GA}, v{AB+(s&1)*4+t}, v{GF+(s&1)*4+t}, v{GA}")
    a.stamp("cloop")
    a.e("v_mul_u32_u24 v5, 1280, v4")
    a.e("v_lshl_add_u32 v5, v3, 3, v5")
    a.e(f"s_mul_i32 s12, s{S_CB}, 160")
    a.e("v_add_u32 v5, s12, v5")
    a.wait_vm_all()
    a.nop(6)
    T = 160
    for t in range(5):
        ca = ACA + t * 4
        cb = ACA + 20 + t * 4
        p = T
        fa = T + 4
        fb = T + 8
        bb = T + 12
        a.e(f"v_cvt_pk_bf16_f32 v{p}, v{ca}, v{ca+1}")
        a.e(f"v_cvt_pk_bf16_f32 v{p+1}, v{ca+2}, v{ca+3}")
        a.e(f"v_cvt_pk_bf16_f32 v{p+2}, v{cb}, v{cb+1}")
        a.e(f"v_cvt_pk_bf16_f32 v{p+3}, v{cb+2}, v{cb+3}")
        unpack(a, fa, fa + 1, p)
        unpack(a, fa + 2, fa + 3, p + 1)
        unpack(a, fb, fb + 1, p + 2)
        unpack(a, fb + 2, fb + 3, p + 3)
        unpack(a, bb, bb + 1, B2 + 2 * t)
        unpack(a, bb + 2, bb + 3, B2 + 2 * t + 1)
        a.e(f"v_pk_add_f32 {vr(fb,2)}, {vr(fb,2)}, {vr(bb,2)}")
        a.e(f"v_pk_add_f32 {vr(fb+2,2)}, {vr(fb+2,2)}, {vr(bb+2,2)}")
        for i in range(4):
            a.e(f"v_mul_f32 v{fa+i}, v{GA}, v{fa+i}")
        a.e(f"v_cvt_pk_bf16_f32 v{p+2}, v{fb}, v{fb+1}")
        a.e(f"v_cvt_pk_bf16_f32 v{p+3}, v{fb+2}, v{fb+3}")
        a.e(f"v_cvt_pk_bf16_f32 v{p}, v{fa}, v{fa+1}")
        a.e(f"v_cvt_pk_bf16_f32 v{p+1}, v{fa+2}, v{fa+3}")
        unpack(a, fb, fb + 1, p + 2)
        unpack(a, fb + 2, fb + 3, p + 3)
        unpack(a, fa, fa + 1, p)
        unpack(a, fa + 2, fa + 3, p + 1)
        for i in range(4):
            a.e(f"v_mul_f32 v{fb+i}, v57, v{fb+i}")
        a.e(f"v_cvt_pk_bf16_f32 v{p+2}, v{fb}, v{fb+1}")
        a.e(f"v_cvt_pk_bf16_f32 v{p+3}, v{fb+2}, v{fb+3}")
        unpack(a, fb, fb + 1, p + 2)
        unpack(a, fb + 2, fb + 3, p + 3)
        a.e(f"v_pk_add_f32 {vr(fa,2)}, {vr(fa,2)}, {vr(fb,2)}")
        a.e(f"v_pk_add_f32 {vr(fa+2,2)}, {vr(fa+2,2)}, {vr(fb+2,2)}")
        o = T + 20 + t * 2
        a.e(f"v_cvt_pk_bf16_f32 v{o}, v{fa}, v{fa+1}")
        a.e(f"v_cvt_pk_bf16_f32 v{o+1}, v{fa+2}, v{fa+3}")
        a.vmem(f"buffer_store_dwordx2 {vr(o,2)}, v5, s[56:59], 0 offen offset:{32*t}", "st")
    a.stamp("end")
    a.dump_stamps()


HEADER = """; Kernarg layout for this problem (96 bytes, ptrs only, base s[0:1]):
;   0 A_x  8 A_wqkv  16 A_wo  24 B_x  32 B_w1  40 B_b1  48 B_w2  56 B_b2  64 gate_w  72 d_out  80 d_debug  88 d_ws
; @launch kernel=fused_kernel grid=(256,1,1) block=(512,1,1) lds=163840
.amdgcn_target "amdgcn-amd-amdhsa--gfx950"
.text
"""


def main():
    a = Asm()
    a.kid = 1
    gen(a)
    nm = "fused_kernel"
    out = HEADER + f".globl {nm}\n.p2align 8\n.type {nm},@function\n" + "\n".join(a.lines) + "\n"
    out += '.section .rodata,"a"\n.p2align 6\n' + kd(nm, 256, 256)
    path = sys.argv[1] if len(sys.argv) > 1 else f"cdna_kernels/{NAME}.s"
    open(path, "w").write(out)


if __name__ == "__main__":
    main()
```

```python
import sys

NAME = "gated_mix__linear_attn_block__dense_activation_squared_relu__prompt"

ACT_RT = 68 * 1024
PART_OFF = 0x900000
PART_BLK = 7168
G_OFF = 0xA00000
XF_OFF = 0xB00000
WQF_OFF = 0xE00000
W2F_OFF = 0xF00000
FLAG_OFF = 0x11F0000
WS_USED = 0x1200000


import os
STAMP = int(os.environ.get("STAMP", "0"))
STAMP_WG = int(os.environ.get("STAMP_WG", "0"))


class Asm:
    def __init__(self):
        self.lines = []
        self.vm = []
        self.lg = []
        self.nstamp = 0
        self.ndump = 0

    def e(self, s):
        self.lines.append("  " + s)

    def label(self, s):
        self.lines.append(s + ":")

    def c(self, s):
        self.lines.append("  ; " + s)

    def vmem(self, s, tag):
        self.e(s)
        self.vm.append(tag)

    def wait_vm(self, tags):
        if isinstance(tags, str):
            tags = [tags]
        last = -1
        for i, t in enumerate(self.vm):
            if t in tags:
                last = i
        if last < 0:
            return
        n = len(self.vm) - 1 - last
        n = min(n, 63)
        self.e(f"s_waitcnt vmcnt({n})")
        self.vm = self.vm[len(self.vm) - n:] if n > 0 else []

    def wait_vm_all(self):
        self.e("s_waitcnt vmcnt(0)")
        self.vm = []

    def lds(self, s, tag):
        self.e(s)
        self.lg.append(tag)

    def wait_lg(self, tags):
        if isinstance(tags, (str, tuple)):
            tags = [tags]
        last = -1
        for i, t in enumerate(self.lg):
            if t in tags:
                last = i
        if last < 0:
            return
        n = len(self.lg) - 1 - last
        n = min(n, 15)
        self.e(f"s_waitcnt lgkmcnt({n})")
        self.lg = self.lg[len(self.lg) - n:] if n > 0 else []

    def wait_lg_all(self):
        self.e("s_waitcnt lgkmcnt(0)")
        self.lg = []

    def stamp(self, name=""):
        if not STAMP:
            return
        if STAMP == 2:
            if name == "start":
                self.e("s_memrealtime s[96:97]")
                self.e("s_memtime s[92:93]")
                self.wait_lg_all()
            return
        if os.environ.get("ASTAMP") and not (name.startswith("a") or name == "start"):
            return
        if os.environ.get("ASTAMP") and name in ("aend", "aloop"):
            self.nstamp = 11
            return
        i = self.nstamp
        self.nstamp += 1
        self.e(f"s_memtime s[{80+2*i}:{81+2*i}]")
        self.wait_lg_all()

    def dump_stamps(self):
        if not STAMP:
            return
        lab = "nodump%d_%d" % (self.kid, self.ndump)
        self.ndump += 1
        if STAMP == 2:
            self.e("s_waitcnt vmcnt(0)")
            self.e("s_memrealtime s[98:99]")
            self.e("s_memtime s[94:95]")
            self.e("s_waitcnt lgkmcnt(0)")
            self.e("s_cmp_lg_u32 s9, 0")
            self.e("s_cbranch_scc1 " + lab)
            make_srd(self, 64, P_WS, 0x2000000)
            self.e("s_lshl_b32 s68, s2, 4")
            self.e(f"s_add_u32 s68, s68, {hex(0x1800000 + self.kid * 4096)}")
            self.e("v_mov_b32 v1, s68")
            self.e("s_sub_u32 s94, s94, s92")
            self.e("s_getreg_b32 s95, hwreg(HW_REG_XCC_ID)")
            for i, r in enumerate((96, 98, 94, 95)):
                self.e(f"v_mov_b32 v2, s{r}")
                self.e(f"buffer_store_dword v2, v1, s[64:67], 0 offen offset:{4*i}")
            self.label(lab)
            return
        self.e("s_waitcnt lgkmcnt(0)")
        if STAMP == 3:
            self.e("s_cmp_lg_u32 s9, 0")
            self.e("s_cbranch_scc1 " + lab)
            make_srd(self, 64, P_WS, 0x2000000)
            self.e("s_lshl_b32 s68, s2, 6")
            self.e(f"s_add_u32 s68, s68, {hex(0x1800000 - 192)}")
            self.e("v_mov_b32 v1, s68")
        else:
            self.e("s_cmp_lg_u32 s2, %d" % STAMP_WG)
            self.e("s_cbranch_scc1 " + lab)
            self.e("s_cmp_lg_u32 s9, 0")
            self.e("s_cbranch_scc1 " + lab)
            make_srd(self, 64, P_DBG, 256)
            self.e("v_mov_b32 v1, 0")
        sel = list(range(self.nstamp))
        base = 192
        if os.environ.get("HSTAMP"):
            sel = [1, 2, 4, 5, 6, 8, 10]
            base = 36
        for k, i in enumerate(sel):
            self.e(f"s_sub_u32 s68, s{80+2*i}, s80")
            self.e("v_mov_b32 v2, s68")
            self.e(f"buffer_store_dword v2, v1, s[64:67], 0 offen offset:{base+4*(k if os.environ.get('HSTAMP') else i)}")
        self.label(lab)

    def nop(self, n):
        while n > 0:
            k = min(n, 16)
            self.e(f"s_nop {k-1}")
            n -= k


def vr(b, n=1):
    return f"v{b}" if n == 1 else f"v[{b}:{b+n-1}]"


def ar(b, n=1):
    return f"a{b}" if n == 1 else f"a[{b}:{b+n-1}]"


def sr(b, n=1):
    return f"s{b}" if n == 1 else f"s[{b}:{b+n-1}]"


P_X, P_WQKV, P_WO, P_BX, P_W1, P_B1, P_W2, P_B2, P_GW, P_OUT, P_DBG, P_WS = [16 + 2 * i for i in range(12)]


def prologue_kernargs(a):
    a.e("s_load_dwordx16 s[16:31], s[0:1], 0")
    a.e("s_load_dwordx8 s[32:39], s[0:1], 64")


def make_srd(a, dst, ptr, nbytes, off=0):
    if off:
        a.e(f"s_add_u32 s{dst}, s{ptr}, {hex(off)}")
        a.e(f"s_addc_u32 s{dst+1}, s{ptr+1}, 0")
        a.e(f"s_and_b32 s{dst+1}, s{dst+1}, 0xffff")
    else:
        a.e(f"s_mov_b32 s{dst}, s{ptr}")
        a.e(f"s_and_b32 s{dst+1}, s{ptr+1}, 0xffff")
    a.e(f"s_mov_b32 s{dst+2}, {hex(nbytes)}")
    a.e(f"s_mov_b32 s{dst+3}, 0x00020000")


def kperm_vgpr(a, dst, rho, t0, t1):
    a.e(f"v_and_b32 v{dst}, 0xffffffe3, v{rho}")
    a.e(f"v_bfe_u32 v{t0}, v{rho}, 2, 2")
    a.e(f"v_lshl_or_b32 v{dst}, v{t0}, 3, v{dst}")
    a.e(f"v_bfe_u32 v{t1}, v{rho}, 4, 1")
    a.e(f"v_lshl_or_b32 v{dst}, v{t1}, 2, v{dst}")


def odd_dma_offsets(a, dsts, first_instr_sgpr_or_const, lane_v, ldw, colbytes_s, t):
    for n, d in enumerate(dsts):
        a.e(f"v_add_u32 v{t[0]}, {first_instr_sgpr_or_const}, v{lane_v}")
        if n:
            a.e(f"v_add_u32 v{t[0]}, {64*n}, v{t[0]}")
        a.e(f"v_mul_u32_u24 v{t[1]}, 6554, v{t[0]}")
        a.e(f"v_lshrrev_b32 v{t[1]}, 16, v{t[1]}")
        a.e(f"v_mul_u32_u24 v{t[2]}, 10, v{t[1]}")
        a.e(f"v_sub_u32 v{t[0]}, v{t[0]}, v{t[2]}")
        kperm_vgpr(a, t[2], t[1], t[3], d)
        a.e(f"v_mul_u32_u24 v{t[2]}, {ldw}, v{t[2]}")
        a.e(f"v_lshl_add_u32 v{d}, v{t[0]}, 4, v{t[2]}")
        a.e(f"v_add_u32 v{d}, {colbytes_s}, v{d}")


def gemm_loop(a, nks, kpc, nslots, nb, arows, wbuf, afrag, acc, tr_addr, dma_chunk, a_tag, swap, first_zero=True,
              pre_step=None, chunk_hook=None):
    nchunks = nks // kpc

    def reads(s, t):
        for hf in range(2):
            v, off = tr_addr(s, t, hf)
            b = wbuf(s & 1, t) + 2 * hf
            a.lds(f"ds_read_b64_tr_b16 {vr(b,2)}, v{v} offset:{off}", ("R", s, t))

    def new_chunk(c):
        a.wait_vm(f"dma{c}")
        a.e("s_barrier")
        nx = c - 2 + nslots
        if c >= 2 and nx < nchunks:
            dma_chunk(nx)
        if chunk_hook:
            chunk_hook(c)

    new_chunk(0)
    for t in range(nb):
        reads(0, t)
    for s in range(nks):
        if s + 1 < nks and (s + 1) % kpc == 0:
            new_chunk((s + 1) // kpc)
        if pre_step:
            pre_step(s)
        a.wait_vm(a_tag(s))
        for t in range(nb):
            if s + 1 < nks:
                reads(s + 1, t)
            a.wait_lg(("R", s, t))
            w = vr(wbuf(s & 1, t), 4)
            for rt in range(arows):
                x = afrag(s, rt)
                d = acc(rt, t)
                cin = "0" if (s == 0 and first_zero) else d
                if swap:
                    a.e(f"v_mfma_f32_16x16x32_bf16 {d}, {w}, {x}, {cin}")
                else:
                    a.e(f"v_mfma_f32_16x16x32_bf16 {d}, {x}, {w}, {cin}")


def unpack(a, lo, hi, p):
    a.e(f"v_lshlrev_b32 v{lo}, 16, v{p}")
    a.e(f"v_and_b32 v{hi}, 0xffff0000, v{p}")


LOG2E = "0x3fb8aa3b"


def phi_inplace(a, c, T, out0, out1, s_eps):
    p0, p1 = T, T + 1
    f = T + 2
    ex = T + 6
    a.e(f"v_cvt_pk_bf16_f32 v{p0}, v{c}, v{c+1}")
    a.e(f"v_cvt_pk_bf16_f32 v{p1}, v{c+2}, v{c+3}")
    unpack(a, f, f + 1, p0)
    unpack(a, f + 2, f + 3, p1)
    a.e(f"v_pk_mul_f32 {vr(ex,2)}, {vr(f,2)}, s[60:61]")
    a.e(f"v_pk_mul_f32 {vr(ex+2,2)}, {vr(f+2,2)}, s[60:61]")
    for i in range(4):
        a.e(f"v_exp_f32 v{ex+i}, v{ex+i}")
    a.e(f"v_pk_add_f32 {vr(f,2)}, {vr(f,2)}, s[62:63]")
    a.e(f"v_pk_add_f32 {vr(f+2,2)}, {vr(f+2,2)}, s[62:63]")
    for i in range(4):
        a.e(f"v_med3_f32 v{f+i}, v{f+i}, v{ex+i}, 1.0")
    a.e(f"v_cvt_pk_bf16_f32 v{p0}, v{f}, v{f+1}")
    a.e(f"v_cvt_pk_bf16_f32 v{p1}, v{f+2}, v{f+3}")
    unpack(a, f, f + 1, p0)
    unpack(a, f + 2, f + 3, p1)
    a.e(f"v_pk_add_f32 {vr(f,2)}, {vr(f,2)}, s[64:65]")
    a.e(f"v_pk_add_f32 {vr(f+2,2)}, {vr(f+2,2)}, s[64:65]")
    a.e(f"v_cvt_pk_bf16_f32 v{out0}, v{f}, v{f+1}")
    a.e(f"v_cvt_pk_bf16_f32 v{out1}, v{f+2}, v{f+3}")


def phi_consts(a):
    a.e(f"s_mov_b32 s60, {LOG2E}")
    a.e(f"s_mov_b32 s61, {LOG2E}")
    a.e("s_mov_b32 s62, 1.0")
    a.e("s_mov_b32 s63, 1.0")
    a.e("s_mov_b32 s64, 0x358637bd")
    a.e("s_mov_b32 s65, 0x358637bd")


EPS = "0x358637bd"


SLOT1 = 20480
NSL1 = 8


def side_jobs_issue(a):
    a.e("s_lshl_b32 s53, s2, 2")
    a.e("s_add_u32 s53, s53, s9")
    for i in range(2):
        sb = 54
        a.e(f"s_add_u32 s{sb}, s53, {1024*i}")
        if i == 1:
            a.e(f"s_min_u32 s{sb}, s{sb}, 1759")
        a.e(f"s_mul_i32 s55, s{sb}, 52429")
        a.e("s_lshr_b32 s55, s55, 18")
        a.e("s_mul_i32 s56, s55, 5")
        a.e(f"s_sub_u32 s56, s{sb}, s56")
        a.e("s_movk_i32 s57, 1280")
        a.e(f"s_mov_b32 s59, {hex(W2F_OFF)}")
        a.e(f"s_mov_b32 s66, {hex(640*1280)}")
        a.e("s_cmp_lt_u32 s55, 80")
        a.e(f"s_cselect_b32 s64, s{P_WQKV}, s{P_WO}")
        a.e(f"s_cselect_b32 s65, s{P_WQKV+1}, s{P_WO+1}")
        a.e("s_cselect_b32 s57, 3840, s57")
        a.e("s_cselect_b32 s58, 0, 80")
        a.e(f"s_cselect_b32 s59, {hex(WQF_OFF)}, s59")
        a.e("s_cselect_b32 s60, 20, 68")
        a.e("s_cselect_b32 s61, 0, 80")
        a.e(f"s_cselect_b32 s66, {hex(640*3840)}, s66")
        a.e("s_cmp_lt_u32 s55, 160")
        a.e(f"s_cselect_b32 s64, s64, s{P_W2}")
        a.e(f"s_cselect_b32 s65, s65, s{P_W2+1}")
        a.e("s_cselect_b32 s58, s58, 160")
        a.e(f"s_cselect_b32 s66, s66, {hex(1536*1280)}")
        a.e("s_and_b32 s65, s65, 0xffff")
        a.e("s_mov_b32 s67, 0x00020000")
        a.e("s_sub_u32 s58, s55, s58")
        a.e("s_lshl_b32 s58, s58, 3")
        a.e("s_mul_i32 s58, s58, s57")
        a.e("s_lshl_b32 s62, s56, 8")
        a.e("s_add_u32 s58, s58, s62")
        a.e(f"v_lshl_add_u32 v{228+i}, v0, 2, s58")
        for r in range(8):
            a.e(f"s_mul_i32 s62, s57, {r}")
            a.vmem(f"buffer_load_dword v{200+8*i+r}, v{228+i}, s[64:67], s62 offen", "side")
        a.e("s_sub_u32 s61, s55, s61")
        a.e("s_lshr_b32 s62, s61, 2")
        a.e("s_and_b32 s61, s61, 3")
        a.e("s_lshl_b32 s63, s56, 7")
        a.e("v_lshl_add_u32 v232, v0, 1, s63")
        a.e("v_mul_u32_u24 v233, 820, v232")
        a.e("v_lshrrev_b32 v233, 16, v233")
        a.e("v_mul_u32_u24 v234, 80, v233")
        a.e("v_sub_u32 v232, v232, v234")
        a.e("v_mul_lo_u32 v233, v233, s60")
        a.e("v_add_u32 v233, s62, v233")
        a.e("v_mul_u32_u24 v233, 5, v233")
        a.e("v_lshrrev_b32 v234, 4, v232")
        a.e("v_add_u32 v233, v233, v234")
        a.e("v_lshlrev_b32 v233, 10, v233")
        a.e("v_and_b32 v232, 15, v232")
        a.e("v_lshl_add_u32 v233, v232, 4, v233")
        a.e("s_lshl_b32 s61, s61, 8")
        a.e("s_add_u32 s61, s61, s59")
        a.e(f"v_add_u32 v{230+i}, s61, v233")
    for i in range(3):
        a.e(f"s_add_u32 s54, s53, {1024*i}")
        if i == 2:
            a.e("s_min_u32 s54, s54, 2559")
        a.e("s_mul_i32 s55, s54, 52429")
        a.e("s_lshr_b32 s55, s55, 20")
        a.e("s_mul_i32 s56, s55, 20")
        a.e("s_sub_u32 s56, s54, s56")
        a.e("s_mul_i32 s55, s55, 20480")
        a.e("s_lshl_b32 s56, s56, 6")
        a.e("s_add_u32 s55, s55, s56")
        a.e("v_mul_u32_u24 v232, 1280, v2")
        a.e("v_lshl_add_u32 v232, v3, 4, v232")
        a.vmem(f"buffer_load_dwordx4 {vr(216+4*i,4)}, v232, s[40:43], s55 offen", "side")
        a.e("s_lshl_b32 s54, s54, 10")
        a.e(f"s_add_u32 s54, s54, {hex(XF_OFF)}")
        a.e(f"v_lshl_add_u32 v{236+i}, v0, 4, s54")


def side_jobs_store(a):
    lab = "k1_noflag%d" % len(a.lines)
    a.e("s_cmp_lg_u32 s53, 0")
    a.e("s_cbranch_scc1 " + lab)
    a.e("v_lshlrev_b32 v240, 7, v0")
    a.e(f"v_add_u32 v240, {hex(FLAG_OFF)}, v240")
    a.e("v_mov_b32 v241, 0")
    a.e("buffer_store_dword v241, v240, s[48:51], 0 offen")
    a.label(lab)
    a.e("s_waitcnt vmcnt(0)")
    a.vm = []
    a.e("s_mov_b32 s54, 0x05040100")
    a.e("s_mov_b32 s55, 0x07060302")
    for i in range(2):
        b = 200 + 8 * i
        o = 240
        for j in range(4):
            a.e(f"v_perm_b32 v{o+j}, v{b+2*j+1}, v{b+2*j}, s54")
        for j in range(4):
            a.e(f"v_perm_b32 v{o+4+j}, v{b+2*j+1}, v{b+2*j}, s55")
        a.vmem(f"buffer_store_dwordx4 {vr(o,4)}, v{230+i}, s[48:51], 0 offen", "st")
        a.vmem(f"buffer_store_dwordx4 {vr(o+4,4)}, v{230+i}, s[48:51], 0 offen offset:16", "st")
        a.nop(2)
    for i in range(3):
        a.vmem(f"buffer_store_dwordx4 {vr(216+4*i,4)}, v{236+i}, s[48:51], 0 offen", "st")


def producer_loop(a, nch, nsl, dma_chunk, ramp=2, hook=None):
    issued = 0

    def issue_upto(n):
        nonlocal issued
        while issued < min(n, nch):
            dma_chunk(issued)
            issued += 1

    issue_upto(nsl - 1)
    for c in range(nch):
        a.wait_vm(f"dma{c}")
        a.e("s_barrier")
        issue_upto(min(issued + ramp, c + nsl - 1))
        if hook:
            hook(c)


def consumer_loop(a, nks, kpc, nb, arows, wfrag, afrag, acc, reads, bump, swap, zero_at=(0,), per_tile=None,
                  stamps=()):
    a.e("s_barrier")
    for t in range(nb):
        reads(0, t)
    for s in range(nks):
        if s in stamps:
            a.stamp(f"s{s}")
        if s + 1 < nks and (s + 1) % kpc == 0:
            a.e("s_barrier")
            bump((s + 1) // kpc)
        for t in range(nb):
            if s + 1 < nks:
                reads(s + 1, t)
            need = [("R", s, t)]
            if t == 0:
                need += [("A", s, r) for r in range(arows)]
            a.wait_lg(need)
            for rt in range(arows):
                d = acc(s, rt, t)
                cin = "0" if s in zero_at else d
                if swap:
                    a.e(f"v_mfma_f32_16x16x32_bf16 {d}, {wfrag(s,t)}, {afrag(s,rt)}, {cin}")
                else:
                    a.e(f"v_mfma_f32_16x16x32_bf16 {d}, {afrag(s,rt)}, {wfrag(s,t)}, {cin}")
            if per_tile:
                per_tile(s, t)


def mk_bump(a, regs, slot, nsl):
    def f(c):
        d = slot if (c % nsl) else -(nsl - 1) * slot
        for r in regs:
            a.e(f"v_add_u32 v{r}, {d if d > 0 else hex(d & 0xffffffff)}, v{r}")
    return f


def poll_counter(a, srd, voff, target, lab):
    a.label(lab)
    a.e(f"buffer_load_dword v21, v{voff}, {srd}, 0 offen sc1")
    a.e("s_waitcnt vmcnt(0)")
    a.vm = []
    a.e("v_readfirstlane_b32 s72, v21")
    a.e(f"s_cmp_ge_u32 s72, {target}")
    a.e(f"s_cbranch_scc1 {lab}_done")
    a.e("s_sleep 8")
    a.e(f"s_branch {lab}")
    a.label(lab + "_done")


def gen_k1(a):
    a.label("k1_kernel")
    a.e("s_cmp_ge_u32 s2, 256")
    a.e("s_cbranch_scc1 k1_exit")
    a.stamp("start")
    prologue_kernargs(a)
    a.e("s_and_b32 s3, s2, 7")
    a.e("s_lshr_b32 s4, s2, 3")
    a.e("s_lshr_b32 s5, s3, 2")
    a.e("s_lshl_b32 s5, s5, 3")
    a.e("s_and_b32 s6, s4, 7")
    a.e("s_add_u32 s5, s5, s6")
    a.e("s_lshr_b32 s6, s4, 3")
    a.e("s_and_b32 s7, s3, 3")
    a.e("s_lshl_b32 s7, s7, 1")
    a.e("s_and_b32 s8, s6, 1")
    a.e("s_add_u32 s7, s7, s8")
    a.e("v_lshrrev_b32 v1, 6, v0")
    a.e("v_and_b32 v0, 63, v0")
    a.e("s_nop 0")
    a.e("v_readfirstlane_b32 s9, v1")
    a.e("v_and_b32 v2, 15, v0")
    a.e("v_lshrrev_b32 v3, 4, v0")
    a.e("s_and_b32 s8, s7, 1")
    a.e("s_cmp_ge_u32 s9, 4")
    a.e("s_cbranch_scc0 k1_cons")
    a.e("s_sub_u32 s9, s9, 4")
    a.e("s_lshl_b32 s10, s5, 7")
    a.e("s_lshl_b32 s11, s9, 5")
    a.e("s_add_u32 s10, s10, s11")
    a.e("v_lshrrev_b32 v14, 2, v0")
    a.e("v_add_u32 v15, s10, v14")
    a.e("v_mul_u32_u24 v15, 1280, v15")
    a.e("v_lshrrev_b32 v14, 5, v0")
    a.e("v_mul_u32_u24 v14, 3, v14")
    a.e("v_and_b32 v16, 3, v0")
    a.e("v_xor_b32 v16, v16, v14")
    a.e("v_lshl_add_u32 v5, v16, 4, v15")
    a.e("s_lshl_b32 s14, s9, 11")
    a.e("s_mul_i32 s15, s9, 3072")
    a.e("s_add_u32 s15, s15, 8192")
    a.e("s_waitcnt lgkmcnt(0)")
    make_srd(a, 40, P_X, 2048 * 1280)
    make_srd(a, 48, P_WS, WS_USED)

    a.e("s_and_b32 s68, s5, 7")
    a.e("s_mul_i32 s68, s68, 5")
    a.e("s_lshr_b32 s68, s68, 1")
    a.e("s_mul_i32 s69, s6, 5")
    a.e("s_add_u32 s68, s68, s69")
    a.e("s_add_u32 s68, s68, s3")
    a.e("s_cmp_ge_u32 s68, 20")
    a.e("s_cselect_b32 s69, 20, 0")
    a.e("s_sub_u32 s68, s68, s69")
    a.e("s_cmp_ge_u32 s68, 20")
    a.e("s_cselect_b32 s69, 20, 0")
    a.e("s_sub_u32 s68, s68, s69")

    def adv_k():
        a.e("s_add_u32 s68, s68, 1")
        a.e("s_cmp_ge_u32 s68, 20")
        a.e("s_cselect_b32 s68, 0, s68")

    def dma_a(c):
        sl = c % NSL1
        for n in range(2):
            a.e(f"s_lshl_b32 s52, s68, 6")
            if n:
                a.e(f"s_add_u32 s52, s52, {n*16*1280}")
            a.e(f"s_add_u32 m0, s14, {sl*SLOT1 + n*1024}")
            a.e("s_nop 0")
            a.vmem(f"buffer_load_dwordx4 v5, s[40:43], s52 offen lds", f"dma{c}")

    a.e("s_cmp_ge_u32 s6, 2")
    a.e("s_cbranch_scc1 k1_ph")
    make_srd(a, 44, P_WQKV, 640 * 3840)
    a.e("s_and_b32 s12, s9, 1")
    a.e("s_mul_i32 s12, s12, 192")
    a.e("s_lshr_b32 s13, s9, 1")
    a.e("s_mul_i32 s10, s7, 160")
    a.e("s_lshl_b32 s11, s8, 5")
    a.e("s_sub_u32 s10, s10, s11")
    a.e("s_mul_i32 s11, s13, 1280")
    a.e("s_add_u32 s10, s10, s11")
    a.e("s_add_u32 s10, s10, 1280")
    DV = 8
    for n in range(3):
        d = DV + n
        a.e(f"v_add_u32 v19, s12, v0")
        if n:
            a.e(f"v_add_u32 v19, {64*n}, v19")
        a.e("v_mul_u32_u24 v20, 5462, v19")
        a.e("v_lshrrev_b32 v20, 16, v20")
        a.e("v_mul_u32_u24 v21, 12, v20")
        a.e("v_sub_u32 v19, v19, v21")
        a.e("v_bfe_u32 v21, v20, 2, 1")
        a.e("v_lshlrev_b32 v21, 1, v21")
        a.e("v_xor_b32 v19, v19, v21")
        kperm_vgpr(a, 21, 20, 22, 23)
        a.e("v_mul_u32_u24 v21, 3840, v21")
        a.e(f"v_lshl_add_u32 v{d}, v19, 4, v21")
        a.e(f"v_add_u32 v{d}, s10, v{d}")

    def dma_kv(c):
        dma_a(c)
        sl = c % NSL1
        a.e(f"s_mul_i32 s52, s68, {32*3840}")
        for n in range(3):
            a.e(f"s_add_u32 m0, s15, {sl*SLOT1 + n*1024}")
            a.e("s_nop 0")
            a.vmem(f"buffer_load_dwordx4 v{DV+n}, s[44:47], s52 offen lds", f"dma{c}")
        adv_k()

    def side_hook(c):
        if c == 0:
            side_jobs_issue(a)
        if c == 8:
            side_jobs_store(a)

    a.e("s_cmp_lg_u32 s5, 0")
    a.e("s_cbranch_scc1 k1_nozero")
    make_srd(a, 64, P_DBG, 256)
    a.e("s_lshl_b32 s10, s7, 13")
    a.e("s_lshl_b32 s11, s9, 11")
    a.e("s_add_u32 s10, s10, s11")
    a.e(f"s_add_u32 s10, s10, {hex(PART_OFF)}")
    a.e("v_lshl_add_u32 v24, v0, 4, s10")
    for i in range(4):
        a.e(f"v_mov_b32 v{28+i}, 0")
    a.e("buffer_store_dwordx4 v[28:31], v24, s[48:51], 0 offen sc1")
    a.e("buffer_store_dwordx4 v[28:31], v24, s[48:51], 0 offen offset:1024 sc1")
    a.e("s_waitcnt vmcnt(0)")
    a.e("s_lshl_b32 s10, s7, 2")
    a.e("v_mov_b32 v24, s10")
    a.e("v_mov_b32 v25, 1")
    a.e("v_cmp_eq_u32 vcc, 0, v0")
    a.e("s_and_saveexec_b64 s[54:55], vcc")
    a.e("buffer_atomic_add v25, v24, s[64:67], 0 offen sc1")
    a.e("s_mov_b64 exec, s[54:55]")
    a.e("s_waitcnt vmcnt(0)")
    a.label("k1_nozero")
    producer_loop(a, 20, NSL1, dma_kv, hook=side_hook)
    a.e("s_endpgm")
    a.label("k1_ph")
    a.vm = []
    make_srd(a, 44, P_W1, 640 * 3072)
    a.e("v_lshrrev_b32 v14, 3, v0")
    a.e("v_and_b32 v15, 3, v14")
    a.e("v_lshrrev_b32 v16, 2, v14")
    a.e("v_lshl_add_u32 v15, v16, 3, v15")
    a.e("v_mul_u32_u24 v8, 3072, v15")
    a.e("v_bfe_u32 v15, v0, 1, 2")
    a.e("v_lshrrev_b32 v16, 1, v14")
    a.e("v_xor_b32 v15, v15, v16")
    a.e("v_lshl_add_u32 v8, v15, 5, v8")
    a.e("v_and_b32 v15, 1, v0")
    a.e("v_lshl_add_u32 v8, v15, 4, v8")
    a.e("s_and_b32 s12, s9, 1")
    a.e("s_lshl_b32 s12, s12, 4")
    a.e("s_lshr_b32 s13, s9, 1")
    a.e("s_lshl_b32 s13, s13, 2")
    a.e("s_add_u32 s12, s12, s13")
    a.e("s_mul_i32 s12, s12, 3072")
    a.e("s_mul_i32 s13, s7, 384")
    a.e("s_add_u32 s12, s12, s13")
    a.e("v_add_u32 v8, s12, v8")

    def dma_h(c):
        dma_a(c)
        sl = c % NSL1
        a.e(f"s_mul_i32 s52, s68, {32*3072}")
        for cbk in range(3):
            if cbk:
                a.e(f"s_add_u32 s52, s52, 128")
            a.e(f"s_add_u32 m0, s15, {sl*SLOT1 + cbk*1024}")
            a.e("s_nop 0")
            a.vmem(f"buffer_load_dwordx4 v8, s[44:47], s52 offen lds", f"dma{c}")
        adv_k()

    producer_loop(a, 20, NSL1, dma_h, hook=side_hook)
    a.e("s_endpgm")

    a.label("k1_cons")
    a.vm = []
    a.lg = []
    a.e("v_lshrrev_b32 v14, 3, v2")
    a.e("v_mul_u32_u24 v14, 3, v14")
    a.e("v_xor_b32 v14, v14, v3")
    a.e("v_lshlrev_b32 v15, 6, v2")
    a.e("v_lshl_add_u32 v17, v14, 4, v15")
    a.e("s_waitcnt lgkmcnt(0)")
    make_srd(a, 48, P_WS, WS_USED)
    a.e("s_cmp_ge_u32 s6, 2")
    a.e("s_cbranch_scc1 k1_ch")
    a.e("v_lshrrev_b32 v19, 2, v0")
    a.e("v_mul_u32_u24 v19, 192, v19")
    a.e("v_and_b32 v20, 3, v0")
    a.e("v_lshl_add_u32 v19, v20, 3, v19")
    a.e("s_lshl_b32 s11, s8, 5")
    a.e("s_add_u32 s11, s11, 8192")
    a.e("v_add_u32 v19, s11, v19")
    a.e("v_and_b32 v20, 1, v3")
    a.e("v_lshlrev_b32 v20, 5, v20")
    a.e("s_cmp_eq_u32 s8, 0")
    a.e("s_cselect_b32 s11, 1, -1")
    a.e("v_mul_lo_u32 v20, v20, s11")
    a.e("v_add_u32 v24, v19, v20")
    a.e("v_sub_u32 v25, v19, v20")
    a.e("s_lshl_b32 s14, s9, 11")
    a.e("v_add_u32 v26, s14, v17")
    ACC = 32
    WB = 112
    AB = 192

    def reads_kv(s, t):
        if t < 2:
            a.lds(f"ds_read_b128 {vr(AB+((s&1)*2+t)*4,4)}, v26 offset:{t*1024}", ("A", s, t))
        for hf in range(2):
            off = (t // 5) * 6144 + 16 * hf * 192 + (t % 5) * 32
            v = 24 if (t % 5) % 2 == 0 else 25
            a.lds(f"ds_read_b64_tr_b16 {vr(WB+((s&1)*10+t)*4+2*hf,2)}, v{v} offset:{off}", ("R", s, t))

    consumer_loop(a, 20, 1, 10, 2, lambda s, t: vr(WB + ((s & 1) * 10 + t) * 4, 4),
                  lambda s, rt: vr(AB + ((s & 1) * 2 + rt) * 4, 4),
                  lambda s, rt, t: vr(ACC + (t * 2 + rt) * 4, 4), reads_kv,
                  mk_bump(a, [24, 25, 26], SLOT1, NSL1), False, stamps=(0, 1, 4, 8, 12, 16))
    a.stamp("loop")
    a.c("KV epilogue")
    a.nop(8)
    a.e(f"s_mov_b32 s58, {EPS}")
    phi_consts(a)
    PK = 112
    T = 152
    for t in range(5):
        for rt in range(2):
            c = ACC + (t * 2 + rt) * 4
            phi_inplace(a, c, T + (12 if rt else 0), PK + t * 4 + rt * 2, PK + t * 4 + rt * 2 + 1, "s58")
    for t in range(5, 10):
        for rt in range(2):
            c = ACC + (t * 2 + rt) * 4
            a.e(f"v_cvt_pk_bf16_f32 v{PK+t*4+rt*2}, v{c}, v{c+1}")
            a.e(f"v_cvt_pk_bf16_f32 v{PK+t*4+rt*2+1}, v{c+2}, v{c+3}")
    ONES = 176
    for i in range(4):
        a.e(f"v_mov_b32 v{ONES+i}, 0x3f803f80")
    a.nop(2)
    D2 = 32
    pairs = [(i, j) for i in range(5) for j in range(5) if abs(i - j) <= 1]
    for (i, j) in pairs:
        a.e(f"v_mfma_f32_16x16x32_bf16 {vr(D2+(2*i+j)*4,4)}, {vr(PK+i*4,4)}, {vr(PK+(5+j)*4,4)}, 0")
    for i in range(5):
        a.e(f"v_mfma_f32_16x16x32_bf16 {vr(D2+(13+i)*4,4)}, {vr(PK+i*4,4)}, {vr(ONES,4)}, 0")
    a.e("s_barrier")
    a.e("s_mul_i32 s12, s9, 18432")
    a.e("v_lshl_add_u32 v14, v0, 4, s12")
    a.nop(8)
    for k in range(18):
        a.lds(f"ds_write_b128 v14, {vr(D2+k*4,4)} offset:{k*1024}", "W")
    a.wait_lg_all()
    a.e("s_barrier")
    a.e("s_lshl_b32 s12, s9, 6")
    a.e("v_add_u32 v16, s12, v0")
    a.e("s_lshl_b32 s12, s7, 13")
    a.e(f"s_add_u32 s12, s12, {hex(PART_OFF)}")
    make_srd(a, 64, P_DBG, 256)
    a.e("s_lshl_b32 s10, s7, 2")
    a.e("v_mov_b32 v20, s10")
    poll_counter(a, "s[64:67]", 20, 4, "k1_zpoll")
    for it in range(7):
        b = 112 + it * 16
        I, H_, RM, DD, E_, Dg, Eg, TI, AD = [b + k for k in range(9)]
        a.e(f"v_add_u32 v{I}, {256*it}, v16")
        a.e(f"v_mul_u32_u24 v{H_}, 1249, v{I}")
        a.e(f"v_lshrrev_b32 v{H_}, 19, v{H_}")
        a.e(f"v_mul_u32_u24 v{RM}, 420, v{H_}")
        a.e(f"v_sub_u32 v{RM}, v{I}, v{RM}")
        a.e(f"v_mul_u32_u24 v{DD}, 3277, v{RM}")
        a.e(f"v_lshrrev_b32 v{DD}, 16, v{DD}")
        a.e(f"v_mul_u32_u24 v{E_}, 20, v{DD}")
        a.e(f"v_sub_u32 v{E_}, v{RM}, v{E_}")
        a.e(f"v_mul_u32_u24 v{H_}, 20, v{H_}")
        a.e(f"v_cmp_eq_u32 vcc, 20, v{DD}")
        a.e(f"v_add_u32 v{Eg}, v{H_}, v{E_}")
        a.e(f"v_add_u32 v{Dg}, v{H_}, v{DD}")
        a.e(f"v_cndmask_b32 v{Dg}, v{Dg}, v{Eg}, vcc")
        a.e(f"v_lshrrev_b32 v{TI}, 4, v{Dg}")
        a.e(f"v_lshrrev_b32 v{AD}, 4, v{Eg}")
        a.e(f"v_lshl_add_u32 v{AD}, v{TI}, 1, v{AD}")
        a.e(f"v_add_u32 v{TI}, 13, v{TI}")
        a.e(f"v_cndmask_b32 v{TI}, v{AD}, v{TI}, vcc")
        a.e(f"v_and_b32 v{Eg}, 15, v{Eg}")
        a.e(f"v_cndmask_b32 v{Eg}, v{Eg}, 0, vcc")
        a.e(f"v_bfe_u32 v{AD}, v{Dg}, 2, 2")
        a.e(f"v_lshl_add_u32 v{AD}, v{AD}, 4, v{Eg}")
        a.e(f"v_lshlrev_b32 v{AD}, 4, v{AD}")
        a.e(f"v_lshl_add_u32 v{AD}, v{TI}, 10, v{AD}")
        a.e(f"v_and_b32 v{Dg}, 3, v{Dg}")
        a.e(f"v_lshl_add_u32 v{AD}, v{Dg}, 2, v{AD}")
        if it == 6:
            a.e(f"v_cmp_gt_u32 vcc, 1680, v{I}")
            a.e("s_nop 1")
            a.e(f"v_cndmask_b32 v{AD}, 0, v{AD}, vcc")
        for w in range(4):
            a.lds(f"ds_read_b32 v{b+10+w}, v{AD} offset:{w*18432}", ("Q", it))
        a.e(f"v_lshl_add_u32 v{I}, v{I}, 2, s12")
    for it in range(7):
        b = 112 + it * 16
        a.wait_lg(("Q", it))
        a.e(f"v_add_f32 v{b+10}, v{b+10}, v{b+11}")
        a.e(f"v_add_f32 v{b+12}, v{b+12}, v{b+13}")
        a.e(f"v_add_f32 v{b+10}, v{b+10}, v{b+12}")
        if it == 6:
            a.e("s_and_saveexec_b64 s[60:61], vcc")
        a.vmem(f"buffer_atomic_add_f32 v{b+10}, v{b}, s[48:51], 0 offen", "st")
        if it == 6:
            a.e("s_mov_b64 exec, s[60:61]")
    a.stamp("end")
    a.dump_stamps()
    a.e("s_endpgm")

    a.label("k1_ch")
    a.vm = []
    a.lg = []
    a.nstamp = 1
    a.e("v_lshrrev_b32 v14, 5, v0")
    a.e("v_mul_u32_u24 v14, 3072, v14")
    a.e("v_bfe_u32 v15, v0, 2, 3")
    a.e("v_lshl_add_u32 v14, v15, 7, v14")
    a.e("v_and_b32 v16, 3, v0")
    a.e("v_lshl_add_u32 v14, v16, 3, v14")
    a.e("v_add_u32 v14, 8192, v14")
    a.e("v_lshrrev_b32 v15, 1, v15")
    a.e("s_and_b32 s13, s9, 1")
    for t in range(6):
        a.e(f"s_mul_i32 s12, s13, 6")
        a.e(f"s_add_u32 s12, s12, {t}")
        a.e("s_and_b32 s11, s12, 3")
        a.e("s_lshr_b32 s12, s12, 2")
        a.e("s_lshl_b32 s12, s12, 10")
        a.e("v_xor_b32 v16, s11, v15")
        a.e(f"v_lshl_add_u32 v{20+t}, v16, 5, v14")
        a.e(f"v_add_u32 v{20+t}, s12, v{20+t}")
    a.e("s_lshr_b32 s12, s9, 1")
    a.e("s_lshl_b32 s12, s12, 12")
    a.e("v_add_u32 v26, s12, v17")
    ACCH = 32
    WBH = 128
    ABH = 176
    BB = 208
    make_srd(a, 64, P_B1, 3072)
    a.e("s_mul_i32 s12, s7, 384")
    a.e("s_mul_i32 s11, s13, 192")
    a.e("s_add_u32 s12, s12, s11")
    a.e("v_lshl_add_u32 v28, v3, 3, s12")
    for t in range(6):
        a.vmem(f"buffer_load_dwordx2 {vr(BB+2*t,2)}, v28, s[64:67], 0 offen offset:{32*t}", "bias")

    def reads_h(s, t):
        if t < 4:
            a.lds(f"ds_read_b128 {vr(ABH+((s&1)*4+t)*4,4)}, v26 offset:{t*1024}", ("A", s, t))
        for hf in range(2):
            a.lds(f"ds_read_b64_tr_b16 {vr(WBH+((s&1)*6+t)*4+2*hf,2)}, v{20+t} offset:{2*hf*3072}", ("R", s, t))

    consumer_loop(a, 20, 1, 6, 4, lambda s, t: vr(WBH + ((s & 1) * 6 + t) * 4, 4),
                  lambda s, rt: vr(ABH + ((s & 1) * 4 + rt) * 4, 4),
                  lambda s, rt, t: vr(ACCH + (t * 4 + rt) * 4, 4), reads_h,
                  mk_bump(a, [20, 21, 22, 23, 24, 25, 26], SLOT1, NSL1), True, stamps=(0, 1, 4, 8, 12, 16))
    a.stamp("loop")
    a.c("H epilogue")
    a.e("s_lshl_b32 s12, s5, 3")
    a.e("s_lshr_b32 s11, s9, 1")
    a.e("s_lshl_b32 s11, s11, 2")
    a.e("s_add_u32 s12, s12, s11")
    a.e(f"s_mul_i32 s12, s12, {ACT_RT}")
    a.e("s_mul_i32 s11, s7, 6")
    a.e("s_mul_i32 s10, s13, 3")
    a.e("s_add_u32 s11, s11, s10")
    a.e("s_add_u32 s11, s11, 20")
    a.e("s_lshl_b32 s11, s11, 10")
    a.e("s_add_u32 s12, s12, s11")
    a.e("v_lshrrev_b32 v14, 1, v3")
    a.e("v_lshl_add_u32 v14, v14, 4, v2")
    a.e("v_lshlrev_b32 v14, 4, v14")
    a.e("v_and_b32 v15, 1, v3")
    a.e("v_lshl_add_u32 v14, v15, 3, v14")
    for rt in range(4):
        a.e(f"v_add_u32 v{8+rt}, s12, v14")
        a.e(f"s_add_u32 s12, s12, {ACT_RT}")
    a.wait_vm("bias")
    a.nop(4)
    T = 128
    for t in range(6):
        bf = T
        unpack(a, bf, bf + 1, BB + 2 * t)
        unpack(a, bf + 2, bf + 3, BB + 2 * t + 1)
        for rt in range(4):
            c = ACCH + (t * 4 + rt) * 4
            p = T + 4 + (rt & 1) * 8
            f = p + 2
            o = T + 20 + ((t * 4 + rt) % 8) * 2
            a.e(f"v_cvt_pk_bf16_f32 v{p}, v{c}, v{c+1}")
            a.e(f"v_cvt_pk_bf16_f32 v{p+1}, v{c+2}, v{c+3}")
            unpack(a, f, f + 1, p)
            unpack(a, f + 2, f + 3, p + 1)
            a.e(f"v_pk_add_f32 {vr(f,2)}, {vr(f,2)}, {vr(bf,2)}")
            a.e(f"v_pk_add_f32 {vr(f+2,2)}, {vr(f+2,2)}, {vr(bf+2,2)}")
            a.e(f"v_cvt_pk_bf16_f32 v{p}, v{f}, v{f+1}")
            a.e(f"v_cvt_pk_bf16_f32 v{p+1}, v{f+2}, v{f+3}")
            a.e(f"v_pk_max_i16 v{p}, v{p}, 0")
            a.e(f"v_pk_max_i16 v{p+1}, v{p+1}, 0")
            unpack(a, f, f + 1, p)
            unpack(a, f + 2, f + 3, p + 1)
            a.e(f"v_pk_mul_f32 {vr(f,2)}, {vr(f,2)}, {vr(f,2)}")
            a.e(f"v_pk_mul_f32 {vr(f+2,2)}, {vr(f+2,2)}, {vr(f+2,2)}")
            a.e(f"v_cvt_pk_bf16_f32 v{o}, v{f}, v{f+1}")
            a.e(f"v_cvt_pk_bf16_f32 v{o+1}, v{f+2}, v{f+3}")
            a.vmem(f"buffer_store_dwordx2 {vr(o,2)}, v{8+rt}, s[48:51], 0 offen offset:{(t>>1)*1024 + (t&1)*512}", "st")
    a.stamp("end")
    a.dump_stamps()
    a.label("k1_exit")
    a.e("s_endpgm")


def ids_64x80(a):
    a.e("s_and_b32 s3, s2, 7")
    a.e("s_lshr_b32 s4, s2, 3")
    a.e("s_lshr_b32 s5, s3, 1")
    a.e("s_lshl_b32 s5, s5, 3")
    a.e("s_and_b32 s6, s4, 7")
    a.e("s_add_u32 s5, s5, s6")
    a.e("s_and_b32 s7, s3, 1")
    a.e("s_lshl_b32 s7, s7, 2")
    a.e("s_lshr_b32 s6, s4, 3")
    a.e("s_add_u32 s7, s7, s6")
    a.e("v_lshrrev_b32 v1, 6, v0")
    a.e("v_and_b32 v0, 63, v0")
    a.e("s_nop 0")
    a.e("v_readfirstlane_b32 s9, v1")
    a.e("v_and_b32 v2, 15, v0")
    a.e("v_lshrrev_b32 v3, 4, v0")
    a.e("v_lshlrev_b32 v7, 4, v0")


SLOT2 = 18432


def producer_setup_64x80(a, w_off, w_nks, a_off, a_rt_stride):
    a.e(f"s_mul_i32 s12, s7, {w_nks*5120}")
    a.e(f"s_add_u32 s12, s12, {hex(w_off)}")
    a.e("s_lshl_b32 s13, s5, 2")
    a.e(f"s_mul_i32 s13, s13, {a_rt_stride}")
    a.e(f"s_add_u32 s13, s13, {hex(a_off)}")
    for n in range(6):
        a.e("s_mul_i32 s14, s9, 6")
        a.e(f"s_add_u32 s14, s14, {n}")
        a.e("s_cmp_ge_u32 s14, 9")
        a.e("s_cselect_b32 s15, 1, 0")
        a.e("s_mul_i32 s10, s15, 9")
        a.e("s_sub_u32 s14, s14, s10")
        a.e("s_mul_i32 s10, s15, 5120")
        a.e("s_lshl_b32 s11, s14, 10")
        a.e("s_add_u32 s10, s10, s11")
        a.e("s_add_u32 s10, s10, s12")
        a.e("s_sub_u32 s11, s14, 5")
        a.e(f"s_mul_i32 s11, s11, {a_rt_stride}")
        a.e("s_lshl_b32 s15, s15, 10")
        a.e("s_add_u32 s11, s11, s15")
        a.e("s_add_u32 s11, s11, s13")
        a.e("s_movk_i32 s15, 2048")
        a.e("s_cmp_lt_u32 s14, 5")
        a.e("s_cselect_b32 s10, s10, s11")
        a.e("s_cselect_b32 s15, 10240, s15")
        a.e(f"v_add_u32 v{8+n}, s10, v7")
        a.e(f"v_mov_b32 v{14+n}, s15")
    a.e("s_mul_i32 s15, s9, 6144")


def rot_64x80(a, segs):
    a.e("s_and_b32 s68, s5, 7")
    a.e("s_lshl_b32 s68, s68, 2")
    a.e("s_and_b32 s69, s7, 3")
    a.e("s_add_u32 s68, s68, s69")


def seg_start(a, n, dst):
    a.e(f"s_mul_i32 {dst}, s68, {n}")
    a.e(f"s_lshr_b32 {dst}, {dst}, 5")


def mk_dma_64x80(a, nsl, srd, segs):
    bounds = {f: n for f, n in segs}

    def dma(c):
        sl = c % nsl
        if c in bounds:
            n = bounds[c]
            seg_start(a, n, "s69")
            for k in range(6):
                a.e(f"v_mul_lo_u32 v20, v{14+k}, s69")
                a.e(f"v_add_u32 v{8+k}, v{8+k}, v20")
        for n in range(6):
            a.e(f"s_add_u32 m0, s15, {sl*SLOT2 + n*1024}")
            a.e("s_nop 0")
            a.vmem(f"buffer_load_dwordx4 v{8+n}, {srd}, 0 offen lds", f"dma{c}")
        f, n = [(f, n) for f, n in segs if f <= c < f + n][0]
        last = (c == f + n - 1)
        a.e("s_add_u32 s69, s69, 1")
        a.e(f"s_cmp_ge_u32 s69, {n}")
        if not last:
            a.e(f"s_cselect_b32 s70, {1-n & 0xffffffff:#x}, 1")
            a.e("s_cselect_b32 s69, 0, s69")
        else:
            a.e(f"s_sub_u32 s70, {n+1}, s69")
        for k in range(6):
            a.e(f"v_mul_lo_u32 v20, v{14+k}, s70")
            a.e(f"v_add_u32 v{8+k}, v{8+k}, v20")
    return dma


def producer_addr(a, w_off, w_nks, w_ks0, a_off, a_rt_stride, a_ks0):
    a.e(f"s_mul_i32 s12, s7, {w_nks*5120}")
    a.e(f"s_add_u32 s12, s12, {hex(w_off + w_ks0*5120)}")
    a.e("s_lshl_b32 s13, s5, 2")
    a.e(f"s_mul_i32 s13, s13, {a_rt_stride}")
    a.e(f"s_add_u32 s13, s13, {hex(a_off + a_ks0*1024)}")
    for n in range(6):
        a.e("s_mul_i32 s14, s9, 6")
        a.e(f"s_add_u32 s14, s14, {n}")
        a.e("s_cmp_ge_u32 s14, 9")
        a.e("s_cselect_b32 s71, 1, 0")
        a.e("s_mul_i32 s10, s71, 9")
        a.e("s_sub_u32 s14, s14, s10")
        a.e("s_mul_i32 s10, s71, 5120")
        a.e("s_lshl_b32 s11, s14, 10")
        a.e("s_add_u32 s10, s10, s11")
        a.e("s_add_u32 s10, s10, s12")
        a.e("s_sub_u32 s11, s14, 5")
        a.e(f"s_mul_i32 s11, s11, {a_rt_stride}")
        a.e("s_lshl_b32 s71, s71, 10")
        a.e("s_add_u32 s11, s11, s71")
        a.e("s_add_u32 s11, s11, s13")
        a.e("s_movk_i32 s71, 2048")
        a.e("s_cmp_lt_u32 s14, 5")
        a.e("s_cselect_b32 s10, s10, s11")
        a.e("s_cselect_b32 s71, 10240, s71")
        a.e(f"v_add_u32 v{8+n}, s10, v7")
        a.e(f"v_mov_b32 v{14+n}, s71")


def mk_dma_seg(a, nsl, srd, segs):
    def dma(c):
        sl = c % nsl
        f, n, setup, flags = [sg for sg in segs if sg[0] <= c < sg[0] + sg[1]][0]
        if c == f:
            setup()
            seg_start(a, n, "s69")
            for k in range(6):
                a.e(f"v_mul_lo_u32 v20, v{14+k}, s69")
                a.e(f"v_add_u32 v{8+k}, v{8+k}, v20")
        for k in range(6):
            a.e(f"s_add_u32 m0, s15, {sl*SLOT2 + k*1024}")
            a.e("s_nop 0")
            a.vmem(f"buffer_load_dwordx4 v{8+k}, {srd}, 0 offen{flags} lds", f"dma{c}")
        if c != f + n - 1:
            a.e("s_add_u32 s69, s69, 1")
            a.e(f"s_cmp_ge_u32 s69, {n}")
            a.e(f"s_cselect_b32 s70, {1-n & 0xffffffff:#x}, 1")
            a.e("s_cselect_b32 s69, 0, s69")
            for k in range(6):
                a.e(f"v_mul_lo_u32 v20, v{14+k}, s70")
                a.e(f"v_add_u32 v{8+k}, v{8+k}, v20")
    return dma


def gen_k2(a):
    NSL = 7
    IMG = NSL * SLOT2
    a.label("k2_kernel")
    a.e("s_cmp_ge_u32 s2, 256")
    a.e("s_cbranch_scc1 k2_exit")
    a.stamp("start")
    prologue_kernargs(a)
    ids_64x80(a)
    a.e("s_cmp_ge_u32 s9, 4")
    a.e("s_cbranch_scc0 k2_cons")
    a.e("s_sub_u32 s9, s9, 4")
    a.e("s_mul_i32 s15, s9, 6144")
    a.e("s_lshl_b32 s10, s9, 6")
    a.e("v_add_u32 v30, s10, v0")
    a.e("s_lshl_b32 s10, s5, 7")
    a.e(f"s_add_u32 s10, s10, {hex(FLAG_OFF)}")
    a.e("v_mov_b32 v31, s10")
    a.e("s_waitcnt lgkmcnt(0)")
    make_srd(a, 48, P_WS, WS_USED)
    make_srd(a, 44, P_DBG, 256)
    for i in range(4):
        a.e(f"v_mov_b32 v{20+i}, 0")
    a.e("v_lshlrev_b32 v24, 4, v30")
    a.e(f"v_add_u32 v24, {IMG}, v24")
    for i in range(10):
        a.lds(f"ds_write_b128 v24, v[20:23] offset:{i*3072}", "Z")
    a.wait_lg_all()
    a.e("s_lshl_b32 s12, s7, 13")
    a.e(f"s_add_u32 s12, s12, {hex(PART_OFF)}")
    a.e("v_lshl_add_u32 v25, v30, 4, s12")
    PL = 64

    def p_issue(r):
        a.vmem(f"buffer_load_dwordx4 {vr(PL+r*4,4)}, v25, s[48:51], 0 offen offset:{r*3072 if r < 2 else 0}" if r < 2 else
               f"buffer_load_dwordx4 {vr(PL+r*4,4)}, v26, s[48:51], 0 offen", f"P{r}")

    a.e("v_add_u32 v26, 6144, v25")

    def p_proc(r):
        a.wait_vm(f"P{r}")
        b = PL + r * 4
        a.e(f"v_cvt_pk_bf16_f32 v32, v{b}, v{b+1}")
        a.e(f"v_cvt_pk_bf16_f32 v33, v{b+2}, v{b+3}")
        F, H_, RM, DD, E0, AD = 34, 35, 36, 37, 38, 39
        a.e(f"v_add_u32 v{F}, {192*r}, v30")
        a.e(f"v_mul_u32_u24 v{H_}, 625, v{F}")
        a.e(f"v_lshrrev_b32 v{H_}, 16, v{H_}")
        a.e(f"v_mul_u32_u24 v{RM}, 105, v{H_}")
        a.e(f"v_sub_u32 v{RM}, v{F}, v{RM}")
        a.e(f"v_mul_u32_u24 v{DD}, 13108, v{RM}")
        a.e(f"v_lshrrev_b32 v{DD}, 16, v{DD}")
        a.e(f"v_mul_u32_u24 v{E0}, 5, v{DD}")
        a.e(f"v_sub_u32 v{E0}, v{RM}, v{E0}")
        a.e(f"v_lshlrev_b32 v{E0}, 2, v{E0}")
        a.e(f"v_mul_u32_u24 v{H_}, 20, v{H_}")
        a.e(f"v_add_u32 v{AD}, v{H_}, v{E0}")
        a.e(f"v_mul_u32_u24 v{AD}, 192, v{AD}")
        a.e(f"v_add_u32 v40, v{H_}, v{DD}")
        a.e(f"v_lshl_add_u32 v{AD}, v40, 1, v{AD}")
        a.e(f"v_add_u32 v{AD}, {IMG}, v{AD}")
        a.e(f"v_cmp_gt_u32 vcc, 420, v{F}")
        a.e("s_mov_b64 s[60:61], vcc")
        a.e(f"v_cmp_gt_u32 s[62:63], 20, v{DD}")
        a.e(f"v_cmp_eq_u32 s[64:65], 20, v{DD}")
        a.e("s_and_b64 s[62:63], s[62:63], s[60:61]")
        a.e("s_and_b64 s[64:65], s[64:65], s[60:61]")
        a.e("v_lshrrev_b32 v41, 16, v32")
        a.e("v_lshrrev_b32 v42, 16, v33")
        a.e("s_mov_b64 s[66:67], exec")
        a.e("s_mov_b64 exec, s[62:63]")
        a.lds(f"ds_write_b16 v{AD}, v32", "S")
        a.lds(f"ds_write_b16 v{AD}, v41 offset:192", "S")
        a.lds(f"ds_write_b16 v{AD}, v33 offset:384", "S")
        a.lds(f"ds_write_b16 v{AD}, v42 offset:576", "S")
        a.e("s_mov_b64 exec, s[66:67]")
        a.e(f"v_mul_u32_u24 v{AD}, 192, v{H_}")
        a.e(f"v_add_u32 v40, v{H_}, v{E0}")
        a.e(f"v_lshl_add_u32 v{AD}, v40, 1, v{AD}")
        a.e(f"v_add_u32 v{AD}, {IMG+15360}, v{AD}")
        a.e("s_mov_b64 exec, s[64:65]")
        for ee in range(20):
            a.lds(f"ds_write_b64 v{AD}, v[32:33] offset:{192*ee}", "S")
        a.e("s_mov_b64 exec, s[66:67]")
        a.wait_lg_all()


    def phook(c):
        if c == 0:
            for r in range(3):
                p_issue(r)
        if c in (2, 3, 4):
            p_proc(c - 2)
        if c == 9:
            a.e("s_barrier")

    def setup_a():
        poll_counter(a, "s[48:51]", 31, 8, "k2_poll")
        producer_addr(a, W2F_OFF, 68, 0, 0, ACT_RT, 0)

    rot_64x80(a, None)
    segs = [(0, 10, lambda: producer_addr(a, WQF_OFF, 20, 0, XF_OFF, 20480, 0), ""),
            (10, 24, lambda: producer_addr(a, W2F_OFF, 68, 20, 0, ACT_RT, 20), ""),
            (34, 10, setup_a, " sc1")]
    producer_loop(a, 44, NSL, mk_dma_seg(a, NSL, "s[48:51]", segs), hook=phook)
    a.e("s_endpgm")

    a.label("k2_cons")
    a.vm = []
    a.lg = []
    a.e("s_lshl_b32 s10, s5, 2")
    a.e("s_add_u32 s10, s10, s9")
    a.e("s_lshl_b32 s11, s10, 4")
    a.e("v_add_u32 v4, s11, v2")
    a.e("v_lshlrev_b32 v6, 4, v3")
    a.e("s_lshl_b32 s12, s9, 10")
    a.e("s_add_u32 s12, s12, 5120")
    a.e("v_add_u32 v8, s12, v7")
    a.e("v_mov_b32 v9, v7")
    a.e("s_waitcnt lgkmcnt(0)")
    make_srd(a, 48, P_WS, WS_USED)
    make_srd(a, 52, P_GW, 1280)
    make_srd(a, 44, P_DBG, 256)
    make_srd(a, 40, P_B2, 1280)
    make_srd(a, 56, P_OUT, 2048 * 1280)
    GF = 112
    rot_64x80(a, None)
    seg_start(a, 10, "s69")
    for c in range(10):
        a.e("s_lshl_b32 s70, s69, 7")
        for ks in range(2):
            s_ = 2 * c + ks
            a.vmem(f"buffer_load_dwordx4 {vr(GF+s_*4,4)}, v6, s[52:55], s70 offen offset:{64*ks}", f"G{s_}")
        a.e("s_add_u32 s69, s69, 1")
        a.e("s_cmp_ge_u32 s69, 10")
        a.e("s_cselect_b32 s69, 0, s69")
    a.e("s_mul_i32 s12, s7, 160")
    a.e("v_lshl_add_u32 v28, v3, 3, s12")
    B2 = 240
    for t in range(5):
        a.vmem(f"buffer_load_dwordx2 {vr(B2+2*t,2)}, v28, s[40:43], 0 offen offset:{32*t}", "b2")
    ACC = 32
    WB = 64
    AB = 104
    GA = 56
    a.e(f"v_mov_b32 v{GA}, 0")

    def reads(s, t):
        ks = s % 2
        if t == 0:
            a.lds(f"ds_read_b128 {vr(AB+(s&1)*4,4)}, v8 offset:{ks*9216}", ("A", s, 0))
        a.lds(f"ds_read_b128 {vr(WB+((s&1)*5+t)*4,4)}, v9 offset:{ks*9216+t*1024}", ("R", s, t))

    def per_tile(s, t):
        if t == 0:
            a.wait_vm(f"G{s}")
        if t < 4:
            a.e(f"v_dot2_f32_bf16 v{GA}, v{AB+(s&1)*4+t}, v{GF+s*4+t}, v{GA}")

    bump = mk_bump(a, [8, 9], SLOT2, NSL)
    consumer_loop(a, 20, 2, 5, 1, lambda s, t: vr(WB + ((s & 1) * 5 + t) * 4, 4), lambda s, rt: vr(AB + (s & 1) * 4, 4),
                  lambda s, rt, t: vr(ACC + t * 4, 4), reads, bump, True, per_tile=per_tile,
                  stamps=(0, 8))
    a.stamp("loopdone")
    a.c("phase B epilogue")
    a.e(f"s_mov_b32 s58, {EPS}")
    phi_consts(a)
    PQ = 184
    T = 196
    a.nop(6)
    for t in range(5):
        phi_inplace(a, ACC + t * 4, T + (12 if t & 1 else 0), PQ + t * 2, PQ + t * 2 + 1, "s58")
    a.e(f"v_mov_b32 v{PQ+10}, 0")
    a.e(f"v_mov_b32 v{PQ+11}, 0")
    a.e("v_mul_u32_u24 v14, 192, v2")
    a.e("v_lshl_add_u32 v14, v3, 3, v14")
    a.e(f"v_add_u32 v14, {IMG}, v14")
    a.e("s_barrier")
    a.stamp("img")
    ju = [(0, 0), (1, 0), (1, 1), (2, 0), (2, 1), (3, 1), (3, 2), (4, 1), (4, 2)]
    KF = 112
    for n, (j, u) in enumerate(ju):
        for im in range(2):
            b = KF + im * 36 + n * 4
            off = im * 15360 + j * 16 * 192 + u * 64
            a.lds(f"ds_read_b64 {vr(b,2)}, v14 offset:{off}", ("F", n, im))
            a.lds(f"ds_read_b64 {vr(b+2,2)}, v14 offset:{off+32}", ("F", n, im))
    NUM = 64
    seen = set()
    for n, (j, u) in enumerate(ju):
        for im in range(2):
            d = vr(NUM + im * 20 + j * 4, 4)
            cin = d if (im, j) in seen else "0"
            seen.add((im, j))
            a.wait_lg(("F", n, im))
            a.e(f"v_mfma_f32_16x16x32_bf16 {d}, {vr(KF+im*36+n*4,4)}, {vr(PQ+u*4,4)}, {cin}")
    a.e(f"s_mul_i32 s12, s10, {ACT_RT}")
    a.e("s_mul_i32 s11, s7, 2560")
    a.e("s_add_u32 s12, s12, s11")
    a.e("v_lshrrev_b32 v14, 1, v3")
    a.e("v_lshl_add_u32 v14, v14, 4, v2")
    a.e("v_lshlrev_b32 v14, 4, v14")
    a.e("v_add_u32 v6, s12, v14")
    a.e("v_and_b32 v15, 1, v3")
    a.e("v_lshl_add_u32 v5, v15, 9, v6")
    a.nop(4)
    for j in range(5):
        n_ = NUM + j * 4
        d_ = NUM + 20 + j * 4
        p = T
        f = T + 4
        g = T + 8
        a.e(f"v_cvt_pk_bf16_f32 v{p}, v{n_}, v{n_+1}")
        a.e(f"v_cvt_pk_bf16_f32 v{p+1}, v{n_+2}, v{n_+3}")
        a.e(f"v_cvt_pk_bf16_f32 v{p+2}, v{d_}, v{d_+1}")
        a.e(f"v_cvt_pk_bf16_f32 v{p+3}, v{d_+2}, v{d_+3}")
        unpack(a, f, f + 1, p)
        unpack(a, f + 2, f + 3, p + 1)
        unpack(a, g, g + 1, p + 2)
        unpack(a, g + 2, g + 3, p + 3)
        a.e(f"v_pk_add_f32 {vr(g,2)}, {vr(g,2)}, s[64:65]")
        a.e(f"v_pk_add_f32 {vr(g+2,2)}, {vr(g+2,2)}, s[64:65]")
        a.e(f"v_cvt_pk_bf16_f32 v{p+2}, v{g}, v{g+1}")
        a.e(f"v_cvt_pk_bf16_f32 v{p+3}, v{g+2}, v{g+3}")
        unpack(a, g, g + 1, p + 2)
        unpack(a, g + 2, g + 3, p + 3)
        for i in range(4):
            a.e(f"v_rcp_f32 v{g+4+i}, v{g+i}")
        a.e("s_nop 0")
        for i in range(4):
            a.e(f"v_mul_f32 v{g+8+i}, v{f+i}, v{g+4+i}")
        for i in range(4):
            a.e(f"v_fma_f32 v{f+i}, -v{g+i}, v{g+8+i}, v{f+i}")
        for i in range(4):
            a.e(f"v_fma_f32 v{g+8+i}, v{f+i}, v{g+4+i}, v{g+8+i}")
        O = T + 24 + (j // 2) * 4
        if j < 4:
            o = O + (j & 1) * 2
            a.e(f"v_cvt_pk_bf16_f32 v{o}, v{g+8}, v{g+9}")
            a.e(f"v_cvt_pk_bf16_f32 v{o+1}, v{g+10}, v{g+11}")
        else:
            a.e(f"v_cvt_pk_bf16_f32 v{O}, v{g+8}, v{g+9}")
            a.e(f"v_cvt_pk_bf16_f32 v{O+1}, v{g+10}, v{g+11}")
            a.e(f"v_mov_b32 v{O+2}, v{O}")
            a.e(f"v_mov_b32 v{O+3}, v{O+1}")
        if j & 1 or j == 4:
            a.nop(2)
            a.e(f"v_permlane16_swap_b32 v{O}, v{O+2}")
            a.e(f"v_permlane16_swap_b32 v{O+1}, v{O+3}")
            a.nop(1)
            a.vmem(f"buffer_store_dwordx4 {vr(O,4)}, v{5 if j < 4 else 6}, s[48:51], 0 offen offset:{512*(j & ~1)} sc1", "st")
    a.e(f"v_mov_b32 v57, v{GA}")
    a.nop(2)
    a.e(f"v_permlane32_swap_b32 v57, v{GA}")
    a.nop(2)
    a.e(f"v_add_f32 v{GA}, v57, v{GA}")
    a.e(f"v_mov_b32 v57, v{GA}")
    a.nop(2)
    a.e(f"v_permlane16_swap_b32 v57, v{GA}")
    a.nop(2)
    a.e(f"v_add_f32 v{GA}, v57, v{GA}")
    a.e(f"v_cvt_pk_bf16_f32 v{GA}, v{GA}, v{GA}")
    a.e(f"v_lshlrev_b32 v{GA}, 16, v{GA}")
    a.e(f"v_mul_f32 v{GA}, 0xbfb8aa3b, v{GA}")
    a.e(f"v_exp_f32 v{GA}, v{GA}")
    a.e("s_nop 0")
    a.e(f"v_add_f32 v{GA}, 1.0, v{GA}")
    a.e(f"v_rcp_f32 v{GA}, v{GA}")
    a.e("s_nop 0")
    a.e(f"v_cvt_pk_bf16_f32 v{GA}, v{GA}, v{GA}")
    a.e(f"v_lshlrev_b32 v{GA}, 16, v{GA}")
    a.e(f"v_sub_f32 v57, 1.0, v{GA}")
    a.e("v_cvt_pk_bf16_f32 v57, v57, v57")
    a.e("v_lshlrev_b32 v57, 16, v57")
    a.wait_vm_all()
    a.stamp("pub")
    ACA = 16
    ACA = 112

    def reads_c(s, t):
        reads(s + 20, t)

    a.e("s_barrier")
    a.e("s_cmp_lg_u32 s9, 0")
    a.e("s_cbranch_scc1 k2_nopub")
    a.e("s_lshl_b32 s12, s5, 7")
    a.e(f"s_add_u32 s12, s12, {hex(FLAG_OFF)}")
    a.e("v_mov_b32 v58, s12")
    a.e("v_mov_b32 v59, 1")
    a.e("v_cmp_eq_u32 vcc, 0, v0")
    a.e("s_and_saveexec_b64 s[66:67], vcc")
    a.e("buffer_atomic_add v59, v58, s[48:51], 0 offen sc1")
    a.e("s_mov_b64 exec, s[66:67]")
    a.label("k2_nopub")
    bump(10)
    for t in range(5):
        reads(20, t)
    NK = 88
    for s in range(20, NK):
        if s in (28, 44, 68, 80):
            a.stamp(f"s{s}")
        if s + 1 < NK and (s + 1) % 2 == 0:
            a.e("s_barrier")
            bump((s + 1) // 2)
        for t in range(5):
            if s + 1 < NK:
                reads(s + 1, t)
            need = [("R", s, t)]
            if t == 0:
                need.append(("A", s, 0))
            a.wait_lg(need)
            d = vr(ACA + (20 if s < 68 else 0) + t * 4, 4)
            cin = "0" if s in (20, 68) else d
            a.e(f"v_mfma_f32_16x16x32_bf16 {d}, {vr(WB+((s&1)*5+t)*4,4)}, {vr(AB+(s&1)*4,4)}, {cin}")
    a.stamp("loopdone")
    a.c("final epilogue")
    a.e("v_mul_u32_u24 v5, 1280, v4")
    a.e("v_lshl_add_u32 v5, v3, 3, v5")
    a.e("s_mul_i32 s12, s7, 160")
    a.e("v_add_u32 v5, s12, v5")
    a.nop(6)
    T = 160
    for t in range(5):
        ca = ACA + t * 4
        cb = ACA + 20 + t * 4
        p = T
        fa = T + 4
        fb = T + 8
        bb = T + 12
        a.e(f"v_cvt_pk_bf16_f32 v{p}, v{ca}, v{ca+1}")
        a.e(f"v_cvt_pk_bf16_f32 v{p+1}, v{ca+2}, v{ca+3}")
        a.e(f"v_cvt_pk_bf16_f32 v{p+2}, v{cb}, v{cb+1}")
        a.e(f"v_cvt_pk_bf16_f32 v{p+3}, v{cb+2}, v{cb+3}")
        unpack(a, fa, fa + 1, p)
        unpack(a, fa + 2, fa + 3, p + 1)
        unpack(a, fb, fb + 1, p + 2)
        unpack(a, fb + 2, fb + 3, p + 3)
        unpack(a, bb, bb + 1, B2 + 2 * t)
        unpack(a, bb + 2, bb + 3, B2 + 2 * t + 1)
        a.e(f"v_pk_add_f32 {vr(fb,2)}, {vr(fb,2)}, {vr(bb,2)}")
        a.e(f"v_pk_add_f32 {vr(fb+2,2)}, {vr(fb+2,2)}, {vr(bb+2,2)}")
        for i in range(4):
            a.e(f"v_mul_f32 v{fa+i}, v{GA}, v{fa+i}")
        a.e(f"v_cvt_pk_bf16_f32 v{p+2}, v{fb}, v{fb+1}")
        a.e(f"v_cvt_pk_bf16_f32 v{p+3}, v{fb+2}, v{fb+3}")
        a.e(f"v_cvt_pk_bf16_f32 v{p}, v{fa}, v{fa+1}")
        a.e(f"v_cvt_pk_bf16_f32 v{p+1}, v{fa+2}, v{fa+3}")
        unpack(a, fb, fb + 1, p + 2)
        unpack(a, fb + 2, fb + 3, p + 3)
        unpack(a, fa, fa + 1, p)
        unpack(a, fa + 2, fa + 3, p + 1)
        for i in range(4):
            a.e(f"v_mul_f32 v{fb+i}, v57, v{fb+i}")
        a.e(f"v_cvt_pk_bf16_f32 v{p+2}, v{fb}, v{fb+1}")
        a.e(f"v_cvt_pk_bf16_f32 v{p+3}, v{fb+2}, v{fb+3}")
        unpack(a, fb, fb + 1, p + 2)
        unpack(a, fb + 2, fb + 3, p + 3)
        a.e(f"v_pk_add_f32 {vr(fa,2)}, {vr(fa,2)}, {vr(fb,2)}")
        a.e(f"v_pk_add_f32 {vr(fa+2,2)}, {vr(fa+2,2)}, {vr(fb+2,2)}")
        o = T + 20 + t * 2
        a.e(f"v_cvt_pk_bf16_f32 v{o}, v{fa}, v{fa+1}")
        a.e(f"v_cvt_pk_bf16_f32 v{o+1}, v{fa+2}, v{fa+3}")
        a.vmem(f"buffer_store_dwordx2 {vr(o,2)}, v5, s[56:59], 0 offen offset:{32*t}", "st")
    a.stamp("end")
    a.dump_stamps()
    a.label("k2_exit")
    a.e("s_endpgm")


HEADER = """; Kernarg layout for this problem (96 bytes, ptrs only, base s[0:1]):
; @launch kernel=k1_kernel grid=(256,1,1) block=(512,1,1) lds=163840
; @launch kernel=k2_kernel grid=(256,1,1) block=(448,1,1) lds=159744
.amdgcn_target "amdgcn-amd-amdhsa--gfx950"
.text
"""


def kd(name, vg, acc_off, sg=102):
    return f""".amdhsa_kernel {name}
  .amdhsa_next_free_vgpr {vg}
  .amdhsa_next_free_sgpr {sg}
  .amdhsa_accum_offset {acc_off}
  .amdhsa_group_segment_fixed_size 0
  .amdhsa_kernarg_size 96
  .amdhsa_user_sgpr_count 2
  .amdhsa_user_sgpr_kernarg_segment_ptr 1
  .amdhsa_system_sgpr_workgroup_id_x 1
.end_amdhsa_kernel
"""


def main():
    for i in range(1280):
        assert (i * 6554) >> 16 == i // 10
    for i in range(1792):
        assert (i * 1249) >> 19 == i // 420, i
    for i in range(420):
        assert (i * 3277) >> 16 == i // 20
    for i in range(576):
        assert (i * 625) >> 16 == i // 105, i
    for i in range(105):
        assert (i * 13108) >> 16 == i // 5
    for i in range(768):
        assert (i * 5462) >> 16 == i // 12
    for i in range(640):
        assert (i * 820) >> 16 == i // 80
    for i in range(2560):
        assert (i * 52429) >> 18 == i // 5
        assert (i * 52429) >> 20 == i // 20
    out = [HEADER]
    for nm, fn in (("k1_kernel", gen_k1), ("k2_kernel", gen_k2)):
        a = Asm()
        a.kid = int(nm[1])
        fn(a)
        out.append(f".globl {nm}\n.p2align 8\n.type {nm},@function\n" + "\n".join(a.lines) + "\n")
    out.append('.section .rodata,"a"\n')
    for nm in ("k1_kernel", "k2_kernel"):
        out.append(".p2align 6\n" + kd(nm, 256, 256))
    path = sys.argv[1] if len(sys.argv) > 1 else f"cdna_kernels/{NAME}.s"
    open(path, "w").write("".join(out))


if __name__ == "__main__":
    main()
```

```python
import sys

NAME = "gated_mix__linear_attn_block__dense_activation_squared_relu__prompt"

ACT_RT = 68 * 1024
PART_OFF = 0x900000
PART_BLK = 7168
G_OFF = 0xA00000
XF_OFF = 0xB00000
WQF_OFF = 0xE00000
W2F_OFF = 0xF00000
FLAG_OFF = 0x11F0000
WS_USED = 0x1200000


import os
STAMP = int(os.environ.get("STAMP", "0"))
STAMP_WG = int(os.environ.get("STAMP_WG", "0"))


class Asm:
    def __init__(self):
        self.lines = []
        self.vm = []
        self.lg = []
        self.nstamp = 0
        self.ndump = 0

    def e(self, s):
        if os.environ.get("NODMA") and s.rstrip().endswith(" lds") and "buffer_load" in s:
            return
        if os.environ.get("NOMFMA") and (s.startswith("v_mfma") or s.startswith("ds_read_b128") or s.startswith("ds_read_b64_tr")):
            return
        self.lines.append("  " + s)

    def label(self, s):
        self.lines.append(s + ":")

    def c(self, s):
        self.lines.append("  ; " + s)

    def vmem(self, s, tag):
        self.e(s)
        self.vm.append(tag)

    def wait_vm(self, tags):
        if isinstance(tags, str):
            tags = [tags]
        last = -1
        for i, t in enumerate(self.vm):
            if t in tags:
                last = i
        if last < 0:
            return
        n = len(self.vm) - 1 - last
        n = min(n, 63)
        self.e(f"s_waitcnt vmcnt({n})")
        self.vm = self.vm[len(self.vm) - n:] if n > 0 else []

    def wait_vm_all(self):
        self.e("s_waitcnt vmcnt(0)")
        self.vm = []

    def lds(self, s, tag):
        self.e(s)
        self.lg.append(tag)

    def wait_lg(self, tags):
        if isinstance(tags, (str, tuple)):
            tags = [tags]
        last = -1
        for i, t in enumerate(self.lg):
            if t in tags:
                last = i
        if last < 0:
            return
        n = len(self.lg) - 1 - last
        n = min(n, 15)
        self.e(f"s_waitcnt lgkmcnt({n})")
        self.lg = self.lg[len(self.lg) - n:] if n > 0 else []

    def wait_lg_all(self):
        self.e("s_waitcnt lgkmcnt(0)")
        self.lg = []

    def stamp(self, name=""):
        if not STAMP:
            return
        if STAMP == 2:
            if name == "start":
                self.e("s_memrealtime s[96:97]")
                self.e("s_memtime s[92:93]")
                self.wait_lg_all()
            return
        if os.environ.get("ASTAMP") and not (name.startswith("a") or name == "start"):
            return
        if os.environ.get("ASTAMP") and name in ("aend", "aloop"):
            self.nstamp = 11
            return
        i = self.nstamp
        self.nstamp += 1
        self.e(f"s_memtime s[{80+2*i}:{81+2*i}]")
        self.wait_lg_all()

    def dump_stamps(self):
        if not STAMP:
            return
        lab = "nodump%d_%d" % (self.kid, self.ndump)
        self.ndump += 1
        if STAMP == 2:
            self.e("s_waitcnt vmcnt(0)")
            self.e("s_memrealtime s[98:99]")
            self.e("s_memtime s[94:95]")
            self.e("s_waitcnt lgkmcnt(0)")
            self.e("s_cmp_lg_u32 s9, 0")
            self.e("s_cbranch_scc1 " + lab)
            make_srd(self, 64, P_WS, 0x2000000)
            self.e("s_lshl_b32 s68, s2, 4")
            self.e(f"s_add_u32 s68, s68, {hex(0x1800000 + self.kid * 4096)}")
            self.e("v_mov_b32 v1, s68")
            self.e("s_sub_u32 s94, s94, s92")
            self.e("s_getreg_b32 s95, hwreg(HW_REG_XCC_ID)")
            for i, r in enumerate((96, 98, 94, 95)):
                self.e(f"v_mov_b32 v2, s{r}")
                self.e(f"buffer_store_dword v2, v1, s[64:67], 0 offen offset:{4*i}")
            self.label(lab)
            return
        self.e("s_waitcnt lgkmcnt(0)")
        if STAMP == 3:
            self.e("s_cmp_lg_u32 s9, 0")
            self.e("s_cbranch_scc1 " + lab)
            make_srd(self, 64, P_WS, 0x2000000)
            self.e("s_lshl_b32 s68, s2, 6")
            self.e(f"s_add_u32 s68, s68, {hex(0x1800000 - 192)}")
            self.e("v_mov_b32 v1, s68")
        else:
            self.e("s_cmp_lg_u32 s2, %d" % STAMP_WG)
            self.e("s_cbranch_scc1 " + lab)
            self.e("s_cmp_lg_u32 s9, 0")
            self.e("s_cbranch_scc1 " + lab)
            make_srd(self, 64, P_DBG, 256)
            self.e("v_mov_b32 v1, 0")
        sel = list(range(self.nstamp))
        base = 192
        if os.environ.get("HSTAMP"):
            sel = [1, 2, 4, 5, 6, 8, 10]
            base = 36
        for k, i in enumerate(sel):
            self.e(f"s_sub_u32 s68, s{80+2*i}, s80")
            self.e("v_mov_b32 v2, s68")
            self.e(f"buffer_store_dword v2, v1, s[64:67], 0 offen offset:{base+4*(k if os.environ.get('HSTAMP') else i)}")
        self.label(lab)

    def nop(self, n):
        while n > 0:
            k = min(n, 16)
            self.e(f"s_nop {k-1}")
            n -= k


def vr(b, n=1):
    return f"v{b}" if n == 1 else f"v[{b}:{b+n-1}]"


def ar(b, n=1):
    return f"a{b}" if n == 1 else f"a[{b}:{b+n-1}]"


def sr(b, n=1):
    return f"s{b}" if n == 1 else f"s[{b}:{b+n-1}]"


P_X, P_WQKV, P_WO, P_BX, P_W1, P_B1, P_W2, P_B2, P_GW, P_OUT, P_DBG, P_WS = [16 + 2 * i for i in range(12)]


def prologue_kernargs(a):
    a.e("s_load_dwordx16 s[16:31], s[0:1], 0")
    a.e("s_load_dwordx8 s[32:39], s[0:1], 64")


def make_srd(a, dst, ptr, nbytes, off=0):
    if off:
        a.e(f"s_add_u32 s{dst}, s{ptr}, {hex(off)}")
        a.e(f"s_addc_u32 s{dst+1}, s{ptr+1}, 0")
        a.e(f"s_and_b32 s{dst+1}, s{dst+1}, 0xffff")
    else:
        a.e(f"s_mov_b32 s{dst}, s{ptr}")
        a.e(f"s_and_b32 s{dst+1}, s{ptr+1}, 0xffff")
    a.e(f"s_mov_b32 s{dst+2}, {hex(nbytes)}")
    a.e(f"s_mov_b32 s{dst+3}, 0x00020000")


def kperm_vgpr(a, dst, rho, t0, t1):
    a.e(f"v_and_b32 v{dst}, 0xffffffe3, v{rho}")
    a.e(f"v_bfe_u32 v{t0}, v{rho}, 2, 2")
    a.e(f"v_lshl_or_b32 v{dst}, v{t0}, 3, v{dst}")
    a.e(f"v_bfe_u32 v{t1}, v{rho}, 4, 1")
    a.e(f"v_lshl_or_b32 v{dst}, v{t1}, 2, v{dst}")


def odd_dma_offsets(a, dsts, first_instr_sgpr_or_const, lane_v, ldw, colbytes_s, t):
    for n, d in enumerate(dsts):
        a.e(f"v_add_u32 v{t[0]}, {first_instr_sgpr_or_const}, v{lane_v}")
        if n:
            a.e(f"v_add_u32 v{t[0]}, {64*n}, v{t[0]}")
        a.e(f"v_mul_u32_u24 v{t[1]}, 6554, v{t[0]}")
        a.e(f"v_lshrrev_b32 v{t[1]}, 16, v{t[1]}")
        a.e(f"v_mul_u32_u24 v{t[2]}, 10, v{t[1]}")
        a.e(f"v_sub_u32 v{t[0]}, v{t[0]}, v{t[2]}")
        kperm_vgpr(a, t[2], t[1], t[3], d)
        a.e(f"v_mul_u32_u24 v{t[2]}, {ldw}, v{t[2]}")
        a.e(f"v_lshl_add_u32 v{d}, v{t[0]}, 4, v{t[2]}")
        a.e(f"v_add_u32 v{d}, {colbytes_s}, v{d}")


def gemm_loop(a, nks, kpc, nslots, nb, arows, wbuf, afrag, acc, tr_addr, dma_chunk, a_tag, swap, first_zero=True,
              pre_step=None, chunk_hook=None):
    nchunks = nks // kpc

    def reads(s, t):
        for hf in range(2):
            v, off = tr_addr(s, t, hf)
            b = wbuf(s & 1, t) + 2 * hf
            a.lds(f"ds_read_b64_tr_b16 {vr(b,2)}, v{v} offset:{off}", ("R", s, t))

    def new_chunk(c):
        a.wait_vm(f"dma{c}")
        a.e("s_barrier")
        nx = c - 2 + nslots
        if c >= 2 and nx < nchunks:
            dma_chunk(nx)
        if chunk_hook:
            chunk_hook(c)

    new_chunk(0)
    for t in range(nb):
        reads(0, t)
    for s in range(nks):
        if s + 1 < nks and (s + 1) % kpc == 0:
            new_chunk((s + 1) // kpc)
        if pre_step:
            pre_step(s)
        a.wait_vm(a_tag(s))
        for t in range(nb):
            if s + 1 < nks:
                reads(s + 1, t)
            a.wait_lg(("R", s, t))
            w = vr(wbuf(s & 1, t), 4)
            for rt in range(arows):
                x = afrag(s, rt)
                d = acc(rt, t)
                cin = "0" if (s == 0 and first_zero) else d
                if swap:
                    a.e(f"v_mfma_f32_16x16x32_bf16 {d}, {w}, {x}, {cin}")
                else:
                    a.e(f"v_mfma_f32_16x16x32_bf16 {d}, {x}, {w}, {cin}")


def unpack(a, lo, hi, p):
    a.e(f"v_lshlrev_b32 v{lo}, 16, v{p}")
    a.e(f"v_and_b32 v{hi}, 0xffff0000, v{p}")


LOG2E = "0x3fb8aa3b"


def phi_inplace(a, c, T, out0, out1, s_eps):
    p0, p1 = T, T + 1
    f = T + 2
    ex = T + 6
    a.e(f"v_cvt_pk_bf16_f32 v{p0}, v{c}, v{c+1}")
    a.e(f"v_cvt_pk_bf16_f32 v{p1}, v{c+2}, v{c+3}")
    unpack(a, f, f + 1, p0)
    unpack(a, f + 2, f + 3, p1)
    a.e(f"v_pk_mul_f32 {vr(ex,2)}, {vr(f,2)}, s[60:61]")
    a.e(f"v_pk_mul_f32 {vr(ex+2,2)}, {vr(f+2,2)}, s[60:61]")
    for i in range(4):
        a.e(f"v_exp_f32 v{ex+i}, v{ex+i}")
    a.e(f"v_pk_add_f32 {vr(f,2)}, {vr(f,2)}, s[62:63]")
    a.e(f"v_pk_add_f32 {vr(f+2,2)}, {vr(f+2,2)}, s[62:63]")
    for i in range(4):
        a.e(f"v_med3_f32 v{f+i}, v{f+i}, v{ex+i}, 1.0")
    a.e(f"v_cvt_pk_bf16_f32 v{p0}, v{f}, v{f+1}")
    a.e(f"v_cvt_pk_bf16_f32 v{p1}, v{f+2}, v{f+3}")
    unpack(a, f, f + 1, p0)
    unpack(a, f + 2, f + 3, p1)
    a.e(f"v_pk_add_f32 {vr(f,2)}, {vr(f,2)}, s[64:65]")
    a.e(f"v_pk_add_f32 {vr(f+2,2)}, {vr(f+2,2)}, s[64:65]")
    a.e(f"v_cvt_pk_bf16_f32 v{out0}, v{f}, v{f+1}")
    a.e(f"v_cvt_pk_bf16_f32 v{out1}, v{f+2}, v{f+3}")


def phi_consts(a):
    a.e(f"s_mov_b32 s60, {LOG2E}")
    a.e(f"s_mov_b32 s61, {LOG2E}")
    a.e("s_mov_b32 s62, 1.0")
    a.e("s_mov_b32 s63, 1.0")
    a.e("s_mov_b32 s64, 0x358637bd")
    a.e("s_mov_b32 s65, 0x358637bd")


EPS = "0x358637bd"


SLOT1 = 20480
NSL1 = 8


def side_jobs_issue(a):
    a.e("s_lshl_b32 s53, s2, 2")
    a.e("s_add_u32 s53, s53, s9")
    for i in range(2):
        sb = 54
        a.e(f"s_add_u32 s{sb}, s53, {1024*i}")
        if i == 1:
            a.e(f"s_min_u32 s{sb}, s{sb}, 1759")
        a.e(f"s_mul_i32 s55, s{sb}, 52429")
        a.e("s_lshr_b32 s55, s55, 18")
        a.e("s_mul_i32 s56, s55, 5")
        a.e(f"s_sub_u32 s56, s{sb}, s56")
        a.e("s_movk_i32 s57, 1280")
        a.e(f"s_mov_b32 s59, {hex(W2F_OFF)}")
        a.e(f"s_mov_b32 s66, {hex(640*1280)}")
        a.e("s_cmp_lt_u32 s55, 80")
        a.e(f"s_cselect_b32 s64, s{P_WQKV}, s{P_WO}")
        a.e(f"s_cselect_b32 s65, s{P_WQKV+1}, s{P_WO+1}")
        a.e("s_cselect_b32 s57, 3840, s57")
        a.e("s_cselect_b32 s58, 0, 80")
        a.e(f"s_cselect_b32 s59, {hex(WQF_OFF)}, s59")
        a.e("s_cselect_b32 s60, 20, 68")
        a.e("s_cselect_b32 s61, 0, 80")
        a.e(f"s_cselect_b32 s66, {hex(640*3840)}, s66")
        a.e("s_cmp_lt_u32 s55, 160")
        a.e(f"s_cselect_b32 s64, s64, s{P_W2}")
        a.e(f"s_cselect_b32 s65, s65, s{P_W2+1}")
        a.e("s_cselect_b32 s58, s58, 160")
        a.e(f"s_cselect_b32 s66, s66, {hex(1536*1280)}")
        a.e("s_and_b32 s65, s65, 0xffff")
        a.e("s_mov_b32 s67, 0x00020000")
        a.e("s_sub_u32 s58, s55, s58")
        a.e("s_lshl_b32 s58, s58, 3")
        a.e("s_mul_i32 s58, s58, s57")
        a.e("s_lshl_b32 s62, s56, 8")
        a.e("s_add_u32 s58, s58, s62")
        a.e(f"v_lshl_add_u32 v{228+i}, v0, 2, s58")
        for r in range(8):
            a.e(f"s_mul_i32 s62, s57, {r}")
            a.vmem(f"buffer_load_dword v{200+8*i+r}, v{228+i}, s[64:67], s62 offen", "side")
        a.e("s_sub_u32 s61, s55, s61")
        a.e("s_lshr_b32 s62, s61, 2")
        a.e("s_and_b32 s61, s61, 3")
        a.e("s_lshl_b32 s63, s56, 7")
        a.e("v_lshl_add_u32 v232, v0, 1, s63")
        a.e("v_mul_u32_u24 v233, 820, v232")
        a.e("v_lshrrev_b32 v233, 16, v233")
        a.e("v_mul_u32_u24 v234, 80, v233")
        a.e("v_sub_u32 v232, v232, v234")
        a.e("v_mul_lo_u32 v233, v233, s60")
        a.e("v_add_u32 v233, s62, v233")
        a.e("v_mul_u32_u24 v233, 5, v233")
        a.e("v_lshrrev_b32 v234, 4, v232")
        a.e("v_add_u32 v233, v233, v234")
        a.e("v_lshlrev_b32 v233, 10, v233")
        a.e("v_and_b32 v232, 15, v232")
        a.e("v_lshl_add_u32 v233, v232, 4, v233")
        a.e("s_lshl_b32 s61, s61, 8")
        a.e("s_add_u32 s61, s61, s59")
        a.e(f"v_add_u32 v{230+i}, s61, v233")
    for i in range(3):
        a.e(f"s_add_u32 s54, s53, {1024*i}")
        if i == 2:
            a.e("s_min_u32 s54, s54, 2559")
        a.e("s_mul_i32 s55, s54, 52429")
        a.e("s_lshr_b32 s55, s55, 20")
        a.e("s_mul_i32 s56, s55, 20")
        a.e("s_sub_u32 s56, s54, s56")
        a.e("s_mul_i32 s55, s55, 20480")
        a.e("s_lshl_b32 s56, s56, 6")
        a.e("s_add_u32 s55, s55, s56")
        a.e("v_mul_u32_u24 v232, 1280, v2")
        a.e("v_lshl_add_u32 v232, v3, 4, v232")
        a.vmem(f"buffer_load_dwordx4 {vr(216+4*i,4)}, v232, s[40:43], s55 offen", "side")
        a.e("s_lshl_b32 s54, s54, 10")
        a.e(f"s_add_u32 s54, s54, {hex(XF_OFF)}")
        a.e(f"v_lshl_add_u32 v{236+i}, v0, 4, s54")


def side_jobs_store(a):
    lab = "k1_noflag%d" % len(a.lines)
    a.e("s_cmp_lg_u32 s53, 0")
    a.e("s_cbranch_scc1 " + lab)
    a.e("v_lshlrev_b32 v240, 7, v0")
    a.e(f"v_add_u32 v240, {hex(FLAG_OFF)}, v240")
    a.e("v_mov_b32 v241, 0")
    a.e("buffer_store_dword v241, v240, s[48:51], 0 offen")
    a.label(lab)
    a.e("s_waitcnt vmcnt(0)")
    a.vm = []
    a.e("s_mov_b32 s54, 0x05040100")
    a.e("s_mov_b32 s55, 0x07060302")
    for i in range(2):
        b = 200 + 8 * i
        o = 240
        for j in range(4):
            a.e(f"v_perm_b32 v{o+j}, v{b+2*j+1}, v{b+2*j}, s54")
        for j in range(4):
            a.e(f"v_perm_b32 v{o+4+j}, v{b+2*j+1}, v{b+2*j}, s55")
        a.vmem(f"buffer_store_dwordx4 {vr(o,4)}, v{230+i}, s[48:51], 0 offen", "st")
        a.vmem(f"buffer_store_dwordx4 {vr(o+4,4)}, v{230+i}, s[48:51], 0 offen offset:16", "st")
        a.nop(2)
    for i in range(3):
        a.vmem(f"buffer_store_dwordx4 {vr(216+4*i,4)}, v{236+i}, s[48:51], 0 offen", "st")


def producer_loop(a, nch, nsl, dma_chunk, ramp=2, hook=None):
    issued = 0

    def issue_upto(n):
        nonlocal issued
        while issued < min(n, nch):
            dma_chunk(issued)
            issued += 1

    issue_upto(nsl - 1)
    for c in range(nch):
        a.wait_vm(f"dma{c}")
        a.e("s_barrier")
        issue_upto(min(issued + ramp, c + nsl - 1))
        if hook:
            hook(c)


def consumer_loop(a, nks, kpc, nb, arows, wfrag, afrag, acc, reads, bump, swap, zero_at=(0,), per_tile=None,
                  stamps=()):
    a.e("s_barrier")
    for t in range(nb):
        reads(0, t)
    for s in range(nks):
        if s in stamps:
            a.stamp(f"s{s}")
        if s + 1 < nks and (s + 1) % kpc == 0:
            a.e("s_barrier")
            bump((s + 1) // kpc)
        for t in range(nb):
            if s + 1 < nks:
                reads(s + 1, t)
            need = [("R", s, t)]
            if t == 0:
                need += [("A", s, r) for r in range(arows)]
            a.wait_lg(need)
            for rt in range(arows):
                d = acc(s, rt, t)
                cin = "0" if s in zero_at else d
                if swap:
                    a.e(f"v_mfma_f32_16x16x32_bf16 {d}, {wfrag(s,t)}, {afrag(s,rt)}, {cin}")
                else:
                    a.e(f"v_mfma_f32_16x16x32_bf16 {d}, {afrag(s,rt)}, {wfrag(s,t)}, {cin}")
            if per_tile:
                per_tile(s, t)


def mk_bump(a, regs, slot, nsl):
    def f(c):
        d = slot if (c % nsl) else -(nsl - 1) * slot
        for r in regs:
            a.e(f"v_add_u32 v{r}, {d if d > 0 else hex(d & 0xffffffff)}, v{r}")
    return f


def poll_counter(a, srd, voff, target, lab):
    a.label(lab)
    a.e(f"buffer_load_dword v21, v{voff}, {srd}, 0 offen sc1")
    a.e("s_waitcnt vmcnt(0)")
    a.vm = []
    a.e("v_readfirstlane_b32 s72, v21")
    a.e(f"s_cmp_ge_u32 s72, {target}")
    a.e(f"s_cbranch_scc1 {lab}_done")
    a.e("s_sleep 8")
    a.e(f"s_branch {lab}")
    a.label(lab + "_done")


def gen_k1(a):
    a.label("k1_kernel")
    a.e("s_cmp_ge_u32 s2, 256")
    a.e("s_cbranch_scc1 k1_exit")
    a.stamp("start")
    prologue_kernargs(a)
    a.e("s_and_b32 s3, s2, 7")
    a.e("s_lshr_b32 s4, s2, 3")
    a.e("s_lshr_b32 s5, s3, 2")
    a.e("s_lshl_b32 s5, s5, 3")
    a.e("s_and_b32 s6, s4, 7")
    a.e("s_add_u32 s5, s5, s6")
    a.e("s_lshr_b32 s6, s4, 3")
    a.e("s_and_b32 s7, s3, 3")
    a.e("s_lshl_b32 s7, s7, 1")
    a.e("s_and_b32 s8, s6, 1")
    a.e("s_add_u32 s7, s7, s8")
    a.e("v_lshrrev_b32 v1, 6, v0")
    a.e("v_and_b32 v0, 63, v0")
    a.e("s_nop 0")
    a.e("v_readfirstlane_b32 s9, v1")
    a.e("v_and_b32 v2, 15, v0")
    a.e("v_lshrrev_b32 v3, 4, v0")
    a.e("s_and_b32 s8, s7, 1")
    a.e("s_cmp_ge_u32 s9, 4")
    a.e("s_cbranch_scc0 k1_cons")
    a.e("s_sub_u32 s9, s9, 4")
    a.e("s_lshl_b32 s10, s5, 7")
    a.e("s_lshl_b32 s11, s9, 5")
    a.e("s_add_u32 s10, s10, s11")
    a.e("v_lshrrev_b32 v14, 2, v0")
    a.e("v_add_u32 v15, s10, v14")
    a.e("v_mul_u32_u24 v15, 1280, v15")
    a.e("v_lshrrev_b32 v14, 5, v0")
    a.e("v_mul_u32_u24 v14, 3, v14")
    a.e("v_and_b32 v16, 3, v0")
    a.e("v_xor_b32 v16, v16, v14")
    a.e("v_lshl_add_u32 v5, v16, 4, v15")
    a.e("s_lshl_b32 s14, s9, 11")
    a.e("s_mul_i32 s15, s9, 3072")
    a.e("s_add_u32 s15, s15, 8192")
    a.e("s_waitcnt lgkmcnt(0)")
    make_srd(a, 40, P_X, 2048 * 1280)
    make_srd(a, 48, P_WS, WS_USED)

    a.e("s_and_b32 s68, s5, 7")
    a.e("s_mul_i32 s68, s68, 5")
    a.e("s_lshr_b32 s68, s68, 1")
    a.e("s_mul_i32 s69, s6, 5")
    a.e("s_add_u32 s68, s68, s69")
    a.e("s_add_u32 s68, s68, s3")
    a.e("s_cmp_ge_u32 s68, 20")
    a.e("s_cselect_b32 s69, 20, 0")
    a.e("s_sub_u32 s68, s68, s69")
    a.e("s_cmp_ge_u32 s68, 20")
    a.e("s_cselect_b32 s69, 20, 0")
    a.e("s_sub_u32 s68, s68, s69")

    def adv_k():
        a.e("s_add_u32 s68, s68, 1")
        a.e("s_cmp_ge_u32 s68, 20")
        a.e("s_cselect_b32 s68, 0, s68")

    def dma_a(c):
        sl = c % NSL1
        for n in range(2):
            a.e(f"s_lshl_b32 s52, s68, 6")
            if n:
                a.e(f"s_add_u32 s52, s52, {n*16*1280}")
            a.e(f"s_add_u32 m0, s14, {sl*SLOT1 + n*1024}")
            a.e("s_nop 0")
            a.vmem(f"buffer_load_dwordx4 v5, s[40:43], s52 offen lds", f"dma{c}")

    a.e("s_cmp_ge_u32 s6, 2")
    a.e("s_cbranch_scc1 k1_ph")
    make_srd(a, 44, P_WQKV, 640 * 3840)
    a.e("s_and_b32 s12, s9, 1")
    a.e("s_mul_i32 s12, s12, 192")
    a.e("s_lshr_b32 s13, s9, 1")
    a.e("s_mul_i32 s10, s7, 160")
    a.e("s_lshl_b32 s11, s8, 5")
    a.e("s_sub_u32 s10, s10, s11")
    a.e("s_mul_i32 s11, s13, 1280")
    a.e("s_add_u32 s10, s10, s11")
    a.e("s_add_u32 s10, s10, 1280")
    DV = 8
    for n in range(3):
        d = DV + n
        a.e(f"v_add_u32 v19, s12, v0")
        if n:
            a.e(f"v_add_u32 v19, {64*n}, v19")
        a.e("v_mul_u32_u24 v20, 5462, v19")
        a.e("v_lshrrev_b32 v20, 16, v20")
        a.e("v_mul_u32_u24 v21, 12, v20")
        a.e("v_sub_u32 v19, v19, v21")
        a.e("v_bfe_u32 v21, v20, 2, 1")
        a.e("v_lshlrev_b32 v21, 1, v21")
        a.e("v_xor_b32 v19, v19, v21")
        kperm_vgpr(a, 21, 20, 22, 23)
        a.e("v_mul_u32_u24 v21, 3840, v21")
        a.e(f"v_lshl_add_u32 v{d}, v19, 4, v21")
        a.e(f"v_add_u32 v{d}, s10, v{d}")

    def dma_kv(c):
        dma_a(c)
        sl = c % NSL1
        a.e(f"s_mul_i32 s52, s68, {32*3840}")
        for n in range(3):
            a.e(f"s_add_u32 m0, s15, {sl*SLOT1 + n*1024}")
            a.e("s_nop 0")
            a.vmem(f"buffer_load_dwordx4 v{DV+n}, s[44:47], s52 offen lds", f"dma{c}")
        adv_k()

    def side_hook(c):
        if c == 0:
            side_jobs_issue(a)
        if c == 8:
            side_jobs_store(a)

    a.e("s_cmp_lg_u32 s5, 0")
    a.e("s_cbranch_scc1 k1_nozero")
    make_srd(a, 64, P_DBG, 256)
    a.e("s_lshl_b32 s10, s7, 13")
    a.e("s_lshl_b32 s11, s9, 11")
    a.e("s_add_u32 s10, s10, s11")
    a.e(f"s_add_u32 s10, s10, {hex(PART_OFF)}")
    a.e("v_lshl_add_u32 v24, v0, 4, s10")
    for i in range(4):
        a.e(f"v_mov_b32 v{28+i}, 0")
    a.e("buffer_store_dwordx4 v[28:31], v24, s[48:51], 0 offen sc1")
    a.e("buffer_store_dwordx4 v[28:31], v24, s[48:51], 0 offen offset:1024 sc1")
    a.e("s_waitcnt vmcnt(0)")
    a.e("s_lshl_b32 s10, s7, 2")
    a.e("v_mov_b32 v24, s10")
    a.e("v_mov_b32 v25, 1")
    a.e("v_cmp_eq_u32 vcc, 0, v0")
    a.e("s_and_saveexec_b64 s[54:55], vcc")
    a.e("buffer_atomic_add v25, v24, s[64:67], 0 offen sc1")
    a.e("s_mov_b64 exec, s[54:55]")
    a.e("s_waitcnt vmcnt(0)")
    a.label("k1_nozero")
    producer_loop(a, 20, NSL1, dma_kv, hook=side_hook)
    a.e("s_endpgm")
    a.label("k1_ph")
    a.vm = []
    make_srd(a, 44, P_W1, 640 * 3072)
    a.e("v_lshrrev_b32 v14, 3, v0")
    a.e("v_and_b32 v15, 3, v14")
    a.e("v_lshrrev_b32 v16, 2, v14")
    a.e("v_lshl_add_u32 v15, v16, 3, v15")
    a.e("v_mul_u32_u24 v8, 3072, v15")
    a.e("v_bfe_u32 v15, v0, 1, 2")
    a.e("v_lshrrev_b32 v16, 1, v14")
    a.e("v_xor_b32 v15, v15, v16")
    a.e("v_lshl_add_u32 v8, v15, 5, v8")
    a.e("v_and_b32 v15, 1, v0")
    a.e("v_lshl_add_u32 v8, v15, 4, v8")
    a.e("s_and_b32 s12, s9, 1")
    a.e("s_lshl_b32 s12, s12, 4")
    a.e("s_lshr_b32 s13, s9, 1")
    a.e("s_lshl_b32 s13, s13, 2")
    a.e("s_add_u32 s12, s12, s13")
    a.e("s_mul_i32 s12, s12, 3072")
    a.e("s_mul_i32 s13, s7, 384")
    a.e("s_add_u32 s12, s12, s13")
    a.e("v_add_u32 v8, s12, v8")

    def dma_h(c):
        dma_a(c)
        sl = c % NSL1
        a.e(f"s_mul_i32 s52, s68, {32*3072}")
        for cbk in range(3):
            if cbk:
                a.e(f"s_add_u32 s52, s52, 128")
            a.e(f"s_add_u32 m0, s15, {sl*SLOT1 + cbk*1024}")
            a.e("s_nop 0")
            a.vmem(f"buffer_load_dwordx4 v8, s[44:47], s52 offen lds", f"dma{c}")
        adv_k()

    producer_loop(a, 20, NSL1, dma_h, hook=side_hook)
    a.e("s_endpgm")

    a.label("k1_cons")
    a.vm = []
    a.lg = []
    a.e("v_lshrrev_b32 v14, 3, v2")
    a.e("v_mul_u32_u24 v14, 3, v14")
    a.e("v_xor_b32 v14, v14, v3")
    a.e("v_lshlrev_b32 v15, 6, v2")
    a.e("v_lshl_add_u32 v17, v14, 4, v15")
    a.e("s_waitcnt lgkmcnt(0)")
    make_srd(a, 48, P_WS, WS_USED)
    a.e("s_cmp_ge_u32 s6, 2")
    a.e("s_cbranch_scc1 k1_ch")
    a.e("v_lshrrev_b32 v19, 2, v0")
    a.e("v_mul_u32_u24 v19, 192, v19")
    a.e("v_and_b32 v20, 3, v0")
    a.e("v_lshl_add_u32 v19, v20, 3, v19")
    a.e("s_lshl_b32 s11, s8, 5")
    a.e("s_add_u32 s11, s11, 8192")
    a.e("v_add_u32 v19, s11, v19")
    a.e("v_and_b32 v20, 1, v3")
    a.e("v_lshlrev_b32 v20, 5, v20")
    a.e("s_cmp_eq_u32 s8, 0")
    a.e("s_cselect_b32 s11, 1, -1")
    a.e("v_mul_lo_u32 v20, v20, s11")
    a.e("v_add_u32 v24, v19, v20")
    a.e("v_sub_u32 v25, v19, v20")
    a.e("s_lshl_b32 s14, s9, 11")
    a.e("v_add_u32 v26, s14, v17")
    ACC = 32
    WB = 112
    AB = 192

    def reads_kv(s, t):
        if t < 2:
            a.lds(f"ds_read_b128 {vr(AB+((s&1)*2+t)*4,4)}, v26 offset:{t*1024}", ("A", s, t))
        for hf in range(2):
            off = (t // 5) * 6144 + 16 * hf * 192 + (t % 5) * 32
            v = 24 if (t % 5) % 2 == 0 else 25
            a.lds(f"ds_read_b64_tr_b16 {vr(WB+((s&1)*10+t)*4+2*hf,2)}, v{v} offset:{off}", ("R", s, t))

    consumer_loop(a, 20, 1, 10, 2, lambda s, t: vr(WB + ((s & 1) * 10 + t) * 4, 4),
                  lambda s, rt: vr(AB + ((s & 1) * 2 + rt) * 4, 4),
                  lambda s, rt, t: vr(ACC + (t * 2 + rt) * 4, 4), reads_kv,
                  mk_bump(a, [24, 25, 26], SLOT1, NSL1), False, stamps=(0, 1, 4, 8, 12, 16))
    a.stamp("loop")
    a.c("KV epilogue")
    a.nop(8)
    a.e(f"s_mov_b32 s58, {EPS}")
    phi_consts(a)
    PK = 112
    T = 152
    for t in range(5):
        for rt in range(2):
            c = ACC + (t * 2 + rt) * 4
            phi_inplace(a, c, T + (12 if rt else 0), PK + t * 4 + rt * 2, PK + t * 4 + rt * 2 + 1, "s58")
    for t in range(5, 10):
        for rt in range(2):
            c = ACC + (t * 2 + rt) * 4
            a.e(f"v_cvt_pk_bf16_f32 v{PK+t*4+rt*2}, v{c}, v{c+1}")
            a.e(f"v_cvt_pk_bf16_f32 v{PK+t*4+rt*2+1}, v{c+2}, v{c+3}")
    ONES = 176
    for i in range(4):
        a.e(f"v_mov_b32 v{ONES+i}, 0x3f803f80")
    a.nop(2)
    D2 = 32
    pairs = [(i, j) for i in range(5) for j in range(5) if abs(i - j) <= 1]
    for (i, j) in pairs:
        a.e(f"v_mfma_f32_16x16x32_bf16 {vr(D2+(2*i+j)*4,4)}, {vr(PK+i*4,4)}, {vr(PK+(5+j)*4,4)}, 0")
    for i in range(5):
        a.e(f"v_mfma_f32_16x16x32_bf16 {vr(D2+(13+i)*4,4)}, {vr(PK+i*4,4)}, {vr(ONES,4)}, 0")
    a.e("s_barrier")
    a.e("s_mul_i32 s12, s9, 18432")
    a.e("v_lshl_add_u32 v14, v0, 4, s12")
    a.nop(8)
    for k in range(18):
        a.lds(f"ds_write_b128 v14, {vr(D2+k*4,4)} offset:{k*1024}", "W")
    a.wait_lg_all()
    a.e("s_barrier")
    a.e("s_lshl_b32 s12, s9, 6")
    a.e("v_add_u32 v16, s12, v0")
    a.e("s_lshl_b32 s12, s7, 13")
    a.e(f"s_add_u32 s12, s12, {hex(PART_OFF)}")
    make_srd(a, 64, P_DBG, 256)
    a.e("s_lshl_b32 s10, s7, 2")
    a.e("v_mov_b32 v20, s10")
    poll_counter(a, "s[64:67]", 20, 4, "k1_zpoll")
    for it in range(7):
        b = 112 + it * 16
        I, H_, RM, DD, E_, Dg, Eg, TI, AD = [b + k for k in range(9)]
        a.e(f"v_add_u32 v{I}, {256*it}, v16")
        a.e(f"v_mul_u32_u24 v{H_}, 1249, v{I}")
        a.e(f"v_lshrrev_b32 v{H_}, 19, v{H_}")
        a.e(f"v_mul_u32_u24 v{RM}, 420, v{H_}")
        a.e(f"v_sub_u32 v{RM}, v{I}, v{RM}")
        a.e(f"v_mul_u32_u24 v{DD}, 3277, v{RM}")
        a.e(f"v_lshrrev_b32 v{DD}, 16, v{DD}")
        a.e(f"v_mul_u32_u24 v{E_}, 20, v{DD}")
        a.e(f"v_sub_u32 v{E_}, v{RM}, v{E_}")
        a.e(f"v_mul_u32_u24 v{H_}, 20, v{H_}")
        a.e(f"v_cmp_eq_u32 vcc, 20, v{DD}")
        a.e(f"v_add_u32 v{Eg}, v{H_}, v{E_}")
        a.e(f"v_add_u32 v{Dg}, v{H_}, v{DD}")
        a.e(f"v_cndmask_b32 v{Dg}, v{Dg}, v{Eg}, vcc")
        a.e(f"v_lshrrev_b32 v{TI}, 4, v{Dg}")
        a.e(f"v_lshrrev_b32 v{AD}, 4, v{Eg}")
        a.e(f"v_lshl_add_u32 v{AD}, v{TI}, 1, v{AD}")
        a.e(f"v_add_u32 v{TI}, 13, v{TI}")
        a.e(f"v_cndmask_b32 v{TI}, v{AD}, v{TI}, vcc")
        a.e(f"v_and_b32 v{Eg}, 15, v{Eg}")
        a.e(f"v_cndmask_b32 v{Eg}, v{Eg}, 0, vcc")
        a.e(f"v_bfe_u32 v{AD}, v{Dg}, 2, 2")
        a.e(f"v_lshl_add_u32 v{AD}, v{AD}, 4, v{Eg}")
        a.e(f"v_lshlrev_b32 v{AD}, 4, v{AD}")
        a.e(f"v_lshl_add_u32 v{AD}, v{TI}, 10, v{AD}")
        a.e(f"v_and_b32 v{Dg}, 3, v{Dg}")
        a.e(f"v_lshl_add_u32 v{AD}, v{Dg}, 2, v{AD}")
        if it == 6:
            a.e(f"v_cmp_gt_u32 vcc, 1680, v{I}")
            a.e("s_nop 1")
            a.e(f"v_cndmask_b32 v{AD}, 0, v{AD}, vcc")
        for w in range(4):
            a.lds(f"ds_read_b32 v{b+10+w}, v{AD} offset:{w*18432}", ("Q", it))
        a.e(f"v_lshl_add_u32 v{I}, v{I}, 2, s12")
    for it in range(7):
        b = 112 + it * 16
        a.wait_lg(("Q", it))
        a.e(f"v_add_f32 v{b+10}, v{b+10}, v{b+11}")
        a.e(f"v_add_f32 v{b+12}, v{b+12}, v{b+13}")
        a.e(f"v_add_f32 v{b+10}, v{b+10}, v{b+12}")
        if it == 6:
            a.e("s_and_saveexec_b64 s[60:61], vcc")
        a.vmem(f"buffer_atomic_add_f32 v{b+10}, v{b}, s[48:51], 0 offen", "st")
        if it == 6:
            a.e("s_mov_b64 exec, s[60:61]")
    a.stamp("end")
    a.dump_stamps()
    a.e("s_endpgm")

    a.label("k1_ch")
    a.vm = []
    a.lg = []
    a.nstamp = 1
    a.e("v_lshrrev_b32 v14, 5, v0")
    a.e("v_mul_u32_u24 v14, 3072, v14")
    a.e("v_bfe_u32 v15, v0, 2, 3")
    a.e("v_lshl_add_u32 v14, v15, 7, v14")
    a.e("v_and_b32 v16, 3, v0")
    a.e("v_lshl_add_u32 v14, v16, 3, v14")
    a.e("v_add_u32 v14, 8192, v14")
    a.e("v_lshrrev_b32 v15, 1, v15")
    a.e("s_and_b32 s13, s9, 1")
    for t in range(6):
        a.e(f"s_mul_i32 s12, s13, 6")
        a.e(f"s_add_u32 s12, s12, {t}")
        a.e("s_and_b32 s11, s12, 3")
        a.e("s_lshr_b32 s12, s12, 2")
        a.e("s_lshl_b32 s12, s12, 10")
        a.e("v_xor_b32 v16, s11, v15")
        a.e(f"v_lshl_add_u32 v{20+t}, v16, 5, v14")
        a.e(f"v_add_u32 v{20+t}, s12, v{20+t}")
    a.e("s_lshr_b32 s12, s9, 1")
    a.e("s_lshl_b32 s12, s12, 12")
    a.e("v_add_u32 v26, s12, v17")
    ACCH = 32
    WBH = 128
    ABH = 176
    BB = 208
    make_srd(a, 64, P_B1, 3072)
    a.e("s_mul_i32 s12, s7, 384")
    a.e("s_mul_i32 s11, s13, 192")
    a.e("s_add_u32 s12, s12, s11")
    a.e("v_lshl_add_u32 v28, v3, 3, s12")
    for t in range(6):
        a.vmem(f"buffer_load_dwordx2 {vr(BB+2*t,2)}, v28, s[64:67], 0 offen offset:{32*t}", "bias")

    def reads_h(s, t):
        if t < 4:
            a.lds(f"ds_read_b128 {vr(ABH+((s&1)*4+t)*4,4)}, v26 offset:{t*1024}", ("A", s, t))
        for hf in range(2):
            a.lds(f"ds_read_b64_tr_b16 {vr(WBH+((s&1)*6+t)*4+2*hf,2)}, v{20+t} offset:{2*hf*3072}", ("R", s, t))

    consumer_loop(a, 20, 1, 6, 4, lambda s, t: vr(WBH + ((s & 1) * 6 + t) * 4, 4),
                  lambda s, rt: vr(ABH + ((s & 1) * 4 + rt) * 4, 4),
                  lambda s, rt, t: vr(ACCH + (t * 4 + rt) * 4, 4), reads_h,
                  mk_bump(a, [20, 21, 22, 23, 24, 25, 26], SLOT1, NSL1), True, stamps=(0, 1, 4, 8, 12, 16))
    a.stamp("loop")
    a.c("H epilogue")
    a.e("s_lshl_b32 s12, s5, 3")
    a.e("s_lshr_b32 s11, s9, 1")
    a.e("s_lshl_b32 s11, s11, 2")
    a.e("s_add_u32 s12, s12, s11")
    a.e(f"s_mul_i32 s12, s12, {ACT_RT}")
    a.e("s_mul_i32 s11, s7, 6")
    a.e("s_mul_i32 s10, s13, 3")
    a.e("s_add_u32 s11, s11, s10")
    a.e("s_add_u32 s11, s11, 20")
    a.e("s_lshl_b32 s11, s11, 10")
    a.e("s_add_u32 s12, s12, s11")
    a.e("v_lshrrev_b32 v14, 1, v3")
    a.e("v_lshl_add_u32 v14, v14, 4, v2")
    a.e("v_lshlrev_b32 v14, 4, v14")
    a.e("v_and_b32 v15, 1, v3")
    a.e("v_lshl_add_u32 v14, v15, 3, v14")
    for rt in range(4):
        a.e(f"v_add_u32 v{8+rt}, s12, v14")
        a.e(f"s_add_u32 s12, s12, {ACT_RT}")
    a.wait_vm("bias")
    a.nop(4)
    T = 128
    for t in range(6):
        bf = T
        unpack(a, bf, bf + 1, BB + 2 * t)
        unpack(a, bf + 2, bf + 3, BB + 2 * t + 1)
        for rt in range(4):
            c = ACCH + (t * 4 + rt) * 4
            p = T + 4 + (rt & 1) * 8
            f = p + 2
            o = T + 20 + ((t * 4 + rt) % 8) * 2
            a.e(f"v_cvt_pk_bf16_f32 v{p}, v{c}, v{c+1}")
            a.e(f"v_cvt_pk_bf16_f32 v{p+1}, v{c+2}, v{c+3}")
            unpack(a, f, f + 1, p)
            unpack(a, f + 2, f + 3, p + 1)
            a.e(f"v_pk_add_f32 {vr(f,2)}, {vr(f,2)}, {vr(bf,2)}")
            a.e(f"v_pk_add_f32 {vr(f+2,2)}, {vr(f+2,2)}, {vr(bf+2,2)}")
            a.e(f"v_cvt_pk_bf16_f32 v{p}, v{f}, v{f+1}")
            a.e(f"v_cvt_pk_bf16_f32 v{p+1}, v{f+2}, v{f+3}")
            a.e(f"v_pk_max_i16 v{p}, v{p}, 0")
            a.e(f"v_pk_max_i16 v{p+1}, v{p+1}, 0")
            unpack(a, f, f + 1, p)
            unpack(a, f + 2, f + 3, p + 1)
            a.e(f"v_pk_mul_f32 {vr(f,2)}, {vr(f,2)}, {vr(f,2)}")
            a.e(f"v_pk_mul_f32 {vr(f+2,2)}, {vr(f+2,2)}, {vr(f+2,2)}")
            a.e(f"v_cvt_pk_bf16_f32 v{o}, v{f}, v{f+1}")
            a.e(f"v_cvt_pk_bf16_f32 v{o+1}, v{f+2}, v{f+3}")
            a.vmem(f"buffer_store_dwordx2 {vr(o,2)}, v{8+rt}, s[48:51], 0 offen offset:{(t>>1)*1024 + (t&1)*512}", "st")
    a.stamp("end")
    a.dump_stamps()
    a.label("k1_exit")
    a.e("s_endpgm")


def ids_64x80(a):
    a.e("s_and_b32 s3, s2, 7")
    a.e("s_lshr_b32 s4, s2, 3")
    a.e("s_lshr_b32 s5, s3, 1")
    a.e("s_lshl_b32 s5, s5, 3")
    a.e("s_and_b32 s6, s4, 7")
    a.e("s_add_u32 s5, s5, s6")
    a.e("s_and_b32 s7, s3, 1")
    a.e("s_lshl_b32 s7, s7, 2")
    a.e("s_lshr_b32 s6, s4, 3")
    a.e("s_add_u32 s7, s7, s6")
    a.e("v_lshrrev_b32 v1, 6, v0")
    a.e("v_and_b32 v0, 63, v0")
    a.e("s_nop 0")
    a.e("v_readfirstlane_b32 s9, v1")
    a.e("v_and_b32 v2, 15, v0")
    a.e("v_lshrrev_b32 v3, 4, v0")
    a.e("v_lshlrev_b32 v7, 4, v0")


SLOT2 = 18432


def producer_setup_64x80(a, w_off, w_nks, a_off, a_rt_stride):
    a.e(f"s_mul_i32 s12, s7, {w_nks*5120}")
    a.e(f"s_add_u32 s12, s12, {hex(w_off)}")
    a.e("s_lshl_b32 s13, s5, 2")
    a.e(f"s_mul_i32 s13, s13, {a_rt_stride}")
    a.e(f"s_add_u32 s13, s13, {hex(a_off)}")
    for n in range(6):
        a.e("s_mul_i32 s14, s9, 6")
        a.e(f"s_add_u32 s14, s14, {n}")
        a.e("s_cmp_ge_u32 s14, 9")
        a.e("s_cselect_b32 s15, 1, 0")
        a.e("s_mul_i32 s10, s15, 9")
        a.e("s_sub_u32 s14, s14, s10")
        a.e("s_mul_i32 s10, s15, 5120")
        a.e("s_lshl_b32 s11, s14, 10")
        a.e("s_add_u32 s10, s10, s11")
        a.e("s_add_u32 s10, s10, s12")
        a.e("s_sub_u32 s11, s14, 5")
        a.e(f"s_mul_i32 s11, s11, {a_rt_stride}")
        a.e("s_lshl_b32 s15, s15, 10")
        a.e("s_add_u32 s11, s11, s15")
        a.e("s_add_u32 s11, s11, s13")
        a.e("s_movk_i32 s15, 2048")
        a.e("s_cmp_lt_u32 s14, 5")
        a.e("s_cselect_b32 s10, s10, s11")
        a.e("s_cselect_b32 s15, 10240, s15")
        a.e(f"v_add_u32 v{8+n}, s10, v7")
        a.e(f"v_mov_b32 v{14+n}, s15")
    a.e("s_mul_i32 s15, s9, 6144")


def rot_64x80(a, segs):
    a.e("s_and_b32 s68, s5, 7")
    a.e("s_lshl_b32 s68, s68, 2")
    a.e("s_and_b32 s69, s7, 3")
    a.e("s_add_u32 s68, s68, s69")


def seg_start(a, n, dst):
    a.e(f"s_mul_i32 {dst}, s68, {n}")
    a.e(f"s_lshr_b32 {dst}, {dst}, 5")


def mk_dma_64x80(a, nsl, srd, segs):
    bounds = {f: n for f, n in segs}

    def dma(c):
        sl = c % nsl
        if c in bounds:
            n = bounds[c]
            seg_start(a, n, "s69")
            for k in range(6):
                a.e(f"v_mul_lo_u32 v20, v{14+k}, s69")
                a.e(f"v_add_u32 v{8+k}, v{8+k}, v20")
        for n in range(6):
            a.e(f"s_add_u32 m0, s15, {sl*SLOT2 + n*1024}")
            a.e("s_nop 0")
            a.vmem(f"buffer_load_dwordx4 v{8+n}, {srd}, 0 offen lds", f"dma{c}")
        f, n = [(f, n) for f, n in segs if f <= c < f + n][0]
        last = (c == f + n - 1)
        a.e("s_add_u32 s69, s69, 1")
        a.e(f"s_cmp_ge_u32 s69, {n}")
        if not last:
            a.e(f"s_cselect_b32 s70, {1-n & 0xffffffff:#x}, 1")
            a.e("s_cselect_b32 s69, 0, s69")
        else:
            a.e(f"s_sub_u32 s70, {n+1}, s69")
        for k in range(6):
            a.e(f"v_mul_lo_u32 v20, v{14+k}, s70")
            a.e(f"v_add_u32 v{8+k}, v{8+k}, v20")
    return dma


def producer_addr(a, w_off, w_nks, w_ks0, a_off, a_rt_stride, a_ks0):
    a.e(f"s_mul_i32 s12, s7, {w_nks*5120}")
    a.e(f"s_add_u32 s12, s12, {hex(w_off + w_ks0*5120)}")
    a.e("s_lshl_b32 s13, s5, 2")
    a.e(f"s_mul_i32 s13, s13, {a_rt_stride}")
    a.e(f"s_add_u32 s13, s13, {hex(a_off + a_ks0*1024)}")
    for n in range(6):
        a.e("s_mul_i32 s14, s9, 6")
        a.e(f"s_add_u32 s14, s14, {n}")
        a.e("s_cmp_ge_u32 s14, 9")
        a.e("s_cselect_b32 s71, 1, 0")
        a.e("s_mul_i32 s10, s71, 9")
        a.e("s_sub_u32 s14, s14, s10")
        a.e("s_mul_i32 s10, s71, 5120")
        a.e("s_lshl_b32 s11, s14, 10")
        a.e("s_add_u32 s10, s10, s11")
        a.e("s_add_u32 s10, s10, s12")
        a.e("s_sub_u32 s11, s14, 5")
        a.e(f"s_mul_i32 s11, s11, {a_rt_stride}")
        a.e("s_lshl_b32 s71, s71, 10")
        a.e("s_add_u32 s11, s11, s71")
        a.e("s_add_u32 s11, s11, s13")
        a.e("s_movk_i32 s71, 2048")
        a.e("s_cmp_lt_u32 s14, 5")
        a.e("s_cselect_b32 s10, s10, s11")
        a.e("s_cselect_b32 s71, 10240, s71")
        a.e(f"v_add_u32 v{8+n}, s10, v7")
        a.e(f"v_mov_b32 v{14+n}, s71")


def mk_dma_seg(a, nsl, srd, segs):
    def dma(c):
        sl = c % nsl
        f, n, setup, flags = [sg for sg in segs if sg[0] <= c < sg[0] + sg[1]][0]
        if c == f:
            setup()
            seg_start(a, n, "s69")
            for k in range(6):
                a.e(f"v_mul_lo_u32 v20, v{14+k}, s69")
                a.e(f"v_add_u32 v{8+k}, v{8+k}, v20")
        for k in range(6):
            a.e(f"s_add_u32 m0, s15, {sl*SLOT2 + k*1024}")
            a.e("s_nop 0")
            a.vmem(f"buffer_load_dwordx4 v{8+k}, {srd}, 0 offen{flags} lds", f"dma{c}")
        if c != f + n - 1:
            a.e("s_add_u32 s69, s69, 1")
            a.e(f"s_cmp_ge_u32 s69, {n}")
            a.e(f"s_cselect_b32 s70, {1-n & 0xffffffff:#x}, 1")
            a.e("s_cselect_b32 s69, 0, s69")
            for k in range(6):
                a.e(f"v_mul_lo_u32 v20, v{14+k}, s70")
                a.e(f"v_add_u32 v{8+k}, v{8+k}, v20")
    return dma


def gen_k2(a):
    NSL = 7
    IMG = NSL * SLOT2
    a.label("k2_kernel")
    a.e("s_cmp_ge_u32 s2, 256")
    a.e("s_cbranch_scc1 k2_exit")
    a.stamp("start")
    prologue_kernargs(a)
    ids_64x80(a)
    a.e("s_cmp_ge_u32 s9, 4")
    a.e("s_cbranch_scc0 k2_cons")
    a.e("s_sub_u32 s9, s9, 4")
    a.e("s_mul_i32 s15, s9, 6144")
    a.e("s_lshl_b32 s10, s9, 6")
    a.e("v_add_u32 v30, s10, v0")
    a.e("s_lshl_b32 s10, s5, 7")
    a.e(f"s_add_u32 s10, s10, {hex(FLAG_OFF)}")
    a.e("v_mov_b32 v31, s10")
    a.e("s_waitcnt lgkmcnt(0)")
    make_srd(a, 48, P_WS, WS_USED)
    make_srd(a, 44, P_DBG, 256)
    for i in range(4):
        a.e(f"v_mov_b32 v{20+i}, 0")
    a.e("v_lshlrev_b32 v24, 4, v30")
    a.e(f"v_add_u32 v24, {IMG}, v24")
    for i in range(10):
        a.lds(f"ds_write_b128 v24, v[20:23] offset:{i*3072}", "Z")
    a.wait_lg_all()
    a.e("s_lshl_b32 s12, s7, 13")
    a.e(f"s_add_u32 s12, s12, {hex(PART_OFF)}")
    a.e("v_lshl_add_u32 v25, v30, 4, s12")
    PL = 64

    def p_issue(r):
        a.vmem(f"buffer_load_dwordx4 {vr(PL+r*4,4)}, v25, s[48:51], 0 offen offset:{r*3072 if r < 2 else 0}" if r < 2 else
               f"buffer_load_dwordx4 {vr(PL+r*4,4)}, v26, s[48:51], 0 offen", f"P{r}")

    a.e("v_add_u32 v26, 6144, v25")

    def p_proc(r):
        a.wait_vm(f"P{r}")
        b = PL + r * 4
        a.e(f"v_cvt_pk_bf16_f32 v32, v{b}, v{b+1}")
        a.e(f"v_cvt_pk_bf16_f32 v33, v{b+2}, v{b+3}")
        F, H_, RM, DD, E0, AD = 34, 35, 36, 37, 38, 39
        a.e(f"v_add_u32 v{F}, {192*r}, v30")
        a.e(f"v_mul_u32_u24 v{H_}, 625, v{F}")
        a.e(f"v_lshrrev_b32 v{H_}, 16, v{H_}")
        a.e(f"v_mul_u32_u24 v{RM}, 105, v{H_}")
        a.e(f"v_sub_u32 v{RM}, v{F}, v{RM}")
        a.e(f"v_mul_u32_u24 v{DD}, 13108, v{RM}")
        a.e(f"v_lshrrev_b32 v{DD}, 16, v{DD}")
        a.e(f"v_mul_u32_u24 v{E0}, 5, v{DD}")
        a.e(f"v_sub_u32 v{E0}, v{RM}, v{E0}")
        a.e(f"v_lshlrev_b32 v{E0}, 2, v{E0}")
        a.e(f"v_mul_u32_u24 v{H_}, 20, v{H_}")
        a.e(f"v_add_u32 v{AD}, v{H_}, v{E0}")
        a.e(f"v_mul_u32_u24 v{AD}, 192, v{AD}")
        a.e(f"v_add_u32 v40, v{H_}, v{DD}")
        a.e(f"v_lshl_add_u32 v{AD}, v40, 1, v{AD}")
        a.e(f"v_add_u32 v{AD}, {IMG}, v{AD}")
        a.e(f"v_cmp_gt_u32 vcc, 420, v{F}")
        a.e("s_mov_b64 s[60:61], vcc")
        a.e(f"v_cmp_gt_u32 s[62:63], 20, v{DD}")
        a.e(f"v_cmp_eq_u32 s[64:65], 20, v{DD}")
        a.e("s_and_b64 s[62:63], s[62:63], s[60:61]")
        a.e("s_and_b64 s[64:65], s[64:65], s[60:61]")
        a.e("v_lshrrev_b32 v41, 16, v32")
        a.e("v_lshrrev_b32 v42, 16, v33")
        a.e("s_mov_b64 s[66:67], exec")
        a.e("s_mov_b64 exec, s[62:63]")
        a.lds(f"ds_write_b16 v{AD}, v32", "S")
        a.lds(f"ds_write_b16 v{AD}, v41 offset:192", "S")
        a.lds(f"ds_write_b16 v{AD}, v33 offset:384", "S")
        a.lds(f"ds_write_b16 v{AD}, v42 offset:576", "S")
        a.e("s_mov_b64 exec, s[66:67]")
        a.e(f"v_mul_u32_u24 v{AD}, 192, v{H_}")
        a.e(f"v_add_u32 v40, v{H_}, v{E0}")
        a.e(f"v_lshl_add_u32 v{AD}, v40, 1, v{AD}")
        a.e(f"v_add_u32 v{AD}, {IMG+15360}, v{AD}")
        a.e("s_mov_b64 exec, s[64:65]")
        for ee in range(20):
            a.lds(f"ds_write_b64 v{AD}, v[32:33] offset:{192*ee}", "S")
        a.e("s_mov_b64 exec, s[66:67]")
        a.wait_lg_all()


    def phook(c):
        if c == 0:
            for r in range(3):
                p_issue(r)
        if c in (2, 3, 4):
            p_proc(c - 2)
        if c == 9:
            a.e("s_barrier")

    def setup_a():
        poll_counter(a, "s[48:51]", 31, 8, "k2_poll")
        producer_addr(a, W2F_OFF, 68, 0, 0, ACT_RT, 0)

    rot_64x80(a, None)
    segs = [(0, 10, lambda: producer_addr(a, WQF_OFF, 20, 0, XF_OFF, 20480, 0), ""),
            (10, 24, lambda: producer_addr(a, W2F_OFF, 68, 20, 0, ACT_RT, 20), ""),
            (34, 10, setup_a, " sc1")]
    producer_loop(a, 44, NSL, mk_dma_seg(a, NSL, "s[48:51]", segs), hook=phook)
    a.e("s_endpgm")

    a.label("k2_cons")
    a.vm = []
    a.lg = []
    a.e("s_lshl_b32 s10, s5, 2")
    a.e("s_add_u32 s10, s10, s9")
    a.e("s_lshl_b32 s11, s10, 4")
    a.e("v_add_u32 v4, s11, v2")
    a.e("v_lshlrev_b32 v6, 4, v3")
    a.e("s_lshl_b32 s12, s9, 10")
    a.e("s_add_u32 s12, s12, 5120")
    a.e("v_add_u32 v8, s12, v7")
    a.e("v_mov_b32 v9, v7")
    a.e("s_waitcnt lgkmcnt(0)")
    make_srd(a, 48, P_WS, WS_USED)
    make_srd(a, 52, P_GW, 1280)
    make_srd(a, 44, P_DBG, 256)
    make_srd(a, 40, P_B2, 1280)
    make_srd(a, 56, P_OUT, 2048 * 1280)
    GF = 112
    rot_64x80(a, None)
    seg_start(a, 10, "s69")
    for c in range(10):
        a.e("s_lshl_b32 s70, s69, 7")
        for ks in range(2):
            s_ = 2 * c + ks
            a.vmem(f"buffer_load_dwordx4 {vr(GF+s_*4,4)}, v6, s[52:55], s70 offen offset:{64*ks}", f"G{s_}")
        a.e("s_add_u32 s69, s69, 1")
        a.e("s_cmp_ge_u32 s69, 10")
        a.e("s_cselect_b32 s69, 0, s69")
    a.e("s_mul_i32 s12, s7, 160")
    a.e("v_lshl_add_u32 v28, v3, 3, s12")
    B2 = 240
    for t in range(5):
        a.vmem(f"buffer_load_dwordx2 {vr(B2+2*t,2)}, v28, s[40:43], 0 offen offset:{32*t}", "b2")
    ACC = 32
    WB = 64
    AB = 104
    GA = 56
    a.e(f"v_mov_b32 v{GA}, 0")

    def reads(s, t):
        ks = s % 2
        if t == 0:
            a.lds(f"ds_read_b128 {vr(AB+(s&1)*4,4)}, v8 offset:{ks*9216}", ("A", s, 0))
        a.lds(f"ds_read_b128 {vr(WB+((s&1)*5+t)*4,4)}, v9 offset:{ks*9216+t*1024}", ("R", s, t))

    def per_tile(s, t):
        if t == 0:
            a.wait_vm(f"G{s}")
        if t < 4:
            a.e(f"v_dot2_f32_bf16 v{GA}, v{AB+(s&1)*4+t}, v{GF+s*4+t}, v{GA}")

    bump = mk_bump(a, [8, 9], SLOT2, NSL)
    consumer_loop(a, 20, 2, 5, 1, lambda s, t: vr(WB + ((s & 1) * 5 + t) * 4, 4), lambda s, rt: vr(AB + (s & 1) * 4, 4),
                  lambda s, rt, t: vr(ACC + t * 4, 4), reads, bump, True, per_tile=per_tile,
                  stamps=(0, 8))
    a.stamp("loopdone")
    a.c("phase B epilogue")
    a.e(f"s_mov_b32 s58, {EPS}")
    phi_consts(a)
    PQ = 184
    T = 196
    a.nop(6)
    for t in range(5):
        phi_inplace(a, ACC + t * 4, T + (12 if t & 1 else 0), PQ + t * 2, PQ + t * 2 + 1, "s58")
    a.e(f"v_mov_b32 v{PQ+10}, 0")
    a.e(f"v_mov_b32 v{PQ+11}, 0")
    a.e("v_mul_u32_u24 v14, 192, v2")
    a.e("v_lshl_add_u32 v14, v3, 3, v14")
    a.e(f"v_add_u32 v14, {IMG}, v14")
    a.e("s_barrier")
    a.stamp("img")
    ju = [(0, 0), (1, 0), (1, 1), (2, 0), (2, 1), (3, 1), (3, 2), (4, 1), (4, 2)]
    KF = 112
    for n, (j, u) in enumerate(ju):
        for im in range(2):
            b = KF + im * 36 + n * 4
            off = im * 15360 + j * 16 * 192 + u * 64
            a.lds(f"ds_read_b64 {vr(b,2)}, v14 offset:{off}", ("F", n, im))
            a.lds(f"ds_read_b64 {vr(b+2,2)}, v14 offset:{off+32}", ("F", n, im))
    NUM = 64
    seen = set()
    for n, (j, u) in enumerate(ju):
        for im in range(2):
            d = vr(NUM + im * 20 + j * 4, 4)
            cin = d if (im, j) in seen else "0"
            seen.add((im, j))
            a.wait_lg(("F", n, im))
            a.e(f"v_mfma_f32_16x16x32_bf16 {d}, {vr(KF+im*36+n*4,4)}, {vr(PQ+u*4,4)}, {cin}")
    a.e(f"s_mul_i32 s12, s10, {ACT_RT}")
    a.e("s_mul_i32 s11, s7, 2560")
    a.e("s_add_u32 s12, s12, s11")
    a.e("v_lshrrev_b32 v14, 1, v3")
    a.e("v_lshl_add_u32 v14, v14, 4, v2")
    a.e("v_lshlrev_b32 v14, 4, v14")
    a.e("v_add_u32 v6, s12, v14")
    a.e("v_and_b32 v15, 1, v3")
    a.e("v_lshl_add_u32 v5, v15, 9, v6")
    a.nop(4)
    for j in range(5):
        n_ = NUM + j * 4
        d_ = NUM + 20 + j * 4
        p = T
        f = T + 4
        g = T + 8
        a.e(f"v_cvt_pk_bf16_f32 v{p}, v{n_}, v{n_+1}")
        a.e(f"v_cvt_pk_bf16_f32 v{p+1}, v{n_+2}, v{n_+3}")
        a.e(f"v_cvt_pk_bf16_f32 v{p+2}, v{d_}, v{d_+1}")
        a.e(f"v_cvt_pk_bf16_f32 v{p+3}, v{d_+2}, v{d_+3}")
        unpack(a, f, f + 1, p)
        unpack(a, f + 2, f + 3, p + 1)
        unpack(a, g, g + 1, p + 2)
        unpack(a, g + 2, g + 3, p + 3)
        a.e(f"v_pk_add_f32 {vr(g,2)}, {vr(g,2)}, s[64:65]")
        a.e(f"v_pk_add_f32 {vr(g+2,2)}, {vr(g+2,2)}, s[64:65]")
        a.e(f"v_cvt_pk_bf16_f32 v{p+2}, v{g}, v{g+1}")
        a.e(f"v_cvt_pk_bf16_f32 v{p+3}, v{g+2}, v{g+3}")
        unpack(a, g, g + 1, p + 2)
        unpack(a, g + 2, g + 3, p + 3)
        for i in range(4):
            a.e(f"v_rcp_f32 v{g+4+i}, v{g+i}")
        a.e("s_nop 0")
        for i in range(4):
            a.e(f"v_mul_f32 v{g+8+i}, v{f+i}, v{g+4+i}")
        for i in range(4):
            a.e(f"v_fma_f32 v{f+i}, -v{g+i}, v{g+8+i}, v{f+i}")
        for i in range(4):
            a.e(f"v_fma_f32 v{g+8+i}, v{f+i}, v{g+4+i}, v{g+8+i}")
        O = T + 24 + (j // 2) * 4
        if j < 4:
            o = O + (j & 1) * 2
            a.e(f"v_cvt_pk_bf16_f32 v{o}, v{g+8}, v{g+9}")
            a.e(f"v_cvt_pk_bf16_f32 v{o+1}, v{g+10}, v{g+11}")
        else:
            a.e(f"v_cvt_pk_bf16_f32 v{O}, v{g+8}, v{g+9}")
            a.e(f"v_cvt_pk_bf16_f32 v{O+1}, v{g+10}, v{g+11}")
            a.e(f"v_mov_b32 v{O+2}, v{O}")
            a.e(f"v_mov_b32 v{O+3}, v{O+1}")
        if j & 1 or j == 4:
            a.nop(2)
            a.e(f"v_permlane16_swap_b32 v{O}, v{O+2}")
            a.e(f"v_permlane16_swap_b32 v{O+1}, v{O+3}")
            a.nop(1)
            a.vmem(f"buffer_store_dwordx4 {vr(O,4)}, v{5 if j < 4 else 6}, s[48:51], 0 offen offset:{512*(j & ~1)} sc1", "st")
    a.e(f"v_mov_b32 v57, v{GA}")
    a.nop(2)
    a.e(f"v_permlane32_swap_b32 v57, v{GA}")
    a.nop(2)
    a.e(f"v_add_f32 v{GA}, v57, v{GA}")
    a.e(f"v_mov_b32 v57, v{GA}")
    a.nop(2)
    a.e(f"v_permlane16_swap_b32 v57, v{GA}")
    a.nop(2)
    a.e(f"v_add_f32 v{GA}, v57, v{GA}")
    a.e(f"v_cvt_pk_bf16_f32 v{GA}, v{GA}, v{GA}")
    a.e(f"v_lshlrev_b32 v{GA}, 16, v{GA}")
    a.e(f"v_mul_f32 v{GA}, 0xbfb8aa3b, v{GA}")
    a.e(f"v_exp_f32 v{GA}, v{GA}")
    a.e("s_nop 0")
    a.e(f"v_add_f32 v{GA}, 1.0, v{GA}")
    a.e(f"v_rcp_f32 v{GA}, v{GA}")
    a.e("s_nop 0")
    a.e(f"v_cvt_pk_bf16_f32 v{GA}, v{GA}, v{GA}")
    a.e(f"v_lshlrev_b32 v{GA}, 16, v{GA}")
    a.e(f"v_sub_f32 v57, 1.0, v{GA}")
    a.e("v_cvt_pk_bf16_f32 v57, v57, v57")
    a.e("v_lshlrev_b32 v57, 16, v57")
    a.wait_vm_all()
    a.stamp("pub")
    ACA = 16
    ACA = 112

    def reads_c(s, t):
        reads(s + 20, t)

    a.e("s_barrier")
    a.e("s_cmp_lg_u32 s9, 0")
    a.e("s_cbranch_scc1 k2_nopub")
    a.e("s_lshl_b32 s12, s5, 7")
    a.e(f"s_add_u32 s12, s12, {hex(FLAG_OFF)}")
    a.e("v_mov_b32 v58, s12")
    a.e("v_mov_b32 v59, 1")
    a.e("v_cmp_eq_u32 vcc, 0, v0")
    a.e("s_and_saveexec_b64 s[66:67], vcc")
    a.e("buffer_atomic_add v59, v58, s[48:51], 0 offen sc1")
    a.e("s_mov_b64 exec, s[66:67]")
    a.label("k2_nopub")
    bump(10)
    for t in range(5):
        reads(20, t)
    NK = 88
    for s in range(20, NK):
        if s in (28, 44, 68, 80):
            a.stamp(f"s{s}")
        if s + 1 < NK and (s + 1) % 2 == 0:
            a.e("s_barrier")
            bump((s + 1) // 2)
        for t in range(5):
            if s + 1 < NK:
                reads(s + 1, t)
            need = [("R", s, t)]
            if t == 0:
                need.append(("A", s, 0))
            a.wait_lg(need)
            d = vr(ACA + (20 if s < 68 else 0) + t * 4, 4)
            cin = "0" if s in (20, 68) else d
            a.e(f"v_mfma_f32_16x16x32_bf16 {d}, {vr(WB+((s&1)*5+t)*4,4)}, {vr(AB+(s&1)*4,4)}, {cin}")
    a.stamp("loopdone")
    a.c("final epilogue")
    a.e("v_mul_u32_u24 v5, 1280, v4")
    a.e("v_lshl_add_u32 v5, v3, 3, v5")
    a.e("s_mul_i32 s12, s7, 160")
    a.e("v_add_u32 v5, s12, v5")
    a.nop(6)
    T = 160
    for t in range(5):
        ca = ACA + t * 4
        cb = ACA + 20 + t * 4
        p = T
        fa = T + 4
        fb = T + 8
        bb = T + 12
        a.e(f"v_cvt_pk_bf16_f32 v{p}, v{ca}, v{ca+1}")
        a.e(f"v_cvt_pk_bf16_f32 v{p+1}, v{ca+2}, v{ca+3}")
        a.e(f"v_cvt_pk_bf16_f32 v{p+2}, v{cb}, v{cb+1}")
        a.e(f"v_cvt_pk_bf16_f32 v{p+3}, v{cb+2}, v{cb+3}")
        unpack(a, fa, fa + 1, p)
        unpack(a, fa + 2, fa + 3, p + 1)
        unpack(a, fb, fb + 1, p + 2)
        unpack(a, fb + 2, fb + 3, p + 3)
        unpack(a, bb, bb + 1, B2 + 2 * t)
        unpack(a, bb + 2, bb + 3, B2 + 2 * t + 1)
        a.e(f"v_pk_add_f32 {vr(fb,2)}, {vr(fb,2)}, {vr(bb,2)}")
        a.e(f"v_pk_add_f32 {vr(fb+2,2)}, {vr(fb+2,2)}, {vr(bb+2,2)}")
        for i in range(4):
            a.e(f"v_mul_f32 v{fa+i}, v{GA}, v{fa+i}")
        a.e(f"v_cvt_pk_bf16_f32 v{p+2}, v{fb}, v{fb+1}")
        a.e(f"v_cvt_pk_bf16_f32 v{p+3}, v{fb+2}, v{fb+3}")
        a.e(f"v_cvt_pk_bf16_f32 v{p}, v{fa}, v{fa+1}")
        a.e(f"v_cvt_pk_bf16_f32 v{p+1}, v{fa+2}, v{fa+3}")
        unpack(a, fb, fb + 1, p + 2)
        unpack(a, fb + 2, fb + 3, p + 3)
        unpack(a, fa, fa + 1, p)
        unpack(a, fa + 2, fa + 3, p + 1)
        for i in range(4):
            a.e(f"v_mul_f32 v{fb+i}, v57, v{fb+i}")
        a.e(f"v_cvt_pk_bf16_f32 v{p+2}, v{fb}, v{fb+1}")
        a.e(f"v_cvt_pk_bf16_f32 v{p+3}, v{fb+2}, v{fb+3}")
        unpack(a, fb, fb + 1, p + 2)
        unpack(a, fb + 2, fb + 3, p + 3)
        a.e(f"v_pk_add_f32 {vr(fa,2)}, {vr(fa,2)}, {vr(fb,2)}")
        a.e(f"v_pk_add_f32 {vr(fa+2,2)}, {vr(fa+2,2)}, {vr(fb+2,2)}")
        o = T + 20 + t * 2
        a.e(f"v_cvt_pk_bf16_f32 v{o}, v{fa}, v{fa+1}")
        a.e(f"v_cvt_pk_bf16_f32 v{o+1}, v{fa+2}, v{fa+3}")
        a.vmem(f"buffer_store_dwordx2 {vr(o,2)}, v5, s[56:59], 0 offen offset:{32*t}", "st")
    a.stamp("end")
    a.dump_stamps()
    a.label("k2_exit")
    a.e("s_endpgm")


HEADER = """; Kernarg layout for this problem (96 bytes, ptrs only, base s[0:1]):
; @launch kernel=k1_kernel grid=(256,1,1) block=(512,1,1) lds=163840
; @launch kernel=k2_kernel grid=(256,1,1) block=(448,1,1) lds=159744
.amdgcn_target "amdgcn-amd-amdhsa--gfx950"
.text
"""


def kd(name, vg, acc_off, sg=102):
    return f""".amdhsa_kernel {name}
  .amdhsa_next_free_vgpr {vg}
  .amdhsa_next_free_sgpr {sg}
  .amdhsa_accum_offset {acc_off}
  .amdhsa_group_segment_fixed_size 0
  .amdhsa_kernarg_size 96
  .amdhsa_user_sgpr_count 2
  .amdhsa_user_sgpr_kernarg_segment_ptr 1
  .amdhsa_system_sgpr_workgroup_id_x 1
.end_amdhsa_kernel
"""


def main():
    for i in range(1280):
        assert (i * 6554) >> 16 == i // 10
    for i in range(1792):
        assert (i * 1249) >> 19 == i // 420, i
    for i in range(420):
        assert (i * 3277) >> 16 == i // 20
    for i in range(576):
        assert (i * 625) >> 16 == i // 105, i
    for i in range(105):
        assert (i * 13108) >> 16 == i // 5
    for i in range(768):
        assert (i * 5462) >> 16 == i // 12
    for i in range(640):
        assert (i * 820) >> 16 == i // 80
    for i in range(2560):
        assert (i * 52429) >> 18 == i // 5
        assert (i * 52429) >> 20 == i // 20
    out = [HEADER]
    for nm, fn in (("k1_kernel", gen_k1), ("k2_kernel", gen_k2)):
        a = Asm()
        a.kid = int(nm[1])
        fn(a)
        out.append(f".globl {nm}\n.p2align 8\n.type {nm},@function\n" + "\n".join(a.lines) + "\n")
    out.append('.section .rodata,"a"\n')
    for nm in ("k1_kernel", "k2_kernel"):
        out.append(".p2align 6\n" + kd(nm, 256, 256))
    path = sys.argv[1] if len(sys.argv) > 1 else f"cdna_kernels/{NAME}.s"
    open(path, "w").write("".join(out))


if __name__ == "__main__":
    main()
```

```python
import sys
import os
sys.path.insert(0, os.path.dirname(os.path.abspath(__file__)))
from gen import (Asm, vr, ar, make_srd, prologue_kernargs, kperm_vgpr, unpack, LOG2E, NAME, kd,
                 P_X, P_WQKV, P_WO, P_BX, P_W1, P_B1, P_W2, P_B2, P_GW, P_OUT, P_DBG, P_WS,
                 ACT_RT, PART_OFF, XF_OFF, WQF_OFF, W2F_OFF, FLAG_OFF, WS_USED)

FAITH = int(os.environ.get("FAITH", "1"))
FAITH_H = int(os.environ.get("FAITH_H", str(FAITH)))
INITD = int(os.environ.get("INITD", "0"))
RWPUB = int(os.environ.get("RWPUB", "7"))
PFE = int(os.environ.get("PFE", "0"))
PFA = int(os.environ.get("PFA", "0"))
PFW = int(os.environ.get("PFW", "0"))
NOSC1 = int(os.environ.get("NOSC1", "0"))
ROT = int(os.environ.get("ROT", "0"))
PUBA_DL = int(os.environ.get("PUBA_DL", "5"))
PUBO_DL = int(os.environ.get("PUBO_DL", "8"))
NOREPACK = int(os.environ.get("NOREPACK", "0"))
RP_ISSUE = int(os.environ.get("RP_ISSUE", "-1"))
RP_STORE = int(os.environ.get("RP_STORE", "2"))

ACT_OFF = 4096
BI_AFTER = int(os.environ.get("BI_AFTER", "19"))
SLOT1 = 20480
NSL1 = 8
SLOT2 = 18432
NSL2 = 7
IMG = NSL2 * SLOT2
GWL = IMG + 30720
SCR = 90112
F_RW = FLAG_OFF
F_KV = FLAG_OFF + 128 * 8
F_H = FLAG_OFF + 128 * 16
F_O = FLAG_OFF + 128 * 32
F_H2 = FLAG_OFF + 128 * 64

S_XCD, S_J, S_RBA, S_CBA, S_COLA, S_PAR, S_W = 3, 4, 5, 6, 7, 8, 9
S_RB, S_CB = 74, 75
SRD_X, SRD_W, SRD_WS, SRD_T = 40, 44, 48, 64


def s4(b):
    return f"s[{b}:{b+3}]"


def poll(a, srd, voff, target, lab, tmp=21, sleep=4):
    a.label(lab)
    a.e(f"buffer_load_dword v{tmp}, v{voff}, {srd}, 0 offen sc1")
    a.e("s_waitcnt vmcnt(0)")
    a.vm = []
    a.e(f"v_readfirstlane_b32 s72, v{tmp}")
    a.e(f"s_cmp_ge_u32 s72, {target}")
    a.e(f"s_cbranch_scc1 {lab}_done")
    a.e(f"s_sleep {sleep}")
    a.e(f"s_branch {lab}")
    a.label(lab + "_done")


def flag_add(a, srd, saddr, v0t=58):
    a.e(f"v_mov_b32 v{v0t}, {saddr}")
    a.e(f"v_mov_b32 v{v0t+1}, 1")
    a.e("s_mov_b64 exec, 1")
    a.e(f"buffer_atomic_add v{v0t+1}, v{v0t}, {srd}, 0 offen sc1")
    a.e("s_mov_b64 exec, -1")


def gen(a):
    a.label("fused_kernel")
    a.e("s_cmp_ge_u32 s2, 256")
    a.e("s_cbranch_scc1 f_exit")
    a.stamp("start")
    prologue_kernargs(a)
    a.e("s_and_b32 s3, s2, 7")
    a.e("s_lshr_b32 s4, s2, 3")
    a.e("s_lshr_b32 s5, s3, 2")
    a.e("s_lshl_b32 s5, s5, 3")
    a.e("s_and_b32 s6, s4, 7")
    a.e("s_add_u32 s5, s5, s6")
    a.e("s_lshr_b32 s6, s4, 3")
    a.e("s_and_b32 s7, s3, 3")
    a.e("s_lshl_b32 s7, s7, 1")
    a.e("s_and_b32 s8, s6, 1")
    a.e("s_add_u32 s7, s7, s8")
    a.e("s_and_b32 s8, s7, 1")
    a.e(f"s_lshr_b32 s{S_RB}, s3, 1")
    a.e(f"s_lshl_b32 s{S_RB}, s{S_RB}, 3")
    a.e("s_and_b32 s10, s4, 7")
    a.e(f"s_add_u32 s{S_RB}, s{S_RB}, s10")
    a.e(f"s_and_b32 s{S_CB}, s3, 1")
    a.e(f"s_lshl_b32 s{S_CB}, s{S_CB}, 2")
    a.e(f"s_add_u32 s{S_CB}, s{S_CB}, s6")
    a.e("v_lshrrev_b32 v1, 6, v0")
    a.e("v_and_b32 v0, 63, v0")
    a.e("s_nop 0")
    a.e("v_readfirstlane_b32 s9, v1")
    a.e("v_and_b32 v2, 15, v0")
    a.e("v_lshrrev_b32 v3, 4, v0")
    a.e("v_lshlrev_b32 v7, 4, v0")
    a.e(f"s_and_b32 s73, s{S_RB}, 7")
    a.e("s_lshl_b32 s73, s73, 2")
    a.e(f"s_and_b32 s10, s{S_CB}, 3")
    a.e("s_add_u32 s73, s73, s10")
    if ROT == 1:
        a.e("s_mov_b32 s73, 0")
    if ROT == 2:
        a.e("s_and_b32 s73, s73, 0x18")
    if ROT == 3:
        a.e(f"s_and_b32 s73, s{S_CB}, 3")
        a.e("s_lshl_b32 s73, s73, 3")
    a.e("s_cmp_ge_u32 s9, 4")
    a.e("s_cbranch_scc0 f_cons")
    gen_producers(a)
    a.label("f_cons")
    a.vm = []
    a.lg = []
    gen_consumers(a)
    a.label("f_exit")
    a.e("s_endpgm")


XS = 16384
WS1 = 12288
WBASE = 65536


def gen_producers(a):
    a.e("s_sub_u32 s9, s9, 4")
    a.e("s_lshl_b32 s10, s5, 7")
    a.e("s_lshl_b32 s11, s9, 5")
    a.e("s_add_u32 s10, s10, s11")
    a.e("v_lshrrev_b32 v14, 3, v0")
    a.e("v_add_u32 v15, s10, v14")
    a.e("v_mul_u32_u24 v15, 1280, v15")
    a.e("v_lshrrev_b32 v14, 1, v14")
    a.e("v_and_b32 v16, 7, v0")
    a.e("v_xor_b32 v16, v16, v14")
    a.e("v_lshl_add_u32 v44, v16, 4, v15")
    a.e("v_xor_b32 v16, 4, v16")
    a.e("v_lshl_add_u32 v45, v16, 4, v15")
    a.e(f"v_add_u32 v45, {8*1280 - 1024}, v45")
    a.e(f"v_add_u32 v46, {16*1280 - 2048}, v44")
    a.e(f"v_add_u32 v47, {16*1280 - 2048}, v45")
    a.e("s_lshl_b32 s14, s9, 12")
    a.e("s_mul_i32 s15, s9, 3072")
    a.e(f"s_add_u32 s15, s15, {WBASE}")
    a.e("s_and_b32 s68, s5, 7")
    a.e("s_mul_i32 s69, s6, 3")
    a.e("s_add_u32 s68, s68, s69")
    a.e("s_add_u32 s68, s68, s3")
    for _ in range(2):
        a.e("s_cmp_ge_u32 s68, 10")
        a.e("s_cselect_b32 s69, 10, 0")
        a.e("s_sub_u32 s68, s68, s69")
    a.e("s_mov_b32 s70, s68")
    a.e("s_lshl_b32 s68, s68, 1")
    def dma_x(J):
        a.e("s_lshl_b32 s52, s70, 7")
        a.e(f"s_add_u32 m0, s14, {(J % 4)*XS}")
        a.e("s_add_u32 s70, s70, 1")
        for n in range(4):
            a.vmem(f"buffer_load_dwordx4 v{44+n}, {s4(SRD_X)}, s52 offen offset:{1024*n} lds", f"dx{J}")
        a.e("s_cmp_ge_u32 s70, 10")
        a.e("s_cselect_b32 s70, 0, s70")

    def adv_k():
        a.e("s_add_u32 s68, s68, 1")
        a.e("s_cmp_ge_u32 s68, 20")
        a.e("s_cselect_b32 s68, 0, s68")

    def repack_dma(tag):
        a.e("s_min_u32 s53, s9, 2")
        a.e(f"s_mul_i32 s54, s{S_RB}, 3")
        a.e("s_add_u32 s54, s54, s53")
        a.e("s_min_u32 s54, s54, 87")
        a.e("s_movk_i32 s57, 1280")
        a.e(f"s_mov_b32 s66, {hex(640*1280)}")
        a.e("s_cmp_lt_u32 s54, 20")
        a.e(f"s_cselect_b32 s64, s{P_WQKV}, s{P_WO}")
        a.e(f"s_cselect_b32 s65, s{P_WQKV+1}, s{P_WO+1}")
        a.e("s_cselect_b32 s57, 3840, s57")
        a.e("s_cselect_b32 s58, 0, 20")
        a.e(f"s_cselect_b32 s66, {hex(640*3840)}, s66")
        a.e("s_cmp_lt_u32 s54, 40")
        a.e(f"s_cselect_b32 s64, s64, s{P_W2}")
        a.e(f"s_cselect_b32 s65, s65, s{P_W2+1}")
        a.e("s_cselect_b32 s58, s58, 40")
        a.e(f"s_cselect_b32 s66, s66, {hex(1536*1280)}")
        a.e("s_and_b32 s65, s65, 0xffff")
        a.e("s_mov_b32 s67, 0x00020000")
        a.e("s_sub_u32 s58, s54, s58")
        a.e("s_lshl_b32 s58, s58, 5")
        a.e("s_mul_i32 s58, s58, s57")
        a.e(f"s_mul_i32 s59, s{S_CB}, 160")
        a.e(f"s_and_b32 s60, s{S_CB}, 1")
        a.e("s_lshl_b32 s60, s60, 5")
        a.e("s_sub_u32 s59, s59, s60")
        a.e("s_add_u32 s58, s58, s59")
        a.e("s_mul_i32 s59, s53, 6144")
        a.e(f"s_add_u32 s59, s59, {WBASE + 6*WS1}")
        for n in range(6):
            a.e(f"v_add_u32 v19, {64*n}, v0")
            a.e("v_mul_u32_u24 v20, 5462, v19")
            a.e("v_lshrrev_b32 v20, 16, v20")
            a.e("v_mul_u32_u24 v21, 12, v20")
            a.e("v_sub_u32 v19, v19, v21")
            a.e("v_bfe_u32 v21, v20, 2, 1")
            a.e("v_lshlrev_b32 v21, 1, v21")
            a.e("v_xor_b32 v19, v19, v21")
            kperm_vgpr(a, 21, 20, 22, 23)
            a.e("v_mul_lo_u32 v21, v21, s57")
            a.e("v_lshl_add_u32 v19, v19, 4, v21")
            a.e(f"s_add_u32 m0, s59, {n*1024}")
            a.e("s_nop 0")
            a.vmem("buffer_load_dwordx4 v19, s[64:67], s58 offen lds", "RP")

    def loop_a(dma_w, tag):
        wi, xi = 0, 0

        def issue_w():
            nonlocal wi, xi
            dma_w(wi)
            wi += 1

        dma_x(0); xi = 1
        issue_w(); issue_w()
        dma_x(1); xi = 2
        issue_w()
        if INITD >= 1:
            issue_w()
        for c in range(20):
            assert xi > c // 2 and wi > c
            if c == 2:
                a.e("s_waitcnt vmcnt(%d)" % (len(a.vm) - 1 - max(i for i, t in enumerate(a.vm) if t == "RP")))
                a.vm = a.vm[max(i for i, t in enumerate(a.vm) if t == "RP") + 1:]
            a.wait_vm([f"dma{c}", f"dx{c//2}"])
            a.e("s_barrier")
            if c == 0:
                repack_dma(tag)
            k = 0
            while k < 2:
                did = False
                if xi < 10 and (xi < 4 or c >= 2 * xi - 5) and 2 * xi <= wi + 1:
                    dma_x(xi)
                    xi += 1
                    did = True
                if wi < min(20, c + NSL1 - 1) and (wi < 6 or c >= 4):
                    issue_w()
                    did = True
                k += 1
                if not did:
                    break
            if c == 9:
                a.e(f"s_lshl_b32 s10, s{S_CB}, 7")
                a.e(f"s_add_u32 s10, s10, {hex(F_RW)}")
                a.e("v_mov_b32 v40, s10")
                a.e("s_mov_b32 s77, 0")
            if PFE and c in (11, 14):
                a.vmem(f"buffer_load_dword v43, v40, {s4(SRD_WS)}, 0 offen sc1", f"pe{c}")
            if PFE and c in (13, 16):
                lab = f"fp_pf{tag}{c}"
                a.wait_vm(f"pe{c-2}")
                a.e("v_readfirstlane_b32 s72, v43")
                a.e("s_cmp_lt_u32 s72, 32")
                a.e(f"s_cbranch_scc1 {lab}")
                a.e("s_cmp_lg_u32 s77, 0")
                a.e(f"s_cbranch_scc1 {lab}")
                a.e("s_mov_b32 s77, 1")
                a.e(f"s_and_b32 s10, s{S_RB}, 7")
                a.e("s_lshl_b32 s10, s10, 2")
                a.e("s_add_u32 s10, s10, s9")
                a.e("v_lshlrev_b32 v50, 7, v0")
                a.e(f"s_mul_i32 s11, s{S_CB}, {68*5120}")
                a.e(f"s_mul_i32 s12, s10, {68*5120//32}")
                a.e("s_add_u32 s11, s11, s12")
                a.e(f"s_add_u32 s11, s11, {hex(W2F_OFF)}")
                a.e(f"buffer_load_dword v52, v50, {s4(SRD_WS)}, s11 offen")
                a.e(f"s_add_u32 s11, s11, {10880 - 8192}")
                a.e(f"buffer_load_dword v53, v50, {s4(SRD_WS)}, s11 offen")
                a.e("v_min_u32 v51, 24, v0")
                a.e("v_lshlrev_b32 v51, 7, v51")
                a.e(f"s_mul_i32 s11, s{S_CB}, 102400")
                a.e("s_mul_i32 s12, s10, 3200")
                a.e("s_add_u32 s11, s11, s12")
                a.e(f"s_add_u32 s11, s11, {hex(WQF_OFF)}")
                a.e(f"buffer_load_dword v54, v51, {s4(SRD_WS)}, s11 offen")
                a.label(lab)
            if c == 18:
                a.vmem(f"buffer_load_dword v42, v40, {s4(SRD_WS)}, 0 offen sc1", "pp0")
        assert wi == 20 and xi == 10
        if tag == "kv":
            a.e("s_branch fp_tail")

    a.e("s_cmp_ge_u32 s6, 2")
    a.e("s_cbranch_scc1 fp_h")
    a.e("s_and_b32 s12, s9, 1")
    a.e("s_mul_i32 s12, s12, 192")
    a.e("s_lshr_b32 s13, s9, 1")
    a.e("s_mul_i32 s10, s7, 160")
    a.e("s_lshl_b32 s11, s8, 5")
    a.e("s_sub_u32 s10, s10, s11")
    a.e("s_mul_i32 s11, s13, 1280")
    a.e("s_add_u32 s10, s10, s11")
    a.e("s_add_u32 s10, s10, 1280")
    for n in range(3):
        d = 8 + n
        a.e("v_add_u32 v19, s12, v0")
        if n:
            a.e(f"v_add_u32 v19, {64*n}, v19")
        a.e("v_mul_u32_u24 v20, 5462, v19")
        a.e("v_lshrrev_b32 v20, 16, v20")
        a.e("v_mul_u32_u24 v21, 12, v20")
        a.e("v_sub_u32 v19, v19, v21")
        a.e("v_bfe_u32 v21, v20, 2, 1")
        a.e("v_lshlrev_b32 v21, 1, v21")
        a.e("v_xor_b32 v19, v19, v21")
        kperm_vgpr(a, 21, 20, 22, 23)
        a.e("v_mul_u32_u24 v21, 3840, v21")
        a.e(f"v_lshl_add_u32 v{d}, v19, 4, v21")
        a.e(f"v_add_u32 v{d}, s10, v{d}")
        if n:
            a.e(f"v_subrev_u32 v{d}, {1024*n}, v{d}")
    a.e("s_waitcnt lgkmcnt(0)")
    make_srd(a, SRD_X, P_X, 2048 * 1280)
    make_srd(a, SRD_WS, P_WS, WS_USED)
    make_srd(a, SRD_W, P_WQKV, 640 * 3840)

    def dma_kv(c):
        a.e(f"s_mul_i32 s52, s68, {32*3840}")
        a.e(f"s_add_u32 m0, s15, {(c % NSL1)*WS1}")
        adv_k()
        for n in range(3):
            a.vmem(f"buffer_load_dwordx4 v{8+n}, {s4(SRD_W)}, s52 offen offset:{1024*n} lds", f"dma{c}")

    loop_a(dma_kv, "kv")
    vm_after = list(a.vm)
    a.label("fp_h")
    a.vm = []
    a.e("v_lshrrev_b32 v14, 3, v0")
    a.e("v_and_b32 v15, 3, v14")
    a.e("v_lshrrev_b32 v16, 2, v14")
    a.e("v_lshl_add_u32 v15, v16, 3, v15")
    a.e("v_mul_u32_u24 v8, 3072, v15")
    a.e("v_bfe_u32 v15, v0, 1, 2")
    a.e("v_lshrrev_b32 v16, 1, v14")
    a.e("v_xor_b32 v15, v15, v16")
    a.e("v_lshl_add_u32 v8, v15, 5, v8")
    a.e("v_and_b32 v15, 1, v0")
    a.e("v_lshl_add_u32 v8, v15, 4, v8")
    a.e("s_and_b32 s12, s9, 1")
    a.e("s_lshl_b32 s12, s12, 4")
    a.e("s_lshr_b32 s13, s9, 1")
    a.e("s_lshl_b32 s13, s13, 2")
    a.e("s_add_u32 s12, s12, s13")
    a.e("s_mul_i32 s12, s12, 3072")
    a.e("s_mul_i32 s13, s7, 384")
    a.e("s_add_u32 s12, s12, s13")
    a.e("v_add_u32 v8, s12, v8")
    a.e("s_waitcnt lgkmcnt(0)")
    make_srd(a, SRD_X, P_X, 2048 * 1280)
    make_srd(a, SRD_WS, P_WS, WS_USED)
    make_srd(a, SRD_W, P_W1, 640 * 3072)

    def dma_h(c):
        a.e(f"s_mul_i32 s52, s68, {32*3072}")
        for cbk in range(3):
            a.e(f"s_add_u32 m0, s15, {(c % NSL1)*WS1 + cbk*1024}")
            if cbk == 0:
                adv_k()
            else:
                a.e("s_add_u32 s52, s52, 128")
            a.vmem(f"buffer_load_dwordx4 v8, {s4(SRD_W)}, s52 offen lds", f"dma{c}")

    loop_a(dma_h, "h")
    assert a.vm == vm_after
    a.label("fp_tail")
    a.e("s_barrier")
    a.e("s_cmp_eq_u32 s9, 3")
    a.e("s_cbranch_scc1 fp_helper")
    a.e("s_cmp_eq_u32 s9, 1")
    a.e("s_cbranch_scc1 fp_p1")
    a.e("s_cmp_eq_u32 s9, 2")
    a.e("s_cbranch_scc1 fp_p2")
    vm_keep = list(a.vm)

    segs = [(0, 10), (10, 24), (34, 10)]

    def gen_p(P):
        items = [("W", i) if i < 10 else ("A", i - 10) for i in range(6 * P, 6 * P + 6)]
        lab = f"fp{P}"

        def check(tag, vval, vaddr, target, lb):
            a.wait_vm(tag)
            a.e(f"v_readfirstlane_b32 s72, v{vval}")
            a.e(f"s_cmp_ge_u32 s72, {target}")
            a.e(f"s_cbranch_scc1 {lb}_done")
            vm = list(a.vm)
            poll(a, s4(SRD_WS), vaddr, target, lb, sleep=8)
            a.vm = vm

        def seg_setup(seg):
            n = segs[seg][1]
            if seg == 1:
                a.e("s_lshr_b32 s69, s73, 2")
                a.e("s_mul_i32 s69, s69, 3")
            else:
                a.e(f"s_mul_i32 s69, s73, {n}")
                a.e("s_lshr_b32 s69, s69, 5")
            w_off, w_nks, ks0 = [(WQF_OFF, 20, 0), (W2F_OFF, 68, 20), (W2F_OFF, 68, 0)][seg]
            a.e(f"s_mul_i32 s60, s{S_CB}, {w_nks*5120}")
            a.e(f"s_add_u32 s60, s60, {hex(w_off + ks0*5120)}")
            if seg == 0:
                a.e(f"s_lshl_b32 s61, s{S_RB}, 6")
                a.e("v_lshrrev_b32 v14, 3, v0")
                a.e("v_add_u32 v15, s61, v14")
                a.e("v_mul_u32_u24 v15, 1280, v15")
                a.e("v_lshrrev_b32 v14, 1, v14")
                a.e("v_and_b32 v16, 7, v0")
                a.e("v_xor_b32 v16, v16, v14")
                a.e("v_lshl_add_u32 v17, v16, 4, v15")
                a.e("v_xor_b32 v16, 4, v16")
                a.e("v_lshl_add_u32 v18, v16, 4, v15")
            else:
                a.e(f"s_lshl_b32 s61, s{S_RB}, 2")
                a.e(f"s_mul_i32 s61, s61, {ACT_RT}")
                a.e(f"s_add_u32 s61, s61, {hex(ACT_OFF + ks0*1024)}")
            for k, (ty, i) in enumerate(items):
                comp = (k & 3) * 1024
                if ty == "W":
                    a.e(f"s_add_u32 s10, s60, {hex((i*1024 - comp) & 0xffffffff)}")
                    a.e(f"v_add_u32 v{8+k}, s10, v7")
                elif seg == 0:
                    a.e(f"v_add_u32 v{8+k}, {i*8*1280}, v{17 + (i & 1)}")
                else:
                    ks, rt = i // 4, i % 4
                    a.e(f"s_add_u32 s10, s61, {hex((rt*ACT_RT + ks*1024 - comp) & 0xffffffff)}")
                    a.e(f"v_add_u32 v{8+k}, s10, v7")

        def dma2(c):
            sl = c % NSL2
            seg = [i for i, sg in enumerate(segs) if sg[0] <= c < sg[0] + sg[1]][0]
            n = segs[seg][1]
            has_a = any(ty == "A" for ty, _ in items)
            has_w = any(ty == "W" for ty, _ in items)
            if c == 0:
                if has_w:
                    check("pp0", 42, 40, 32, lab + "_rw")
                seg_setup(0)
            if has_a and c in range(8, 32, 3):
                g = (c - 8) // 3
                a.e("s_lshr_b32 s10, s73, 2")
                a.e(f"s_add_u32 s10, s10, {g}")
                a.e("s_and_b32 s10, s10, 7")
                a.e(f"s_lshr_b32 s11, s{S_RB}, 1")
                a.e("s_lshl_b32 s11, s11, 3")
                a.e("s_add_u32 s10, s10, s11")
                a.e("s_lshl_b32 s10, s10, 7")
                a.e(f"s_add_u32 s10, s10, {hex(F_H2)}")
                a.e("v_mov_b32 v40, s10")
                a.vmem(f"buffer_load_dword v42, v40, {s4(SRD_WS)}, 0 offen sc1", f"pp1{g}")
            if has_a and c in range(10, 34, 3):
                g = (c - 10) // 3
                check(f"pp1{g}", 42, 40, 4, lab + f"_h{g}")
            if c == 10:
                seg_setup(1)
            if c == 32 and has_a:
                a.e(f"s_lshl_b32 s10, s{S_RB}, 7")
                a.e(f"s_add_u32 s10, s10, {hex(F_O)}")
                a.e("v_mov_b32 v40, s10")
                a.vmem(f"buffer_load_dword v42, v40, {s4(SRD_WS)}, 0 offen sc1", "pp2")
            if c == 34:
                if has_a:
                    check("pp2", 42, 40, 32, lab + "_o")
                seg_setup(2)
            if has_w:
                a.e("s_mul_i32 s62, s69, 10240")
            if has_a:
                a.e(f"s_lshl_b32 s63, s69, {7 if seg == 0 else 11}")
            base = sl * SLOT2 + 6 * P * 1024
            cur_m0 = None
            for k, (ty, i) in enumerate(items):
                raw = (ty == "A" and seg == 0)
                m0v = base + (k * 1024 if raw else (k & ~3) * 1024)
                off = 0 if raw else (k & 3) * 1024
                if m0v != cur_m0:
                    a.e(f"s_mov_b32 m0, {m0v}")
                    a.e("s_nop 0")
                    cur_m0 = m0v
                srd = s4(SRD_X) if raw else s4(SRD_WS)
                so = "s62" if ty == "W" else "s63"
                fl = "" if (raw or NOSC1) else " sc1"
                a.vmem(f"buffer_load_dwordx4 v{8+k}, {srd}, {so} offen offset:{off}{fl} lds", f"d2{c}")
            a.e("s_add_u32 s69, s69, 1")
            a.e(f"s_cmp_ge_u32 s69, {n}")
            a.e("s_cselect_b32 s69, 0, s69")

        for c in range(4):
            dma2(c)
        a.e("s_cmp_ge_u32 s6, 2")
        a.e(f"s_cbranch_scc1 {lab}_noe")
        a.e("s_barrier")
        a.e("s_barrier")
        a.label(f"{lab}_noe")
        dma2(4)
        dma2(5)
        issued = 6
        for c in range(44):
            a.wait_vm(f"d2{c}")
            a.e("s_barrier")
            if issued < 44 and (issued < NSL2 or issued <= c + NSL2 - 2):
                dma2(issued)
                issued += 1
            if c == BI_AFTER:
                a.e("s_barrier")
        a.e("s_endpgm")

    gen_p(0)
    a.label("fp_p1")
    a.vm = list(vm_keep)
    gen_p(1)
    a.label("fp_p2")
    a.vm = list(vm_keep)
    gen_p(2)

    a.label("fp_helper")
    a.vm = []
    a.lg = []
    a.e("s_cmp_ge_u32 s6, 2")
    a.e("s_cbranch_scc1 fh_noe")
    a.e("s_barrier")
    a.e("s_barrier")
    a.label("fh_noe")
    if PFW:
        a.e("s_waitcnt vmcnt(0)")
        a.e("v_readfirstlane_b32 s72, v42")
        a.e("s_cmp_ge_u32 s72, 32")
        a.e("s_cbranch_scc0 fh_nopfw")
        a.e(f"s_and_b32 s10, s{S_RB}, 7")
        a.e("v_lshlrev_b32 v50, 7, v0")
        a.e(f"s_mul_i32 s11, s{S_CB}, {68*5120}")
        a.e(f"s_mul_i32 s12, s10, {68*5120//8}")
        a.e("s_add_u32 s11, s11, s12")
        a.e(f"s_add_u32 s11, s11, {hex(W2F_OFF)}")
        for i in range(6):
            a.e(f"buffer_load_dword v{52+i}, v50, {s4(SRD_WS)}, s11 offen")
            a.e("s_add_u32 s11, s11, 8192" if i < 4 else f"s_add_u32 s11, s11, {43520 - 5*8192}")
        a.label("fh_nopfw")
    for i in range(4):
        a.e(f"v_mov_b32 v{20+i}, 0")
    a.e(f"v_add_u32 v24, {IMG}, v7")
    for i in range(30):
        a.lds(f"ds_write_b128 v24, v[20:23] offset:{i*1024}", "Z")
    a.e(f"s_lshl_b32 s10, s{S_CB}, 7")
    a.e(f"s_add_u32 s10, s10, {hex(F_KV)}")
    a.e("v_mov_b32 v26, s10")
    a.e(f"s_lshl_b32 s12, s{S_CB}, 13")
    a.e(f"s_add_u32 s12, s12, {hex(PART_OFF)}")
    a.e("v_add_u32 v25, s12, v7")
    make_srd(a, SRD_T, P_GW, 1280)
    a.e(f"s_mov_b32 m0, {GWL}")
    a.e("s_nop 0")
    a.e(f"buffer_load_dwordx4 v7, {s4(SRD_T)}, 0 offen lds")
    a.e(f"buffer_load_dwordx4 v7, {s4(SRD_T)}, 0 offen offset:1024 lds")
    a.e("s_mov_b32 s60, 0")
    a.e("s_mov_b32 s61, 0")
    a.e("v_mov_b32 v30, v0")
    a.e("s_waitcnt vmcnt(0) lgkmcnt(0)")
    a.lg = []
    for i in range(8):
        a.e("s_barrier")
    a.e("s_mov_b32 s60, 8")
    a.label("fh_wait")
    a.e(f"buffer_load_dword v21, v26, {s4(SRD_WS)}, 0 offen sc1")
    for i in range(2):
        a.e("s_cmp_ge_u32 s60, %d" % (BI_AFTER + 1))
        a.e(f"s_cbranch_scc1 fh_nobar{i}")
        a.e("s_barrier")
        a.e("s_add_u32 s60, s60, 1")
        a.label(f"fh_nobar{i}")
    a.e("s_waitcnt vmcnt(0)")
    a.e("v_readfirstlane_b32 s72, v21")
    a.e("s_cmp_ge_u32 s72, 64")
    a.e("s_cbranch_scc0 fh_wait")
    for r in range(7):
        a.e(f"buffer_load_dwordx4 {vr(64+4*r,4)}, v25, {s4(SRD_WS)}, 0 offen" + (f" offset:{1024*r}" if r < 4 else "") + " sc1")
        if r == 3:
            a.e("v_add_u32 v25, 4096, v25")
        if r >= 4:
            a.e("v_add_u32 v25, 1024, v25")
    a.e("s_cmp_ge_u32 s60, %d" % (BI_AFTER + 1))
    a.e("s_cbranch_scc1 fh_loop")
    a.e("s_barrier")
    a.e("s_add_u32 s60, s60, 1")
    a.label("fh_loop")
    a.e("s_cmp_ge_u32 s60, %d" % (BI_AFTER + 1) + "")
    a.e("s_cbranch_scc1 fh_round")
    a.e("s_barrier")
    a.e("s_add_u32 s60, s60, 1")
    a.label("fh_round")
    F, H_, RM, DD, E0, AD = 30, 35, 36, 37, 38, 39
    a.e(f"v_mul_u32_u24 v{H_}, 625, v{F}")
    a.e(f"v_lshrrev_b32 v{H_}, 16, v{H_}")
    a.e(f"v_mul_u32_u24 v{RM}, 105, v{H_}")
    a.e(f"v_sub_u32 v{RM}, v{F}, v{RM}")
    a.e(f"v_mul_u32_u24 v{DD}, 13108, v{RM}")
    a.e(f"v_lshrrev_b32 v{DD}, 16, v{DD}")
    a.e(f"v_mul_u32_u24 v{E0}, 5, v{DD}")
    a.e(f"v_sub_u32 v{E0}, v{RM}, v{E0}")
    a.e(f"v_lshlrev_b32 v{E0}, 2, v{E0}")
    a.e(f"v_mul_u32_u24 v{H_}, 20, v{H_}")
    a.e(f"v_add_u32 v{AD}, v{H_}, v{E0}")
    a.e(f"v_mul_u32_u24 v{AD}, 192, v{AD}")
    a.e(f"v_add_u32 v40, v{H_}, v{DD}")
    a.e(f"v_lshl_add_u32 v{AD}, v40, 1, v{AD}")
    a.e(f"v_add_u32 v{AD}, {IMG}, v{AD}")
    a.e(f"v_mul_u32_u24 v43, 192, v{H_}")
    a.e(f"v_add_u32 v40, v{H_}, v{E0}")
    a.e(f"v_lshl_add_u32 v43, v40, 1, v43")
    a.e(f"v_add_u32 v43, {IMG+15360}, v43")
    a.e(f"v_cmp_gt_u32 vcc, 420, v{F}")
    a.e("s_mov_b64 s[56:57], vcc")
    a.e(f"v_cmp_gt_u32 s[52:53], 20, v{DD}")
    a.e(f"v_cmp_eq_u32 s[54:55], 20, v{DD}")
    a.e("s_and_b64 s[52:53], s[52:53], s[56:57]")
    a.e("s_and_b64 s[54:55], s[54:55], s[56:57]")
    a.e("s_waitcnt vmcnt(0)")
    a.e("v_cvt_pk_bf16_f32 v32, v64, v65")
    a.e("v_cvt_pk_bf16_f32 v33, v66, v67")
    for k in range(24):
        a.e(f"v_mov_b32 v{64+k}, v{68+k}")
    a.e("v_lshrrev_b32 v41, 16, v32")
    a.e("v_lshrrev_b32 v42, 16, v33")
    a.e("s_mov_b64 s[66:67], exec")
    a.e("s_mov_b64 exec, s[52:53]")
    a.e(f"ds_write_b16 v{AD}, v32")
    a.e(f"ds_write_b16 v{AD}, v41 offset:192")
    a.e(f"ds_write_b16 v{AD}, v33 offset:384")
    a.e(f"ds_write_b16 v{AD}, v42 offset:576")
    a.e("s_mov_b64 exec, s[54:55]")
    a.e("s_cbranch_execz fh_noz")
    for ee in range(20):
        a.e(f"ds_write_b64 v43, v[32:33] offset:{192*ee}")
    a.label("fh_noz")
    a.e("s_mov_b64 exec, s[66:67]")
    a.e(f"v_add_u32 v{F}, 64, v{F}")
    a.e("s_add_u32 s61, s61, 1")
    a.e("s_cmp_lt_u32 s61, 7")
    a.e("s_cbranch_scc1 fh_loop")
    a.e("s_waitcnt lgkmcnt(0)")
    a.label("fh_rest")
    a.e("s_cmp_ge_u32 s60, %d" % (BI_AFTER + 1) + "")
    a.e("s_cbranch_scc1 fh_bi")
    a.e("s_barrier")
    a.e("s_add_u32 s60, s60, 1")
    a.e("s_branch fh_rest")
    a.label("fh_bi")
    a.e("s_barrier")
    a.e("s_endpgm")


def repack_issue(a):
    a.e("s_min_u32 s53, s9, 2")
    a.e(f"s_mul_i32 s54, s{S_RB}, 3")
    a.e("s_add_u32 s54, s54, s53")
    a.e("s_min_u32 s54, s54, 87")
    a.e(f"s_mov_b32 s59, {hex(W2F_OFF)}")
    a.e("s_cmp_lt_u32 s54, 20")
    a.e(f"s_cselect_b32 s59, {hex(WQF_OFF)}, s59")
    a.e("s_cselect_b32 s60, 20, 68")
    a.e("s_cselect_b32 s61, 0, 20")
    a.e("s_sub_u32 s54, s54, s61")
    a.e(f"s_mul_i32 s60, s60, s{S_CB}")
    a.e("s_add_u32 s54, s54, s60")
    a.e("s_mul_i32 s54, s54, 5120")
    a.e("s_add_u32 s54, s54, s59")
    a.e("v_add_u32 v10, s54, v7")
    a.e("v_lshrrev_b32 v12, 2, v0")
    a.e("v_mul_u32_u24 v12, 192, v12")
    a.e("v_and_b32 v13, 3, v0")
    a.e("v_lshl_add_u32 v12, v13, 3, v12")
    a.e(f"s_and_b32 s60, s{S_CB}, 1")
    a.e("s_lshl_b32 s61, s60, 5")
    a.e("s_mul_i32 s59, s53, 6144")
    a.e("s_add_u32 s61, s61, s59")
    a.e(f"s_add_u32 s61, s61, {WBASE + 6*WS1}")
    a.e("v_add_u32 v12, s61, v12")
    a.e("v_and_b32 v13, 1, v3")
    a.e("v_lshlrev_b32 v13, 5, v13")
    a.e("s_cmp_eq_u32 s60, 0")
    a.e("s_cselect_b32 s61, 1, -1")
    a.e("v_mul_lo_u32 v13, v13, s61")
    a.e("v_add_u32 v8, v12, v13")
    a.e("v_sub_u32 v9, v12, v13")


def repack_reads(a):
    for t in range(5):
        for hf in range(2):
            a.lds(f"ds_read_b64_tr_b16 {vr(208+t*4+2*hf,2)}, v{8 + (t & 1)} offset:{16*hf*192 + t*32}", "RPR")


def repack_store(a):
    a.wait_lg("RPR")
    for t in range(4):
        a.vmem(f"buffer_store_dwordx4 {vr(208+4*t,4)}, v10, {s4(SRD_WS)}, 0 offen offset:{1024*t} sc1", "rst")
    a.e("v_add_u32 v10, 4096, v10")
    a.vmem(f"buffer_store_dwordx4 {vr(224,4)}, v10, {s4(SRD_WS)}, 0 offen sc1", "rst")
    a.nop(2)


def phi4(a, c, T, out0, out1):
    p0, p1 = T, T + 1
    f = T + 2
    ex = T + 6
    if FAITH:
        a.e(f"v_cvt_pk_bf16_f32 v{p0}, v{c}, v{c+1}")
        a.e(f"v_cvt_pk_bf16_f32 v{p1}, v{c+2}, v{c+3}")
        unpack(a, f, f + 1, p0)
        unpack(a, f + 2, f + 3, p1)
        src = f
    else:
        src = c
    a.e(f"v_pk_mul_f32 {vr(ex,2)}, {vr(src,2)}, s[60:61]")
    a.e(f"v_pk_mul_f32 {vr(ex+2,2)}, {vr(src+2,2)}, s[60:61]")
    for i in range(4):
        a.e(f"v_exp_f32 v{ex+i}, v{ex+i}")
    a.e(f"v_pk_add_f32 {vr(f,2)}, {vr(src,2)}, s[62:63]")
    a.e(f"v_pk_add_f32 {vr(f+2,2)}, {vr(src+2,2)}, s[62:63]")
    for i in range(4):
        a.e(f"v_med3_f32 v{f+i}, v{f+i}, v{ex+i}, 1.0")
    if FAITH:
        a.e(f"v_cvt_pk_bf16_f32 v{p0}, v{f}, v{f+1}")
        a.e(f"v_cvt_pk_bf16_f32 v{p1}, v{f+2}, v{f+3}")
        unpack(a, f, f + 1, p0)
        unpack(a, f + 2, f + 3, p1)
    a.e(f"v_pk_add_f32 {vr(f,2)}, {vr(f,2)}, s[64:65]")
    a.e(f"v_pk_add_f32 {vr(f+2,2)}, {vr(f+2,2)}, s[64:65]")
    a.e(f"v_cvt_pk_bf16_f32 v{out0}, v{f}, v{f+1}")
    a.e(f"v_cvt_pk_bf16_f32 v{out1}, v{f+2}, v{f+3}")


def phi_consts(a):
    a.e(f"s_mov_b32 s60, {LOG2E}")
    a.e(f"s_mov_b32 s61, {LOG2E}")
    a.e("s_mov_b32 s62, 1.0")
    a.e("s_mov_b32 s63, 1.0")
    a.e("s_mov_b32 s64, 0x358637bd")
    a.e("s_mov_b32 s65, 0x358637bd")


def loop_a_cons(a, nb, arows, wfrag, afrag, acc, reads, regs, swap, cinit=None, post_repack=None):
    def bump(c):
        pass

    make_srd(a, SRD_T, P_DBG, 256)
    a.e("v_mov_b32 v254, 32")
    a.e("s_barrier")
    a.stamp("a0")
    for t in range(nb):
        reads(0, t)
    for s in range(20):
        if os.environ.get("ASTAMP") and s in (2, 4, 6, 8, 10, 12, 14, 16, 18):
            a.stamp(f"a{s}")
        if s == 2:
            repack_reads(a)
        if s == 3:
            a.vmem(f"buffer_load_dword v255, v254, {s4(SRD_T)}, 0 offen sc1", "rst")
            repack_store(a)
            if post_repack:
                post_repack()
        if s + 1 < 20:
            if s == RWPUB:
                a.wait_vm("rst")
            a.e("s_barrier")
            bump(s + 1)
            if s == RWPUB:
                lab = f"fc_norp{swap}"
                a.e("s_cmp_lg_u32 s9, 0")
                a.e(f"s_cbranch_scc1 {lab}")
                lg = list(a.lg)
                vm = list(a.vm)
                a.e("v_readfirstlane_b32 s72, v255")
                a.e("s_cmp_ge_u32 s72, 1")
                a.e(f"s_cbranch_scc1 {lab}_p_done")
                make_srd(a, SRD_T, P_DBG, 256)
                poll(a, s4(SRD_T), 254, 1, lab + "_p", tmp=255)
                a.e(f"s_lshl_b32 s10, s{S_CB}, 7")
                a.e(f"s_add_u32 s10, s10, {hex(F_RW)}")
                flag_add(a, s4(SRD_WS), "s10", 254)
                a.label(lab)
                a.lg = lg
                a.vm = vm
        for t in range(nb):
            if s + 1 < 20:
                reads(s + 1, t)
            need = [("R", s, t)]
            if t == 0:
                need += [("A", s, r) for r in range(arows)]
            a.wait_lg(need)
            for rt in range(arows):
                d = acc(rt, t)
                cin = d if s else (cinit(t) if cinit else "0")
                if swap:
                    a.e(f"v_mfma_f32_16x16x32_bf16 {d}, {wfrag(s,t)}, {afrag(s,rt)}, {cin}")
                else:
                    a.e(f"v_mfma_f32_16x16x32_bf16 {d}, {afrag(s,rt)}, {wfrag(s,t)}, {cin}")


def prefetch_a(a):
    a.e("s_lshl_b32 s53, s4, 2")
    a.e("s_add_u32 s53, s53, s9")
    a.e("s_lshr_b32 s54, s3, 2")
    a.e(f"s_mul_i32 s54, s54, {1024*1280}")
    a.e(f"s_mul_i32 s55, s53, {80*128}")
    a.e("s_add_u32 s54, s54, s55")
    a.e("v_lshlrev_b32 v32, 7, v0")
    a.e(f"buffer_load_dword v250, v32, {s4(SRD_X)}, s54 offen")
    a.e("v_and_b32 v33, 15, v0")
    a.e("v_lshlrev_b32 v33, 7, v33")
    a.e("s_add_u32 s54, s54, 8192")
    a.e(f"buffer_load_dword v251, v33, {s4(SRD_X)}, s54 offen")
    a.e("s_and_b32 s56, s3, 3")
    make_srd(a, SRD_T, P_WQKV, 640 * 3840)
    a.e("v_min_u32 v32, 39, v0")
    a.e("v_lshrrev_b32 v33, 3, v32")
    a.e("s_mul_i32 s54, s53, 5")
    a.e("v_add_u32 v33, s54, v33")
    a.e("v_mul_u32_u24 v33, 3840, v33")
    a.e("v_bfe_u32 v34, v32, 2, 1")
    a.e("v_mul_u32_u24 v34, 1280, v34")
    a.e("v_add_u32 v33, v33, v34")
    a.e("v_and_b32 v34, 3, v32")
    a.e("v_mul_u32_u24 v34, 106, v34")
    a.e("v_and_b32 v34, 0xfffffffc, v34")
    a.e("v_add_u32 v33, v33, v34")
    a.e("s_mul_i32 s54, s56, 320")
    a.e("s_add_u32 s54, s54, 1280")
    a.e(f"buffer_load_dword v252, v33, {s4(SRD_T)}, s54 offen")
    make_srd(a, SRD_T, P_W1, 640 * 3072)
    a.e("v_min_u32 v32, 29, v0")
    a.e("v_mul_u32_u24 v33, 10923, v32")
    a.e("v_lshrrev_b32 v33, 16, v33")
    a.e("v_mul_u32_u24 v34, 6, v33")
    a.e("v_sub_u32 v34, v32, v34")
    a.e("s_mul_i32 s54, s53, 5")
    a.e("v_add_u32 v33, s54, v33")
    a.e("v_mul_u32_u24 v33, 3072, v33")
    a.e("v_lshl_add_u32 v33, v34, 7, v33")
    a.e("s_mul_i32 s54, s56, 768")
    a.e(f"buffer_load_dword v253, v33, {s4(SRD_T)}, s54 offen")


def kv_duties(a):
    a.e("s_add_u32 s10, s2, s9")
    a.e("s_cmp_lg_u32 s10, 0")
    a.e("s_cbranch_scc1 fp_noflag")
    make_srd(a, SRD_T, P_DBG, 256)
    a.e("v_lshlrev_b32 v24, 7, v0")
    a.e(f"v_add_u32 v24, {hex(FLAG_OFF)}, v24")
    a.e("v_mov_b32 v25, 0")
    for i in range(3):
        a.e(f"buffer_store_dword v25, v24, {s4(SRD_WS)}, 0 offen sc1")
        a.e("v_add_u32 v24, 8192, v24")
    a.e("s_waitcnt vmcnt(0)")
    a.e("s_mov_b32 s10, 32")
    flag_add(a, s4(SRD_T), "s10", 24)
    a.label("fp_noflag")

    a.e("s_cmp_lg_u32 s5, 0")
    a.e("s_cbranch_scc1 fp_nozero")
    make_srd(a, SRD_T, P_DBG, 256)
    a.e("s_lshl_b32 s10, s7, 13")
    a.e("s_lshl_b32 s11, s9, 11")
    a.e("s_add_u32 s10, s10, s11")
    a.e(f"s_add_u32 s10, s10, {hex(PART_OFF)}")
    a.e("v_lshl_add_u32 v24, v0, 4, s10")
    for i in range(4):
        a.e(f"v_mov_b32 v{28+i}, 0")
    a.e(f"buffer_store_dwordx4 v[28:31], v24, {s4(SRD_WS)}, 0 offen sc1")
    a.e(f"buffer_store_dwordx4 v[28:31], v24, {s4(SRD_WS)}, 0 offen offset:1024 sc1")
    a.e("s_waitcnt vmcnt(0)")
    a.e("s_lshl_b32 s10, s7, 2")
    flag_add(a, s4(SRD_T), "s10", 24)
    a.label("fp_nozero")


def gen_consumers(a):
    a.e("s_waitcnt lgkmcnt(0)")
    make_srd(a, SRD_X, P_X, 2048 * 1280)
    make_srd(a, SRD_WS, P_WS, WS_USED)
    if PFA:
        prefetch_a(a)
    repack_issue(a)
    a.e("v_lshrrev_b32 v14, 1, v2")
    a.e("v_xor_b32 v14, v14, v3")
    a.e("v_lshlrev_b32 v15, 7, v2")
    a.e("v_lshl_add_u32 v17, v14, 4, v15")
    a.e("s_cmp_ge_u32 s6, 2")
    a.e("s_cbranch_scc1 fc_h")
    vm0 = list(a.vm)
    kv_duties(a)
    a.e("v_lshrrev_b32 v19, 2, v0")
    a.e("v_mul_u32_u24 v19, 192, v19")
    a.e("v_and_b32 v20, 3, v0")
    a.e("v_lshl_add_u32 v19, v20, 3, v19")
    a.e("s_lshl_b32 s11, s8, 5")
    a.e(f"s_add_u32 s11, s11, {WBASE}")
    a.e("v_add_u32 v19, s11, v19")
    a.e("v_and_b32 v20, 1, v3")
    a.e("v_lshlrev_b32 v20, 5, v20")
    a.e("s_cmp_eq_u32 s8, 0")
    a.e("s_cselect_b32 s11, 1, -1")
    a.e("v_mul_lo_u32 v20, v20, s11")
    a.e("v_add_u32 v24, v19, v20")
    a.e("v_sub_u32 v25, v19, v20")
    a.e(f"v_add_u32 v18, {4*WS1}, v24")
    a.e(f"v_add_u32 v19, {4*WS1}, v25")
    a.e("s_lshl_b32 s14, s9, 12")
    a.e("v_add_u32 v26, s14, v17")
    a.e("v_xor_b32 v27, 64, v26")
    ACC, WB, AB = 32, 112, 192
    if PFA:
        a.e("s_waitcnt vmcnt(0)")
    a.e("s_lshl_b32 s12, s9, 6")
    a.e("v_add_u32 v16, s12, v0")
    a.e("s_lshl_b32 s12, s7, 13")
    a.e(f"s_add_u32 s12, s12, {hex(PART_OFF)}")
    for it in range(7):
        I, H_, RM, DD, E_, Dg, Eg, TI = [32 + k for k in range(8)]
        AD = 240 + it
        a.e(f"v_add_u32 v{I}, {256*it}, v16")
        a.e(f"v_mul_u32_u24 v{H_}, 1249, v{I}")
        a.e(f"v_lshrrev_b32 v{H_}, 19, v{H_}")
        a.e(f"v_mul_u32_u24 v{RM}, 420, v{H_}")
        a.e(f"v_sub_u32 v{RM}, v{I}, v{RM}")
        a.e(f"v_mul_u32_u24 v{DD}, 3277, v{RM}")
        a.e(f"v_lshrrev_b32 v{DD}, 16, v{DD}")
        a.e(f"v_mul_u32_u24 v{E_}, 20, v{DD}")
        a.e(f"v_sub_u32 v{E_}, v{RM}, v{E_}")
        a.e(f"v_mul_u32_u24 v{H_}, 20, v{H_}")
        a.e(f"v_cmp_eq_u32 vcc, 20, v{DD}")
        a.e(f"v_add_u32 v{Eg}, v{H_}, v{E_}")
        a.e(f"v_add_u32 v{Dg}, v{H_}, v{DD}")
        a.e(f"v_cndmask_b32 v{Dg}, v{Dg}, v{Eg}, vcc")
        a.e(f"v_lshrrev_b32 v{TI}, 4, v{Dg}")
        a.e(f"v_lshrrev_b32 v{AD}, 4, v{Eg}")
        a.e(f"v_lshl_add_u32 v{AD}, v{TI}, 1, v{AD}")
        a.e(f"v_add_u32 v{TI}, 13, v{TI}")
        a.e(f"v_cndmask_b32 v{TI}, v{AD}, v{TI}, vcc")
        a.e(f"v_and_b32 v{Eg}, 15, v{Eg}")
        a.e(f"v_cndmask_b32 v{Eg}, v{Eg}, 0, vcc")
        a.e(f"v_bfe_u32 v{AD}, v{Dg}, 2, 2")
        a.e(f"v_lshl_add_u32 v{AD}, v{AD}, 4, v{Eg}")
        a.e(f"v_lshlrev_b32 v{AD}, 4, v{AD}")
        a.e(f"v_lshl_add_u32 v{AD}, v{TI}, 10, v{AD}")
        a.e(f"v_and_b32 v{Dg}, 3, v{Dg}")
        a.e(f"v_lshl_add_u32 v{AD}, v{Dg}, 2, v{AD}")
        if it == 6:
            a.e(f"v_cmp_gt_u32 vcc, 1680, v{I}")
            a.e("s_nop 1")
            a.e(f"v_cndmask_b32 v{AD}, 0, v{AD}, vcc")
            a.e("s_mov_b64 s[50+28:51+28], vcc".replace("50+28:51+28", "78:79"))
        a.e(f"v_add_u32 v{AD}, {SCR}, v{AD}")
        a.e(f"v_lshl_add_u32 v{247+it}, v{I}, 2, s12")

    def reads_kv(s, t):
        if t < 2:
            a.lds(f"ds_read_b128 {vr(AB+((s&1)*2+t)*4,4)}, v{26+(s&1)} offset:{t*2048 + ((s//2)%4)*XS}", ("A", s, t))
        for hf in range(2):
            sl = s % NSL1
            off = (t // 5) * 6144 + 16 * hf * 192 + (t % 5) * 32 + (sl % 4) * WS1
            v = (24 if sl < 4 else 18) + ((t % 5) % 2)
            a.lds(f"ds_read_b64_tr_b16 {vr(WB+((s&1)*10+t)*4+2*hf,2)}, v{v} offset:{off}", ("R", s, t))

    loop_a_cons(a, 10, 2, lambda s, t: vr(WB + ((s & 1) * 10 + t) * 4, 4),
                lambda s, rt: vr(AB + ((s & 1) * 2 + rt) * 4, 4),
                lambda rt, t: vr(ACC + (t * 2 + rt) * 4, 4), reads_kv, [24, 25], False)
    a.stamp("aloop")
    a.e("s_barrier")
    phi_consts(a)
    a.nop(4)
    PK, T = 112, 152
    for t in range(5):
        for rt in range(2):
            c = ACC + (t * 2 + rt) * 4
            phi4(a, c, T + (12 if rt else 0), PK + t * 4 + rt * 2, PK + t * 4 + rt * 2 + 1)
    for t in range(5, 10):
        for rt in range(2):
            c = ACC + (t * 2 + rt) * 4
            a.e(f"v_cvt_pk_bf16_f32 v{PK+t*4+rt*2}, v{c}, v{c+1}")
            a.e(f"v_cvt_pk_bf16_f32 v{PK+t*4+rt*2+1}, v{c+2}, v{c+3}")
    ONES = 176
    for i in range(4):
        a.e(f"v_mov_b32 v{ONES+i}, 0x3f803f80")
    a.nop(2)
    D2 = 32
    pairs = [(i, j) for i in range(5) for j in range(5) if abs(i - j) <= 1]
    for (i, j) in pairs:
        a.e(f"v_mfma_f32_16x16x32_bf16 {vr(D2+(2*i+j)*4,4)}, {vr(PK+i*4,4)}, {vr(PK+(5+j)*4,4)}, 0")
    for i in range(5):
        a.e(f"v_mfma_f32_16x16x32_bf16 {vr(D2+(13+i)*4,4)}, {vr(PK+i*4,4)}, {vr(ONES,4)}, 0")
    a.e("s_mul_i32 s12, s9, 18432")
    a.e(f"s_add_u32 s12, s12, {SCR}")
    a.e("v_add_u32 v14, s12, v7")
    make_srd(a, SRD_T, P_DBG, 256)
    a.e("s_lshl_b32 s10, s7, 2")
    a.e("v_mov_b32 v20, s10")
    a.vmem(f"buffer_load_dword v22, v20, {s4(SRD_T)}, 0 offen sc1", "zp")
    a.nop(2)
    for k in range(18):
        a.lds(f"ds_write_b128 v14, {vr(D2+k*4,4)} offset:{k*1024}", "W")
    a.wait_lg_all()
    a.e("s_barrier")
    for it in range(7):
        b = 112 + it * 4
        for w in range(4):
            a.lds(f"ds_read_b32 v{b+w}, v{240+it} offset:{w*18432}", ("Q", it))
    a.wait_lg_all()
    a.e("s_barrier")
    a.wait_vm("zp")
    a.e("v_readfirstlane_b32 s72, v22")
    a.e("s_cmp_ge_u32 s72, 4")
    a.e("s_cbranch_scc1 fc_zp_done")
    poll(a, s4(SRD_T), 20, 4, "fc_zp")
    for it in range(7):
        b = 112 + it * 4
        a.e(f"v_add_f32 v{b}, v{b}, v{b+1}")
        a.e(f"v_add_f32 v{b+2}, v{b+2}, v{b+3}")
        a.e(f"v_add_f32 v{b}, v{b}, v{b+2}")
        if it == 6:
            a.e("s_mov_b64 exec, s[78:79]")
        a.vmem(f"buffer_atomic_add_f32 v{b}, v{247+it}, {s4(SRD_WS)}, 0 offen sc0 sc1", "st")
        if it == 6:
            a.e("s_mov_b64 exec, -1")
    a.e("s_lshl_b32 s71, s7, 7")
    a.e(f"s_add_u32 s71, s71, {hex(F_KV)}")
    a.e("s_branch fc_b")

    a.label("fc_h")
    a.vm = vm0
    a.lg = []
    a.nstamp = 1
    a.e("v_lshrrev_b32 v14, 5, v0")
    a.e("v_mul_u32_u24 v14, 3072, v14")
    a.e("v_bfe_u32 v15, v0, 2, 3")
    a.e("v_lshl_add_u32 v14, v15, 7, v14")
    a.e("v_and_b32 v16, 3, v0")
    a.e("v_lshl_add_u32 v14, v16, 3, v14")
    a.e(f"v_add_u32 v14, {WBASE}, v14")
    a.e("v_lshrrev_b32 v15, 1, v15")
    a.e("s_and_b32 s13, s9, 1")
    for t in range(6):
        a.e("s_mul_i32 s12, s13, 6")
        a.e(f"s_add_u32 s12, s12, {t}")
        a.e("s_and_b32 s11, s12, 3")
        a.e("s_lshr_b32 s12, s12, 2")
        a.e("s_lshl_b32 s12, s12, 10")
        a.e("v_xor_b32 v16, s11, v15")
        a.e(f"v_lshl_add_u32 v{20+t}, v16, 5, v14")
        a.e(f"v_add_u32 v{20+t}, s12, v{20+t}")
        a.e(f"v_add_u32 v{240+t}, {4*WS1}, v{20+t}")
    a.e("s_lshr_b32 s12, s9, 1")
    a.e("s_lshl_b32 s12, s12, 13")
    a.e("v_add_u32 v26, s12, v17")
    a.e("v_xor_b32 v27, 64, v26")
    ACCH, WBH, ABH = 32, 128, 176
    BB = 228

    def load_bias():
        make_srd(a, SRD_T, P_B1, 3072)
        a.e("s_mul_i32 s12, s7, 384")
        a.e("s_mul_i32 s11, s13, 192")
        a.e("s_add_u32 s12, s12, s11")
        a.e("v_lshl_add_u32 v28, v3, 3, s12")
        for t in range(6):
            a.vmem(f"buffer_load_dwordx2 {vr(BB+2*t,2)}, v28, {s4(SRD_T)}, 0 offen offset:{32*t}", "bias")

    def reads_h(s, t):
        if t < 4:
            a.lds(f"ds_read_b128 {vr(ABH+((s&1)*4+t)*4,4)}, v{26+(s&1)} offset:{t*2048 + ((s//2)%4)*XS}", ("A", s, t))
        for hf in range(2):
            sl = s % NSL1
            a.lds(f"ds_read_b64_tr_b16 {vr(WBH+((s&1)*6+t)*4+2*hf,2)}, v{(20 if sl < 4 else 240)+t} offset:{2*hf*3072 + (sl%4)*WS1}", ("R", s, t))

    loop_a_cons(a, 6, 4, lambda s, t: vr(WBH + ((s & 1) * 6 + t) * 4, 4),
                lambda s, rt: vr(ABH + ((s & 1) * 4 + rt) * 4, 4),
                lambda rt, t: vr(ACCH + (t * 4 + rt) * 4, 4), reads_h, [20, 21, 22, 23, 24, 25], True, None, load_bias)
    a.stamp("aloop")
    a.e("s_barrier")
    a.e("s_lshl_b32 s12, s5, 3")
    a.e("s_lshr_b32 s11, s9, 1")
    a.e("s_lshl_b32 s11, s11, 2")
    a.e("s_add_u32 s12, s12, s11")
    a.e(f"s_mul_i32 s12, s12, {ACT_RT}")
    a.e("s_mul_i32 s11, s7, 6")
    a.e("s_mul_i32 s10, s13, 3")
    a.e("s_add_u32 s11, s11, s10")
    a.e(f"s_add_u32 s11, s11, {20 + ACT_OFF // 1024}")
    a.e("s_lshl_b32 s11, s11, 10")
    a.e("s_add_u32 s12, s12, s11")
    a.e("v_lshrrev_b32 v14, 1, v3")
    a.e("v_lshl_add_u32 v14, v14, 4, v2")
    a.e("v_lshlrev_b32 v14, 4, v14")
    a.e("v_and_b32 v15, 1, v3")
    a.e("v_lshl_add_u32 v14, v15, 9, v14")
    for rt in range(4):
        a.e(f"v_add_u32 v{8+rt}, s12, v14")
        a.e(f"s_add_u32 s12, s12, {ACT_RT}")
    a.wait_vm("bias")
    T = 128
    for tp in range(3):
        if True:
            for h in range(2):
                t = 2 * tp + h
                unpack(a, T + 4 * h, T + 4 * h + 1, BB + 2 * t)
                unpack(a, T + 4 * h + 2, T + 4 * h + 3, BB + 2 * t + 1)
        for rt in range(4):
            O = T + 24 + ((tp * 4 + rt) % 4) * 4
            for h in range(2):
                t = 2 * tp + h
                c = ACCH + (t * 4 + rt) * 4
                p = T + 8 + h * 8
                f = p + 2
                bf = T + 4 * h
                o = O + 2 * h
                if FAITH_H:
                    a.e(f"v_cvt_pk_bf16_f32 v{p}, v{c}, v{c+1}")
                    a.e(f"v_cvt_pk_bf16_f32 v{p+1}, v{c+2}, v{c+3}")
                    unpack(a, f, f + 1, p)
                    unpack(a, f + 2, f + 3, p + 1)
                    a.e(f"v_pk_add_f32 {vr(f,2)}, {vr(f,2)}, {vr(bf,2)}")
                    a.e(f"v_pk_add_f32 {vr(f+2,2)}, {vr(f+2,2)}, {vr(bf+2,2)}")
                    a.e(f"v_cvt_pk_bf16_f32 v{p}, v{f}, v{f+1}")
                    a.e(f"v_cvt_pk_bf16_f32 v{p+1}, v{f+2}, v{f+3}")
                    a.e(f"v_pk_max_i16 v{p}, v{p}, 0")
                    a.e(f"v_pk_max_i16 v{p+1}, v{p+1}, 0")
                    unpack(a, f, f + 1, p)
                    unpack(a, f + 2, f + 3, p + 1)
                else:
                    a.e(f"v_pk_add_f32 {vr(f,2)}, {vr(c,2)}, {vr(bf,2)}")
                    a.e(f"v_pk_add_f32 {vr(f+2,2)}, {vr(c+2,2)}, {vr(bf+2,2)}")
                    for i in range(4):
                        a.e(f"v_max_f32 v{f+i}, 0, v{f+i}")
                a.e(f"v_pk_mul_f32 {vr(f,2)}, {vr(f,2)}, {vr(f,2)}")
                a.e(f"v_pk_mul_f32 {vr(f+2,2)}, {vr(f+2,2)}, {vr(f+2,2)}")
                a.e(f"v_cvt_pk_bf16_f32 v{o}, v{f}, v{f+1}")
                a.e(f"v_cvt_pk_bf16_f32 v{o+1}, v{f+2}, v{f+3}")
            a.nop(2)
            a.e(f"v_permlane16_swap_b32 v{O}, v{O+2}")
            a.e(f"v_permlane16_swap_b32 v{O+1}, v{O+3}")
            a.nop(1)
            a.vmem(f"buffer_store_dwordx4 {vr(O,4)}, v{8+rt}, {s4(SRD_WS)}, 0 offen offset:{tp*1024} sc1", "st")
    a.e("s_lshl_b32 s71, s5, 3")
    a.e("s_add_u32 s71, s71, s7")
    a.e("s_lshl_b32 s71, s71, 7")
    a.e(f"s_add_u32 s71, s71, {hex(F_H2)}")

    a.label("fc_b")
    a.vm = ["st"]
    a.lg = []
    a.nstamp = 11 if os.environ.get("ASTAMP") else 3
    a.stamp("aend")
    a.e(f"s_lshl_b32 s10, s{S_RB}, 2")
    a.e("s_add_u32 s10, s10, s9")
    a.e("s_lshl_b32 s11, s10, 4")
    a.e("v_add_u32 v4, s11, v2")
    a.e("v_lshlrev_b32 v6, 4, v3")
    a.e("s_lshl_b32 s12, s9, 10")
    a.e("s_add_u32 s12, s12, 10240")
    a.e("v_add_u32 v8, s12, v7")
    a.e("v_mov_b32 v9, v7")
    a.e("s_lshl_b32 s12, s9, 11")
    a.e("s_add_u32 s12, s12, 10240")
    a.e("v_add_u32 v10, s12, v17")
    a.e("v_xor_b32 v11, 64, v10")
    make_srd(a, SRD_X, P_B2, 1280)
    make_srd(a, 56, P_OUT, 2048 * 1280)
    a.e("s_mul_i32 s69, s73, 10")
    a.e("s_lshr_b32 s69, s69, 5")
    a.e("s_lshl_b32 s70, s69, 7")
    a.e(f"s_add_u32 s70, s70, {GWL}")
    a.e("v_add_u32 v6, s70, v6")
    ACC, WB, AB, GA, GF = 32, 64, 104, 56, 152
    ACA = 112
    B2 = 240
    a.e(f"v_mov_b32 v{GA}, 0")

    def reads(s, t):
        ks = s % 2
        if t == 0:
            if s < 20:
                a.lds(f"ds_read_b128 {vr(AB+(s&1)*4,4)}, v{10+ks}", ("A", s, 0))
                a.lds(f"ds_read_b128 {vr(GF+(s&1)*4,4)}, v6 offset:{ks*64}", ("A", s, 0))
            else:
                a.lds(f"ds_read_b128 {vr(AB+(s&1)*4,4)}, v8 offset:{ks*4096}", ("A", s, 0))
        a.lds(f"ds_read_b128 {vr(WB+((s&1)*5+t)*4,4)}, v9 offset:{ks*5120+t*1024}", ("R", s, t))

    def bump(c):
        d = SLOT2 if (c % NSL2) else -(NSL2 - 1) * SLOT2
        for r in ((8, 9, 10, 11) if c < 10 else (8, 9)):
            a.e(f"v_add_u32 v{r}, {d if d > 0 else hex(d & 0xffffffff)}, v{r}")
        if c < 10:
            a.e("s_add_u32 s69, s69, 1")
            a.e("s_cmp_ge_u32 s69, 10")
            a.e("s_cselect_b32 s70, -9, 1")
            a.e("s_cselect_b32 s69, 0, s69")
            a.e("s_lshl_b32 s70, s70, 7")
            a.e("v_add_u32 v6, s70, v6")

    def b_epilogue():
        a.stamp("bep")
        phi_consts(a)
        PQ, T = 152, 212
        for t in range(5):
            phi4(a, ACC + t * 4, T + (12 if t & 1 else 0), PQ + t * 2, PQ + t * 2 + 1)
        a.e(f"v_mov_b32 v{PQ+10}, 0")
        a.e(f"v_mov_b32 v{PQ+11}, 0")
        a.e("v_mul_u32_u24 v14, 192, v2")
        a.e("v_lshl_add_u32 v14, v3, 3, v14")
        a.e(f"v_add_u32 v14, {IMG}, v14")
        a.e(f"s_mul_i32 s12, s10, {ACT_RT}")
        a.e(f"s_mul_i32 s11, s{S_CB}, 2560")
        a.e("s_add_u32 s12, s12, s11")
        a.e(f"s_add_u32 s12, s12, {ACT_OFF}")
        a.e("v_lshrrev_b32 v15, 1, v3")
        a.e("v_lshl_add_u32 v15, v15, 4, v2")
        a.e("v_lshlrev_b32 v15, 4, v15")
        a.e("v_add_u32 v13, s12, v15")
        a.e("v_and_b32 v15, 1, v3")
        a.e("v_lshl_add_u32 v12, v15, 9, v13")
        a.e("s_barrier")
        us = {0: [0], 1: [0, 1], 2: [0, 1], 3: [1, 2], 4: [1, 2]}

        def fr(j):
            kf = 164 + (j & 1) * 16
            for im in range(2):
                for n, u in enumerate(us[j]):
                    b = kf + im * 8 + n * 4
                    off = im * 15360 + j * 16 * 192 + u * 64
                    a.lds(f"ds_read_b64 {vr(b,2)}, v14 offset:{off}", ("F", j))
                    a.lds(f"ds_read_b64 {vr(b+2,2)}, v14 offset:{off+32}", ("F", j))

        def mm(j):
            kf = 164 + (j & 1) * 16
            nd = 196 + (j & 1) * 8
            a.wait_lg(("F", j))
            for im in range(2):
                for n, u in enumerate(us[j]):
                    d = vr(nd + im * 4, 4)
                    a.e(f"v_mfma_f32_16x16x32_bf16 {d}, {vr(kf+im*8+n*4,4)}, {vr(PQ+u*4,4)}, {d if n else '0'}")

        fr(0)
        fr(1)
        mm(0)
        for j in range(5):
            if j + 1 < 5:
                mm(j + 1)
            else:
                a.nop(8)
            if j + 2 < 5:
                fr(j + 2)
            if j == 0:
                a.nop(4)
            n_ = 196 + (j & 1) * 8
            d_ = n_ + 4
            p = T
            f = T + 4
            g = T + 8
            if FAITH:
                a.e(f"v_cvt_pk_bf16_f32 v{p}, v{n_}, v{n_+1}")
                a.e(f"v_cvt_pk_bf16_f32 v{p+1}, v{n_+2}, v{n_+3}")
                a.e(f"v_cvt_pk_bf16_f32 v{p+2}, v{d_}, v{d_+1}")
                a.e(f"v_cvt_pk_bf16_f32 v{p+3}, v{d_+2}, v{d_+3}")
                unpack(a, f, f + 1, p)
                unpack(a, f + 2, f + 3, p + 1)
                unpack(a, g, g + 1, p + 2)
                unpack(a, g + 2, g + 3, p + 3)
                a.e(f"v_pk_add_f32 {vr(g,2)}, {vr(g,2)}, s[64:65]")
                a.e(f"v_pk_add_f32 {vr(g+2,2)}, {vr(g+2,2)}, s[64:65]")
                a.e(f"v_cvt_pk_bf16_f32 v{p+2}, v{g}, v{g+1}")
                a.e(f"v_cvt_pk_bf16_f32 v{p+3}, v{g+2}, v{g+3}")
                unpack(a, g, g + 1, p + 2)
                unpack(a, g + 2, g + 3, p + 3)
            else:
                a.e(f"v_pk_add_f32 {vr(g,2)}, {vr(d_,2)}, s[64:65]")
                a.e(f"v_pk_add_f32 {vr(g+2,2)}, {vr(d_+2,2)}, s[64:65]")
                for i in range(4):
                    a.e(f"v_mov_b32 v{f+i}, v{n_+i}")
            for i in range(4):
                a.e(f"v_rcp_f32 v{g+4+i}, v{g+i}")
            a.e("s_nop 0")
            a.e(f"v_pk_mul_f32 {vr(g+8,2)}, {vr(f,2)}, {vr(g+4,2)}")
            a.e(f"v_pk_mul_f32 {vr(g+10,2)}, {vr(f+2,2)}, {vr(g+6,2)}")
            if FAITH:
                for i in range(4):
                    a.e(f"v_fma_f32 v{f+i}, -v{g+i}, v{g+8+i}, v{f+i}")
                for i in range(4):
                    a.e(f"v_fma_f32 v{g+8+i}, v{f+i}, v{g+4+i}, v{g+8+i}")
            O = T + 24 + (j // 2) * 4
            if j < 4:
                o = O + (j & 1) * 2
                a.e(f"v_cvt_pk_bf16_f32 v{o}, v{g+8}, v{g+9}")
                a.e(f"v_cvt_pk_bf16_f32 v{o+1}, v{g+10}, v{g+11}")
            else:
                a.e(f"v_cvt_pk_bf16_f32 v{O}, v{g+8}, v{g+9}")
                a.e(f"v_cvt_pk_bf16_f32 v{O+1}, v{g+10}, v{g+11}")
                a.e(f"v_mov_b32 v{O+2}, v{O}")
                a.e(f"v_mov_b32 v{O+3}, v{O+1}")
            if j & 1 or j == 4:
                a.nop(2)
                a.e(f"v_permlane16_swap_b32 v{O}, v{O+2}")
                a.e(f"v_permlane16_swap_b32 v{O+1}, v{O+3}")
                a.nop(1)
                a.vmem(f"buffer_store_dwordx4 {vr(O,4)}, v{12 if j < 4 else 13}, {s4(SRD_WS)}, 0 offen offset:{512*(j & ~1)} sc1", "st")
        a.e(f"v_mov_b32 v{GA}, v52")
        a.e(f"v_cvt_pk_bf16_f32 v{GA}, v{GA}, v{GA}")
        a.e(f"v_lshlrev_b32 v{GA}, 16, v{GA}")
        a.e(f"v_mul_f32 v{GA}, 0xbfb8aa3b, v{GA}")
        a.e(f"v_exp_f32 v{GA}, v{GA}")
        a.e("s_nop 0")
        a.e(f"v_add_f32 v{GA}, 1.0, v{GA}")
        a.e(f"v_rcp_f32 v{GA}, v{GA}")
        a.e("s_nop 0")
        a.e(f"v_cvt_pk_bf16_f32 v{GA}, v{GA}, v{GA}")
        a.e(f"v_lshlrev_b32 v{GA}, 16, v{GA}")
        a.e(f"v_sub_f32 v57, 1.0, v{GA}")
        a.e("v_cvt_pk_bf16_f32 v57, v57, v57")
        a.e("v_lshlrev_b32 v57, 16, v57")
        a.e(f"s_lshl_b32 s71, s{S_RB}, 7")
        a.e(f"s_add_u32 s71, s71, {hex(F_O)}")
        a.e("s_mov_b32 s77, 0")
        a.stamp("bep_end")

    a.e("s_mov_b32 s77, 0")
    a.e("s_barrier")
    a.stamp("b0")
    for t in range(5):
        reads(0, t)
    NK = 88
    for s in range(NK):
        if s in (20, 68):
            a.stamp(f"s{s}")
        if s == 70:
            a.e(f"s_mul_i32 s12, s{S_CB}, 160")
            a.e("v_lshl_add_u32 v28, v3, 3, s12")
            for t in range(5):
                a.vmem(f"buffer_load_dwordx2 {vr(B2+2*t,2)}, v28, {s4(SRD_X)}, 0 offen offset:{32*t}", "b2")
        if s + 1 < NK and (s + 1) % 2 == 0:
            c = (s + 1) // 2
            a.e("s_barrier")
            bump(c)
            win = None
            if 1 <= c <= PUBA_DL:
                win = (c == PUBA_DL)
            if BI_AFTER + 1 <= c <= BI_AFTER + PUBO_DL:
                win = (c == BI_AFTER + PUBO_DL)
            if win is not None:
                lab = f"fc_pub{c}"
                a.e("s_cmp_lg_u32 s77, 0")
                a.e(f"s_cbranch_scc1 {lab}")
                if win:
                    a.e("s_waitcnt vmcnt(0)")
                else:
                    a.e("s_getreg_b32 s72, hwreg(HW_REG_IB_STS)")
                    a.e("s_and_b32 s72, s72, 0xc0000f")
                    a.e(f"s_cbranch_scc1 {lab}")
                flag_add(a, s4(SRD_WS), "s71", 58)
                a.e("s_mov_b32 s77, 1")
                a.label(lab)
            if c == BI_AFTER:
                b_epilogue()
        for t in range(5):
            if s + 1 < NK:
                reads(s + 1, t)
            need = [("R", s, t)]
            if t == 0:
                need.append(("A", s, 0))
            a.wait_lg(need)
            if s < 20:
                d = vr(ACC + t * 4, 4)
            else:
                d = vr(ACA + (20 if s < 68 else 0) + t * 4, 4)
            cin = "0" if s in (0, 20, 68) else d
            a.e(f"v_mfma_f32_16x16x32_bf16 {d}, {vr(WB+((s&1)*5+t)*4,4)}, {vr(AB+(s&1)*4,4)}, {cin}")
            if s < 20 and t == 2:
                a.e(f"v_mfma_f32_16x16x32_bf16 v[52:55], {vr(GF+(s&1)*4,4)}, {vr(AB+(s&1)*4,4)}, {'0' if s == 0 else 'v[52:55]'}")
    a.stamp("cloop")
    a.e("v_mul_u32_u24 v5, 1280, v4")
    a.e("v_lshl_add_u32 v5, v3, 3, v5")
    a.e(f"s_mul_i32 s12, s{S_CB}, 160")
    a.e("v_add_u32 v5, s12, v5")
    a.wait_vm_all()
    a.nop(6)
    T = 160
    for t in range(5):
        ca = ACA + t * 4
        cb = ACA + 20 + t * 4
        p = T
        fa = T + 4
        fb = T + 8
        bb = T + 12
        a.e(f"v_cvt_pk_bf16_f32 v{p}, v{ca}, v{ca+1}")
        a.e(f"v_cvt_pk_bf16_f32 v{p+1}, v{ca+2}, v{ca+3}")
        a.e(f"v_cvt_pk_bf16_f32 v{p+2}, v{cb}, v{cb+1}")
        a.e(f"v_cvt_pk_bf16_f32 v{p+3}, v{cb+2}, v{cb+3}")
        unpack(a, fa, fa + 1, p)
        unpack(a, fa + 2, fa + 3, p + 1)
        unpack(a, fb, fb + 1, p + 2)
        unpack(a, fb + 2, fb + 3, p + 3)
        unpack(a, bb, bb + 1, B2 + 2 * t)
        unpack(a, bb + 2, bb + 3, B2 + 2 * t + 1)
        a.e(f"v_pk_add_f32 {vr(fb,2)}, {vr(fb,2)}, {vr(bb,2)}")
        a.e(f"v_pk_add_f32 {vr(fb+2,2)}, {vr(fb+2,2)}, {vr(bb+2,2)}")
        for i in range(4):
            a.e(f"v_mul_f32 v{fa+i}, v{GA}, v{fa+i}")
        a.e(f"v_cvt_pk_bf16_f32 v{p+2}, v{fb}, v{fb+1}")
        a.e(f"v_cvt_pk_bf16_f32 v{p+3}, v{fb+2}, v{fb+3}")
        a.e(f"v_cvt_pk_bf16_f32 v{p}, v{fa}, v{fa+1}")
        a.e(f"v_cvt_pk_bf16_f32 v{p+1}, v{fa+2}, v{fa+3}")
        unpack(a, fb, fb + 1, p + 2)
        unpack(a, fb + 2, fb + 3, p + 3)
        unpack(a, fa, fa + 1, p)
        unpack(a, fa + 2, fa + 3, p + 1)
        for i in range(4):
            a.e(f"v_mul_f32 v{fb+i}, v57, v{fb+i}")
        a.e(f"v_cvt_pk_bf16_f32 v{p+2}, v{fb}, v{fb+1}")
        a.e(f"v_cvt_pk_bf16_f32 v{p+3}, v{fb+2}, v{fb+3}")
        unpack(a, fb, fb + 1, p + 2)
        unpack(a, fb + 2, fb + 3, p + 3)
        a.e(f"v_pk_add_f32 {vr(fa,2)}, {vr(fa,2)}, {vr(fb,2)}")
        a.e(f"v_pk_add_f32 {vr(fa+2,2)}, {vr(fa+2,2)}, {vr(fb+2,2)}")
        o = T + 20 + t * 2
        a.e(f"v_cvt_pk_bf16_f32 v{o}, v{fa}, v{fa+1}")
        a.e(f"v_cvt_pk_bf16_f32 v{o+1}, v{fa+2}, v{fa+3}")
        a.vmem(f"buffer_store_dwordx2 {vr(o,2)}, v5, s[56:59], 0 offen offset:{32*t}", "st")
    a.stamp("end")
    a.dump_stamps()


HEADER = """; Kernarg layout for this problem (96 bytes, ptrs only, base s[0:1]):
;   0 A_x  8 A_wqkv  16 A_wo  24 B_x  32 B_w1  40 B_b1  48 B_w2  56 B_b2  64 gate_w  72 d_out  80 d_debug  88 d_ws
; @launch kernel=fused_kernel grid=(256,1,1) block=(512,1,1) lds=163840
.amdgcn_target "amdgcn-amd-amdhsa--gfx950"
.text
"""


def main():
    a = Asm()
    a.kid = 1
    gen(a)
    nm = "fused_kernel"
    out = HEADER + f".globl {nm}\n.p2align 8\n.type {nm},@function\n" + "\n".join(a.lines) + "\n"
    out += '.section .rodata,"a"\n.p2align 6\n' + kd(nm, 256, 256)
    path = sys.argv[1] if len(sys.argv) > 1 else f"cdna_kernels/{NAME}.s"
    open(path, "w").write(out)


if __name__ == "__main__":
    main()
```

```python
import sys
import os
sys.path.insert(0, os.path.dirname(os.path.abspath(__file__)))
from gen import (Asm, vr, ar, make_srd, prologue_kernargs, kperm_vgpr, unpack, LOG2E, NAME, kd,
                 P_X, P_WQKV, P_WO, P_BX, P_W1, P_B1, P_W2, P_B2, P_GW, P_OUT, P_DBG, P_WS,
                 ACT_RT, PART_OFF, XF_OFF, WQF_OFF, W2F_OFF, FLAG_OFF, WS_USED)

FAITH = int(os.environ.get("FAITH", "1"))
FAITH_H = int(os.environ.get("FAITH_H", str(FAITH)))
INITD = int(os.environ.get("INITD", "0"))
CPF = int(os.environ.get("CPF", "1"))
RWPUB = int(os.environ.get("RWPUB", "7"))
PFE = int(os.environ.get("PFE", "0"))
PFA = int(os.environ.get("PFA", "0"))
PFW = int(os.environ.get("PFW", "0"))
NOSC1 = int(os.environ.get("NOSC1", "0"))
ROT = int(os.environ.get("ROT", "0"))
PUBA_DL = int(os.environ.get("PUBA_DL", "5"))
PUBO_DL = int(os.environ.get("PUBO_DL", "8"))
NOREPACK = int(os.environ.get("NOREPACK", "0"))
RP_ISSUE = int(os.environ.get("RP_ISSUE", "-1"))
RP_STORE = int(os.environ.get("RP_STORE", "2"))

ACT_OFF = 4096
BI_AFTER = int(os.environ.get("BI_AFTER", "19"))
SLOT1 = 20480
NSL1 = 8
SLOT2 = 18432
NSL2 = 7
IMG = NSL2 * SLOT2
GWL = IMG + 30720
SCR = 90112
F_RW = FLAG_OFF
F_KV = FLAG_OFF + 128 * 8
F_H = FLAG_OFF + 128 * 16
F_O = FLAG_OFF + 128 * 32
F_H2 = FLAG_OFF + 128 * 64

S_XCD, S_J, S_RBA, S_CBA, S_COLA, S_PAR, S_W = 3, 4, 5, 6, 7, 8, 9
S_RB, S_CB = 74, 75
SRD_X, SRD_W, SRD_WS, SRD_T = 40, 44, 48, 64


def s4(b):
    return f"s[{b}:{b+3}]"


def poll(a, srd, voff, target, lab, tmp=21, sleep=4):
    a.label(lab)
    a.e(f"buffer_load_dword v{tmp}, v{voff}, {srd}, 0 offen sc1")
    a.e("s_waitcnt vmcnt(0)")
    a.vm = []
    a.e(f"v_readfirstlane_b32 s72, v{tmp}")
    a.e(f"s_cmp_ge_u32 s72, {target}")
    a.e(f"s_cbranch_scc1 {lab}_done")
    a.e(f"s_sleep {sleep}")
    a.e(f"s_branch {lab}")
    a.label(lab + "_done")


def flag_add(a, srd, saddr, v0t=58):
    a.e(f"v_mov_b32 v{v0t}, {saddr}")
    a.e(f"v_mov_b32 v{v0t+1}, 1")
    a.e("s_mov_b64 exec, 1")
    a.e(f"buffer_atomic_add v{v0t+1}, v{v0t}, {srd}, 0 offen sc1")
    a.e("s_mov_b64 exec, -1")


def gen(a):
    a.label("fused_kernel")
    a.e("s_cmp_ge_u32 s2, 256")
    a.e("s_cbranch_scc1 f_exit")
    a.stamp("start")
    prologue_kernargs(a)
    a.e("s_and_b32 s3, s2, 7")
    a.e("s_lshr_b32 s4, s2, 3")
    a.e("s_lshr_b32 s5, s3, 2")
    a.e("s_lshl_b32 s5, s5, 3")
    a.e("s_and_b32 s6, s4, 7")
    a.e("s_add_u32 s5, s5, s6")
    a.e("s_lshr_b32 s6, s4, 3")
    a.e("s_and_b32 s7, s3, 3")
    a.e("s_lshl_b32 s7, s7, 1")
    a.e("s_and_b32 s8, s6, 1")
    a.e("s_add_u32 s7, s7, s8")
    a.e("s_and_b32 s8, s7, 1")
    a.e(f"s_lshr_b32 s{S_RB}, s3, 1")
    a.e(f"s_lshl_b32 s{S_RB}, s{S_RB}, 3")
    a.e("s_and_b32 s10, s4, 7")
    a.e(f"s_add_u32 s{S_RB}, s{S_RB}, s10")
    a.e(f"s_and_b32 s{S_CB}, s3, 1")
    a.e(f"s_lshl_b32 s{S_CB}, s{S_CB}, 2")
    a.e(f"s_add_u32 s{S_CB}, s{S_CB}, s6")
    a.e("v_lshrrev_b32 v1, 6, v0")
    a.e("v_and_b32 v0, 63, v0")
    a.e("s_nop 0")
    a.e("v_readfirstlane_b32 s9, v1")
    a.e("v_and_b32 v2, 15, v0")
    a.e("v_lshrrev_b32 v3, 4, v0")
    a.e("v_lshlrev_b32 v7, 4, v0")
    a.e(f"s_and_b32 s73, s{S_RB}, 7")
    a.e("s_lshl_b32 s73, s73, 2")
    a.e(f"s_and_b32 s10, s{S_CB}, 3")
    a.e("s_add_u32 s73, s73, s10")
    if ROT == 1:
        a.e("s_mov_b32 s73, 0")
    if ROT == 2:
        a.e("s_and_b32 s73, s73, 0x18")
    if ROT == 3:
        a.e(f"s_and_b32 s73, s{S_CB}, 3")
        a.e("s_lshl_b32 s73, s73, 3")
    a.e("s_cmp_ge_u32 s9, 4")
    a.e("s_cbranch_scc0 f_cons")
    gen_producers(a)
    a.label("f_cons")
    a.vm = []
    a.lg = []
    gen_consumers(a)
    a.label("f_exit")
    a.e("s_endpgm")
    a.label("f_code_end")


XS = 16384
WS1 = 12288
WBASE = 65536


def gen_producers(a):
    a.e("s_sub_u32 s9, s9, 4")
    a.e("s_lshl_b32 s10, s5, 7")
    a.e("s_lshl_b32 s11, s9, 5")
    a.e("s_add_u32 s10, s10, s11")
    a.e("v_lshrrev_b32 v14, 3, v0")
    a.e("v_add_u32 v15, s10, v14")
    a.e("v_mul_u32_u24 v15, 1280, v15")
    a.e("v_lshrrev_b32 v14, 1, v14")
    a.e("v_and_b32 v16, 7, v0")
    a.e("v_xor_b32 v16, v16, v14")
    a.e("v_lshl_add_u32 v44, v16, 4, v15")
    a.e("v_xor_b32 v16, 4, v16")
    a.e("v_lshl_add_u32 v45, v16, 4, v15")
    a.e(f"v_add_u32 v45, {8*1280 - 1024}, v45")
    a.e(f"v_add_u32 v46, {16*1280 - 2048}, v44")
    a.e(f"v_add_u32 v47, {16*1280 - 2048}, v45")
    a.e("s_lshl_b32 s14, s9, 12")
    a.e("s_mul_i32 s15, s9, 3072")
    a.e(f"s_add_u32 s15, s15, {WBASE}")
    a.e("s_and_b32 s68, s5, 7")
    a.e("s_mul_i32 s69, s6, 3")
    a.e("s_add_u32 s68, s68, s69")
    a.e("s_add_u32 s68, s68, s3")
    for _ in range(2):
        a.e("s_cmp_ge_u32 s68, 10")
        a.e("s_cselect_b32 s69, 10, 0")
        a.e("s_sub_u32 s68, s68, s69")
    a.e("s_mov_b32 s70, s68")
    a.e("s_lshl_b32 s68, s68, 1")
    def dma_x(J):
        a.e("s_lshl_b32 s52, s70, 7")
        a.e(f"s_add_u32 m0, s14, {(J % 4)*XS}")
        a.e("s_add_u32 s70, s70, 1")
        for n in range(4):
            a.vmem(f"buffer_load_dwordx4 v{44+n}, {s4(SRD_X)}, s52 offen offset:{1024*n} lds", f"dx{J}")
        a.e("s_cmp_ge_u32 s70, 10")
        a.e("s_cselect_b32 s70, 0, s70")

    def adv_k():
        a.e("s_add_u32 s68, s68, 1")
        a.e("s_cmp_ge_u32 s68, 20")
        a.e("s_cselect_b32 s68, 0, s68")

    def repack_dma(tag):
        a.e("s_min_u32 s53, s9, 2")
        a.e(f"s_mul_i32 s54, s{S_RB}, 3")
        a.e("s_add_u32 s54, s54, s53")
        a.e("s_min_u32 s54, s54, 87")
        a.e("s_movk_i32 s57, 1280")
        a.e(f"s_mov_b32 s66, {hex(640*1280)}")
        a.e("s_cmp_lt_u32 s54, 20")
        a.e(f"s_cselect_b32 s64, s{P_WQKV}, s{P_WO}")
        a.e(f"s_cselect_b32 s65, s{P_WQKV+1}, s{P_WO+1}")
        a.e("s_cselect_b32 s57, 3840, s57")
        a.e("s_cselect_b32 s58, 0, 20")
        a.e(f"s_cselect_b32 s66, {hex(640*3840)}, s66")
        a.e("s_cmp_lt_u32 s54, 40")
        a.e(f"s_cselect_b32 s64, s64, s{P_W2}")
        a.e(f"s_cselect_b32 s65, s65, s{P_W2+1}")
        a.e("s_cselect_b32 s58, s58, 40")
        a.e(f"s_cselect_b32 s66, s66, {hex(1536*1280)}")
        a.e("s_and_b32 s65, s65, 0xffff")
        a.e("s_mov_b32 s67, 0x00020000")
        a.e("s_sub_u32 s58, s54, s58")
        a.e("s_lshl_b32 s58, s58, 5")
        a.e("s_mul_i32 s58, s58, s57")
        a.e(f"s_mul_i32 s59, s{S_CB}, 160")
        a.e(f"s_and_b32 s60, s{S_CB}, 1")
        a.e("s_lshl_b32 s60, s60, 5")
        a.e("s_sub_u32 s59, s59, s60")
        a.e("s_add_u32 s58, s58, s59")
        a.e("s_mul_i32 s59, s53, 6144")
        a.e(f"s_add_u32 s59, s59, {WBASE + 6*WS1}")
        for n in range(6):
            a.e(f"v_add_u32 v19, {64*n}, v0")
            a.e("v_mul_u32_u24 v20, 5462, v19")
            a.e("v_lshrrev_b32 v20, 16, v20")
            a.e("v_mul_u32_u24 v21, 12, v20")
            a.e("v_sub_u32 v19, v19, v21")
            a.e("v_bfe_u32 v21, v20, 2, 1")
            a.e("v_lshlrev_b32 v21, 1, v21")
            a.e("v_xor_b32 v19, v19, v21")
            kperm_vgpr(a, 21, 20, 22, 23)
            a.e("v_mul_lo_u32 v21, v21, s57")
            a.e("v_lshl_add_u32 v19, v19, 4, v21")
            a.e(f"s_add_u32 m0, s59, {n*1024}")
            a.e("s_nop 0")
            a.vmem("buffer_load_dwordx4 v19, s[64:67], s58 offen lds", "RP")

    def loop_a(dma_w, tag):
        wi, xi = 0, 0

        def issue_w():
            nonlocal wi, xi
            dma_w(wi)
            wi += 1

        dma_x(0); xi = 1
        issue_w(); issue_w()
        dma_x(1); xi = 2
        issue_w()
        if INITD >= 1:
            issue_w()
        for c in range(20):
            assert xi > c // 2 and wi > c
            if c == 2:
                a.e("s_waitcnt vmcnt(%d)" % (len(a.vm) - 1 - max(i for i, t in enumerate(a.vm) if t == "RP")))
                a.vm = a.vm[max(i for i, t in enumerate(a.vm) if t == "RP") + 1:]
            a.wait_vm([f"dma{c}", f"dx{c//2}"])
            a.e("s_barrier")
            if c == 0:
                repack_dma(tag)
            k = 0
            while k < 2:
                did = False
                if xi < 10 and (xi < 4 or c >= 2 * xi - 5) and 2 * xi <= wi + 1:
                    dma_x(xi)
                    xi += 1
                    did = True
                if wi < min(20, c + NSL1 - 1) and (wi < 6 or c >= 4):
                    issue_w()
                    did = True
                k += 1
                if not did:
                    break
            if c == 9:
                a.e(f"s_lshl_b32 s10, s{S_CB}, 7")
                a.e(f"s_add_u32 s10, s10, {hex(F_RW)}")
                a.e("v_mov_b32 v40, s10")
                a.e("s_mov_b32 s77, 0")
            if PFE and c in (11, 14):
                a.vmem(f"buffer_load_dword v43, v40, {s4(SRD_WS)}, 0 offen sc1", f"pe{c}")
            if PFE and c in (13, 16):
                lab = f"fp_pf{tag}{c}"
                a.wait_vm(f"pe{c-2}")
                a.e("v_readfirstlane_b32 s72, v43")
                a.e("s_cmp_lt_u32 s72, 32")
                a.e(f"s_cbranch_scc1 {lab}")
                a.e("s_cmp_lg_u32 s77, 0")
                a.e(f"s_cbranch_scc1 {lab}")
                a.e("s_mov_b32 s77, 1")
                a.e(f"s_and_b32 s10, s{S_RB}, 7")
                a.e("s_lshl_b32 s10, s10, 2")
                a.e("s_add_u32 s10, s10, s9")
                a.e("v_lshlrev_b32 v50, 7, v0")
                a.e(f"s_mul_i32 s11, s{S_CB}, {68*5120}")
                a.e(f"s_mul_i32 s12, s10, {68*5120//32}")
                a.e("s_add_u32 s11, s11, s12")
                a.e(f"s_add_u32 s11, s11, {hex(W2F_OFF)}")
                a.e(f"buffer_load_dword v52, v50, {s4(SRD_WS)}, s11 offen")
                a.e(f"s_add_u32 s11, s11, {10880 - 8192}")
                a.e(f"buffer_load_dword v53, v50, {s4(SRD_WS)}, s11 offen")
                a.e("v_min_u32 v51, 24, v0")
                a.e("v_lshlrev_b32 v51, 7, v51")
                a.e(f"s_mul_i32 s11, s{S_CB}, 102400")
                a.e("s_mul_i32 s12, s10, 3200")
                a.e("s_add_u32 s11, s11, s12")
                a.e(f"s_add_u32 s11, s11, {hex(WQF_OFF)}")
                a.e(f"buffer_load_dword v54, v51, {s4(SRD_WS)}, s11 offen")
                a.label(lab)
            if c == 18:
                a.vmem(f"buffer_load_dword v42, v40, {s4(SRD_WS)}, 0 offen sc1", "pp0")
        assert wi == 20 and xi == 10
        if tag == "kv":
            a.e("s_branch fp_tail")

    a.e("s_cmp_ge_u32 s6, 2")
    a.e("s_cbranch_scc1 fp_h")
    a.e("s_and_b32 s12, s9, 1")
    a.e("s_mul_i32 s12, s12, 192")
    a.e("s_lshr_b32 s13, s9, 1")
    a.e("s_mul_i32 s10, s7, 160")
    a.e("s_lshl_b32 s11, s8, 5")
    a.e("s_sub_u32 s10, s10, s11")
    a.e("s_mul_i32 s11, s13, 1280")
    a.e("s_add_u32 s10, s10, s11")
    a.e("s_add_u32 s10, s10, 1280")
    for n in range(3):
        d = 8 + n
        a.e("v_add_u32 v19, s12, v0")
        if n:
            a.e(f"v_add_u32 v19, {64*n}, v19")
        a.e("v_mul_u32_u24 v20, 5462, v19")
        a.e("v_lshrrev_b32 v20, 16, v20")
        a.e("v_mul_u32_u24 v21, 12, v20")
        a.e("v_sub_u32 v19, v19, v21")
        a.e("v_bfe_u32 v21, v20, 2, 1")
        a.e("v_lshlrev_b32 v21, 1, v21")
        a.e("v_xor_b32 v19, v19, v21")
        kperm_vgpr(a, 21, 20, 22, 23)
        a.e("v_mul_u32_u24 v21, 3840, v21")
        a.e(f"v_lshl_add_u32 v{d}, v19, 4, v21")
        a.e(f"v_add_u32 v{d}, s10, v{d}")
        if n:
            a.e(f"v_subrev_u32 v{d}, {1024*n}, v{d}")
    a.e("s_waitcnt lgkmcnt(0)")
    make_srd(a, SRD_X, P_X, 2048 * 1280)
    make_srd(a, SRD_WS, P_WS, WS_USED)
    make_srd(a, SRD_W, P_WQKV, 640 * 3840)

    def dma_kv(c):
        a.e(f"s_mul_i32 s52, s68, {32*3840}")
        a.e(f"s_add_u32 m0, s15, {(c % NSL1)*WS1}")
        adv_k()
        for n in range(3):
            a.vmem(f"buffer_load_dwordx4 v{8+n}, {s4(SRD_W)}, s52 offen offset:{1024*n} lds", f"dma{c}")

    loop_a(dma_kv, "kv")
    vm_after = list(a.vm)
    a.label("fp_h")
    a.vm = []
    a.e("v_lshrrev_b32 v14, 3, v0")
    a.e("v_and_b32 v15, 3, v14")
    a.e("v_lshrrev_b32 v16, 2, v14")
    a.e("v_lshl_add_u32 v15, v16, 3, v15")
    a.e("v_mul_u32_u24 v8, 3072, v15")
    a.e("v_bfe_u32 v15, v0, 1, 2")
    a.e("v_lshrrev_b32 v16, 1, v14")
    a.e("v_xor_b32 v15, v15, v16")
    a.e("v_lshl_add_u32 v8, v15, 5, v8")
    a.e("v_and_b32 v15, 1, v0")
    a.e("v_lshl_add_u32 v8, v15, 4, v8")
    a.e("s_and_b32 s12, s9, 1")
    a.e("s_lshl_b32 s12, s12, 4")
    a.e("s_lshr_b32 s13, s9, 1")
    a.e("s_lshl_b32 s13, s13, 2")
    a.e("s_add_u32 s12, s12, s13")
    a.e("s_mul_i32 s12, s12, 3072")
    a.e("s_mul_i32 s13, s7, 384")
    a.e("s_add_u32 s12, s12, s13")
    a.e("v_add_u32 v8, s12, v8")
    a.e("s_waitcnt lgkmcnt(0)")
    make_srd(a, SRD_X, P_X, 2048 * 1280)
    make_srd(a, SRD_WS, P_WS, WS_USED)
    make_srd(a, SRD_W, P_W1, 640 * 3072)

    def dma_h(c):
        a.e(f"s_mul_i32 s52, s68, {32*3072}")
        for cbk in range(3):
            a.e(f"s_add_u32 m0, s15, {(c % NSL1)*WS1 + cbk*1024}")
            if cbk == 0:
                adv_k()
            else:
                a.e("s_add_u32 s52, s52, 128")
            a.vmem(f"buffer_load_dwordx4 v8, {s4(SRD_W)}, s52 offen lds", f"dma{c}")

    loop_a(dma_h, "h")
    assert a.vm == vm_after
    a.label("fp_tail")
    a.e("s_barrier")
    a.e("s_cmp_eq_u32 s9, 3")
    a.e("s_cbranch_scc1 fp_helper")
    a.e("s_cmp_eq_u32 s9, 1")
    a.e("s_cbranch_scc1 fp_p1")
    a.e("s_cmp_eq_u32 s9, 2")
    a.e("s_cbranch_scc1 fp_p2")
    vm_keep = list(a.vm)

    segs = [(0, 10), (10, 24), (34, 10)]

    def gen_p(P):
        items = [("W", i) if i < 10 else ("A", i - 10) for i in range(6 * P, 6 * P + 6)]
        lab = f"fp{P}"

        def check(tag, vval, vaddr, target, lb):
            a.wait_vm(tag)
            a.e(f"v_readfirstlane_b32 s72, v{vval}")
            a.e(f"s_cmp_ge_u32 s72, {target}")
            a.e(f"s_cbranch_scc1 {lb}_done")
            vm = list(a.vm)
            poll(a, s4(SRD_WS), vaddr, target, lb, sleep=8)
            a.vm = vm

        def seg_setup(seg):
            n = segs[seg][1]
            if seg == 1:
                a.e("s_lshr_b32 s69, s73, 2")
                a.e("s_mul_i32 s69, s69, 3")
            else:
                a.e(f"s_mul_i32 s69, s73, {n}")
                a.e("s_lshr_b32 s69, s69, 5")
            w_off, w_nks, ks0 = [(WQF_OFF, 20, 0), (W2F_OFF, 68, 20), (W2F_OFF, 68, 0)][seg]
            a.e(f"s_mul_i32 s60, s{S_CB}, {w_nks*5120}")
            a.e(f"s_add_u32 s60, s60, {hex(w_off + ks0*5120)}")
            if seg == 0:
                a.e(f"s_lshl_b32 s61, s{S_RB}, 6")
                a.e("v_lshrrev_b32 v14, 3, v0")
                a.e("v_add_u32 v15, s61, v14")
                a.e("v_mul_u32_u24 v15, 1280, v15")
                a.e("v_lshrrev_b32 v14, 1, v14")
                a.e("v_and_b32 v16, 7, v0")
                a.e("v_xor_b32 v16, v16, v14")
                a.e("v_lshl_add_u32 v17, v16, 4, v15")
                a.e("v_xor_b32 v16, 4, v16")
                a.e("v_lshl_add_u32 v18, v16, 4, v15")
            else:
                a.e(f"s_lshl_b32 s61, s{S_RB}, 2")
                a.e(f"s_mul_i32 s61, s61, {ACT_RT}")
                a.e(f"s_add_u32 s61, s61, {hex(ACT_OFF + ks0*1024)}")
            for k, (ty, i) in enumerate(items):
                comp = (k & 3) * 1024
                if ty == "W":
                    a.e(f"s_add_u32 s10, s60, {hex((i*1024 - comp) & 0xffffffff)}")
                    a.e(f"v_add_u32 v{8+k}, s10, v7")
                elif seg == 0:
                    a.e(f"v_add_u32 v{8+k}, {i*8*1280}, v{17 + (i & 1)}")
                else:
                    ks, rt = i // 4, i % 4
                    a.e(f"s_add_u32 s10, s61, {hex((rt*ACT_RT + ks*1024 - comp) & 0xffffffff)}")
                    a.e(f"v_add_u32 v{8+k}, s10, v7")

        def dma2(c):
            sl = c % NSL2
            seg = [i for i, sg in enumerate(segs) if sg[0] <= c < sg[0] + sg[1]][0]
            n = segs[seg][1]
            has_a = any(ty == "A" for ty, _ in items)
            has_w = any(ty == "W" for ty, _ in items)
            if c == 0:
                if has_w:
                    check("pp0", 42, 40, 32, lab + "_rw")
                seg_setup(0)
            if has_a and c in range(8, 32, 3):
                g = (c - 8) // 3
                a.e("s_lshr_b32 s10, s73, 2")
                a.e(f"s_add_u32 s10, s10, {g}")
                a.e("s_and_b32 s10, s10, 7")
                a.e(f"s_lshr_b32 s11, s{S_RB}, 1")
                a.e("s_lshl_b32 s11, s11, 3")
                a.e("s_add_u32 s10, s10, s11")
                a.e("s_lshl_b32 s10, s10, 7")
                a.e(f"s_add_u32 s10, s10, {hex(F_H2)}")
                a.e("v_mov_b32 v40, s10")
                a.vmem(f"buffer_load_dword v42, v40, {s4(SRD_WS)}, 0 offen sc1", f"pp1{g}")
            if has_a and c in range(10, 34, 3):
                g = (c - 10) // 3
                check(f"pp1{g}", 42, 40, 4, lab + f"_h{g}")
            if c == 10:
                seg_setup(1)
            if c == 32 and has_a:
                a.e(f"s_lshl_b32 s10, s{S_RB}, 7")
                a.e(f"s_add_u32 s10, s10, {hex(F_O)}")
                a.e("v_mov_b32 v40, s10")
                a.vmem(f"buffer_load_dword v42, v40, {s4(SRD_WS)}, 0 offen sc1", "pp2")
            if c == 34:
                if has_a:
                    check("pp2", 42, 40, 32, lab + "_o")
                seg_setup(2)
            if has_w:
                a.e("s_mul_i32 s62, s69, 10240")
            if has_a:
                a.e(f"s_lshl_b32 s63, s69, {7 if seg == 0 else 11}")
            base = sl * SLOT2 + 6 * P * 1024
            cur_m0 = None
            for k, (ty, i) in enumerate(items):
                raw = (ty == "A" and seg == 0)
                m0v = base + (k * 1024 if raw else (k & ~3) * 1024)
                off = 0 if raw else (k & 3) * 1024
                if m0v != cur_m0:
                    a.e(f"s_mov_b32 m0, {m0v}")
                    a.e("s_nop 0")
                    cur_m0 = m0v
                srd = s4(SRD_X) if raw else s4(SRD_WS)
                so = "s62" if ty == "W" else "s63"
                fl = "" if (raw or NOSC1) else " sc1"
                a.vmem(f"buffer_load_dwordx4 v{8+k}, {srd}, {so} offen offset:{off}{fl} lds", f"d2{c}")
            a.e("s_add_u32 s69, s69, 1")
            a.e(f"s_cmp_ge_u32 s69, {n}")
            a.e("s_cselect_b32 s69, 0, s69")

        for c in range(4):
            dma2(c)
        a.e("s_cmp_ge_u32 s6, 2")
        a.e(f"s_cbranch_scc1 {lab}_noe")
        a.e("s_barrier")
        a.e("s_barrier")
        a.label(f"{lab}_noe")
        dma2(4)
        dma2(5)
        issued = 6
        for c in range(44):
            a.wait_vm(f"d2{c}")
            a.e("s_barrier")
            if issued < 44 and (issued < NSL2 or issued <= c + NSL2 - 2):
                dma2(issued)
                issued += 1
            if c == BI_AFTER:
                a.e("s_barrier")
        a.e("s_endpgm")

    gen_p(0)
    a.label("fp_p1")
    a.vm = list(vm_keep)
    gen_p(1)
    a.label("fp_p2")
    a.vm = list(vm_keep)
    gen_p(2)

    a.label("fp_helper")
    a.vm = []
    a.lg = []
    a.e("s_cmp_ge_u32 s6, 2")
    a.e("s_cbranch_scc1 fh_noe")
    a.e("s_barrier")
    a.e("s_barrier")
    a.label("fh_noe")
    if PFW:
        a.e("s_waitcnt vmcnt(0)")
        a.e("v_readfirstlane_b32 s72, v42")
        a.e("s_cmp_ge_u32 s72, 32")
        a.e("s_cbranch_scc0 fh_nopfw")
        a.e(f"s_and_b32 s10, s{S_RB}, 7")
        a.e("v_lshlrev_b32 v50, 7, v0")
        a.e(f"s_mul_i32 s11, s{S_CB}, {68*5120}")
        a.e(f"s_mul_i32 s12, s10, {68*5120//8}")
        a.e("s_add_u32 s11, s11, s12")
        a.e(f"s_add_u32 s11, s11, {hex(W2F_OFF)}")
        for i in range(6):
            a.e(f"buffer_load_dword v{52+i}, v50, {s4(SRD_WS)}, s11 offen")
            a.e("s_add_u32 s11, s11, 8192" if i < 4 else f"s_add_u32 s11, s11, {43520 - 5*8192}")
        a.label("fh_nopfw")
    for i in range(4):
        a.e(f"v_mov_b32 v{20+i}, 0")
    a.e(f"v_add_u32 v24, {IMG}, v7")
    for i in range(30):
        a.lds(f"ds_write_b128 v24, v[20:23] offset:{i*1024}", "Z")
    a.e(f"s_lshl_b32 s10, s{S_CB}, 7")
    a.e(f"s_add_u32 s10, s10, {hex(F_KV)}")
    a.e("v_mov_b32 v26, s10")
    a.e(f"s_lshl_b32 s12, s{S_CB}, 13")
    a.e(f"s_add_u32 s12, s12, {hex(PART_OFF)}")
    a.e("v_add_u32 v25, s12, v7")
    make_srd(a, SRD_T, P_GW, 1280)
    a.e(f"s_mov_b32 m0, {GWL}")
    a.e("s_nop 0")
    a.e(f"buffer_load_dwordx4 v7, {s4(SRD_T)}, 0 offen lds")
    a.e(f"buffer_load_dwordx4 v7, {s4(SRD_T)}, 0 offen offset:1024 lds")
    a.e("s_mov_b32 s60, 0")
    a.e("s_mov_b32 s61, 0")
    a.e("v_mov_b32 v30, v0")
    a.e("s_waitcnt vmcnt(0) lgkmcnt(0)")
    a.lg = []
    for i in range(8):
        a.e("s_barrier")
    a.e("s_mov_b32 s60, 8")
    a.label("fh_wait")
    a.e(f"buffer_load_dword v21, v26, {s4(SRD_WS)}, 0 offen sc1")
    for i in range(2):
        a.e("s_cmp_ge_u32 s60, %d" % (BI_AFTER + 1))
        a.e(f"s_cbranch_scc1 fh_nobar{i}")
        a.e("s_barrier")
        a.e("s_add_u32 s60, s60, 1")
        a.label(f"fh_nobar{i}")
    a.e("s_waitcnt vmcnt(0)")
    a.e("v_readfirstlane_b32 s72, v21")
    a.e("s_cmp_ge_u32 s72, 64")
    a.e("s_cbranch_scc0 fh_wait")
    for r in range(7):
        a.e(f"buffer_load_dwordx4 {vr(64+4*r,4)}, v25, {s4(SRD_WS)}, 0 offen" + (f" offset:{1024*r}" if r < 4 else "") + " sc1")
        if r == 3:
            a.e("v_add_u32 v25, 4096, v25")
        if r >= 4:
            a.e("v_add_u32 v25, 1024, v25")
    a.e("s_cmp_ge_u32 s60, %d" % (BI_AFTER + 1))
    a.e("s_cbranch_scc1 fh_loop")
    a.e("s_barrier")
    a.e("s_add_u32 s60, s60, 1")
    a.label("fh_loop")
    a.e("s_cmp_ge_u32 s60, %d" % (BI_AFTER + 1) + "")
    a.e("s_cbranch_scc1 fh_round")
    a.e("s_barrier")
    a.e("s_add_u32 s60, s60, 1")
    a.label("fh_round")
    F, H_, RM, DD, E0, AD = 30, 35, 36, 37, 38, 39
    a.e(f"v_mul_u32_u24 v{H_}, 625, v{F}")
    a.e(f"v_lshrrev_b32 v{H_}, 16, v{H_}")
    a.e(f"v_mul_u32_u24 v{RM}, 105, v{H_}")
    a.e(f"v_sub_u32 v{RM}, v{F}, v{RM}")
    a.e(f"v_mul_u32_u24 v{DD}, 13108, v{RM}")
    a.e(f"v_lshrrev_b32 v{DD}, 16, v{DD}")
    a.e(f"v_mul_u32_u24 v{E0}, 5, v{DD}")
    a.e(f"v_sub_u32 v{E0}, v{RM}, v{E0}")
    a.e(f"v_lshlrev_b32 v{E0}, 2, v{E0}")
    a.e(f"v_mul_u32_u24 v{H_}, 20, v{H_}")
    a.e(f"v_add_u32 v{AD}, v{H_}, v{E0}")
    a.e(f"v_mul_u32_u24 v{AD}, 192, v{AD}")
    a.e(f"v_add_u32 v40, v{H_}, v{DD}")
    a.e(f"v_lshl_add_u32 v{AD}, v40, 1, v{AD}")
    a.e(f"v_add_u32 v{AD}, {IMG}, v{AD}")
    a.e(f"v_mul_u32_u24 v43, 192, v{H_}")
    a.e(f"v_add_u32 v40, v{H_}, v{E0}")
    a.e(f"v_lshl_add_u32 v43, v40, 1, v43")
    a.e(f"v_add_u32 v43, {IMG+15360}, v43")
    a.e(f"v_cmp_gt_u32 vcc, 420, v{F}")
    a.e("s_mov_b64 s[56:57], vcc")
    a.e(f"v_cmp_gt_u32 s[52:53], 20, v{DD}")
    a.e(f"v_cmp_eq_u32 s[54:55], 20, v{DD}")
    a.e("s_and_b64 s[52:53], s[52:53], s[56:57]")
    a.e("s_and_b64 s[54:55], s[54:55], s[56:57]")
    a.e("s_waitcnt vmcnt(0)")
    a.e("v_cvt_pk_bf16_f32 v32, v64, v65")
    a.e("v_cvt_pk_bf16_f32 v33, v66, v67")
    for k in range(24):
        a.e(f"v_mov_b32 v{64+k}, v{68+k}")
    a.e("v_lshrrev_b32 v41, 16, v32")
    a.e("v_lshrrev_b32 v42, 16, v33")
    a.e("s_mov_b64 s[66:67], exec")
    a.e("s_mov_b64 exec, s[52:53]")
    a.e(f"ds_write_b16 v{AD}, v32")
    a.e(f"ds_write_b16 v{AD}, v41 offset:192")
    a.e(f"ds_write_b16 v{AD}, v33 offset:384")
    a.e(f"ds_write_b16 v{AD}, v42 offset:576")
    a.e("s_mov_b64 exec, s[54:55]")
    a.e("s_cbranch_execz fh_noz")
    for ee in range(20):
        a.e(f"ds_write_b64 v43, v[32:33] offset:{192*ee}")
    a.label("fh_noz")
    a.e("s_mov_b64 exec, s[66:67]")
    a.e(f"v_add_u32 v{F}, 64, v{F}")
    a.e("s_add_u32 s61, s61, 1")
    a.e("s_cmp_lt_u32 s61, 7")
    a.e("s_cbranch_scc1 fh_loop")
    a.e("s_waitcnt lgkmcnt(0)")
    a.label("fh_rest")
    a.e("s_cmp_ge_u32 s60, %d" % (BI_AFTER + 1) + "")
    a.e("s_cbranch_scc1 fh_bi")
    a.e("s_barrier")
    a.e("s_add_u32 s60, s60, 1")
    a.e("s_branch fh_rest")
    a.label("fh_bi")
    a.e("s_barrier")
    a.e("s_endpgm")


def repack_issue(a):
    a.e("s_min_u32 s53, s9, 2")
    a.e(f"s_mul_i32 s54, s{S_RB}, 3")
    a.e("s_add_u32 s54, s54, s53")
    a.e("s_min_u32 s54, s54, 87")
    a.e(f"s_mov_b32 s59, {hex(W2F_OFF)}")
    a.e("s_cmp_lt_u32 s54, 20")
    a.e(f"s_cselect_b32 s59, {hex(WQF_OFF)}, s59")
    a.e("s_cselect_b32 s60, 20, 68")
    a.e("s_cselect_b32 s61, 0, 20")
    a.e("s_sub_u32 s54, s54, s61")
    a.e(f"s_mul_i32 s60, s60, s{S_CB}")
    a.e("s_add_u32 s54, s54, s60")
    a.e("s_mul_i32 s54, s54, 5120")
    a.e("s_add_u32 s54, s54, s59")
    a.e("v_add_u32 v10, s54, v7")
    a.e("v_lshrrev_b32 v12, 2, v0")
    a.e("v_mul_u32_u24 v12, 192, v12")
    a.e("v_and_b32 v13, 3, v0")
    a.e("v_lshl_add_u32 v12, v13, 3, v12")
    a.e(f"s_and_b32 s60, s{S_CB}, 1")
    a.e("s_lshl_b32 s61, s60, 5")
    a.e("s_mul_i32 s59, s53, 6144")
    a.e("s_add_u32 s61, s61, s59")
    a.e(f"s_add_u32 s61, s61, {WBASE + 6*WS1}")
    a.e("v_add_u32 v12, s61, v12")
    a.e("v_and_b32 v13, 1, v3")
    a.e("v_lshlrev_b32 v13, 5, v13")
    a.e("s_cmp_eq_u32 s60, 0")
    a.e("s_cselect_b32 s61, 1, -1")
    a.e("v_mul_lo_u32 v13, v13, s61")
    a.e("v_add_u32 v8, v12, v13")
    a.e("v_sub_u32 v9, v12, v13")


def repack_reads(a):
    for t in range(5):
        for hf in range(2):
            a.lds(f"ds_read_b64_tr_b16 {vr(208+t*4+2*hf,2)}, v{8 + (t & 1)} offset:{16*hf*192 + t*32}", "RPR")


def repack_store(a):
    a.wait_lg("RPR")
    for t in range(4):
        a.vmem(f"buffer_store_dwordx4 {vr(208+4*t,4)}, v10, {s4(SRD_WS)}, 0 offen offset:{1024*t} sc1", "rst")
    a.e("v_add_u32 v10, 4096, v10")
    a.vmem(f"buffer_store_dwordx4 {vr(224,4)}, v10, {s4(SRD_WS)}, 0 offen sc1", "rst")
    a.nop(2)


def phi4(a, c, T, out0, out1):
    p0, p1 = T, T + 1
    f = T + 2
    ex = T + 6
    if FAITH:
        a.e(f"v_cvt_pk_bf16_f32 v{p0}, v{c}, v{c+1}")
        a.e(f"v_cvt_pk_bf16_f32 v{p1}, v{c+2}, v{c+3}")
        unpack(a, f, f + 1, p0)
        unpack(a, f + 2, f + 3, p1)
        src = f
    else:
        src = c
    a.e(f"v_pk_mul_f32 {vr(ex,2)}, {vr(src,2)}, s[60:61]")
    a.e(f"v_pk_mul_f32 {vr(ex+2,2)}, {vr(src+2,2)}, s[60:61]")
    for i in range(4):
        a.e(f"v_exp_f32 v{ex+i}, v{ex+i}")
    a.e(f"v_pk_add_f32 {vr(f,2)}, {vr(src,2)}, s[62:63]")
    a.e(f"v_pk_add_f32 {vr(f+2,2)}, {vr(src+2,2)}, s[62:63]")
    for i in range(4):
        a.e(f"v_med3_f32 v{f+i}, v{f+i}, v{ex+i}, 1.0")
    if FAITH:
        a.e(f"v_cvt_pk_bf16_f32 v{p0}, v{f}, v{f+1}")
        a.e(f"v_cvt_pk_bf16_f32 v{p1}, v{f+2}, v{f+3}")
        unpack(a, f, f + 1, p0)
        unpack(a, f + 2, f + 3, p1)
    a.e(f"v_pk_add_f32 {vr(f,2)}, {vr(f,2)}, s[64:65]")
    a.e(f"v_pk_add_f32 {vr(f+2,2)}, {vr(f+2,2)}, s[64:65]")
    a.e(f"v_cvt_pk_bf16_f32 v{out0}, v{f}, v{f+1}")
    a.e(f"v_cvt_pk_bf16_f32 v{out1}, v{f+2}, v{f+3}")


def phi_consts(a):
    a.e(f"s_mov_b32 s60, {LOG2E}")
    a.e(f"s_mov_b32 s61, {LOG2E}")
    a.e("s_mov_b32 s62, 1.0")
    a.e("s_mov_b32 s63, 1.0")
    a.e("s_mov_b32 s64, 0x358637bd")
    a.e("s_mov_b32 s65, 0x358637bd")


def loop_a_cons(a, nb, arows, wfrag, afrag, acc, reads, regs, swap, cinit=None, post_repack=None):
    def bump(c):
        pass

    make_srd(a, SRD_T, P_DBG, 256)
    a.e("v_mov_b32 v254, 32")
    a.e("s_barrier")
    a.stamp("a0")
    for t in range(nb):
        reads(0, t)
    for s in range(20):
        if os.environ.get("ASTAMP") and s in (2, 4, 6, 8, 10, 12, 14, 16, 18):
            a.stamp(f"a{s}")
        if s == 2:
            repack_reads(a)
        if s == 3:
            a.vmem(f"buffer_load_dword v255, v254, {s4(SRD_T)}, 0 offen sc1", "rst")
            repack_store(a)
            if post_repack:
                post_repack()
        if s + 1 < 20:
            if s == RWPUB:
                a.wait_vm("rst")
            a.e("s_barrier")
            bump(s + 1)
            if s == RWPUB:
                lab = f"fc_norp{swap}"
                a.e("s_cmp_lg_u32 s9, 0")
                a.e(f"s_cbranch_scc1 {lab}")
                lg = list(a.lg)
                vm = list(a.vm)
                a.e("v_readfirstlane_b32 s72, v255")
                a.e("s_cmp_ge_u32 s72, 1")
                a.e(f"s_cbranch_scc1 {lab}_p_done")
                make_srd(a, SRD_T, P_DBG, 256)
                poll(a, s4(SRD_T), 254, 1, lab + "_p", tmp=255)
                a.e(f"s_lshl_b32 s10, s{S_CB}, 7")
                a.e(f"s_add_u32 s10, s10, {hex(F_RW)}")
                flag_add(a, s4(SRD_WS), "s10", 254)
                a.label(lab)
                a.lg = lg
                a.vm = vm
        for t in range(nb):
            if s + 1 < 20:
                reads(s + 1, t)
            need = [("R", s, t)]
            if t == 0:
                need += [("A", s, r) for r in range(arows)]
            a.wait_lg(need)
            for rt in range(arows):
                d = acc(rt, t)
                cin = d if s else (cinit(t) if cinit else "0")
                if swap:
                    a.e(f"v_mfma_f32_16x16x32_bf16 {d}, {wfrag(s,t)}, {afrag(s,rt)}, {cin}")
                else:
                    a.e(f"v_mfma_f32_16x16x32_bf16 {d}, {afrag(s,rt)}, {wfrag(s,t)}, {cin}")


def prefetch_a(a):
    a.e("s_lshl_b32 s53, s4, 2")
    a.e("s_add_u32 s53, s53, s9")
    a.e("s_lshr_b32 s54, s3, 2")
    a.e(f"s_mul_i32 s54, s54, {1024*1280}")
    a.e(f"s_mul_i32 s55, s53, {80*128}")
    a.e("s_add_u32 s54, s54, s55")
    a.e("v_lshlrev_b32 v32, 7, v0")
    a.e(f"buffer_load_dword v250, v32, {s4(SRD_X)}, s54 offen")
    a.e("v_and_b32 v33, 15, v0")
    a.e("v_lshlrev_b32 v33, 7, v33")
    a.e("s_add_u32 s54, s54, 8192")
    a.e(f"buffer_load_dword v251, v33, {s4(SRD_X)}, s54 offen")
    a.e("s_and_b32 s56, s3, 3")
    make_srd(a, SRD_T, P_WQKV, 640 * 3840)
    a.e("v_min_u32 v32, 39, v0")
    a.e("v_lshrrev_b32 v33, 3, v32")
    a.e("s_mul_i32 s54, s53, 5")
    a.e("v_add_u32 v33, s54, v33")
    a.e("v_mul_u32_u24 v33, 3840, v33")
    a.e("v_bfe_u32 v34, v32, 2, 1")
    a.e("v_mul_u32_u24 v34, 1280, v34")
    a.e("v_add_u32 v33, v33, v34")
    a.e("v_and_b32 v34, 3, v32")
    a.e("v_mul_u32_u24 v34, 106, v34")
    a.e("v_and_b32 v34, 0xfffffffc, v34")
    a.e("v_add_u32 v33, v33, v34")
    a.e("s_mul_i32 s54, s56, 320")
    a.e("s_add_u32 s54, s54, 1280")
    a.e(f"buffer_load_dword v252, v33, {s4(SRD_T)}, s54 offen")
    make_srd(a, SRD_T, P_W1, 640 * 3072)
    a.e("v_min_u32 v32, 29, v0")
    a.e("v_mul_u32_u24 v33, 10923, v32")
    a.e("v_lshrrev_b32 v33, 16, v33")
    a.e("v_mul_u32_u24 v34, 6, v33")
    a.e("v_sub_u32 v34, v32, v34")
    a.e("s_mul_i32 s54, s53, 5")
    a.e("v_add_u32 v33, s54, v33")
    a.e("v_mul_u32_u24 v33, 3072, v33")
    a.e("v_lshl_add_u32 v33, v34, 7, v33")
    a.e("s_mul_i32 s54, s56, 768")
    a.e(f"buffer_load_dword v253, v33, {s4(SRD_T)}, s54 offen")


def kv_duties(a):
    a.e("s_add_u32 s10, s2, s9")
    a.e("s_cmp_lg_u32 s10, 0")
    a.e("s_cbranch_scc1 fp_noflag")
    make_srd(a, SRD_T, P_DBG, 256)
    a.e("v_lshlrev_b32 v24, 7, v0")
    a.e(f"v_add_u32 v24, {hex(FLAG_OFF)}, v24")
    a.e("v_mov_b32 v25, 0")
    for i in range(3):
        a.e(f"buffer_store_dword v25, v24, {s4(SRD_WS)}, 0 offen sc1")
        a.e("v_add_u32 v24, 8192, v24")
    a.e("s_waitcnt vmcnt(0)")
    a.e("s_mov_b32 s10, 32")
    flag_add(a, s4(SRD_T), "s10", 24)
    a.label("fp_noflag")

    a.e("s_cmp_lg_u32 s5, 0")
    a.e("s_cbranch_scc1 fp_nozero")
    make_srd(a, SRD_T, P_DBG, 256)
    a.e("s_lshl_b32 s10, s7, 13")
    a.e("s_lshl_b32 s11, s9, 11")
    a.e("s_add_u32 s10, s10, s11")
    a.e(f"s_add_u32 s10, s10, {hex(PART_OFF)}")
    a.e("v_lshl_add_u32 v24, v0, 4, s10")
    for i in range(4):
        a.e(f"v_mov_b32 v{28+i}, 0")
    a.e(f"buffer_store_dwordx4 v[28:31], v24, {s4(SRD_WS)}, 0 offen sc1")
    a.e(f"buffer_store_dwordx4 v[28:31], v24, {s4(SRD_WS)}, 0 offen offset:1024 sc1")
    a.e("s_waitcnt vmcnt(0)")
    a.e("s_lshl_b32 s10, s7, 2")
    flag_add(a, s4(SRD_T), "s10", 24)
    a.label("fp_nozero")


def code_prefetch(a):
    a.e("s_getpc_b64 s[54:55]")
    a.label("fc_pc0")
    a.e("s_sub_u32 s54, s54, fc_pc0-fused_kernel")
    a.e("s_subb_u32 s55, s55, 0")
    a.e("s_lshl_b32 s56, s4, 2")
    a.e("s_add_u32 s56, s56, s9")
    a.e("s_and_b32 s56, s56, 15")
    a.e("s_lshl_b32 s56, s56, 13")
    a.e("v_lshlrev_b32 v32, 7, v0")
    a.e("v_add_u32 v32, s56, v32")
    a.e("v_min_u32 v32, f_code_end-fused_kernel-4, v32")
    a.e("v_and_b32 v32, 0xfffffffc, v32")
    a.e("global_load_dword v11, v32, s[54:55]")


def gen_consumers(a):
    if CPF:
        code_prefetch(a)
    a.e("s_waitcnt lgkmcnt(0)")
    make_srd(a, SRD_X, P_X, 2048 * 1280)
    make_srd(a, SRD_WS, P_WS, WS_USED)
    if PFA:
        prefetch_a(a)
    repack_issue(a)
    a.e("v_lshrrev_b32 v14, 1, v2")
    a.e("v_xor_b32 v14, v14, v3")
    a.e("v_lshlrev_b32 v15, 7, v2")
    a.e("v_lshl_add_u32 v17, v14, 4, v15")
    a.e("s_cmp_ge_u32 s6, 2")
    a.e("s_cbranch_scc1 fc_h")
    vm0 = list(a.vm)
    kv_duties(a)
    a.e("v_lshrrev_b32 v19, 2, v0")
    a.e("v_mul_u32_u24 v19, 192, v19")
    a.e("v_and_b32 v20, 3, v0")
    a.e("v_lshl_add_u32 v19, v20, 3, v19")
    a.e("s_lshl_b32 s11, s8, 5")
    a.e(f"s_add_u32 s11, s11, {WBASE}")
    a.e("v_add_u32 v19, s11, v19")
    a.e("v_and_b32 v20, 1, v3")
    a.e("v_lshlrev_b32 v20, 5, v20")
    a.e("s_cmp_eq_u32 s8, 0")
    a.e("s_cselect_b32 s11, 1, -1")
    a.e("v_mul_lo_u32 v20, v20, s11")
    a.e("v_add_u32 v24, v19, v20")
    a.e("v_sub_u32 v25, v19, v20")
    a.e(f"v_add_u32 v18, {4*WS1}, v24")
    a.e(f"v_add_u32 v19, {4*WS1}, v25")
    a.e("s_lshl_b32 s14, s9, 12")
    a.e("v_add_u32 v26, s14, v17")
    a.e("v_xor_b32 v27, 64, v26")
    ACC, WB, AB = 32, 112, 192
    if PFA:
        a.e("s_waitcnt vmcnt(0)")
    a.e("s_lshl_b32 s12, s9, 6")
    a.e("v_add_u32 v16, s12, v0")
    a.e("s_lshl_b32 s12, s7, 13")
    a.e(f"s_add_u32 s12, s12, {hex(PART_OFF)}")
    for it in range(7):
        I, H_, RM, DD, E_, Dg, Eg, TI = [32 + k for k in range(8)]
        AD = 240 + it
        a.e(f"v_add_u32 v{I}, {256*it}, v16")
        a.e(f"v_mul_u32_u24 v{H_}, 1249, v{I}")
        a.e(f"v_lshrrev_b32 v{H_}, 19, v{H_}")
        a.e(f"v_mul_u32_u24 v{RM}, 420, v{H_}")
        a.e(f"v_sub_u32 v{RM}, v{I}, v{RM}")
        a.e(f"v_mul_u32_u24 v{DD}, 3277, v{RM}")
        a.e(f"v_lshrrev_b32 v{DD}, 16, v{DD}")
        a.e(f"v_mul_u32_u24 v{E_}, 20, v{DD}")
        a.e(f"v_sub_u32 v{E_}, v{RM}, v{E_}")
        a.e(f"v_mul_u32_u24 v{H_}, 20, v{H_}")
        a.e(f"v_cmp_eq_u32 vcc, 20, v{DD}")
        a.e(f"v_add_u32 v{Eg}, v{H_}, v{E_}")
        a.e(f"v_add_u32 v{Dg}, v{H_}, v{DD}")
        a.e(f"v_cndmask_b32 v{Dg}, v{Dg}, v{Eg}, vcc")
        a.e(f"v_lshrrev_b32 v{TI}, 4, v{Dg}")
        a.e(f"v_lshrrev_b32 v{AD}, 4, v{Eg}")
        a.e(f"v_lshl_add_u32 v{AD}, v{TI}, 1, v{AD}")
        a.e(f"v_add_u32 v{TI}, 13, v{TI}")
        a.e(f"v_cndmask_b32 v{TI}, v{AD}, v{TI}, vcc")
        a.e(f"v_and_b32 v{Eg}, 15, v{Eg}")
        a.e(f"v_cndmask_b32 v{Eg}, v{Eg}, 0, vcc")
        a.e(f"v_bfe_u32 v{AD}, v{Dg}, 2, 2")
        a.e(f"v_lshl_add_u32 v{AD}, v{AD}, 4, v{Eg}")
        a.e(f"v_lshlrev_b32 v{AD}, 4, v{AD}")
        a.e(f"v_lshl_add_u32 v{AD}, v{TI}, 10, v{AD}")
        a.e(f"v_and_b32 v{Dg}, 3, v{Dg}")
        a.e(f"v_lshl_add_u32 v{AD}, v{Dg}, 2, v{AD}")
        if it == 6:
            a.e(f"v_cmp_gt_u32 vcc, 1680, v{I}")
            a.e("s_nop 1")
            a.e(f"v_cndmask_b32 v{AD}, 0, v{AD}, vcc")
            a.e("s_mov_b64 s[50+28:51+28], vcc".replace("50+28:51+28", "78:79"))
        a.e(f"v_add_u32 v{AD}, {SCR}, v{AD}")
        a.e(f"v_lshl_add_u32 v{247+it}, v{I}, 2, s12")

    def reads_kv(s, t):
        if t < 2:
            a.lds(f"ds_read_b128 {vr(AB+((s&1)*2+t)*4,4)}, v{26+(s&1)} offset:{t*2048 + ((s//2)%4)*XS}", ("A", s, t))
        for hf in range(2):
            sl = s % NSL1
            off = (t // 5) * 6144 + 16 * hf * 192 + (t % 5) * 32 + (sl % 4) * WS1
            v = (24 if sl < 4 else 18) + ((t % 5) % 2)
            a.lds(f"ds_read_b64_tr_b16 {vr(WB+((s&1)*10+t)*4+2*hf,2)}, v{v} offset:{off}", ("R", s, t))

    loop_a_cons(a, 10, 2, lambda s, t: vr(WB + ((s & 1) * 10 + t) * 4, 4),
                lambda s, rt: vr(AB + ((s & 1) * 2 + rt) * 4, 4),
                lambda rt, t: vr(ACC + (t * 2 + rt) * 4, 4), reads_kv, [24, 25], False)
    a.stamp("aloop")
    a.e("s_barrier")
    phi_consts(a)
    a.nop(4)
    PK, T = 112, 152
    for t in range(5):
        for rt in range(2):
            c = ACC + (t * 2 + rt) * 4
            phi4(a, c, T + (12 if rt else 0), PK + t * 4 + rt * 2, PK + t * 4 + rt * 2 + 1)
    for t in range(5, 10):
        for rt in range(2):
            c = ACC + (t * 2 + rt) * 4
            a.e(f"v_cvt_pk_bf16_f32 v{PK+t*4+rt*2}, v{c}, v{c+1}")
            a.e(f"v_cvt_pk_bf16_f32 v{PK+t*4+rt*2+1}, v{c+2}, v{c+3}")
    ONES = 176
    for i in range(4):
        a.e(f"v_mov_b32 v{ONES+i}, 0x3f803f80")
    a.nop(2)
    D2 = 32
    pairs = [(i, j) for i in range(5) for j in range(5) if abs(i - j) <= 1]
    for (i, j) in pairs:
        a.e(f"v_mfma_f32_16x16x32_bf16 {vr(D2+(2*i+j)*4,4)}, {vr(PK+i*4,4)}, {vr(PK+(5+j)*4,4)}, 0")
    for i in range(5):
        a.e(f"v_mfma_f32_16x16x32_bf16 {vr(D2+(13+i)*4,4)}, {vr(PK+i*4,4)}, {vr(ONES,4)}, 0")
    a.e("s_mul_i32 s12, s9, 18432")
    a.e(f"s_add_u32 s12, s12, {SCR}")
    a.e("v_add_u32 v14, s12, v7")
    make_srd(a, SRD_T, P_DBG, 256)
    a.e("s_lshl_b32 s10, s7, 2")
    a.e("v_mov_b32 v20, s10")
    a.vmem(f"buffer_load_dword v22, v20, {s4(SRD_T)}, 0 offen sc1", "zp")
    a.nop(2)
    for k in range(18):
        a.lds(f"ds_write_b128 v14, {vr(D2+k*4,4)} offset:{k*1024}", "W")
    a.wait_lg_all()
    a.e("s_barrier")
    for it in range(7):
        b = 112 + it * 4
        for w in range(4):
            a.lds(f"ds_read_b32 v{b+w}, v{240+it} offset:{w*18432}", ("Q", it))
    a.wait_lg_all()
    a.e("s_barrier")
    a.wait_vm("zp")
    a.e("v_readfirstlane_b32 s72, v22")
    a.e("s_cmp_ge_u32 s72, 4")
    a.e("s_cbranch_scc1 fc_zp_done")
    poll(a, s4(SRD_T), 20, 4, "fc_zp")
    for it in range(7):
        b = 112 + it * 4
        a.e(f"v_add_f32 v{b}, v{b}, v{b+1}")
        a.e(f"v_add_f32 v{b+2}, v{b+2}, v{b+3}")
        a.e(f"v_add_f32 v{b}, v{b}, v{b+2}")
        if it == 6:
            a.e("s_mov_b64 exec, s[78:79]")
        a.vmem(f"buffer_atomic_add_f32 v{b}, v{247+it}, {s4(SRD_WS)}, 0 offen sc0 sc1", "st")
        if it == 6:
            a.e("s_mov_b64 exec, -1")
    a.e("s_lshl_b32 s71, s7, 7")
    a.e(f"s_add_u32 s71, s71, {hex(F_KV)}")
    a.e("s_branch fc_b")

    a.label("fc_h")
    a.vm = vm0
    a.lg = []
    a.nstamp = 1
    a.e("v_lshrrev_b32 v14, 5, v0")
    a.e("v_mul_u32_u24 v14, 3072, v14")
    a.e("v_bfe_u32 v15, v0, 2, 3")
    a.e("v_lshl_add_u32 v14, v15, 7, v14")
    a.e("v_and_b32 v16, 3, v0")
    a.e("v_lshl_add_u32 v14, v16, 3, v14")
    a.e(f"v_add_u32 v14, {WBASE}, v14")
    a.e("v_lshrrev_b32 v15, 1, v15")
    a.e("s_and_b32 s13, s9, 1")
    for t in range(6):
        a.e("s_mul_i32 s12, s13, 6")
        a.e(f"s_add_u32 s12, s12, {t}")
        a.e("s_and_b32 s11, s12, 3")
        a.e("s_lshr_b32 s12, s12, 2")
        a.e("s_lshl_b32 s12, s12, 10")
        a.e("v_xor_b32 v16, s11, v15")
        a.e(f"v_lshl_add_u32 v{20+t}, v16, 5, v14")
        a.e(f"v_add_u32 v{20+t}, s12, v{20+t}")
        a.e(f"v_add_u32 v{240+t}, {4*WS1}, v{20+t}")
    a.e("s_lshr_b32 s12, s9, 1")
    a.e("s_lshl_b32 s12, s12, 13")
    a.e("v_add_u32 v26, s12, v17")
    a.e("v_xor_b32 v27, 64, v26")
    ACCH, WBH, ABH = 32, 128, 176
    BB = 228

    def load_bias():
        make_srd(a, SRD_T, P_B1, 3072)
        a.e("s_mul_i32 s12, s7, 384")
        a.e("s_mul_i32 s11, s13, 192")
        a.e("s_add_u32 s12, s12, s11")
        a.e("v_lshl_add_u32 v28, v3, 3, s12")
        for t in range(6):
            a.vmem(f"buffer_load_dwordx2 {vr(BB+2*t,2)}, v28, {s4(SRD_T)}, 0 offen offset:{32*t}", "bias")

    def reads_h(s, t):
        if t < 4:
            a.lds(f"ds_read_b128 {vr(ABH+((s&1)*4+t)*4,4)}, v{26+(s&1)} offset:{t*2048 + ((s//2)%4)*XS}", ("A", s, t))
        for hf in range(2):
            sl = s % NSL1
            a.lds(f"ds_read_b64_tr_b16 {vr(WBH+((s&1)*6+t)*4+2*hf,2)}, v{(20 if sl < 4 else 240)+t} offset:{2*hf*3072 + (sl%4)*WS1}", ("R", s, t))

    loop_a_cons(a, 6, 4, lambda s, t: vr(WBH + ((s & 1) * 6 + t) * 4, 4),
                lambda s, rt: vr(ABH + ((s & 1) * 4 + rt) * 4, 4),
                lambda rt, t: vr(ACCH + (t * 4 + rt) * 4, 4), reads_h, [20, 21, 22, 23, 24, 25], True, None, load_bias)
    a.stamp("aloop")
    a.e("s_barrier")
    a.e("s_lshl_b32 s12, s5, 3")
    a.e("s_lshr_b32 s11, s9, 1")
    a.e("s_lshl_b32 s11, s11, 2")
    a.e("s_add_u32 s12, s12, s11")
    a.e(f"s_mul_i32 s12, s12, {ACT_RT}")
    a.e("s_mul_i32 s11, s7, 6")
    a.e("s_mul_i32 s10, s13, 3")
    a.e("s_add_u32 s11, s11, s10")
    a.e(f"s_add_u32 s11, s11, {20 + ACT_OFF // 1024}")
    a.e("s_lshl_b32 s11, s11, 10")
    a.e("s_add_u32 s12, s12, s11")
    a.e("v_lshrrev_b32 v14, 1, v3")
    a.e("v_lshl_add_u32 v14, v14, 4, v2")
    a.e("v_lshlrev_b32 v14, 4, v14")
    a.e("v_and_b32 v15, 1, v3")
    a.e("v_lshl_add_u32 v14, v15, 9, v14")
    for rt in range(4):
        a.e(f"v_add_u32 v{8+rt}, s12, v14")
        a.e(f"s_add_u32 s12, s12, {ACT_RT}")
    a.wait_vm("bias")
    T = 128
    for tp in range(3):
        if True:
            for h in range(2):
                t = 2 * tp + h
                unpack(a, T + 4 * h, T + 4 * h + 1, BB + 2 * t)
                unpack(a, T + 4 * h + 2, T + 4 * h + 3, BB + 2 * t + 1)
        for rt in range(4):
            O = T + 24 + ((tp * 4 + rt) % 4) * 4
            for h in range(2):
                t = 2 * tp + h
                c = ACCH + (t * 4 + rt) * 4
                p = T + 8 + h * 8
                f = p + 2
                bf = T + 4 * h
                o = O + 2 * h
                if FAITH_H:
                    a.e(f"v_cvt_pk_bf16_f32 v{p}, v{c}, v{c+1}")
                    a.e(f"v_cvt_pk_bf16_f32 v{p+1}, v{c+2}, v{c+3}")
                    unpack(a, f, f + 1, p)
                    unpack(a, f + 2, f + 3, p + 1)
                    a.e(f"v_pk_add_f32 {vr(f,2)}, {vr(f,2)}, {vr(bf,2)}")
                    a.e(f"v_pk_add_f32 {vr(f+2,2)}, {vr(f+2,2)}, {vr(bf+2,2)}")
                    a.e(f"v_cvt_pk_bf16_f32 v{p}, v{f}, v{f+1}")
                    a.e(f"v_cvt_pk_bf16_f32 v{p+1}, v{f+2}, v{f+3}")
                    a.e(f"v_pk_max_i16 v{p}, v{p}, 0")
                    a.e(f"v_pk_max_i16 v{p+1}, v{p+1}, 0")
                    unpack(a, f, f + 1, p)
                    unpack(a, f + 2, f + 3, p + 1)
                else:
                    a.e(f"v_pk_add_f32 {vr(f,2)}, {vr(c,2)}, {vr(bf,2)}")
                    a.e(f"v_pk_add_f32 {vr(f+2,2)}, {vr(c+2,2)}, {vr(bf+2,2)}")
                    for i in range(4):
                        a.e(f"v_max_f32 v{f+i}, 0, v{f+i}")
                a.e(f"v_pk_mul_f32 {vr(f,2)}, {vr(f,2)}, {vr(f,2)}")
                a.e(f"v_pk_mul_f32 {vr(f+2,2)}, {vr(f+2,2)}, {vr(f+2,2)}")
                a.e(f"v_cvt_pk_bf16_f32 v{o}, v{f}, v{f+1}")
                a.e(f"v_cvt_pk_bf16_f32 v{o+1}, v{f+2}, v{f+3}")
            a.nop(2)
            a.e(f"v_permlane16_swap_b32 v{O}, v{O+2}")
            a.e(f"v_permlane16_swap_b32 v{O+1}, v{O+3}")
            a.nop(1)
            a.vmem(f"buffer_store_dwordx4 {vr(O,4)}, v{8+rt}, {s4(SRD_WS)}, 0 offen offset:{tp*1024} sc1", "st")
    a.e("s_lshl_b32 s71, s5, 3")
    a.e("s_add_u32 s71, s71, s7")
    a.e("s_lshl_b32 s71, s71, 7")
    a.e(f"s_add_u32 s71, s71, {hex(F_H2)}")

    a.label("fc_b")
    a.vm = ["st"]
    a.lg = []
    a.nstamp = 11 if os.environ.get("ASTAMP") else 3
    a.stamp("aend")
    a.e(f"s_lshl_b32 s10, s{S_RB}, 2")
    a.e("s_add_u32 s10, s10, s9")
    a.e("s_lshl_b32 s11, s10, 4")
    a.e("v_add_u32 v4, s11, v2")
    a.e("v_lshlrev_b32 v6, 4, v3")
    a.e("s_lshl_b32 s12, s9, 10")
    a.e("s_add_u32 s12, s12, 10240")
    a.e("v_add_u32 v8, s12, v7")
    a.e("v_mov_b32 v9, v7")
    a.e("s_lshl_b32 s12, s9, 11")
    a.e("s_add_u32 s12, s12, 10240")
    a.e("v_add_u32 v10, s12, v17")
    a.e("v_xor_b32 v11, 64, v10")
    make_srd(a, SRD_X, P_B2, 1280)
    make_srd(a, 56, P_OUT, 2048 * 1280)
    a.e("s_mul_i32 s69, s73, 10")
    a.e("s_lshr_b32 s69, s69, 5")
    a.e("s_lshl_b32 s70, s69, 7")
    a.e(f"s_add_u32 s70, s70, {GWL}")
    a.e("v_add_u32 v6, s70, v6")
    ACC, WB, AB, GA, GF = 32, 64, 104, 56, 152
    ACA = 112
    B2 = 240
    a.e(f"v_mov_b32 v{GA}, 0")

    def reads(s, t):
        ks = s % 2
        if t == 0:
            if s < 20:
                a.lds(f"ds_read_b128 {vr(AB+(s&1)*4,4)}, v{10+ks}", ("A", s, 0))
                a.lds(f"ds_read_b128 {vr(GF+(s&1)*4,4)}, v6 offset:{ks*64}", ("A", s, 0))
            else:
                a.lds(f"ds_read_b128 {vr(AB+(s&1)*4,4)}, v8 offset:{ks*4096}", ("A", s, 0))
        a.lds(f"ds_read_b128 {vr(WB+((s&1)*5+t)*4,4)}, v9 offset:{ks*5120+t*1024}", ("R", s, t))

    def bump(c):
        d = SLOT2 if (c % NSL2) else -(NSL2 - 1) * SLOT2
        for r in ((8, 9, 10, 11) if c < 10 else (8, 9)):
            a.e(f"v_add_u32 v{r}, {d if d > 0 else hex(d & 0xffffffff)}, v{r}")
        if c < 10:
            a.e("s_add_u32 s69, s69, 1")
            a.e("s_cmp_ge_u32 s69, 10")
            a.e("s_cselect_b32 s70, -9, 1")
            a.e("s_cselect_b32 s69, 0, s69")
            a.e("s_lshl_b32 s70, s70, 7")
            a.e("v_add_u32 v6, s70, v6")

    def b_epilogue():
        a.stamp("bep")
        phi_consts(a)
        PQ, T = 152, 212
        for t in range(5):
            phi4(a, ACC + t * 4, T + (12 if t & 1 else 0), PQ + t * 2, PQ + t * 2 + 1)
        a.e(f"v_mov_b32 v{PQ+10}, 0")
        a.e(f"v_mov_b32 v{PQ+11}, 0")
        a.e("v_mul_u32_u24 v14, 192, v2")
        a.e("v_lshl_add_u32 v14, v3, 3, v14")
        a.e(f"v_add_u32 v14, {IMG}, v14")
        a.e(f"s_mul_i32 s12, s10, {ACT_RT}")
        a.e(f"s_mul_i32 s11, s{S_CB}, 2560")
        a.e("s_add_u32 s12, s12, s11")
        a.e(f"s_add_u32 s12, s12, {ACT_OFF}")
        a.e("v_lshrrev_b32 v15, 1, v3")
        a.e("v_lshl_add_u32 v15, v15, 4, v2")
        a.e("v_lshlrev_b32 v15, 4, v15")
        a.e("v_add_u32 v13, s12, v15")
        a.e("v_and_b32 v15, 1, v3")
        a.e("v_lshl_add_u32 v12, v15, 9, v13")
        a.e("s_barrier")
        us = {0: [0], 1: [0, 1], 2: [0, 1], 3: [1, 2], 4: [1, 2]}

        def fr(j):
            kf = 164 + (j & 1) * 16
            for im in range(2):
                for n, u in enumerate(us[j]):
                    b = kf + im * 8 + n * 4
                    off = im * 15360 + j * 16 * 192 + u * 64
                    a.lds(f"ds_read_b64 {vr(b,2)}, v14 offset:{off}", ("F", j))
                    a.lds(f"ds_read_b64 {vr(b+2,2)}, v14 offset:{off+32}", ("F", j))

        def mm(j):
            kf = 164 + (j & 1) * 16
            nd = 196 + (j & 1) * 8
            a.wait_lg(("F", j))
            for im in range(2):
                for n, u in enumerate(us[j]):
                    d = vr(nd + im * 4, 4)
                    a.e(f"v_mfma_f32_16x16x32_bf16 {d}, {vr(kf+im*8+n*4,4)}, {vr(PQ+u*4,4)}, {d if n else '0'}")

        fr(0)
        fr(1)
        mm(0)
        for j in range(5):
            if j + 1 < 5:
                mm(j + 1)
            else:
                a.nop(8)
            if j + 2 < 5:
                fr(j + 2)
            if j == 0:
                a.nop(4)
            n_ = 196 + (j & 1) * 8
            d_ = n_ + 4
            p = T
            f = T + 4
            g = T + 8
            if FAITH:
                a.e(f"v_cvt_pk_bf16_f32 v{p}, v{n_}, v{n_+1}")
                a.e(f"v_cvt_pk_bf16_f32 v{p+1}, v{n_+2}, v{n_+3}")
                a.e(f"v_cvt_pk_bf16_f32 v{p+2}, v{d_}, v{d_+1}")
                a.e(f"v_cvt_pk_bf16_f32 v{p+3}, v{d_+2}, v{d_+3}")
                unpack(a, f, f + 1, p)
                unpack(a, f + 2, f + 3, p + 1)
                unpack(a, g, g + 1, p + 2)
                unpack(a, g + 2, g + 3, p + 3)
                a.e(f"v_pk_add_f32 {vr(g,2)}, {vr(g,2)}, s[64:65]")
                a.e(f"v_pk_add_f32 {vr(g+2,2)}, {vr(g+2,2)}, s[64:65]")
                a.e(f"v_cvt_pk_bf16_f32 v{p+2}, v{g}, v{g+1}")
                a.e(f"v_cvt_pk_bf16_f32 v{p+3}, v{g+2}, v{g+3}")
                unpack(a, g, g + 1, p + 2)
                unpack(a, g + 2, g + 3, p + 3)
            else:
                a.e(f"v_pk_add_f32 {vr(g,2)}, {vr(d_,2)}, s[64:65]")
                a.e(f"v_pk_add_f32 {vr(g+2,2)}, {vr(d_+2,2)}, s[64:65]")
                for i in range(4):
                    a.e(f"v_mov_b32 v{f+i}, v{n_+i}")
            for i in range(4):
                a.e(f"v_rcp_f32 v{g+4+i}, v{g+i}")
            a.e("s_nop 0")
            a.e(f"v_pk_mul_f32 {vr(g+8,2)}, {vr(f,2)}, {vr(g+4,2)}")
            a.e(f"v_pk_mul_f32 {vr(g+10,2)}, {vr(f+2,2)}, {vr(g+6,2)}")
            if FAITH:
                for i in range(4):
                    a.e(f"v_fma_f32 v{f+i}, -v{g+i}, v{g+8+i}, v{f+i}")
                for i in range(4):
                    a.e(f"v_fma_f32 v{g+8+i}, v{f+i}, v{g+4+i}, v{g+8+i}")
            O = T + 24 + (j // 2) * 4
            if j < 4:
                o = O + (j & 1) * 2
                a.e(f"v_cvt_pk_bf16_f32 v{o}, v{g+8}, v{g+9}")
                a.e(f"v_cvt_pk_bf16_f32 v{o+1}, v{g+10}, v{g+11}")
            else:
                a.e(f"v_cvt_pk_bf16_f32 v{O}, v{g+8}, v{g+9}")
                a.e(f"v_cvt_pk_bf16_f32 v{O+1}, v{g+10}, v{g+11}")
                a.e(f"v_mov_b32 v{O+2}, v{O}")
                a.e(f"v_mov_b32 v{O+3}, v{O+1}")
            if j & 1 or j == 4:
                a.nop(2)
                a.e(f"v_permlane16_swap_b32 v{O}, v{O+2}")
                a.e(f"v_permlane16_swap_b32 v{O+1}, v{O+3}")
                a.nop(1)
                a.vmem(f"buffer_store_dwordx4 {vr(O,4)}, v{12 if j < 4 else 13}, {s4(SRD_WS)}, 0 offen offset:{512*(j & ~1)} sc1", "st")
        a.e(f"v_mov_b32 v{GA}, v52")
        a.e(f"v_cvt_pk_bf16_f32 v{GA}, v{GA}, v{GA}")
        a.e(f"v_lshlrev_b32 v{GA}, 16, v{GA}")
        a.e(f"v_mul_f32 v{GA}, 0xbfb8aa3b, v{GA}")
        a.e(f"v_exp_f32 v{GA}, v{GA}")
        a.e("s_nop 0")
        a.e(f"v_add_f32 v{GA}, 1.0, v{GA}")
        a.e(f"v_rcp_f32 v{GA}, v{GA}")
        a.e("s_nop 0")
        a.e(f"v_cvt_pk_bf16_f32 v{GA}, v{GA}, v{GA}")
        a.e(f"v_lshlrev_b32 v{GA}, 16, v{GA}")
        a.e(f"v_sub_f32 v57, 1.0, v{GA}")
        a.e("v_cvt_pk_bf16_f32 v57, v57, v57")
        a.e("v_lshlrev_b32 v57, 16, v57")
        a.e(f"s_lshl_b32 s71, s{S_RB}, 7")
        a.e(f"s_add_u32 s71, s71, {hex(F_O)}")
        a.e("s_mov_b32 s77, 0")
        a.stamp("bep_end")

    a.e("s_mov_b32 s77, 0")
    a.e("s_barrier")
    a.stamp("b0")
    for t in range(5):
        reads(0, t)
    NK = 88
    for s in range(NK):
        if s in (20, 68):
            a.stamp(f"s{s}")
        if s == 70:
            a.e(f"s_mul_i32 s12, s{S_CB}, 160")
            a.e("v_lshl_add_u32 v28, v3, 3, s12")
            for t in range(5):
                a.vmem(f"buffer_load_dwordx2 {vr(B2+2*t,2)}, v28, {s4(SRD_X)}, 0 offen offset:{32*t}", "b2")
        if s + 1 < NK and (s + 1) % 2 == 0:
            c = (s + 1) // 2
            a.e("s_barrier")
            bump(c)
            win = None
            if 1 <= c <= PUBA_DL:
                win = (c == PUBA_DL)
            if BI_AFTER + 1 <= c <= BI_AFTER + PUBO_DL:
                win = (c == BI_AFTER + PUBO_DL)
            if win is not None:
                lab = f"fc_pub{c}"
                a.e("s_cmp_lg_u32 s77, 0")
                a.e(f"s_cbranch_scc1 {lab}")
                if win:
                    a.e("s_waitcnt vmcnt(0)")
                else:
                    a.e("s_getreg_b32 s72, hwreg(HW_REG_IB_STS)")
                    a.e("s_and_b32 s72, s72, 0xc0000f")
                    a.e(f"s_cbranch_scc1 {lab}")
                flag_add(a, s4(SRD_WS), "s71", 58)
                a.e("s_mov_b32 s77, 1")
                a.label(lab)
            if c == BI_AFTER:
                b_epilogue()
        for t in range(5):
            if s + 1 < NK:
                reads(s + 1, t)
            need = [("R", s, t)]
            if t == 0:
                need.append(("A", s, 0))
            a.wait_lg(need)
            if s < 20:
                d = vr(ACC + t * 4, 4)
            else:
                d = vr(ACA + (20 if s < 68 else 0) + t * 4, 4)
            cin = "0" if s in (0, 20, 68) else d
            a.e(f"v_mfma_f32_16x16x32_bf16 {d}, {vr(WB+((s&1)*5+t)*4,4)}, {vr(AB+(s&1)*4,4)}, {cin}")
            if s < 20 and t == 2:
                a.e(f"v_mfma_f32_16x16x32_bf16 v[52:55], {vr(GF+(s&1)*4,4)}, {vr(AB+(s&1)*4,4)}, {'0' if s == 0 else 'v[52:55]'}")
    a.stamp("cloop")
    a.e("v_mul_u32_u24 v5, 1280, v4")
    a.e("v_lshl_add_u32 v5, v3, 3, v5")
    a.e(f"s_mul_i32 s12, s{S_CB}, 160")
    a.e("v_add_u32 v5, s12, v5")
    a.wait_vm_all()
    a.nop(6)
    T = 160
    for t in range(5):
        ca = ACA + t * 4
        cb = ACA + 20 + t * 4
        p = T
        fa = T + 4
        fb = T + 8
        bb = T + 12
        a.e(f"v_cvt_pk_bf16_f32 v{p}, v{ca}, v{ca+1}")
        a.e(f"v_cvt_pk_bf16_f32 v{p+1}, v{ca+2}, v{ca+3}")
        a.e(f"v_cvt_pk_bf16_f32 v{p+2}, v{cb}, v{cb+1}")
        a.e(f"v_cvt_pk_bf16_f32 v{p+3}, v{cb+2}, v{cb+3}")
        unpack(a, fa, fa + 1, p)
        unpack(a, fa + 2, fa + 3, p + 1)
        unpack(a, fb, fb + 1, p + 2)
        unpack(a, fb + 2, fb + 3, p + 3)
        unpack(a, bb, bb + 1, B2 + 2 * t)
        unpack(a, bb + 2, bb + 3, B2 + 2 * t + 1)
        a.e(f"v_pk_add_f32 {vr(fb,2)}, {vr(fb,2)}, {vr(bb,2)}")
        a.e(f"v_pk_add_f32 {vr(fb+2,2)}, {vr(fb+2,2)}, {vr(bb+2,2)}")
        for i in range(4):
            a.e(f"v_mul_f32 v{fa+i}, v{GA}, v{fa+i}")
        a.e(f"v_cvt_pk_bf16_f32 v{p+2}, v{fb}, v{fb+1}")
        a.e(f"v_cvt_pk_bf16_f32 v{p+3}, v{fb+2}, v{fb+3}")
        a.e(f"v_cvt_pk_bf16_f32 v{p}, v{fa}, v{fa+1}")
        a.e(f"v_cvt_pk_bf16_f32 v{p+1}, v{fa+2}, v{fa+3}")
        unpack(a, fb, fb + 1, p + 2)
        unpack(a, fb + 2, fb + 3, p + 3)
        unpack(a, fa, fa + 1, p)
        unpack(a, fa + 2, fa + 3, p + 1)
        for i in range(4):
            a.e(f"v_mul_f32 v{fb+i}, v57, v{fb+i}")
        a.e(f"v_cvt_pk_bf16_f32 v{p+2}, v{fb}, v{fb+1}")
        a.e(f"v_cvt_pk_bf16_f32 v{p+3}, v{fb+2}, v{fb+3}")
        unpack(a, fb, fb + 1, p + 2)
        unpack(a, fb + 2, fb + 3, p + 3)
        a.e(f"v_pk_add_f32 {vr(fa,2)}, {vr(fa,2)}, {vr(fb,2)}")
        a.e(f"v_pk_add_f32 {vr(fa+2,2)}, {vr(fa+2,2)}, {vr(fb+2,2)}")
        o = T + 20 + t * 2
        a.e(f"v_cvt_pk_bf16_f32 v{o}, v{fa}, v{fa+1}")
        a.e(f"v_cvt_pk_bf16_f32 v{o+1}, v{fa+2}, v{fa+3}")
        a.vmem(f"buffer_store_dwordx2 {vr(o,2)}, v5, s[56:59], 0 offen offset:{32*t}", "st")
    a.stamp("end")
    a.dump_stamps()


HEADER = """; Kernarg layout for this problem (96 bytes, ptrs only, base s[0:1]):
;   0 A_x  8 A_wqkv  16 A_wo  24 B_x  32 B_w1  40 B_b1  48 B_w2  56 B_b2  64 gate_w  72 d_out  80 d_debug  88 d_ws
; @launch kernel=fused_kernel grid=(256,1,1) block=(512,1,1) lds=163840
.amdgcn_target "amdgcn-amd-amdhsa--gfx950"
.text
"""


def main():
    a = Asm()
    a.kid = 1
    gen(a)
    nm = "fused_kernel"
    out = HEADER + f".globl {nm}\n.p2align 8\n.type {nm},@function\n" + "\n".join(a.lines) + "\n"
    out += '.section .rodata,"a"\n.p2align 6\n' + kd(nm, 256, 256)
    path = sys.argv[1] if len(sys.argv) > 1 else f"cdna_kernels/{NAME}.s"
    open(path, "w").write(out)


if __name__ == "__main__":
    main()
```

```python
import sys
import os
sys.path.insert(0, os.path.dirname(os.path.abspath(__file__)))
from gen import (Asm, vr, ar, make_srd, prologue_kernargs, kperm_vgpr, unpack, LOG2E, NAME, kd,
                 P_X, P_WQKV, P_WO, P_BX, P_W1, P_B1, P_W2, P_B2, P_GW, P_OUT, P_DBG, P_WS,
                 ACT_RT, PART_OFF, XF_OFF, WQF_OFF, W2F_OFF, FLAG_OFF, WS_USED)

FAITH = int(os.environ.get("FAITH", "1"))
FAITH_H = int(os.environ.get("FAITH_H", str(FAITH)))
INITD = int(os.environ.get("INITD", "0"))
TLBW = int(os.environ.get("TLBW", "0"))
CPF = int(os.environ.get("CPF", "1"))
RWPUB = int(os.environ.get("RWPUB", "7"))
PFE = int(os.environ.get("PFE", "0"))
PFA = int(os.environ.get("PFA", "0"))
PFW = int(os.environ.get("PFW", "0"))
NOSC1 = int(os.environ.get("NOSC1", "0"))
ROT = int(os.environ.get("ROT", "0"))
PUBA_DL = int(os.environ.get("PUBA_DL", "5"))
PUBO_DL = int(os.environ.get("PUBO_DL", "8"))
NOREPACK = int(os.environ.get("NOREPACK", "0"))
RP_ISSUE = int(os.environ.get("RP_ISSUE", "-1"))
RP_STORE = int(os.environ.get("RP_STORE", "2"))

ACT_OFF = 4096
ACT_RT = 68 * 1024 + 128
BI_AFTER = int(os.environ.get("BI_AFTER", "19"))
SLOT1 = 20480
NSL1 = 8
SLOT2 = 18432
NSL2 = 7
IMG = NSL2 * SLOT2
GWL = IMG + 30720
SCR = 90112
F_RW = FLAG_OFF
F_KV = FLAG_OFF + 128 * 8
F_H = FLAG_OFF + 128 * 16
F_O = FLAG_OFF + 128 * 32
F_H2 = FLAG_OFF + 128 * 64

S_XCD, S_J, S_RBA, S_CBA, S_COLA, S_PAR, S_W = 3, 4, 5, 6, 7, 8, 9
S_RB, S_CB = 74, 75
SRD_X, SRD_W, SRD_WS, SRD_T = 40, 44, 48, 64


def s4(b):
    return f"s[{b}:{b+3}]"


def poll(a, srd, voff, target, lab, tmp=21, sleep=4):
    a.label(lab)
    a.e(f"buffer_load_dword v{tmp}, v{voff}, {srd}, 0 offen sc1")
    a.e("s_waitcnt vmcnt(0)")
    a.vm = []
    a.e(f"v_readfirstlane_b32 s72, v{tmp}")
    a.e(f"s_cmp_ge_u32 s72, {target}")
    a.e(f"s_cbranch_scc1 {lab}_done")
    a.e(f"s_sleep {sleep}")
    a.e(f"s_branch {lab}")
    a.label(lab + "_done")


def flag_add(a, srd, saddr, v0t=58):
    a.e(f"v_mov_b32 v{v0t}, {saddr}")
    a.e(f"v_mov_b32 v{v0t+1}, 1")
    a.e("s_mov_b64 exec, 1")
    a.e(f"buffer_atomic_add v{v0t+1}, v{v0t}, {srd}, 0 offen sc1")
    a.e("s_mov_b64 exec, -1")


def gen(a):
    a.label("fused_kernel")
    a.e("s_cmp_ge_u32 s2, 256")
    a.e("s_cbranch_scc1 f_exit")
    a.stamp("start")
    prologue_kernargs(a)
    a.e("s_and_b32 s3, s2, 7")
    a.e("s_lshr_b32 s4, s2, 3")
    a.e("s_lshr_b32 s5, s3, 2")
    a.e("s_lshl_b32 s5, s5, 3")
    a.e("s_and_b32 s6, s4, 7")
    a.e("s_add_u32 s5, s5, s6")
    a.e("s_lshr_b32 s6, s4, 3")
    a.e("s_and_b32 s7, s3, 3")
    a.e("s_lshl_b32 s7, s7, 1")
    a.e("s_and_b32 s8, s6, 1")
    a.e("s_add_u32 s7, s7, s8")
    a.e("s_and_b32 s8, s7, 1")
    a.e(f"s_lshr_b32 s{S_RB}, s3, 1")
    a.e(f"s_lshl_b32 s{S_RB}, s{S_RB}, 3")
    a.e("s_and_b32 s10, s4, 7")
    a.e(f"s_add_u32 s{S_RB}, s{S_RB}, s10")
    a.e(f"s_and_b32 s{S_CB}, s3, 1")
    a.e(f"s_lshl_b32 s{S_CB}, s{S_CB}, 2")
    a.e(f"s_add_u32 s{S_CB}, s{S_CB}, s6")
    a.e("v_lshrrev_b32 v1, 6, v0")
    a.e("v_and_b32 v0, 63, v0")
    a.e("s_nop 0")
    a.e("v_readfirstlane_b32 s9, v1")
    a.e("v_and_b32 v2, 15, v0")
    a.e("v_lshrrev_b32 v3, 4, v0")
    a.e("v_lshlrev_b32 v7, 4, v0")
    a.e(f"s_and_b32 s73, s{S_RB}, 7")
    a.e("s_lshl_b32 s73, s73, 2")
    a.e(f"s_and_b32 s10, s{S_CB}, 3")
    a.e("s_add_u32 s73, s73, s10")
    if ROT == 1:
        a.e("s_mov_b32 s73, 0")
    if ROT == 2:
        a.e("s_and_b32 s73, s73, 0x18")
    if ROT == 3:
        a.e(f"s_and_b32 s73, s{S_CB}, 3")
        a.e("s_lshl_b32 s73, s73, 3")
    a.e("s_cmp_ge_u32 s9, 4")
    a.e("s_cbranch_scc0 f_cons")
    gen_producers(a)
    a.label("f_cons")
    a.vm = []
    a.lg = []
    gen_consumers(a)
    a.label("f_exit")
    a.e("s_endpgm")
    a.label("f_code_end")


XS = 16384
WS1 = 12288
WBASE = 65536


def gen_producers(a):
    a.e("s_sub_u32 s9, s9, 4")
    a.e("s_lshl_b32 s10, s5, 7")
    a.e("s_lshl_b32 s11, s9, 5")
    a.e("s_add_u32 s10, s10, s11")
    a.e("v_lshrrev_b32 v14, 3, v0")
    a.e("v_add_u32 v15, s10, v14")
    a.e("v_mul_u32_u24 v15, 1280, v15")
    a.e("v_lshrrev_b32 v14, 1, v14")
    a.e("v_and_b32 v16, 7, v0")
    a.e("v_xor_b32 v16, v16, v14")
    a.e("v_lshl_add_u32 v44, v16, 4, v15")
    a.e("v_xor_b32 v16, 4, v16")
    a.e("v_lshl_add_u32 v45, v16, 4, v15")
    a.e(f"v_add_u32 v45, {8*1280 - 1024}, v45")
    a.e(f"v_add_u32 v46, {16*1280 - 2048}, v44")
    a.e(f"v_add_u32 v47, {16*1280 - 2048}, v45")
    a.e("s_lshl_b32 s14, s9, 12")
    a.e("s_mul_i32 s15, s9, 3072")
    a.e(f"s_add_u32 s15, s15, {WBASE}")
    a.e("s_and_b32 s68, s5, 7")
    a.e("s_mul_i32 s69, s6, 3")
    a.e("s_add_u32 s68, s68, s69")
    a.e("s_add_u32 s68, s68, s3")
    for _ in range(2):
        a.e("s_cmp_ge_u32 s68, 10")
        a.e("s_cselect_b32 s69, 10, 0")
        a.e("s_sub_u32 s68, s68, s69")
    a.e("s_mov_b32 s70, s68")
    a.e("s_lshl_b32 s68, s68, 1")
    def dma_x(J):
        a.e("s_lshl_b32 s52, s70, 7")
        a.e(f"s_add_u32 m0, s14, {(J % 4)*XS}")
        a.e("s_add_u32 s70, s70, 1")
        for n in range(4):
            a.vmem(f"buffer_load_dwordx4 v{44+n}, {s4(SRD_X)}, s52 offen offset:{1024*n} lds", f"dx{J}")
        a.e("s_cmp_ge_u32 s70, 10")
        a.e("s_cselect_b32 s70, 0, s70")

    def adv_k():
        a.e("s_add_u32 s68, s68, 1")
        a.e("s_cmp_ge_u32 s68, 20")
        a.e("s_cselect_b32 s68, 0, s68")

    def repack_dma(tag):
        a.e("s_min_u32 s53, s9, 2")
        a.e(f"s_mul_i32 s54, s{S_RB}, 3")
        a.e("s_add_u32 s54, s54, s53")
        a.e("s_min_u32 s54, s54, 87")
        a.e("s_movk_i32 s57, 1280")
        a.e(f"s_mov_b32 s66, {hex(640*1280)}")
        a.e("s_cmp_lt_u32 s54, 20")
        a.e(f"s_cselect_b32 s64, s{P_WQKV}, s{P_WO}")
        a.e(f"s_cselect_b32 s65, s{P_WQKV+1}, s{P_WO+1}")
        a.e("s_cselect_b32 s57, 3840, s57")
        a.e("s_cselect_b32 s58, 0, 20")
        a.e(f"s_cselect_b32 s66, {hex(640*3840)}, s66")
        a.e("s_cmp_lt_u32 s54, 40")
        a.e(f"s_cselect_b32 s64, s64, s{P_W2}")
        a.e(f"s_cselect_b32 s65, s65, s{P_W2+1}")
        a.e("s_cselect_b32 s58, s58, 40")
        a.e(f"s_cselect_b32 s66, s66, {hex(1536*1280)}")
        a.e("s_and_b32 s65, s65, 0xffff")
        a.e("s_mov_b32 s67, 0x00020000")
        a.e("s_sub_u32 s58, s54, s58")
        a.e("s_lshl_b32 s58, s58, 5")
        a.e("s_mul_i32 s58, s58, s57")
        a.e(f"s_mul_i32 s59, s{S_CB}, 160")
        a.e(f"s_and_b32 s60, s{S_CB}, 1")
        a.e("s_lshl_b32 s60, s60, 5")
        a.e("s_sub_u32 s59, s59, s60")
        a.e("s_add_u32 s58, s58, s59")
        a.e("s_mul_i32 s59, s53, 6144")
        a.e(f"s_add_u32 s59, s59, {WBASE + 6*WS1}")
        for n in range(6):
            a.e(f"v_add_u32 v19, {64*n}, v0")
            a.e("v_mul_u32_u24 v20, 5462, v19")
            a.e("v_lshrrev_b32 v20, 16, v20")
            a.e("v_mul_u32_u24 v21, 12, v20")
            a.e("v_sub_u32 v19, v19, v21")
            a.e("v_bfe_u32 v21, v20, 2, 1")
            a.e("v_lshlrev_b32 v21, 1, v21")
            a.e("v_xor_b32 v19, v19, v21")
            kperm_vgpr(a, 21, 20, 22, 23)
            a.e("v_mul_lo_u32 v21, v21, s57")
            a.e("v_lshl_add_u32 v19, v19, 4, v21")
            a.e(f"s_add_u32 m0, s59, {n*1024}")
            a.e("s_nop 0")
            a.vmem("buffer_load_dwordx4 v19, s[64:67], s58 offen lds", "RP")

    def loop_a(dma_w, tag):
        wi, xi = 0, 0

        def issue_w():
            nonlocal wi, xi
            dma_w(wi)
            wi += 1

        dma_x(0); xi = 1
        issue_w(); issue_w()
        dma_x(1); xi = 2
        issue_w()
        if INITD >= 1:
            issue_w()
        for c in range(20):
            assert xi > c // 2 and wi > c
            if c == 2:
                a.e("s_waitcnt vmcnt(%d)" % (len(a.vm) - 1 - max(i for i, t in enumerate(a.vm) if t == "RP")))
                a.vm = a.vm[max(i for i, t in enumerate(a.vm) if t == "RP") + 1:]
            a.wait_vm([f"dma{c}", f"dx{c//2}"])
            a.e("s_barrier")
            if c == 0:
                repack_dma(tag)
            k = 0
            while k < 2:
                did = False
                if xi < 10 and (xi < 4 or c >= 2 * xi - 5) and 2 * xi <= wi + 1:
                    dma_x(xi)
                    xi += 1
                    did = True
                if wi < min(20, c + NSL1 - 1) and (wi < 6 or c >= 4):
                    issue_w()
                    did = True
                k += 1
                if not did:
                    break
            if c == 9:
                a.e(f"s_lshl_b32 s10, s{S_CB}, 7")
                a.e(f"s_add_u32 s10, s10, {hex(F_RW)}")
                a.e("v_mov_b32 v40, s10")
                a.e("s_mov_b32 s77, 0")
            if PFE and c in (11, 14):
                a.vmem(f"buffer_load_dword v43, v40, {s4(SRD_WS)}, 0 offen sc1", f"pe{c}")
            if PFE and c in (13, 16):
                lab = f"fp_pf{tag}{c}"
                a.wait_vm(f"pe{c-2}")
                a.e("v_readfirstlane_b32 s72, v43")
                a.e("s_cmp_lt_u32 s72, 32")
                a.e(f"s_cbranch_scc1 {lab}")
                a.e("s_cmp_lg_u32 s77, 0")
                a.e(f"s_cbranch_scc1 {lab}")
                a.e("s_mov_b32 s77, 1")
                a.e(f"s_and_b32 s10, s{S_RB}, 7")
                a.e("s_lshl_b32 s10, s10, 2")
                a.e("s_add_u32 s10, s10, s9")
                a.e("v_lshlrev_b32 v50, 7, v0")
                a.e(f"s_mul_i32 s11, s{S_CB}, {68*5120}")
                a.e(f"s_mul_i32 s12, s10, {68*5120//32}")
                a.e("s_add_u32 s11, s11, s12")
                a.e(f"s_add_u32 s11, s11, {hex(W2F_OFF)}")
                a.e(f"buffer_load_dword v52, v50, {s4(SRD_WS)}, s11 offen")
                a.e(f"s_add_u32 s11, s11, {10880 - 8192}")
                a.e(f"buffer_load_dword v53, v50, {s4(SRD_WS)}, s11 offen")
                a.e("v_min_u32 v51, 24, v0")
                a.e("v_lshlrev_b32 v51, 7, v51")
                a.e(f"s_mul_i32 s11, s{S_CB}, 102400")
                a.e("s_mul_i32 s12, s10, 3200")
                a.e("s_add_u32 s11, s11, s12")
                a.e(f"s_add_u32 s11, s11, {hex(WQF_OFF)}")
                a.e(f"buffer_load_dword v54, v51, {s4(SRD_WS)}, s11 offen")
                a.label(lab)
            if c == 18:
                a.vmem(f"buffer_load_dword v42, v40, {s4(SRD_WS)}, 0 offen sc1", "pp0")
        assert wi == 20 and xi == 10
        if tag == "kv":
            a.e("s_branch fp_tail")

    a.e("s_cmp_ge_u32 s6, 2")
    a.e("s_cbranch_scc1 fp_h")
    a.e("s_and_b32 s12, s9, 1")
    a.e("s_mul_i32 s12, s12, 192")
    a.e("s_lshr_b32 s13, s9, 1")
    a.e("s_mul_i32 s10, s7, 160")
    a.e("s_lshl_b32 s11, s8, 5")
    a.e("s_sub_u32 s10, s10, s11")
    a.e("s_mul_i32 s11, s13, 1280")
    a.e("s_add_u32 s10, s10, s11")
    a.e("s_add_u32 s10, s10, 1280")
    for n in range(3):
        d = 8 + n
        a.e("v_add_u32 v19, s12, v0")
        if n:
            a.e(f"v_add_u32 v19, {64*n}, v19")
        a.e("v_mul_u32_u24 v20, 5462, v19")
        a.e("v_lshrrev_b32 v20, 16, v20")
        a.e("v_mul_u32_u24 v21, 12, v20")
        a.e("v_sub_u32 v19, v19, v21")
        a.e("v_bfe_u32 v21, v20, 2, 1")
        a.e("v_lshlrev_b32 v21, 1, v21")
        a.e("v_xor_b32 v19, v19, v21")
        kperm_vgpr(a, 21, 20, 22, 23)
        a.e("v_mul_u32_u24 v21, 3840, v21")
        a.e(f"v_lshl_add_u32 v{d}, v19, 4, v21")
        a.e(f"v_add_u32 v{d}, s10, v{d}")
        if n:
            a.e(f"v_subrev_u32 v{d}, {1024*n}, v{d}")
    a.e("s_waitcnt lgkmcnt(0)")
    make_srd(a, SRD_X, P_X, 2048 * 1280)
    make_srd(a, SRD_WS, P_WS, WS_USED)
    make_srd(a, SRD_W, P_WQKV, 640 * 3840)

    def dma_kv(c):
        a.e(f"s_mul_i32 s52, s68, {32*3840}")
        a.e(f"s_add_u32 m0, s15, {(c % NSL1)*WS1}")
        adv_k()
        for n in range(3):
            a.vmem(f"buffer_load_dwordx4 v{8+n}, {s4(SRD_W)}, s52 offen offset:{1024*n} lds", f"dma{c}")

    loop_a(dma_kv, "kv")
    vm_after = list(a.vm)
    a.label("fp_h")
    a.vm = []
    a.e("v_lshrrev_b32 v14, 3, v0")
    a.e("v_and_b32 v15, 3, v14")
    a.e("v_lshrrev_b32 v16, 2, v14")
    a.e("v_lshl_add_u32 v15, v16, 3, v15")
    a.e("v_mul_u32_u24 v8, 3072, v15")
    a.e("v_bfe_u32 v15, v0, 1, 2")
    a.e("v_lshrrev_b32 v16, 1, v14")
    a.e("v_xor_b32 v15, v15, v16")
    a.e("v_lshl_add_u32 v8, v15, 5, v8")
    a.e("v_and_b32 v15, 1, v0")
    a.e("v_lshl_add_u32 v8, v15, 4, v8")
    a.e("s_and_b32 s12, s9, 1")
    a.e("s_lshl_b32 s12, s12, 4")
    a.e("s_lshr_b32 s13, s9, 1")
    a.e("s_lshl_b32 s13, s13, 2")
    a.e("s_add_u32 s12, s12, s13")
    a.e("s_mul_i32 s12, s12, 3072")
    a.e("s_mul_i32 s13, s7, 384")
    a.e("s_add_u32 s12, s12, s13")
    a.e("v_add_u32 v8, s12, v8")
    a.e("s_waitcnt lgkmcnt(0)")
    make_srd(a, SRD_X, P_X, 2048 * 1280)
    make_srd(a, SRD_WS, P_WS, WS_USED)
    make_srd(a, SRD_W, P_W1, 640 * 3072)

    def dma_h(c):
        a.e(f"s_mul_i32 s52, s68, {32*3072}")
        for cbk in range(3):
            a.e(f"s_add_u32 m0, s15, {(c % NSL1)*WS1 + cbk*1024}")
            if cbk == 0:
                adv_k()
            else:
                a.e("s_add_u32 s52, s52, 128")
            a.vmem(f"buffer_load_dwordx4 v8, {s4(SRD_W)}, s52 offen lds", f"dma{c}")

    loop_a(dma_h, "h")
    assert a.vm == vm_after
    a.label("fp_tail")
    a.e("s_barrier")
    a.e("s_cmp_eq_u32 s9, 3")
    a.e("s_cbranch_scc1 fp_helper")
    a.e("s_cmp_eq_u32 s9, 1")
    a.e("s_cbranch_scc1 fp_p1")
    a.e("s_cmp_eq_u32 s9, 2")
    a.e("s_cbranch_scc1 fp_p2")
    vm_keep = list(a.vm)

    segs = [(0, 10), (10, 24), (34, 10)]

    def gen_p(P):
        items = [("W", i) if i < 10 else ("A", i - 10) for i in range(6 * P, 6 * P + 6)]
        lab = f"fp{P}"

        def check(tag, vval, vaddr, target, lb):
            a.wait_vm(tag)
            a.e(f"v_readfirstlane_b32 s72, v{vval}")
            a.e(f"s_cmp_ge_u32 s72, {target}")
            a.e(f"s_cbranch_scc1 {lb}_done")
            vm = list(a.vm)
            poll(a, s4(SRD_WS), vaddr, target, lb, sleep=8)
            a.vm = vm

        def seg_setup(seg):
            n = segs[seg][1]
            if seg == 1:
                a.e("s_lshr_b32 s69, s73, 2")
                a.e("s_mul_i32 s69, s69, 3")
            else:
                a.e(f"s_mul_i32 s69, s73, {n}")
                a.e("s_lshr_b32 s69, s69, 5")
            w_off, w_nks, ks0 = [(WQF_OFF, 20, 0), (W2F_OFF, 68, 20), (W2F_OFF, 68, 0)][seg]
            a.e(f"s_mul_i32 s60, s{S_CB}, {w_nks*5120}")
            a.e(f"s_add_u32 s60, s60, {hex(w_off + ks0*5120)}")
            if seg == 0:
                a.e(f"s_lshl_b32 s61, s{S_RB}, 6")
                a.e("v_lshrrev_b32 v14, 3, v0")
                a.e("v_add_u32 v15, s61, v14")
                a.e("v_mul_u32_u24 v15, 1280, v15")
                a.e("v_lshrrev_b32 v14, 1, v14")
                a.e("v_and_b32 v16, 7, v0")
                a.e("v_xor_b32 v16, v16, v14")
                a.e("v_lshl_add_u32 v17, v16, 4, v15")
                a.e("v_xor_b32 v16, 4, v16")
                a.e("v_lshl_add_u32 v18, v16, 4, v15")
            else:
                a.e(f"s_lshl_b32 s61, s{S_RB}, 2")
                a.e(f"s_mul_i32 s61, s61, {ACT_RT}")
                a.e(f"s_add_u32 s61, s61, {hex(ACT_OFF + ks0*1024)}")
            for k, (ty, i) in enumerate(items):
                comp = (k & 3) * 1024
                if ty == "W":
                    a.e(f"s_add_u32 s10, s60, {hex((i*1024 - comp) & 0xffffffff)}")
                    a.e(f"v_add_u32 v{8+k}, s10, v7")
                elif seg == 0:
                    a.e(f"v_add_u32 v{8+k}, {i*8*1280}, v{17 + (i & 1)}")
                else:
                    ks, rt = i // 4, i % 4
                    a.e(f"s_add_u32 s10, s61, {hex((rt*ACT_RT + ks*1024 - comp) & 0xffffffff)}")
                    a.e(f"v_add_u32 v{8+k}, s10, v7")

        def dma2(c):
            sl = c % NSL2
            seg = [i for i, sg in enumerate(segs) if sg[0] <= c < sg[0] + sg[1]][0]
            n = segs[seg][1]
            has_a = any(ty == "A" for ty, _ in items)
            has_w = any(ty == "W" for ty, _ in items)
            if c == 0:
                if has_w:
                    check("pp0", 42, 40, 32, lab + "_rw")
                seg_setup(0)
            if has_a and c in range(8, 32, 3):
                g = (c - 8) // 3
                a.e("s_lshr_b32 s10, s73, 2")
                a.e(f"s_add_u32 s10, s10, {g}")
                a.e("s_and_b32 s10, s10, 7")
                a.e(f"s_lshr_b32 s11, s{S_RB}, 1")
                a.e("s_lshl_b32 s11, s11, 3")
                a.e("s_add_u32 s10, s10, s11")
                a.e("s_lshl_b32 s10, s10, 7")
                a.e(f"s_add_u32 s10, s10, {hex(F_H2)}")
                a.e("v_mov_b32 v40, s10")
                a.vmem(f"buffer_load_dword v42, v40, {s4(SRD_WS)}, 0 offen sc1", f"pp1{g}")
            if has_a and c in range(10, 34, 3):
                g = (c - 10) // 3
                check(f"pp1{g}", 42, 40, 4, lab + f"_h{g}")
            if c == 10:
                seg_setup(1)
            if c == 32 and has_a:
                a.e(f"s_lshl_b32 s10, s{S_RB}, 7")
                a.e(f"s_add_u32 s10, s10, {hex(F_O)}")
                a.e("v_mov_b32 v40, s10")
                a.vmem(f"buffer_load_dword v42, v40, {s4(SRD_WS)}, 0 offen sc1", "pp2")
            if c == 34:
                if has_a:
                    check("pp2", 42, 40, 32, lab + "_o")
                seg_setup(2)
            if has_w:
                a.e("s_mul_i32 s62, s69, 10240")
            if has_a:
                a.e(f"s_lshl_b32 s63, s69, {7 if seg == 0 else 11}")
            base = sl * SLOT2 + 6 * P * 1024
            cur_m0 = None
            for k, (ty, i) in enumerate(items):
                raw = (ty == "A" and seg == 0)
                m0v = base + (k * 1024 if raw else (k & ~3) * 1024)
                off = 0 if raw else (k & 3) * 1024
                if m0v != cur_m0:
                    a.e(f"s_mov_b32 m0, {m0v}")
                    a.e("s_nop 0")
                    cur_m0 = m0v
                srd = s4(SRD_X) if raw else s4(SRD_WS)
                so = "s62" if ty == "W" else "s63"
                fl = "" if (raw or NOSC1) else " sc1"
                a.vmem(f"buffer_load_dwordx4 v{8+k}, {srd}, {so} offen offset:{off}{fl} lds", f"d2{c}")
            a.e("s_add_u32 s69, s69, 1")
            a.e(f"s_cmp_ge_u32 s69, {n}")
            a.e("s_cselect_b32 s69, 0, s69")

        for c in range(4):
            dma2(c)
        a.e("s_cmp_ge_u32 s6, 2")
        a.e(f"s_cbranch_scc1 {lab}_noe")
        a.e("s_barrier")
        a.e("s_barrier")
        a.label(f"{lab}_noe")
        dma2(4)
        dma2(5)
        issued = 6
        for c in range(44):
            a.wait_vm(f"d2{c}")
            a.e("s_barrier")
            if issued < 44 and (issued < NSL2 or issued <= c + NSL2 - 2):
                dma2(issued)
                issued += 1
            if c == BI_AFTER:
                a.e("s_barrier")
        a.e("s_endpgm")

    gen_p(0)
    a.label("fp_p1")
    a.vm = list(vm_keep)
    gen_p(1)
    a.label("fp_p2")
    a.vm = list(vm_keep)
    gen_p(2)

    a.label("fp_helper")
    a.vm = []
    a.lg = []
    a.e("s_cmp_ge_u32 s6, 2")
    a.e("s_cbranch_scc1 fh_noe")
    a.e("s_barrier")
    a.e("s_barrier")
    a.label("fh_noe")
    if PFW:
        a.e("s_waitcnt vmcnt(0)")
        a.e("v_readfirstlane_b32 s72, v42")
        a.e("s_cmp_ge_u32 s72, 32")
        a.e("s_cbranch_scc0 fh_nopfw")
        a.e(f"s_and_b32 s10, s{S_RB}, 7")
        a.e("v_lshlrev_b32 v50, 7, v0")
        a.e(f"s_mul_i32 s11, s{S_CB}, {68*5120}")
        a.e(f"s_mul_i32 s12, s10, {68*5120//8}")
        a.e("s_add_u32 s11, s11, s12")
        a.e(f"s_add_u32 s11, s11, {hex(W2F_OFF)}")
        for i in range(6):
            a.e(f"buffer_load_dword v{52+i}, v50, {s4(SRD_WS)}, s11 offen")
            a.e("s_add_u32 s11, s11, 8192" if i < 4 else f"s_add_u32 s11, s11, {43520 - 5*8192}")
        a.label("fh_nopfw")
    for i in range(4):
        a.e(f"v_mov_b32 v{20+i}, 0")
    a.e(f"v_add_u32 v24, {IMG}, v7")
    for i in range(30):
        a.lds(f"ds_write_b128 v24, v[20:23] offset:{i*1024}", "Z")
    a.e(f"s_lshl_b32 s10, s{S_CB}, 7")
    a.e(f"s_add_u32 s10, s10, {hex(F_KV)}")
    a.e("v_mov_b32 v26, s10")
    a.e(f"s_lshl_b32 s12, s{S_CB}, 13")
    a.e(f"s_add_u32 s12, s12, {hex(PART_OFF)}")
    a.e("v_add_u32 v25, s12, v7")
    make_srd(a, SRD_T, P_GW, 1280)
    a.e(f"s_mov_b32 m0, {GWL}")
    a.e("s_nop 0")
    a.e(f"buffer_load_dwordx4 v7, {s4(SRD_T)}, 0 offen lds")
    a.e(f"buffer_load_dwordx4 v7, {s4(SRD_T)}, 0 offen offset:1024 lds")
    a.e("s_mov_b32 s60, 0")
    a.e("s_mov_b32 s61, 0")
    a.e("v_mov_b32 v30, v0")
    a.e("s_waitcnt vmcnt(0) lgkmcnt(0)")
    a.lg = []
    for i in range(8):
        a.e("s_barrier")
    a.e("s_mov_b32 s60, 8")
    a.label("fh_wait")
    a.e(f"buffer_load_dword v21, v26, {s4(SRD_WS)}, 0 offen sc1")
    for i in range(2):
        a.e("s_cmp_ge_u32 s60, %d" % (BI_AFTER + 1))
        a.e(f"s_cbranch_scc1 fh_nobar{i}")
        a.e("s_barrier")
        a.e("s_add_u32 s60, s60, 1")
        a.label(f"fh_nobar{i}")
    a.e("s_waitcnt vmcnt(0)")
    a.e("v_readfirstlane_b32 s72, v21")
    a.e("s_cmp_ge_u32 s72, 64")
    a.e("s_cbranch_scc0 fh_wait")
    for r in range(7):
        a.e(f"buffer_load_dwordx4 {vr(64+4*r,4)}, v25, {s4(SRD_WS)}, 0 offen" + (f" offset:{1024*r}" if r < 4 else "") + " sc1")
        if r == 3:
            a.e("v_add_u32 v25, 4096, v25")
        if r >= 4:
            a.e("v_add_u32 v25, 1024, v25")
    a.e("s_cmp_ge_u32 s60, %d" % (BI_AFTER + 1))
    a.e("s_cbranch_scc1 fh_loop")
    a.e("s_barrier")
    a.e("s_add_u32 s60, s60, 1")
    a.label("fh_loop")
    a.e("s_cmp_ge_u32 s60, %d" % (BI_AFTER + 1) + "")
    a.e("s_cbranch_scc1 fh_round")
    a.e("s_barrier")
    a.e("s_add_u32 s60, s60, 1")
    a.label("fh_round")
    F, H_, RM, DD, E0, AD = 30, 35, 36, 37, 38, 39
    a.e(f"v_mul_u32_u24 v{H_}, 625, v{F}")
    a.e(f"v_lshrrev_b32 v{H_}, 16, v{H_}")
    a.e(f"v_mul_u32_u24 v{RM}, 105, v{H_}")
    a.e(f"v_sub_u32 v{RM}, v{F}, v{RM}")
    a.e(f"v_mul_u32_u24 v{DD}, 13108, v{RM}")
    a.e(f"v_lshrrev_b32 v{DD}, 16, v{DD}")
    a.e(f"v_mul_u32_u24 v{E0}, 5, v{DD}")
    a.e(f"v_sub_u32 v{E0}, v{RM}, v{E0}")
    a.e(f"v_lshlrev_b32 v{E0}, 2, v{E0}")
    a.e(f"v_mul_u32_u24 v{H_}, 20, v{H_}")
    a.e(f"v_add_u32 v{AD}, v{H_}, v{E0}")
    a.e(f"v_mul_u32_u24 v{AD}, 192, v{AD}")
    a.e(f"v_add_u32 v40, v{H_}, v{DD}")
    a.e(f"v_lshl_add_u32 v{AD}, v40, 1, v{AD}")
    a.e(f"v_add_u32 v{AD}, {IMG}, v{AD}")
    a.e(f"v_mul_u32_u24 v43, 192, v{H_}")
    a.e(f"v_add_u32 v40, v{H_}, v{E0}")
    a.e(f"v_lshl_add_u32 v43, v40, 1, v43")
    a.e(f"v_add_u32 v43, {IMG+15360}, v43")
    a.e(f"v_cmp_gt_u32 vcc, 420, v{F}")
    a.e("s_mov_b64 s[56:57], vcc")
    a.e(f"v_cmp_gt_u32 s[52:53], 20, v{DD}")
    a.e(f"v_cmp_eq_u32 s[54:55], 20, v{DD}")
    a.e("s_and_b64 s[52:53], s[52:53], s[56:57]")
    a.e("s_and_b64 s[54:55], s[54:55], s[56:57]")
    a.e("s_waitcnt vmcnt(0)")
    a.e("v_cvt_pk_bf16_f32 v32, v64, v65")
    a.e("v_cvt_pk_bf16_f32 v33, v66, v67")
    for k in range(24):
        a.e(f"v_mov_b32 v{64+k}, v{68+k}")
    a.e("v_lshrrev_b32 v41, 16, v32")
    a.e("v_lshrrev_b32 v42, 16, v33")
    a.e("s_mov_b64 s[66:67], exec")
    a.e("s_mov_b64 exec, s[52:53]")
    a.e(f"ds_write_b16 v{AD}, v32")
    a.e(f"ds_write_b16 v{AD}, v41 offset:192")
    a.e(f"ds_write_b16 v{AD}, v33 offset:384")
    a.e(f"ds_write_b16 v{AD}, v42 offset:576")
    a.e("s_mov_b64 exec, s[54:55]")
    a.e("s_cbranch_execz fh_noz")
    for ee in range(20):
        a.e(f"ds_write_b64 v43, v[32:33] offset:{192*ee}")
    a.label("fh_noz")
    a.e("s_mov_b64 exec, s[66:67]")
    a.e(f"v_add_u32 v{F}, 64, v{F}")
    a.e("s_add_u32 s61, s61, 1")
    a.e("s_cmp_lt_u32 s61, 7")
    a.e("s_cbranch_scc1 fh_loop")
    a.e("s_waitcnt lgkmcnt(0)")
    a.label("fh_rest")
    a.e("s_cmp_ge_u32 s60, %d" % (BI_AFTER + 1) + "")
    a.e("s_cbranch_scc1 fh_bi")
    a.e("s_barrier")
    a.e("s_add_u32 s60, s60, 1")
    a.e("s_branch fh_rest")
    a.label("fh_bi")
    a.e("s_barrier")
    a.e("s_endpgm")


def repack_issue(a):
    a.e("s_min_u32 s53, s9, 2")
    a.e(f"s_mul_i32 s54, s{S_RB}, 3")
    a.e("s_add_u32 s54, s54, s53")
    a.e("s_min_u32 s54, s54, 87")
    a.e(f"s_mov_b32 s59, {hex(W2F_OFF)}")
    a.e("s_cmp_lt_u32 s54, 20")
    a.e(f"s_cselect_b32 s59, {hex(WQF_OFF)}, s59")
    a.e("s_cselect_b32 s60, 20, 68")
    a.e("s_cselect_b32 s61, 0, 20")
    a.e("s_sub_u32 s54, s54, s61")
    a.e(f"s_mul_i32 s60, s60, s{S_CB}")
    a.e("s_add_u32 s54, s54, s60")
    a.e("s_mul_i32 s54, s54, 5120")
    a.e("s_add_u32 s54, s54, s59")
    a.e("v_add_u32 v10, s54, v7")
    a.e("v_lshrrev_b32 v12, 2, v0")
    a.e("v_mul_u32_u24 v12, 192, v12")
    a.e("v_and_b32 v13, 3, v0")
    a.e("v_lshl_add_u32 v12, v13, 3, v12")
    a.e(f"s_and_b32 s60, s{S_CB}, 1")
    a.e("s_lshl_b32 s61, s60, 5")
    a.e("s_mul_i32 s59, s53, 6144")
    a.e("s_add_u32 s61, s61, s59")
    a.e(f"s_add_u32 s61, s61, {WBASE + 6*WS1}")
    a.e("v_add_u32 v12, s61, v12")
    a.e("v_and_b32 v13, 1, v3")
    a.e("v_lshlrev_b32 v13, 5, v13")
    a.e("s_cmp_eq_u32 s60, 0")
    a.e("s_cselect_b32 s61, 1, -1")
    a.e("v_mul_lo_u32 v13, v13, s61")
    a.e("v_add_u32 v8, v12, v13")
    a.e("v_sub_u32 v9, v12, v13")


def repack_reads(a):
    for t in range(5):
        for hf in range(2):
            a.lds(f"ds_read_b64_tr_b16 {vr(208+t*4+2*hf,2)}, v{8 + (t & 1)} offset:{16*hf*192 + t*32}", "RPR")


def repack_store(a):
    a.wait_lg("RPR")
    for t in range(4):
        a.vmem(f"buffer_store_dwordx4 {vr(208+4*t,4)}, v10, {s4(SRD_WS)}, 0 offen offset:{1024*t} sc1", "rst")
    a.e("v_add_u32 v10, 4096, v10")
    a.vmem(f"buffer_store_dwordx4 {vr(224,4)}, v10, {s4(SRD_WS)}, 0 offen sc1", "rst")
    a.nop(2)


def phi4(a, c, T, out0, out1):
    p0, p1 = T, T + 1
    f = T + 2
    ex = T + 6
    if FAITH:
        a.e(f"v_cvt_pk_bf16_f32 v{p0}, v{c}, v{c+1}")
        a.e(f"v_cvt_pk_bf16_f32 v{p1}, v{c+2}, v{c+3}")
        unpack(a, f, f + 1, p0)
        unpack(a, f + 2, f + 3, p1)
        src = f
    else:
        src = c
    a.e(f"v_pk_mul_f32 {vr(ex,2)}, {vr(src,2)}, s[60:61]")
    a.e(f"v_pk_mul_f32 {vr(ex+2,2)}, {vr(src+2,2)}, s[60:61]")
    for i in range(4):
        a.e(f"v_exp_f32 v{ex+i}, v{ex+i}")
    a.e(f"v_pk_add_f32 {vr(f,2)}, {vr(src,2)}, s[62:63]")
    a.e(f"v_pk_add_f32 {vr(f+2,2)}, {vr(src+2,2)}, s[62:63]")
    for i in range(4):
        a.e(f"v_med3_f32 v{f+i}, v{f+i}, v{ex+i}, 1.0")
    if FAITH:
        a.e(f"v_cvt_pk_bf16_f32 v{p0}, v{f}, v{f+1}")
        a.e(f"v_cvt_pk_bf16_f32 v{p1}, v{f+2}, v{f+3}")
        unpack(a, f, f + 1, p0)
        unpack(a, f + 2, f + 3, p1)
    a.e(f"v_pk_add_f32 {vr(f,2)}, {vr(f,2)}, s[64:65]")
    a.e(f"v_pk_add_f32 {vr(f+2,2)}, {vr(f+2,2)}, s[64:65]")
    a.e(f"v_cvt_pk_bf16_f32 v{out0}, v{f}, v{f+1}")
    a.e(f"v_cvt_pk_bf16_f32 v{out1}, v{f+2}, v{f+3}")


def phi_consts(a):
    a.e(f"s_mov_b32 s60, {LOG2E}")
    a.e(f"s_mov_b32 s61, {LOG2E}")
    a.e("s_mov_b32 s62, 1.0")
    a.e("s_mov_b32 s63, 1.0")
    a.e("s_mov_b32 s64, 0x358637bd")
    a.e("s_mov_b32 s65, 0x358637bd")


def loop_a_cons(a, nb, arows, wfrag, afrag, acc, reads, regs, swap, cinit=None, post_repack=None):
    def bump(c):
        pass

    make_srd(a, SRD_T, P_DBG, 256)
    a.e("v_mov_b32 v254, 32")
    a.e("s_barrier")
    a.stamp("a0")
    for t in range(nb):
        reads(0, t)
    for s in range(20):
        if os.environ.get("ASTAMP") and s in (2, 4, 6, 8, 10, 12, 14, 16, 18):
            a.stamp(f"a{s}")
        if s == 2:
            repack_reads(a)
        if s == 3:
            a.vmem(f"buffer_load_dword v255, v254, {s4(SRD_T)}, 0 offen sc1", "rst")
            repack_store(a)
            if post_repack:
                post_repack()
        if s + 1 < 20:
            if s == RWPUB:
                a.wait_vm("rst")
            a.e("s_barrier")
            bump(s + 1)
            if s == RWPUB:
                lab = f"fc_norp{swap}"
                a.e("s_cmp_lg_u32 s9, 0")
                a.e(f"s_cbranch_scc1 {lab}")
                lg = list(a.lg)
                vm = list(a.vm)
                a.e("v_readfirstlane_b32 s72, v255")
                a.e("s_cmp_ge_u32 s72, 1")
                a.e(f"s_cbranch_scc1 {lab}_p_done")
                make_srd(a, SRD_T, P_DBG, 256)
                poll(a, s4(SRD_T), 254, 1, lab + "_p", tmp=255)
                a.e(f"s_lshl_b32 s10, s{S_CB}, 7")
                a.e(f"s_add_u32 s10, s10, {hex(F_RW)}")
                flag_add(a, s4(SRD_WS), "s10", 254)
                a.label(lab)
                a.lg = lg
                a.vm = vm
        for t in range(nb):
            if s + 1 < 20:
                reads(s + 1, t)
            need = [("R", s, t)]
            if t == 0:
                need += [("A", s, r) for r in range(arows)]
            a.wait_lg(need)
            for rt in range(arows):
                d = acc(rt, t)
                cin = d if s else (cinit(t) if cinit else "0")
                if swap:
                    a.e(f"v_mfma_f32_16x16x32_bf16 {d}, {wfrag(s,t)}, {afrag(s,rt)}, {cin}")
                else:
                    a.e(f"v_mfma_f32_16x16x32_bf16 {d}, {afrag(s,rt)}, {wfrag(s,t)}, {cin}")


def prefetch_a(a):
    a.e("s_lshl_b32 s53, s4, 2")
    a.e("s_add_u32 s53, s53, s9")
    a.e("s_lshr_b32 s54, s3, 2")
    a.e(f"s_mul_i32 s54, s54, {1024*1280}")
    a.e(f"s_mul_i32 s55, s53, {80*128}")
    a.e("s_add_u32 s54, s54, s55")
    a.e("v_lshlrev_b32 v32, 7, v0")
    a.e(f"buffer_load_dword v250, v32, {s4(SRD_X)}, s54 offen")
    a.e("v_and_b32 v33, 15, v0")
    a.e("v_lshlrev_b32 v33, 7, v33")
    a.e("s_add_u32 s54, s54, 8192")
    a.e(f"buffer_load_dword v251, v33, {s4(SRD_X)}, s54 offen")
    a.e("s_and_b32 s56, s3, 3")
    make_srd(a, SRD_T, P_WQKV, 640 * 3840)
    a.e("v_min_u32 v32, 39, v0")
    a.e("v_lshrrev_b32 v33, 3, v32")
    a.e("s_mul_i32 s54, s53, 5")
    a.e("v_add_u32 v33, s54, v33")
    a.e("v_mul_u32_u24 v33, 3840, v33")
    a.e("v_bfe_u32 v34, v32, 2, 1")
    a.e("v_mul_u32_u24 v34, 1280, v34")
    a.e("v_add_u32 v33, v33, v34")
    a.e("v_and_b32 v34, 3, v32")
    a.e("v_mul_u32_u24 v34, 106, v34")
    a.e("v_and_b32 v34, 0xfffffffc, v34")
    a.e("v_add_u32 v33, v33, v34")
    a.e("s_mul_i32 s54, s56, 320")
    a.e("s_add_u32 s54, s54, 1280")
    a.e(f"buffer_load_dword v252, v33, {s4(SRD_T)}, s54 offen")
    make_srd(a, SRD_T, P_W1, 640 * 3072)
    a.e("v_min_u32 v32, 29, v0")
    a.e("v_mul_u32_u24 v33, 10923, v32")
    a.e("v_lshrrev_b32 v33, 16, v33")
    a.e("v_mul_u32_u24 v34, 6, v33")
    a.e("v_sub_u32 v34, v32, v34")
    a.e("s_mul_i32 s54, s53, 5")
    a.e("v_add_u32 v33, s54, v33")
    a.e("v_mul_u32_u24 v33, 3072, v33")
    a.e("v_lshl_add_u32 v33, v34, 7, v33")
    a.e("s_mul_i32 s54, s56, 768")
    a.e(f"buffer_load_dword v253, v33, {s4(SRD_T)}, s54 offen")


def kv_duties(a):
    a.e("s_add_u32 s10, s2, s9")
    a.e("s_cmp_lg_u32 s10, 0")
    a.e("s_cbranch_scc1 fp_noflag")
    make_srd(a, SRD_T, P_DBG, 256)
    a.e("v_lshlrev_b32 v24, 7, v0")
    a.e(f"v_add_u32 v24, {hex(FLAG_OFF)}, v24")
    a.e("v_mov_b32 v25, 0")
    for i in range(3):
        a.e(f"buffer_store_dword v25, v24, {s4(SRD_WS)}, 0 offen sc1")
        a.e("v_add_u32 v24, 8192, v24")
    a.e("s_waitcnt vmcnt(0)")
    a.e("s_mov_b32 s10, 32")
    flag_add(a, s4(SRD_T), "s10", 24)
    a.label("fp_noflag")

    a.e("s_cmp_lg_u32 s5, 0")
    a.e("s_cbranch_scc1 fp_nozero")
    make_srd(a, SRD_T, P_DBG, 256)
    a.e("s_lshl_b32 s10, s7, 13")
    a.e("s_lshl_b32 s11, s9, 11")
    a.e("s_add_u32 s10, s10, s11")
    a.e(f"s_add_u32 s10, s10, {hex(PART_OFF)}")
    a.e("v_lshl_add_u32 v24, v0, 4, s10")
    for i in range(4):
        a.e(f"v_mov_b32 v{28+i}, 0")
    a.e(f"buffer_store_dwordx4 v[28:31], v24, {s4(SRD_WS)}, 0 offen sc1")
    a.e(f"buffer_store_dwordx4 v[28:31], v24, {s4(SRD_WS)}, 0 offen offset:1024 sc1")
    a.e("s_waitcnt vmcnt(0)")
    a.e("s_lshl_b32 s10, s7, 2")
    flag_add(a, s4(SRD_T), "s10", 24)
    a.label("fp_nozero")


def code_prefetch(a):
    a.e("s_getpc_b64 s[54:55]")
    a.label("fc_pc0")
    a.e("s_sub_u32 s54, s54, fc_pc0-fused_kernel")
    a.e("s_subb_u32 s55, s55, 0")
    a.e("s_lshl_b32 s56, s4, 2")
    a.e("s_add_u32 s56, s56, s9")
    a.e("s_and_b32 s56, s56, 15")
    a.e("s_lshl_b32 s56, s56, 13")
    a.e("v_lshlrev_b32 v32, 7, v0")
    a.e("v_add_u32 v32, s56, v32")
    a.e("v_min_u32 v32, f_code_end-fused_kernel-4, v32")
    a.e("v_and_b32 v32, 0xfffffffc, v32")
    a.e("global_load_dword v11, v32, s[54:55]")


def tlb_warm(a):
    a.e("s_cmp_lg_u32 s9, 1")
    a.e("s_cbranch_scc1 fc_notlb")
    spots = [0]
    for pg in (1, 2, 3, 4):
        r = -(-(pg * (2 << 20)) // ACT_RT)
        sp = ACT_OFF + r * ACT_RT + 68 * 1024
        assert sp >> 21 == pg and r < 128
        spots.append(sp)
    spots += [PART_OFF + 0x20000, WQF_OFF + 0xE0000, FLAG_OFF - 0x10000]
    a.e("s_mov_b64 exec, 1")
    for sp in spots:
        a.e(f"v_mov_b32 v32, {hex(sp)}")
        a.e(f"buffer_load_dword v11, v32, {s4(SRD_WS)}, 0 offen")
    a.e("v_mov_b32 v32, 0")
    for ptr, nb in ((P_WO, 640 * 1280), (P_W2, 1536 * 1280), (P_B1, 3072), (P_B2, 1280), (P_GW, 1280), (P_OUT, 2048 * 1280)):
        make_srd(a, SRD_T, ptr, nb)
        a.e(f"buffer_load_dword v11, v32, {s4(SRD_T)}, 0 offen")
    a.e(f"v_mov_b32 v32, {hex(2048*1280 - 4)}")
    a.e(f"buffer_load_dword v11, v32, {s4(SRD_T)}, 0 offen")
    a.e("s_mov_b64 exec, -1")
    a.label("fc_notlb")


def gen_consumers(a):
    if CPF:
        code_prefetch(a)
    a.e("s_waitcnt lgkmcnt(0)")
    make_srd(a, SRD_X, P_X, 2048 * 1280)
    make_srd(a, SRD_WS, P_WS, WS_USED)
    if TLBW:
        tlb_warm(a)
    if PFA:
        prefetch_a(a)
    repack_issue(a)
    a.e("v_lshrrev_b32 v14, 1, v2")
    a.e("v_xor_b32 v14, v14, v3")
    a.e("v_lshlrev_b32 v15, 7, v2")
    a.e("v_lshl_add_u32 v17, v14, 4, v15")
    a.e("s_cmp_ge_u32 s6, 2")
    a.e("s_cbranch_scc1 fc_h")
    vm0 = list(a.vm)
    kv_duties(a)
    a.e("v_lshrrev_b32 v19, 2, v0")
    a.e("v_mul_u32_u24 v19, 192, v19")
    a.e("v_and_b32 v20, 3, v0")
    a.e("v_lshl_add_u32 v19, v20, 3, v19")
    a.e("s_lshl_b32 s11, s8, 5")
    a.e(f"s_add_u32 s11, s11, {WBASE}")
    a.e("v_add_u32 v19, s11, v19")
    a.e("v_and_b32 v20, 1, v3")
    a.e("v_lshlrev_b32 v20, 5, v20")
    a.e("s_cmp_eq_u32 s8, 0")
    a.e("s_cselect_b32 s11, 1, -1")
    a.e("v_mul_lo_u32 v20, v20, s11")
    a.e("v_add_u32 v24, v19, v20")
    a.e("v_sub_u32 v25, v19, v20")
    a.e(f"v_add_u32 v18, {4*WS1}, v24")
    a.e(f"v_add_u32 v19, {4*WS1}, v25")
    a.e("s_lshl_b32 s14, s9, 12")
    a.e("v_add_u32 v26, s14, v17")
    a.e("v_xor_b32 v27, 64, v26")
    ACC, WB, AB = 32, 112, 192
    if PFA:
        a.e("s_waitcnt vmcnt(0)")
    a.e("s_lshl_b32 s12, s9, 6")
    a.e("v_add_u32 v16, s12, v0")
    a.e("s_lshl_b32 s12, s7, 13")
    a.e(f"s_add_u32 s12, s12, {hex(PART_OFF)}")
    for it in range(7):
        I, H_, RM, DD, E_, Dg, Eg, TI = [32 + k for k in range(8)]
        AD = 240 + it
        a.e(f"v_add_u32 v{I}, {256*it}, v16")
        a.e(f"v_mul_u32_u24 v{H_}, 1249, v{I}")
        a.e(f"v_lshrrev_b32 v{H_}, 19, v{H_}")
        a.e(f"v_mul_u32_u24 v{RM}, 420, v{H_}")
        a.e(f"v_sub_u32 v{RM}, v{I}, v{RM}")
        a.e(f"v_mul_u32_u24 v{DD}, 3277, v{RM}")
        a.e(f"v_lshrrev_b32 v{DD}, 16, v{DD}")
        a.e(f"v_mul_u32_u24 v{E_}, 20, v{DD}")
        a.e(f"v_sub_u32 v{E_}, v{RM}, v{E_}")
        a.e(f"v_mul_u32_u24 v{H_}, 20, v{H_}")
        a.e(f"v_cmp_eq_u32 vcc, 20, v{DD}")
        a.e(f"v_add_u32 v{Eg}, v{H_}, v{E_}")
        a.e(f"v_add_u32 v{Dg}, v{H_}, v{DD}")
        a.e(f"v_cndmask_b32 v{Dg}, v{Dg}, v{Eg}, vcc")
        a.e(f"v_lshrrev_b32 v{TI}, 4, v{Dg}")
        a.e(f"v_lshrrev_b32 v{AD}, 4, v{Eg}")
        a.e(f"v_lshl_add_u32 v{AD}, v{TI}, 1, v{AD}")
        a.e(f"v_add_u32 v{TI}, 13, v{TI}")
        a.e(f"v_cndmask_b32 v{TI}, v{AD}, v{TI}, vcc")
        a.e(f"v_and_b32 v{Eg}, 15, v{Eg}")
        a.e(f"v_cndmask_b32 v{Eg}, v{Eg}, 0, vcc")
        a.e(f"v_bfe_u32 v{AD}, v{Dg}, 2, 2")
        a.e(f"v_lshl_add_u32 v{AD}, v{AD}, 4, v{Eg}")
        a.e(f"v_lshlrev_b32 v{AD}, 4, v{AD}")
        a.e(f"v_lshl_add_u32 v{AD}, v{TI}, 10, v{AD}")
        a.e(f"v_and_b32 v{Dg}, 3, v{Dg}")
        a.e(f"v_lshl_add_u32 v{AD}, v{Dg}, 2, v{AD}")
        if it == 6:
            a.e(f"v_cmp_gt_u32 vcc, 1680, v{I}")
            a.e("s_nop 1")
            a.e(f"v_cndmask_b32 v{AD}, 0, v{AD}, vcc")
            a.e("s_mov_b64 s[50+28:51+28], vcc".replace("50+28:51+28", "78:79"))
        a.e(f"v_add_u32 v{AD}, {SCR}, v{AD}")
        a.e(f"v_lshl_add_u32 v{247+it}, v{I}, 2, s12")

    def reads_kv(s, t):
        if t < 2:
            a.lds(f"ds_read_b128 {vr(AB+((s&1)*2+t)*4,4)}, v{26+(s&1)} offset:{t*2048 + ((s//2)%4)*XS}", ("A", s, t))
        for hf in range(2):
            sl = s % NSL1
            off = (t // 5) * 6144 + 16 * hf * 192 + (t % 5) * 32 + (sl % 4) * WS1
            v = (24 if sl < 4 else 18) + ((t % 5) % 2)
            a.lds(f"ds_read_b64_tr_b16 {vr(WB+((s&1)*10+t)*4+2*hf,2)}, v{v} offset:{off}", ("R", s, t))

    loop_a_cons(a, 10, 2, lambda s, t: vr(WB + ((s & 1) * 10 + t) * 4, 4),
                lambda s, rt: vr(AB + ((s & 1) * 2 + rt) * 4, 4),
                lambda rt, t: vr(ACC + (t * 2 + rt) * 4, 4), reads_kv, [24, 25], False)
    a.stamp("aloop")
    a.e("s_barrier")
    phi_consts(a)
    a.nop(4)
    PK, T = 112, 152
    for t in range(5):
        for rt in range(2):
            c = ACC + (t * 2 + rt) * 4
            phi4(a, c, T + (12 if rt else 0), PK + t * 4 + rt * 2, PK + t * 4 + rt * 2 + 1)
    for t in range(5, 10):
        for rt in range(2):
            c = ACC + (t * 2 + rt) * 4
            a.e(f"v_cvt_pk_bf16_f32 v{PK+t*4+rt*2}, v{c}, v{c+1}")
            a.e(f"v_cvt_pk_bf16_f32 v{PK+t*4+rt*2+1}, v{c+2}, v{c+3}")
    ONES = 176
    for i in range(4):
        a.e(f"v_mov_b32 v{ONES+i}, 0x3f803f80")
    a.nop(2)
    D2 = 32
    pairs = [(i, j) for i in range(5) for j in range(5) if abs(i - j) <= 1]
    for (i, j) in pairs:
        a.e(f"v_mfma_f32_16x16x32_bf16 {vr(D2+(2*i+j)*4,4)}, {vr(PK+i*4,4)}, {vr(PK+(5+j)*4,4)}, 0")
    for i in range(5):
        a.e(f"v_mfma_f32_16x16x32_bf16 {vr(D2+(13+i)*4,4)}, {vr(PK+i*4,4)}, {vr(ONES,4)}, 0")
    a.e("s_mul_i32 s12, s9, 18432")
    a.e(f"s_add_u32 s12, s12, {SCR}")
    a.e("v_add_u32 v14, s12, v7")
    make_srd(a, SRD_T, P_DBG, 256)
    a.e("s_lshl_b32 s10, s7, 2")
    a.e("v_mov_b32 v20, s10")
    a.vmem(f"buffer_load_dword v22, v20, {s4(SRD_T)}, 0 offen sc1", "zp")
    a.nop(2)
    for k in range(18):
        a.lds(f"ds_write_b128 v14, {vr(D2+k*4,4)} offset:{k*1024}", "W")
    a.wait_lg_all()
    a.e("s_barrier")
    for it in range(7):
        b = 112 + it * 4
        for w in range(4):
            a.lds(f"ds_read_b32 v{b+w}, v{240+it} offset:{w*18432}", ("Q", it))
    a.wait_lg_all()
    a.e("s_barrier")
    a.wait_vm("zp")
    a.e("v_readfirstlane_b32 s72, v22")
    a.e("s_cmp_ge_u32 s72, 4")
    a.e("s_cbranch_scc1 fc_zp_done")
    poll(a, s4(SRD_T), 20, 4, "fc_zp")
    for it in range(7):
        b = 112 + it * 4
        a.e(f"v_add_f32 v{b}, v{b}, v{b+1}")
        a.e(f"v_add_f32 v{b+2}, v{b+2}, v{b+3}")
        a.e(f"v_add_f32 v{b}, v{b}, v{b+2}")
        if it == 6:
            a.e("s_mov_b64 exec, s[78:79]")
        a.vmem(f"buffer_atomic_add_f32 v{b}, v{247+it}, {s4(SRD_WS)}, 0 offen sc0 sc1", "st")
        if it == 6:
            a.e("s_mov_b64 exec, -1")
    a.e("s_lshl_b32 s71, s7, 7")
    a.e(f"s_add_u32 s71, s71, {hex(F_KV)}")
    a.e("s_branch fc_b")

    a.label("fc_h")
    a.vm = vm0
    a.lg = []
    a.nstamp = 1
    a.e("v_lshrrev_b32 v14, 5, v0")
    a.e("v_mul_u32_u24 v14, 3072, v14")
    a.e("v_bfe_u32 v15, v0, 2, 3")
    a.e("v_lshl_add_u32 v14, v15, 7, v14")
    a.e("v_and_b32 v16, 3, v0")
    a.e("v_lshl_add_u32 v14, v16, 3, v14")
    a.e(f"v_add_u32 v14, {WBASE}, v14")
    a.e("v_lshrrev_b32 v15, 1, v15")
    a.e("s_and_b32 s13, s9, 1")
    for t in range(6):
        a.e("s_mul_i32 s12, s13, 6")
        a.e(f"s_add_u32 s12, s12, {t}")
        a.e("s_and_b32 s11, s12, 3")
        a.e("s_lshr_b32 s12, s12, 2")
        a.e("s_lshl_b32 s12, s12, 10")
        a.e("v_xor_b32 v16, s11, v15")
        a.e(f"v_lshl_add_u32 v{20+t}, v16, 5, v14")
        a.e(f"v_add_u32 v{20+t}, s12, v{20+t}")
        a.e(f"v_add_u32 v{240+t}, {4*WS1}, v{20+t}")
    a.e("s_lshr_b32 s12, s9, 1")
    a.e("s_lshl_b32 s12, s12, 13")
    a.e("v_add_u32 v26, s12, v17")
    a.e("v_xor_b32 v27, 64, v26")
    ACCH, WBH, ABH = 32, 128, 176
    BB = 228

    def load_bias():
        make_srd(a, SRD_T, P_B1, 3072)
        a.e("s_mul_i32 s12, s7, 384")
        a.e("s_mul_i32 s11, s13, 192")
        a.e("s_add_u32 s12, s12, s11")
        a.e("v_lshl_add_u32 v28, v3, 3, s12")
        for t in range(6):
            a.vmem(f"buffer_load_dwordx2 {vr(BB+2*t,2)}, v28, {s4(SRD_T)}, 0 offen offset:{32*t}", "bias")

    def reads_h(s, t):
        if t < 4:
            a.lds(f"ds_read_b128 {vr(ABH+((s&1)*4+t)*4,4)}, v{26+(s&1)} offset:{t*2048 + ((s//2)%4)*XS}", ("A", s, t))
        for hf in range(2):
            sl = s % NSL1
            a.lds(f"ds_read_b64_tr_b16 {vr(WBH+((s&1)*6+t)*4+2*hf,2)}, v{(20 if sl < 4 else 240)+t} offset:{2*hf*3072 + (sl%4)*WS1}", ("R", s, t))

    loop_a_cons(a, 6, 4, lambda s, t: vr(WBH + ((s & 1) * 6 + t) * 4, 4),
                lambda s, rt: vr(ABH + ((s & 1) * 4 + rt) * 4, 4),
                lambda rt, t: vr(ACCH + (t * 4 + rt) * 4, 4), reads_h, [20, 21, 22, 23, 24, 25], True, None, load_bias)
    a.stamp("aloop")
    a.e("s_barrier")
    a.e("s_lshl_b32 s12, s5, 3")
    a.e("s_lshr_b32 s11, s9, 1")
    a.e("s_lshl_b32 s11, s11, 2")
    a.e("s_add_u32 s12, s12, s11")
    a.e(f"s_mul_i32 s12, s12, {ACT_RT}")
    a.e("s_mul_i32 s11, s7, 6")
    a.e("s_mul_i32 s10, s13, 3")
    a.e("s_add_u32 s11, s11, s10")
    a.e(f"s_add_u32 s11, s11, {20 + ACT_OFF // 1024}")
    a.e("s_lshl_b32 s11, s11, 10")
    a.e("s_add_u32 s12, s12, s11")
    a.e("v_lshrrev_b32 v14, 1, v3")
    a.e("v_lshl_add_u32 v14, v14, 4, v2")
    a.e("v_lshlrev_b32 v14, 4, v14")
    a.e("v_and_b32 v15, 1, v3")
    a.e("v_lshl_add_u32 v14, v15, 9, v14")
    for rt in range(4):
        a.e(f"v_add_u32 v{8+rt}, s12, v14")
        a.e(f"s_add_u32 s12, s12, {ACT_RT}")
    a.wait_vm("bias")
    T = 128
    for tp in range(3):
        if True:
            for h in range(2):
                t = 2 * tp + h
                unpack(a, T + 4 * h, T + 4 * h + 1, BB + 2 * t)
                unpack(a, T + 4 * h + 2, T + 4 * h + 3, BB + 2 * t + 1)
        for rt in range(4):
            O = T + 24 + ((tp * 4 + rt) % 4) * 4
            for h in range(2):
                t = 2 * tp + h
                c = ACCH + (t * 4 + rt) * 4
                p = T + 8 + h * 8
                f = p + 2
                bf = T + 4 * h
                o = O + 2 * h
                if FAITH_H:
                    a.e(f"v_cvt_pk_bf16_f32 v{p}, v{c}, v{c+1}")
                    a.e(f"v_cvt_pk_bf16_f32 v{p+1}, v{c+2}, v{c+3}")
                    unpack(a, f, f + 1, p)
                    unpack(a, f + 2, f + 3, p + 1)
                    a.e(f"v_pk_add_f32 {vr(f,2)}, {vr(f,2)}, {vr(bf,2)}")
                    a.e(f"v_pk_add_f32 {vr(f+2,2)}, {vr(f+2,2)}, {vr(bf+2,2)}")
                    a.e(f"v_cvt_pk_bf16_f32 v{p}, v{f}, v{f+1}")
                    a.e(f"v_cvt_pk_bf16_f32 v{p+1}, v{f+2}, v{f+3}")
                    a.e(f"v_pk_max_i16 v{p}, v{p}, 0")
                    a.e(f"v_pk_max_i16 v{p+1}, v{p+1}, 0")
                    unpack(a, f, f + 1, p)
                    unpack(a, f + 2, f + 3, p + 1)
                else:
                    a.e(f"v_pk_add_f32 {vr(f,2)}, {vr(c,2)}, {vr(bf,2)}")
                    a.e(f"v_pk_add_f32 {vr(f+2,2)}, {vr(c+2,2)}, {vr(bf+2,2)}")
                    for i in range(4):
                        a.e(f"v_max_f32 v{f+i}, 0, v{f+i}")
                a.e(f"v_pk_mul_f32 {vr(f,2)}, {vr(f,2)}, {vr(f,2)}")
                a.e(f"v_pk_mul_f32 {vr(f+2,2)}, {vr(f+2,2)}, {vr(f+2,2)}")
                a.e(f"v_cvt_pk_bf16_f32 v{o}, v{f}, v{f+1}")
                a.e(f"v_cvt_pk_bf16_f32 v{o+1}, v{f+2}, v{f+3}")
            a.nop(2)
            a.e(f"v_permlane16_swap_b32 v{O}, v{O+2}")
            a.e(f"v_permlane16_swap_b32 v{O+1}, v{O+3}")
            a.nop(1)
            a.vmem(f"buffer_store_dwordx4 {vr(O,4)}, v{8+rt}, {s4(SRD_WS)}, 0 offen offset:{tp*1024} sc1", "st")
    a.e("s_lshl_b32 s71, s5, 3")
    a.e("s_add_u32 s71, s71, s7")
    a.e("s_lshl_b32 s71, s71, 7")
    a.e(f"s_add_u32 s71, s71, {hex(F_H2)}")

    a.label("fc_b")
    a.vm = ["st"]
    a.lg = []
    a.nstamp = 11 if os.environ.get("ASTAMP") else 3
    a.stamp("aend")
    a.e(f"s_lshl_b32 s10, s{S_RB}, 2")
    a.e("s_add_u32 s10, s10, s9")
    a.e("s_lshl_b32 s11, s10, 4")
    a.e("v_add_u32 v4, s11, v2")
    a.e("v_lshlrev_b32 v6, 4, v3")
    a.e("s_lshl_b32 s12, s9, 10")
    a.e("s_add_u32 s12, s12, 10240")
    a.e("v_add_u32 v8, s12, v7")
    a.e("v_mov_b32 v9, v7")
    a.e("s_lshl_b32 s12, s9, 11")
    a.e("s_add_u32 s12, s12, 10240")
    a.e("v_add_u32 v10, s12, v17")
    a.e("v_xor_b32 v11, 64, v10")
    make_srd(a, SRD_X, P_B2, 1280)
    make_srd(a, 56, P_OUT, 2048 * 1280)
    a.e("s_mul_i32 s69, s73, 10")
    a.e("s_lshr_b32 s69, s69, 5")
    a.e("s_lshl_b32 s70, s69, 7")
    a.e(f"s_add_u32 s70, s70, {GWL}")
    a.e("v_add_u32 v6, s70, v6")
    ACC, WB, AB, GA, GF = 32, 64, 104, 56, 152
    ACA = 112
    B2 = 240
    a.e(f"v_mov_b32 v{GA}, 0")

    def reads(s, t):
        ks = s % 2
        if t == 0:
            if s < 20:
                a.lds(f"ds_read_b128 {vr(AB+(s&1)*4,4)}, v{10+ks}", ("A", s, 0))
                a.lds(f"ds_read_b128 {vr(GF+(s&1)*4,4)}, v6 offset:{ks*64}", ("A", s, 0))
            else:
                a.lds(f"ds_read_b128 {vr(AB+(s&1)*4,4)}, v8 offset:{ks*4096}", ("A", s, 0))
        a.lds(f"ds_read_b128 {vr(WB+((s&1)*5+t)*4,4)}, v9 offset:{ks*5120+t*1024}", ("R", s, t))

    def bump(c):
        d = SLOT2 if (c % NSL2) else -(NSL2 - 1) * SLOT2
        for r in ((8, 9, 10, 11) if c < 10 else (8, 9)):
            a.e(f"v_add_u32 v{r}, {d if d > 0 else hex(d & 0xffffffff)}, v{r}")
        if c < 10:
            a.e("s_add_u32 s69, s69, 1")
            a.e("s_cmp_ge_u32 s69, 10")
            a.e("s_cselect_b32 s70, -9, 1")
            a.e("s_cselect_b32 s69, 0, s69")
            a.e("s_lshl_b32 s70, s70, 7")
            a.e("v_add_u32 v6, s70, v6")

    def b_epilogue():
        a.stamp("bep")
        phi_consts(a)
        PQ, T = 152, 212
        for t in range(5):
            phi4(a, ACC + t * 4, T + (12 if t & 1 else 0), PQ + t * 2, PQ + t * 2 + 1)
        a.e(f"v_mov_b32 v{PQ+10}, 0")
        a.e(f"v_mov_b32 v{PQ+11}, 0")
        a.e("v_mul_u32_u24 v14, 192, v2")
        a.e("v_lshl_add_u32 v14, v3, 3, v14")
        a.e(f"v_add_u32 v14, {IMG}, v14")
        a.e(f"s_mul_i32 s12, s10, {ACT_RT}")
        a.e(f"s_mul_i32 s11, s{S_CB}, 2560")
        a.e("s_add_u32 s12, s12, s11")
        a.e(f"s_add_u32 s12, s12, {ACT_OFF}")
        a.e("v_lshrrev_b32 v15, 1, v3")
        a.e("v_lshl_add_u32 v15, v15, 4, v2")
        a.e("v_lshlrev_b32 v15, 4, v15")
        a.e("v_add_u32 v13, s12, v15")
        a.e("v_and_b32 v15, 1, v3")
        a.e("v_lshl_add_u32 v12, v15, 9, v13")
        a.e("s_barrier")
        us = {0: [0], 1: [0, 1], 2: [0, 1], 3: [1, 2], 4: [1, 2]}

        def fr(j):
            kf = 164 + (j & 1) * 16
            for im in range(2):
                for n, u in enumerate(us[j]):
                    b = kf + im * 8 + n * 4
                    off = im * 15360 + j * 16 * 192 + u * 64
                    a.lds(f"ds_read_b64 {vr(b,2)}, v14 offset:{off}", ("F", j))
                    a.lds(f"ds_read_b64 {vr(b+2,2)}, v14 offset:{off+32}", ("F", j))

        def mm(j):
            kf = 164 + (j & 1) * 16
            nd = 196 + (j & 1) * 8
            a.wait_lg(("F", j))
            for im in range(2):
                for n, u in enumerate(us[j]):
                    d = vr(nd + im * 4, 4)
                    a.e(f"v_mfma_f32_16x16x32_bf16 {d}, {vr(kf+im*8+n*4,4)}, {vr(PQ+u*4,4)}, {d if n else '0'}")

        fr(0)
        fr(1)
        mm(0)
        for j in range(5):
            if j + 1 < 5:
                mm(j + 1)
            else:
                a.nop(8)
            if j + 2 < 5:
                fr(j + 2)
            if j == 0:
                a.nop(4)
            n_ = 196 + (j & 1) * 8
            d_ = n_ + 4
            p = T
            f = T + 4
            g = T + 8
            if FAITH:
                a.e(f"v_cvt_pk_bf16_f32 v{p}, v{n_}, v{n_+1}")
                a.e(f"v_cvt_pk_bf16_f32 v{p+1}, v{n_+2}, v{n_+3}")
                a.e(f"v_cvt_pk_bf16_f32 v{p+2}, v{d_}, v{d_+1}")
                a.e(f"v_cvt_pk_bf16_f32 v{p+3}, v{d_+2}, v{d_+3}")
                unpack(a, f, f + 1, p)
                unpack(a, f + 2, f + 3, p + 1)
                unpack(a, g, g + 1, p + 2)
                unpack(a, g + 2, g + 3, p + 3)
                a.e(f"v_pk_add_f32 {vr(g,2)}, {vr(g,2)}, s[64:65]")
                a.e(f"v_pk_add_f32 {vr(g+2,2)}, {vr(g+2,2)}, s[64:65]")
                a.e(f"v_cvt_pk_bf16_f32 v{p+2}, v{g}, v{g+1}")
                a.e(f"v_cvt_pk_bf16_f32 v{p+3}, v{g+2}, v{g+3}")
                unpack(a, g, g + 1, p + 2)
                unpack(a, g + 2, g + 3, p + 3)
            else:
                a.e(f"v_pk_add_f32 {vr(g,2)}, {vr(d_,2)}, s[64:65]")
                a.e(f"v_pk_add_f32 {vr(g+2,2)}, {vr(d_+2,2)}, s[64:65]")
                for i in range(4):
                    a.e(f"v_mov_b32 v{f+i}, v{n_+i}")
            for i in range(4):
                a.e(f"v_rcp_f32 v{g+4+i}, v{g+i}")
            a.e("s_nop 0")
            a.e(f"v_pk_mul_f32 {vr(g+8,2)}, {vr(f,2)}, {vr(g+4,2)}")
            a.e(f"v_pk_mul_f32 {vr(g+10,2)}, {vr(f+2,2)}, {vr(g+6,2)}")
            if FAITH:
                for i in range(4):
                    a.e(f"v_fma_f32 v{f+i}, -v{g+i}, v{g+8+i}, v{f+i}")
                for i in range(4):
                    a.e(f"v_fma_f32 v{g+8+i}, v{f+i}, v{g+4+i}, v{g+8+i}")
            O = T + 24 + (j // 2) * 4
            if j < 4:
                o = O + (j & 1) * 2
                a.e(f"v_cvt_pk_bf16_f32 v{o}, v{g+8}, v{g+9}")
                a.e(f"v_cvt_pk_bf16_f32 v{o+1}, v{g+10}, v{g+11}")
            else:
                a.e(f"v_cvt_pk_bf16_f32 v{O}, v{g+8}, v{g+9}")
                a.e(f"v_cvt_pk_bf16_f32 v{O+1}, v{g+10}, v{g+11}")
                a.e(f"v_mov_b32 v{O+2}, v{O}")
                a.e(f"v_mov_b32 v{O+3}, v{O+1}")
            if j & 1 or j == 4:
                a.nop(2)
                a.e(f"v_permlane16_swap_b32 v{O}, v{O+2}")
                a.e(f"v_permlane16_swap_b32 v{O+1}, v{O+3}")
                a.nop(1)
                a.vmem(f"buffer_store_dwordx4 {vr(O,4)}, v{12 if j < 4 else 13}, {s4(SRD_WS)}, 0 offen offset:{512*(j & ~1)} sc1", "st")
        a.e(f"v_mov_b32 v{GA}, v52")
        a.e(f"v_cvt_pk_bf16_f32 v{GA}, v{GA}, v{GA}")
        a.e(f"v_lshlrev_b32 v{GA}, 16, v{GA}")
        a.e(f"v_mul_f32 v{GA}, 0xbfb8aa3b, v{GA}")
        a.e(f"v_exp_f32 v{GA}, v{GA}")
        a.e("s_nop 0")
        a.e(f"v_add_f32 v{GA}, 1.0, v{GA}")
        a.e(f"v_rcp_f32 v{GA}, v{GA}")
        a.e("s_nop 0")
        a.e(f"v_cvt_pk_bf16_f32 v{GA}, v{GA}, v{GA}")
        a.e(f"v_lshlrev_b32 v{GA}, 16, v{GA}")
        a.e(f"v_sub_f32 v57, 1.0, v{GA}")
        a.e("v_cvt_pk_bf16_f32 v57, v57, v57")
        a.e("v_lshlrev_b32 v57, 16, v57")
        a.e(f"s_lshl_b32 s71, s{S_RB}, 7")
        a.e(f"s_add_u32 s71, s71, {hex(F_O)}")
        a.e("s_mov_b32 s77, 0")
        a.stamp("bep_end")

    a.e("s_mov_b32 s77, 0")
    a.e("s_barrier")
    a.stamp("b0")
    for t in range(5):
        reads(0, t)
    NK = 88
    for s in range(NK):
        if s in (20, 68):
            a.stamp(f"s{s}")
        if s == 70:
            a.e(f"s_mul_i32 s12, s{S_CB}, 160")
            a.e("v_lshl_add_u32 v28, v3, 3, s12")
            for t in range(5):
                a.vmem(f"buffer_load_dwordx2 {vr(B2+2*t,2)}, v28, {s4(SRD_X)}, 0 offen offset:{32*t}", "b2")
        if s + 1 < NK and (s + 1) % 2 == 0:
            c = (s + 1) // 2
            a.e("s_barrier")
            bump(c)
            win = None
            if 1 <= c <= PUBA_DL:
                win = (c == PUBA_DL)
            if BI_AFTER + 1 <= c <= BI_AFTER + PUBO_DL:
                win = (c == BI_AFTER + PUBO_DL)
            if win is not None:
                lab = f"fc_pub{c}"
                a.e("s_cmp_lg_u32 s77, 0")
                a.e(f"s_cbranch_scc1 {lab}")
                if win:
                    a.e("s_waitcnt vmcnt(0)")
                else:
                    a.e("s_getreg_b32 s72, hwreg(HW_REG_IB_STS)")
                    a.e("s_and_b32 s72, s72, 0xc0000f")
                    a.e(f"s_cbranch_scc1 {lab}")
                flag_add(a, s4(SRD_WS), "s71", 58)
                a.e("s_mov_b32 s77, 1")
                a.label(lab)
            if c == BI_AFTER:
                b_epilogue()
        for t in range(5):
            if s + 1 < NK:
                reads(s + 1, t)
            need = [("R", s, t)]
            if t == 0:
                need.append(("A", s, 0))
            a.wait_lg(need)
            if s < 20:
                d = vr(ACC + t * 4, 4)
            else:
                d = vr(ACA + (20 if s < 68 else 0) + t * 4, 4)
            cin = "0" if s in (0, 20, 68) else d
            a.e(f"v_mfma_f32_16x16x32_bf16 {d}, {vr(WB+((s&1)*5+t)*4,4)}, {vr(AB+(s&1)*4,4)}, {cin}")
            if s < 20 and t == 2:
                a.e(f"v_mfma_f32_16x16x32_bf16 v[52:55], {vr(GF+(s&1)*4,4)}, {vr(AB+(s&1)*4,4)}, {'0' if s == 0 else 'v[52:55]'}")
    a.stamp("cloop")
    a.e("v_mul_u32_u24 v5, 1280, v4")
    a.e("v_lshl_add_u32 v5, v3, 3, v5")
    a.e(f"s_mul_i32 s12, s{S_CB}, 160")
    a.e("v_add_u32 v5, s12, v5")
    a.wait_vm_all()
    a.nop(6)
    T = 160
    for t in range(5):
        ca = ACA + t * 4
        cb = ACA + 20 + t * 4
        p = T
        fa = T + 4
        fb = T + 8
        bb = T + 12
        a.e(f"v_cvt_pk_bf16_f32 v{p}, v{ca}, v{ca+1}")
        a.e(f"v_cvt_pk_bf16_f32 v{p+1}, v{ca+2}, v{ca+3}")
        a.e(f"v_cvt_pk_bf16_f32 v{p+2}, v{cb}, v{cb+1}")
        a.e(f"v_cvt_pk_bf16_f32 v{p+3}, v{cb+2}, v{cb+3}")
        unpack(a, fa, fa + 1, p)
        unpack(a, fa + 2, fa + 3, p + 1)
        unpack(a, fb, fb + 1, p + 2)
        unpack(a, fb + 2, fb + 3, p + 3)
        unpack(a, bb, bb + 1, B2 + 2 * t)
        unpack(a, bb + 2, bb + 3, B2 + 2 * t + 1)
        a.e(f"v_pk_add_f32 {vr(fb,2)}, {vr(fb,2)}, {vr(bb,2)}")
        a.e(f"v_pk_add_f32 {vr(fb+2,2)}, {vr(fb+2,2)}, {vr(bb+2,2)}")
        for i in range(4):
            a.e(f"v_mul_f32 v{fa+i}, v{GA}, v{fa+i}")
        a.e(f"v_cvt_pk_bf16_f32 v{p+2}, v{fb}, v{fb+1}")
        a.e(f"v_cvt_pk_bf16_f32 v{p+3}, v{fb+2}, v{fb+3}")
        a.e(f"v_cvt_pk_bf16_f32 v{p}, v{fa}, v{fa+1}")
        a.e(f"v_cvt_pk_bf16_f32 v{p+1}, v{fa+2}, v{fa+3}")
        unpack(a, fb, fb + 1, p + 2)
        unpack(a, fb + 2, fb + 3, p + 3)
        unpack(a, fa, fa + 1, p)
        unpack(a, fa + 2, fa + 3, p + 1)
        for i in range(4):
            a.e(f"v_mul_f32 v{fb+i}, v57, v{fb+i}")
        a.e(f"v_cvt_pk_bf16_f32 v{p+2}, v{fb}, v{fb+1}")
        a.e(f"v_cvt_pk_bf16_f32 v{p+3}, v{fb+2}, v{fb+3}")
        unpack(a, fb, fb + 1, p + 2)
        unpack(a, fb + 2, fb + 3, p + 3)
        a.e(f"v_pk_add_f32 {vr(fa,2)}, {vr(fa,2)}, {vr(fb,2)}")
        a.e(f"v_pk_add_f32 {vr(fa+2,2)}, {vr(fa+2,2)}, {vr(fb+2,2)}")
        o = T + 20 + t * 2
        a.e(f"v_cvt_pk_bf16_f32 v{o}, v{fa}, v{fa+1}")
        a.e(f"v_cvt_pk_bf16_f32 v{o+1}, v{fa+2}, v{fa+3}")
        a.vmem(f"buffer_store_dwordx2 {vr(o,2)}, v5, s[56:59], 0 offen offset:{32*t}", "st")
    a.stamp("end")
    a.dump_stamps()


HEADER = """; Kernarg layout for this problem (96 bytes, ptrs only, base s[0:1]):
;   0 A_x  8 A_wqkv  16 A_wo  24 B_x  32 B_w1  40 B_b1  48 B_w2  56 B_b2  64 gate_w  72 d_out  80 d_debug  88 d_ws
; @launch kernel=fused_kernel grid=(256,1,1) block=(512,1,1) lds=163840
.amdgcn_target "amdgcn-amd-amdhsa--gfx950"
.text
"""


def main():
    a = Asm()
    a.kid = 1
    gen(a)
    nm = "fused_kernel"
    out = HEADER + f".globl {nm}\n.p2align 8\n.type {nm},@function\n" + "\n".join(a.lines) + "\n"
    out += '.section .rodata,"a"\n.p2align 6\n' + kd(nm, 256, 256)
    path = sys.argv[1] if len(sys.argv) > 1 else f"cdna_kernels/{NAME}.s"
    open(path, "w").write(out)


if __name__ == "__main__":
    main()
```

```python
import sys
import os
sys.path.insert(0, os.path.dirname(os.path.abspath(__file__)))
from gen import (Asm, vr, ar, make_srd, prologue_kernargs, kperm_vgpr, unpack, LOG2E, NAME, kd,
                 P_X, P_WQKV, P_WO, P_BX, P_W1, P_B1, P_W2, P_B2, P_GW, P_OUT, P_DBG, P_WS,
                 ACT_RT, PART_OFF, XF_OFF, WQF_OFF, W2F_OFF, FLAG_OFF, WS_USED)

FAITH = int(os.environ.get("FAITH", "1"))
FAITH_H = int(os.environ.get("FAITH_H", str(FAITH)))
INITD = int(os.environ.get("INITD", "0"))
MAPA = int(os.environ.get("MAPA", "0"))
TLBW = int(os.environ.get("TLBW", "0"))
CPF = int(os.environ.get("CPF", "1"))
RWPUB = int(os.environ.get("RWPUB", "7"))
PFE = int(os.environ.get("PFE", "0"))
PFA = int(os.environ.get("PFA", "0"))
PFW = int(os.environ.get("PFW", "0"))
NOSC1 = int(os.environ.get("NOSC1", "0"))
ROT = int(os.environ.get("ROT", "0"))
PUBA_DL = int(os.environ.get("PUBA_DL", "5"))
PUBO_DL = int(os.environ.get("PUBO_DL", "8"))
NOREPACK = int(os.environ.get("NOREPACK", "0"))
RP_ISSUE = int(os.environ.get("RP_ISSUE", "-1"))
RP_STORE = int(os.environ.get("RP_STORE", "2"))

ACT_OFF = 4096
ACT_RT = 68 * 1024 + 128
BI_AFTER = int(os.environ.get("BI_AFTER", "19"))
SLOT1 = 20480
NSL1 = 8
SLOT2 = 18432
NSL2 = 7
IMG = NSL2 * SLOT2
GWL = IMG + 30720
SCR = 90112
F_RW = FLAG_OFF
F_KV = FLAG_OFF + 128 * 8
F_H = FLAG_OFF + 128 * 16
F_O = FLAG_OFF + 128 * 32
F_H2 = FLAG_OFF + 128 * 64

S_XCD, S_J, S_RBA, S_CBA, S_COLA, S_PAR, S_W = 3, 4, 5, 6, 7, 8, 9
S_RB, S_CB = 74, 75
SRD_X, SRD_W, SRD_WS, SRD_T = 40, 44, 48, 64


def s4(b):
    return f"s[{b}:{b+3}]"


def poll(a, srd, voff, target, lab, tmp=21, sleep=4):
    a.label(lab)
    a.e(f"buffer_load_dword v{tmp}, v{voff}, {srd}, 0 offen sc1")
    a.e("s_waitcnt vmcnt(0)")
    a.vm = []
    a.e(f"v_readfirstlane_b32 s72, v{tmp}")
    a.e(f"s_cmp_ge_u32 s72, {target}")
    a.e(f"s_cbranch_scc1 {lab}_done")
    a.e(f"s_sleep {sleep}")
    a.e(f"s_branch {lab}")
    a.label(lab + "_done")


def flag_add(a, srd, saddr, v0t=58):
    a.e(f"v_mov_b32 v{v0t}, {saddr}")
    a.e(f"v_mov_b32 v{v0t+1}, 1")
    a.e("s_mov_b64 exec, 1")
    a.e(f"buffer_atomic_add v{v0t+1}, v{v0t}, {srd}, 0 offen sc1")
    a.e("s_mov_b64 exec, -1")


def gen(a):
    a.label("fused_kernel")
    a.e("s_cmp_ge_u32 s2, 256")
    a.e("s_cbranch_scc1 f_exit")
    a.stamp("start")
    prologue_kernargs(a)
    a.e("s_and_b32 s3, s2, 7")
    a.e("s_lshr_b32 s4, s2, 3")
    a.e("s_lshr_b32 s5, s3, 2")
    a.e("s_lshl_b32 s5, s5, 3")
    a.e("s_and_b32 s6, s4, 7")
    a.e("s_add_u32 s5, s5, s6")
    a.e("s_lshr_b32 s6, s4, 3")
    a.e("s_and_b32 s7, s3, 3")
    a.e("s_lshl_b32 s7, s7, 1")
    a.e("s_and_b32 s8, s6, 1")
    a.e("s_add_u32 s7, s7, s8")
    a.e("s_and_b32 s8, s7, 1")
    a.e(f"s_lshr_b32 s{S_RB}, s3, 1")
    a.e(f"s_lshl_b32 s{S_RB}, s{S_RB}, 3")
    a.e("s_and_b32 s10, s4, 7")
    a.e(f"s_add_u32 s{S_RB}, s{S_RB}, s10")
    a.e(f"s_and_b32 s{S_CB}, s3, 1")
    a.e(f"s_lshl_b32 s{S_CB}, s{S_CB}, 2")
    a.e(f"s_add_u32 s{S_CB}, s{S_CB}, s6")
    if MAPA == 1:
        a.e("s_lshr_b32 s5, s3, 1")
        a.e("s_lshl_b32 s5, s5, 2")
        a.e("s_and_b32 s10, s4, 3")
        a.e("s_add_u32 s5, s5, s10")
        a.e("s_lshr_b32 s10, s4, 2")
        a.e("s_and_b32 s7, s3, 1")
        a.e("s_lshl_b32 s7, s7, 2")
        a.e("s_and_b32 s11, s10, 3")
        a.e("s_add_u32 s7, s7, s11")
        a.e("s_lshr_b32 s6, s10, 2")
        a.e("s_lshl_b32 s6, s6, 1")
        a.e("s_and_b32 s11, s10, 1")
        a.e("s_add_u32 s6, s6, s11")
        a.e("s_and_b32 s8, s7, 1")
    a.e("v_lshrrev_b32 v1, 6, v0")
    a.e("v_and_b32 v0, 63, v0")
    a.e("s_nop 0")
    a.e("v_readfirstlane_b32 s9, v1")
    a.e("v_and_b32 v2, 15, v0")
    a.e("v_lshrrev_b32 v3, 4, v0")
    a.e("v_lshlrev_b32 v7, 4, v0")
    a.e(f"s_and_b32 s73, s{S_RB}, 7")
    a.e("s_lshl_b32 s73, s73, 2")
    a.e(f"s_and_b32 s10, s{S_CB}, 3")
    a.e("s_add_u32 s73, s73, s10")
    if ROT == 1:
        a.e("s_mov_b32 s73, 0")
    if ROT == 2:
        a.e("s_and_b32 s73, s73, 0x18")
    if ROT == 3:
        a.e(f"s_and_b32 s73, s{S_CB}, 3")
        a.e("s_lshl_b32 s73, s73, 3")
    a.e("s_cmp_ge_u32 s9, 4")
    a.e("s_cbranch_scc0 f_cons")
    gen_producers(a)
    a.label("f_cons")
    a.vm = []
    a.lg = []
    gen_consumers(a)
    a.label("f_exit")
    a.e("s_endpgm")
    a.label("f_code_end")


XS = 16384
WS1 = 12288
WBASE = 65536


def gen_producers(a):
    a.e("s_sub_u32 s9, s9, 4")
    a.e("s_lshl_b32 s10, s5, 7")
    a.e("s_lshl_b32 s11, s9, 5")
    a.e("s_add_u32 s10, s10, s11")
    a.e("v_lshrrev_b32 v14, 3, v0")
    a.e("v_add_u32 v15, s10, v14")
    a.e("v_mul_u32_u24 v15, 1280, v15")
    a.e("v_lshrrev_b32 v14, 1, v14")
    a.e("v_and_b32 v16, 7, v0")
    a.e("v_xor_b32 v16, v16, v14")
    a.e("v_lshl_add_u32 v44, v16, 4, v15")
    a.e("v_xor_b32 v16, 4, v16")
    a.e("v_lshl_add_u32 v45, v16, 4, v15")
    a.e(f"v_add_u32 v45, {8*1280 - 1024}, v45")
    a.e(f"v_add_u32 v46, {16*1280 - 2048}, v44")
    a.e(f"v_add_u32 v47, {16*1280 - 2048}, v45")
    a.e("s_lshl_b32 s14, s9, 12")
    a.e("s_mul_i32 s15, s9, 3072")
    a.e(f"s_add_u32 s15, s15, {WBASE}")
    if MAPA == 1:
        a.e("s_and_b32 s68, s5, 3")
        a.e("s_mul_i32 s68, s68, 3")
        a.e("s_lshr_b32 s69, s4, 2")
        a.e("s_add_u32 s68, s68, s69")
        a.e("s_add_u32 s68, s68, s3")
    else:
        a.e("s_and_b32 s68, s5, 7")
        a.e("s_mul_i32 s69, s6, 3")
        a.e("s_add_u32 s68, s68, s69")
        a.e("s_add_u32 s68, s68, s3")
    for _ in range(2):
        a.e("s_cmp_ge_u32 s68, 10")
        a.e("s_cselect_b32 s69, 10, 0")
        a.e("s_sub_u32 s68, s68, s69")
    a.e("s_mov_b32 s70, s68")
    a.e("s_lshl_b32 s68, s68, 1")
    def dma_x(J):
        a.e("s_lshl_b32 s52, s70, 7")
        a.e(f"s_add_u32 m0, s14, {(J % 4)*XS}")
        a.e("s_add_u32 s70, s70, 1")
        for n in range(4):
            a.vmem(f"buffer_load_dwordx4 v{44+n}, {s4(SRD_X)}, s52 offen offset:{1024*n} lds", f"dx{J}")
        a.e("s_cmp_ge_u32 s70, 10")
        a.e("s_cselect_b32 s70, 0, s70")

    def adv_k():
        a.e("s_add_u32 s68, s68, 1")
        a.e("s_cmp_ge_u32 s68, 20")
        a.e("s_cselect_b32 s68, 0, s68")

    def repack_dma(tag):
        a.e("s_min_u32 s53, s9, 2")
        a.e(f"s_mul_i32 s54, s{S_RB}, 3")
        a.e("s_add_u32 s54, s54, s53")
        a.e("s_min_u32 s54, s54, 87")
        a.e("s_movk_i32 s57, 1280")
        a.e(f"s_mov_b32 s66, {hex(640*1280)}")
        a.e("s_cmp_lt_u32 s54, 20")
        a.e(f"s_cselect_b32 s64, s{P_WQKV}, s{P_WO}")
        a.e(f"s_cselect_b32 s65, s{P_WQKV+1}, s{P_WO+1}")
        a.e("s_cselect_b32 s57, 3840, s57")
        a.e("s_cselect_b32 s58, 0, 20")
        a.e(f"s_cselect_b32 s66, {hex(640*3840)}, s66")
        a.e("s_cmp_lt_u32 s54, 40")
        a.e(f"s_cselect_b32 s64, s64, s{P_W2}")
        a.e(f"s_cselect_b32 s65, s65, s{P_W2+1}")
        a.e("s_cselect_b32 s58, s58, 40")
        a.e(f"s_cselect_b32 s66, s66, {hex(1536*1280)}")
        a.e("s_and_b32 s65, s65, 0xffff")
        a.e("s_mov_b32 s67, 0x00020000")
        a.e("s_sub_u32 s58, s54, s58")
        a.e("s_lshl_b32 s58, s58, 5")
        a.e("s_mul_i32 s58, s58, s57")
        a.e(f"s_mul_i32 s59, s{S_CB}, 160")
        a.e(f"s_and_b32 s60, s{S_CB}, 1")
        a.e("s_lshl_b32 s60, s60, 5")
        a.e("s_sub_u32 s59, s59, s60")
        a.e("s_add_u32 s58, s58, s59")
        a.e("s_mul_i32 s59, s53, 6144")
        a.e(f"s_add_u32 s59, s59, {WBASE + 6*WS1}")
        for n in range(6):
            a.e(f"v_add_u32 v19, {64*n}, v0")
            a.e("v_mul_u32_u24 v20, 5462, v19")
            a.e("v_lshrrev_b32 v20, 16, v20")
            a.e("v_mul_u32_u24 v21, 12, v20")
            a.e("v_sub_u32 v19, v19, v21")
            a.e("v_bfe_u32 v21, v20, 2, 1")
            a.e("v_lshlrev_b32 v21, 1, v21")
            a.e("v_xor_b32 v19, v19, v21")
            kperm_vgpr(a, 21, 20, 22, 23)
            a.e("v_mul_lo_u32 v21, v21, s57")
            a.e("v_lshl_add_u32 v19, v19, 4, v21")
            a.e(f"s_add_u32 m0, s59, {n*1024}")
            a.e("s_nop 0")
            a.vmem("buffer_load_dwordx4 v19, s[64:67], s58 offen lds", "RP")

    def loop_a(dma_w, tag):
        wi, xi = 0, 0

        def issue_w():
            nonlocal wi, xi
            dma_w(wi)
            wi += 1

        dma_x(0); xi = 1
        issue_w(); issue_w()
        dma_x(1); xi = 2
        issue_w()
        if INITD >= 1:
            issue_w()
        for c in range(20):
            assert xi > c // 2 and wi > c
            if c == 2:
                a.e("s_waitcnt vmcnt(%d)" % (len(a.vm) - 1 - max(i for i, t in enumerate(a.vm) if t == "RP")))
                a.vm = a.vm[max(i for i, t in enumerate(a.vm) if t == "RP") + 1:]
            a.wait_vm([f"dma{c}", f"dx{c//2}"])
            a.e("s_barrier")
            if c == 0:
                repack_dma(tag)
            k = 0
            while k < 2:
                did = False
                if xi < 10 and (xi < 4 or c >= 2 * xi - 5) and 2 * xi <= wi + 1:
                    dma_x(xi)
                    xi += 1
                    did = True
                if wi < min(20, c + NSL1 - 1) and (wi < 6 or c >= 4):
                    issue_w()
                    did = True
                k += 1
                if not did:
                    break
            if c == 9:
                a.e(f"s_lshl_b32 s10, s{S_CB}, 7")
                a.e(f"s_add_u32 s10, s10, {hex(F_RW)}")
                a.e("v_mov_b32 v40, s10")
                a.e("s_mov_b32 s77, 0")
            if PFE and c in (11, 14):
                a.vmem(f"buffer_load_dword v43, v40, {s4(SRD_WS)}, 0 offen sc1", f"pe{c}")
            if PFE and c in (13, 16):
                lab = f"fp_pf{tag}{c}"
                a.wait_vm(f"pe{c-2}")
                a.e("v_readfirstlane_b32 s72, v43")
                a.e("s_cmp_lt_u32 s72, 32")
                a.e(f"s_cbranch_scc1 {lab}")
                a.e("s_cmp_lg_u32 s77, 0")
                a.e(f"s_cbranch_scc1 {lab}")
                a.e("s_mov_b32 s77, 1")
                a.e(f"s_and_b32 s10, s{S_RB}, 7")
                a.e("s_lshl_b32 s10, s10, 2")
                a.e("s_add_u32 s10, s10, s9")
                a.e("v_lshlrev_b32 v50, 7, v0")
                a.e(f"s_mul_i32 s11, s{S_CB}, {68*5120}")
                a.e(f"s_mul_i32 s12, s10, {68*5120//32}")
                a.e("s_add_u32 s11, s11, s12")
                a.e(f"s_add_u32 s11, s11, {hex(W2F_OFF)}")
                a.e(f"buffer_load_dword v52, v50, {s4(SRD_WS)}, s11 offen")
                a.e(f"s_add_u32 s11, s11, {10880 - 8192}")
                a.e(f"buffer_load_dword v53, v50, {s4(SRD_WS)}, s11 offen")
                a.e("v_min_u32 v51, 24, v0")
                a.e("v_lshlrev_b32 v51, 7, v51")
                a.e(f"s_mul_i32 s11, s{S_CB}, 102400")
                a.e("s_mul_i32 s12, s10, 3200")
                a.e("s_add_u32 s11, s11, s12")
                a.e(f"s_add_u32 s11, s11, {hex(WQF_OFF)}")
                a.e(f"buffer_load_dword v54, v51, {s4(SRD_WS)}, s11 offen")
                a.label(lab)
            if c == 18:
                a.vmem(f"buffer_load_dword v42, v40, {s4(SRD_WS)}, 0 offen sc1", "pp0")
        assert wi == 20 and xi == 10
        if tag == "kv":
            a.e("s_branch fp_tail")

    a.e("s_cmp_ge_u32 s6, 2")
    a.e("s_cbranch_scc1 fp_h")
    a.e("s_and_b32 s12, s9, 1")
    a.e("s_mul_i32 s12, s12, 192")
    a.e("s_lshr_b32 s13, s9, 1")
    a.e("s_mul_i32 s10, s7, 160")
    a.e("s_lshl_b32 s11, s8, 5")
    a.e("s_sub_u32 s10, s10, s11")
    a.e("s_mul_i32 s11, s13, 1280")
    a.e("s_add_u32 s10, s10, s11")
    a.e("s_add_u32 s10, s10, 1280")
    for n in range(3):
        d = 8 + n
        a.e("v_add_u32 v19, s12, v0")
        if n:
            a.e(f"v_add_u32 v19, {64*n}, v19")
        a.e("v_mul_u32_u24 v20, 5462, v19")
        a.e("v_lshrrev_b32 v20, 16, v20")
        a.e("v_mul_u32_u24 v21, 12, v20")
        a.e("v_sub_u32 v19, v19, v21")
        a.e("v_bfe_u32 v21, v20, 2, 1")
        a.e("v_lshlrev_b32 v21, 1, v21")
        a.e("v_xor_b32 v19, v19, v21")
        kperm_vgpr(a, 21, 20, 22, 23)
        a.e("v_mul_u32_u24 v21, 3840, v21")
        a.e(f"v_lshl_add_u32 v{d}, v19, 4, v21")
        a.e(f"v_add_u32 v{d}, s10, v{d}")
        if n:
            a.e(f"v_subrev_u32 v{d}, {1024*n}, v{d}")
    a.e("s_waitcnt lgkmcnt(0)")
    make_srd(a, SRD_X, P_X, 2048 * 1280)
    make_srd(a, SRD_WS, P_WS, WS_USED)
    make_srd(a, SRD_W, P_WQKV, 640 * 3840)

    def dma_kv(c):
        a.e(f"s_mul_i32 s52, s68, {32*3840}")
        a.e(f"s_add_u32 m0, s15, {(c % NSL1)*WS1}")
        adv_k()
        for n in range(3):
            a.vmem(f"buffer_load_dwordx4 v{8+n}, {s4(SRD_W)}, s52 offen offset:{1024*n} lds", f"dma{c}")

    loop_a(dma_kv, "kv")
    vm_after = list(a.vm)
    a.label("fp_h")
    a.vm = []
    a.e("v_lshrrev_b32 v14, 3, v0")
    a.e("v_and_b32 v15, 3, v14")
    a.e("v_lshrrev_b32 v16, 2, v14")
    a.e("v_lshl_add_u32 v15, v16, 3, v15")
    a.e("v_mul_u32_u24 v8, 3072, v15")
    a.e("v_bfe_u32 v15, v0, 1, 2")
    a.e("v_lshrrev_b32 v16, 1, v14")
    a.e("v_xor_b32 v15, v15, v16")
    a.e("v_lshl_add_u32 v8, v15, 5, v8")
    a.e("v_and_b32 v15, 1, v0")
    a.e("v_lshl_add_u32 v8, v15, 4, v8")
    a.e("s_and_b32 s12, s9, 1")
    a.e("s_lshl_b32 s12, s12, 4")
    a.e("s_lshr_b32 s13, s9, 1")
    a.e("s_lshl_b32 s13, s13, 2")
    a.e("s_add_u32 s12, s12, s13")
    a.e("s_mul_i32 s12, s12, 3072")
    a.e("s_mul_i32 s13, s7, 384")
    a.e("s_add_u32 s12, s12, s13")
    a.e("v_add_u32 v8, s12, v8")
    a.e("s_waitcnt lgkmcnt(0)")
    make_srd(a, SRD_X, P_X, 2048 * 1280)
    make_srd(a, SRD_WS, P_WS, WS_USED)
    make_srd(a, SRD_W, P_W1, 640 * 3072)

    def dma_h(c):
        a.e(f"s_mul_i32 s52, s68, {32*3072}")
        for cbk in range(3):
            a.e(f"s_add_u32 m0, s15, {(c % NSL1)*WS1 + cbk*1024}")
            if cbk == 0:
                adv_k()
            else:
                a.e("s_add_u32 s52, s52, 128")
            a.vmem(f"buffer_load_dwordx4 v8, {s4(SRD_W)}, s52 offen lds", f"dma{c}")

    loop_a(dma_h, "h")
    assert a.vm == vm_after
    a.label("fp_tail")
    a.e("s_barrier")
    a.e("s_cmp_eq_u32 s9, 3")
    a.e("s_cbranch_scc1 fp_helper")
    a.e("s_cmp_eq_u32 s9, 1")
    a.e("s_cbranch_scc1 fp_p1")
    a.e("s_cmp_eq_u32 s9, 2")
    a.e("s_cbranch_scc1 fp_p2")
    vm_keep = list(a.vm)

    segs = [(0, 10), (10, 24), (34, 10)]

    def gen_p(P):
        items = [("W", i) if i < 10 else ("A", i - 10) for i in range(6 * P, 6 * P + 6)]
        lab = f"fp{P}"

        def check(tag, vval, vaddr, target, lb):
            a.wait_vm(tag)
            a.e(f"v_readfirstlane_b32 s72, v{vval}")
            a.e(f"s_cmp_ge_u32 s72, {target}")
            a.e(f"s_cbranch_scc1 {lb}_done")
            vm = list(a.vm)
            poll(a, s4(SRD_WS), vaddr, target, lb, sleep=8)
            a.vm = vm

        def seg_setup(seg):
            n = segs[seg][1]
            if seg == 1:
                a.e("s_lshr_b32 s69, s73, 2")
                a.e("s_mul_i32 s69, s69, 3")
            else:
                a.e(f"s_mul_i32 s69, s73, {n}")
                a.e("s_lshr_b32 s69, s69, 5")
            w_off, w_nks, ks0 = [(WQF_OFF, 20, 0), (W2F_OFF, 68, 20), (W2F_OFF, 68, 0)][seg]
            a.e(f"s_mul_i32 s60, s{S_CB}, {w_nks*5120}")
            a.e(f"s_add_u32 s60, s60, {hex(w_off + ks0*5120)}")
            if seg == 0:
                a.e(f"s_lshl_b32 s61, s{S_RB}, 6")
                a.e("v_lshrrev_b32 v14, 3, v0")
                a.e("v_add_u32 v15, s61, v14")
                a.e("v_mul_u32_u24 v15, 1280, v15")
                a.e("v_lshrrev_b32 v14, 1, v14")
                a.e("v_and_b32 v16, 7, v0")
                a.e("v_xor_b32 v16, v16, v14")
                a.e("v_lshl_add_u32 v17, v16, 4, v15")
                a.e("v_xor_b32 v16, 4, v16")
                a.e("v_lshl_add_u32 v18, v16, 4, v15")
            else:
                a.e(f"s_lshl_b32 s61, s{S_RB}, 2")
                a.e(f"s_mul_i32 s61, s61, {ACT_RT}")
                a.e(f"s_add_u32 s61, s61, {hex(ACT_OFF + ks0*1024)}")
            for k, (ty, i) in enumerate(items):
                comp = (k & 3) * 1024
                if ty == "W":
                    a.e(f"s_add_u32 s10, s60, {hex((i*1024 - comp) & 0xffffffff)}")
                    a.e(f"v_add_u32 v{8+k}, s10, v7")
                elif seg == 0:
                    a.e(f"v_add_u32 v{8+k}, {i*8*1280}, v{17 + (i & 1)}")
                else:
                    ks, rt = i // 4, i % 4
                    a.e(f"s_add_u32 s10, s61, {hex((rt*ACT_RT + ks*1024 - comp) & 0xffffffff)}")
                    a.e(f"v_add_u32 v{8+k}, s10, v7")

        def dma2(c):
            sl = c % NSL2
            seg = [i for i, sg in enumerate(segs) if sg[0] <= c < sg[0] + sg[1]][0]
            n = segs[seg][1]
            has_a = any(ty == "A" for ty, _ in items)
            has_w = any(ty == "W" for ty, _ in items)
            if c == 0:
                if has_w:
                    check("pp0", 42, 40, 32, lab + "_rw")
                seg_setup(0)
            if has_a and c in range(8, 32, 3):
                g = (c - 8) // 3
                a.e("s_lshr_b32 s10, s73, 2")
                a.e(f"s_add_u32 s10, s10, {g}")
                a.e("s_and_b32 s10, s10, 7")
                a.e(f"s_lshr_b32 s11, s{S_RB}, 1")
                a.e("s_lshl_b32 s11, s11, 3")
                a.e("s_add_u32 s10, s10, s11")
                a.e("s_lshl_b32 s10, s10, 7")
                a.e(f"s_add_u32 s10, s10, {hex(F_H2)}")
                a.e("v_mov_b32 v40, s10")
                a.vmem(f"buffer_load_dword v42, v40, {s4(SRD_WS)}, 0 offen sc1", f"pp1{g}")
            if has_a and c in range(10, 34, 3):
                g = (c - 10) // 3
                check(f"pp1{g}", 42, 40, 4, lab + f"_h{g}")
            if c == 10:
                seg_setup(1)
            if c == 32 and has_a:
                a.e(f"s_lshl_b32 s10, s{S_RB}, 7")
                a.e(f"s_add_u32 s10, s10, {hex(F_O)}")
                a.e("v_mov_b32 v40, s10")
                a.vmem(f"buffer_load_dword v42, v40, {s4(SRD_WS)}, 0 offen sc1", "pp2")
            if c == 34:
                if has_a:
                    check("pp2", 42, 40, 32, lab + "_o")
                seg_setup(2)
            if has_w:
                a.e("s_mul_i32 s62, s69, 10240")
            if has_a:
                a.e(f"s_lshl_b32 s63, s69, {7 if seg == 0 else 11}")
            base = sl * SLOT2 + 6 * P * 1024
            cur_m0 = None
            for k, (ty, i) in enumerate(items):
                raw = (ty == "A" and seg == 0)
                m0v = base + (k * 1024 if raw else (k & ~3) * 1024)
                off = 0 if raw else (k & 3) * 1024
                if m0v != cur_m0:
                    a.e(f"s_mov_b32 m0, {m0v}")
                    a.e("s_nop 0")
                    cur_m0 = m0v
                srd = s4(SRD_X) if raw else s4(SRD_WS)
                so = "s62" if ty == "W" else "s63"
                fl = "" if (raw or NOSC1) else " sc1"
                a.vmem(f"buffer_load_dwordx4 v{8+k}, {srd}, {so} offen offset:{off}{fl} lds", f"d2{c}")
            a.e("s_add_u32 s69, s69, 1")
            a.e(f"s_cmp_ge_u32 s69, {n}")
            a.e("s_cselect_b32 s69, 0, s69")

        for c in range(4):
            dma2(c)
        a.e("s_cmp_ge_u32 s6, 2")
        a.e(f"s_cbranch_scc1 {lab}_noe")
        a.e("s_barrier")
        a.e("s_barrier")
        a.label(f"{lab}_noe")
        dma2(4)
        dma2(5)
        issued = 6
        for c in range(44):
            a.wait_vm(f"d2{c}")
            a.e("s_barrier")
            if issued < 44 and (issued < NSL2 or issued <= c + NSL2 - 2):
                dma2(issued)
                issued += 1
            if c == BI_AFTER:
                a.e("s_barrier")
        a.e("s_endpgm")

    gen_p(0)
    a.label("fp_p1")
    a.vm = list(vm_keep)
    gen_p(1)
    a.label("fp_p2")
    a.vm = list(vm_keep)
    gen_p(2)

    a.label("fp_helper")
    a.vm = []
    a.lg = []
    a.e("s_cmp_ge_u32 s6, 2")
    a.e("s_cbranch_scc1 fh_noe")
    a.e("s_barrier")
    a.e("s_barrier")
    a.label("fh_noe")
    if PFW:
        a.e("s_waitcnt vmcnt(0)")
        a.e("v_readfirstlane_b32 s72, v42")
        a.e("s_cmp_ge_u32 s72, 32")
        a.e("s_cbranch_scc0 fh_nopfw")
        a.e(f"s_and_b32 s10, s{S_RB}, 7")
        a.e("v_lshlrev_b32 v50, 7, v0")
        a.e(f"s_mul_i32 s11, s{S_CB}, {68*5120}")
        a.e(f"s_mul_i32 s12, s10, {68*5120//8}")
        a.e("s_add_u32 s11, s11, s12")
        a.e(f"s_add_u32 s11, s11, {hex(W2F_OFF)}")
        for i in range(6):
            a.e(f"buffer_load_dword v{52+i}, v50, {s4(SRD_WS)}, s11 offen")
            a.e("s_add_u32 s11, s11, 8192" if i < 4 else f"s_add_u32 s11, s11, {43520 - 5*8192}")
        a.label("fh_nopfw")
    for i in range(4):
        a.e(f"v_mov_b32 v{20+i}, 0")
    a.e(f"v_add_u32 v24, {IMG}, v7")
    for i in range(30):
        a.lds(f"ds_write_b128 v24, v[20:23] offset:{i*1024}", "Z")
    a.e(f"s_lshl_b32 s10, s{S_CB}, 7")
    a.e(f"s_add_u32 s10, s10, {hex(F_KV)}")
    a.e("v_mov_b32 v26, s10")
    a.e(f"s_lshl_b32 s12, s{S_CB}, 13")
    a.e(f"s_add_u32 s12, s12, {hex(PART_OFF)}")
    a.e("v_add_u32 v25, s12, v7")
    make_srd(a, SRD_T, P_GW, 1280)
    a.e(f"s_mov_b32 m0, {GWL}")
    a.e("s_nop 0")
    a.e(f"buffer_load_dwordx4 v7, {s4(SRD_T)}, 0 offen lds")
    a.e(f"buffer_load_dwordx4 v7, {s4(SRD_T)}, 0 offen offset:1024 lds")
    a.e("s_mov_b32 s60, 0")
    a.e("s_mov_b32 s61, 0")
    a.e("v_mov_b32 v30, v0")
    a.e("s_waitcnt vmcnt(0) lgkmcnt(0)")
    a.lg = []
    for i in range(8):
        a.e("s_barrier")
    a.e("s_mov_b32 s60, 8")
    a.label("fh_wait")
    a.e(f"buffer_load_dword v21, v26, {s4(SRD_WS)}, 0 offen sc1")
    for i in range(2):
        a.e("s_cmp_ge_u32 s60, %d" % (BI_AFTER + 1))
        a.e(f"s_cbranch_scc1 fh_nobar{i}")
        a.e("s_barrier")
        a.e("s_add_u32 s60, s60, 1")
        a.label(f"fh_nobar{i}")
    a.e("s_waitcnt vmcnt(0)")
    a.e("v_readfirstlane_b32 s72, v21")
    a.e("s_cmp_ge_u32 s72, 64")
    a.e("s_cbranch_scc0 fh_wait")
    for r in range(7):
        a.e(f"buffer_load_dwordx4 {vr(64+4*r,4)}, v25, {s4(SRD_WS)}, 0 offen" + (f" offset:{1024*r}" if r < 4 else "") + " sc1")
        if r == 3:
            a.e("v_add_u32 v25, 4096, v25")
        if r >= 4:
            a.e("v_add_u32 v25, 1024, v25")
    a.e("s_cmp_ge_u32 s60, %d" % (BI_AFTER + 1))
    a.e("s_cbranch_scc1 fh_loop")
    a.e("s_barrier")
    a.e("s_add_u32 s60, s60, 1")
    a.label("fh_loop")
    a.e("s_cmp_ge_u32 s60, %d" % (BI_AFTER + 1) + "")
    a.e("s_cbranch_scc1 fh_round")
    a.e("s_barrier")
    a.e("s_add_u32 s60, s60, 1")
    a.label("fh_round")
    F, H_, RM, DD, E0, AD = 30, 35, 36, 37, 38, 39
    a.e(f"v_mul_u32_u24 v{H_}, 625, v{F}")
    a.e(f"v_lshrrev_b32 v{H_}, 16, v{H_}")
    a.e(f"v_mul_u32_u24 v{RM}, 105, v{H_}")
    a.e(f"v_sub_u32 v{RM}, v{F}, v{RM}")
    a.e(f"v_mul_u32_u24 v{DD}, 13108, v{RM}")
    a.e(f"v_lshrrev_b32 v{DD}, 16, v{DD}")
    a.e(f"v_mul_u32_u24 v{E0}, 5, v{DD}")
    a.e(f"v_sub_u32 v{E0}, v{RM}, v{E0}")
    a.e(f"v_lshlrev_b32 v{E0}, 2, v{E0}")
    a.e(f"v_mul_u32_u24 v{H_}, 20, v{H_}")
    a.e(f"v_add_u32 v{AD}, v{H_}, v{E0}")
    a.e(f"v_mul_u32_u24 v{AD}, 192, v{AD}")
    a.e(f"v_add_u32 v40, v{H_}, v{DD}")
    a.e(f"v_lshl_add_u32 v{AD}, v40, 1, v{AD}")
    a.e(f"v_add_u32 v{AD}, {IMG}, v{AD}")
    a.e(f"v_mul_u32_u24 v43, 192, v{H_}")
    a.e(f"v_add_u32 v40, v{H_}, v{E0}")
    a.e(f"v_lshl_add_u32 v43, v40, 1, v43")
    a.e(f"v_add_u32 v43, {IMG+15360}, v43")
    a.e(f"v_cmp_gt_u32 vcc, 420, v{F}")
    a.e("s_mov_b64 s[56:57], vcc")
    a.e(f"v_cmp_gt_u32 s[52:53], 20, v{DD}")
    a.e(f"v_cmp_eq_u32 s[54:55], 20, v{DD}")
    a.e("s_and_b64 s[52:53], s[52:53], s[56:57]")
    a.e("s_and_b64 s[54:55], s[54:55], s[56:57]")
    a.e("s_waitcnt vmcnt(0)")
    a.e("v_cvt_pk_bf16_f32 v32, v64, v65")
    a.e("v_cvt_pk_bf16_f32 v33, v66, v67")
    for k in range(24):
        a.e(f"v_mov_b32 v{64+k}, v{68+k}")
    a.e("v_lshrrev_b32 v41, 16, v32")
    a.e("v_lshrrev_b32 v42, 16, v33")
    a.e("s_mov_b64 s[66:67], exec")
    a.e("s_mov_b64 exec, s[52:53]")
    a.e(f"ds_write_b16 v{AD}, v32")
    a.e(f"ds_write_b16 v{AD}, v41 offset:192")
    a.e(f"ds_write_b16 v{AD}, v33 offset:384")
    a.e(f"ds_write_b16 v{AD}, v42 offset:576")
    a.e("s_mov_b64 exec, s[54:55]")
    a.e("s_cbranch_execz fh_noz")
    for ee in range(20):
        a.e(f"ds_write_b64 v43, v[32:33] offset:{192*ee}")
    a.label("fh_noz")
    a.e("s_mov_b64 exec, s[66:67]")
    a.e(f"v_add_u32 v{F}, 64, v{F}")
    a.e("s_add_u32 s61, s61, 1")
    a.e("s_cmp_lt_u32 s61, 7")
    a.e("s_cbranch_scc1 fh_loop")
    a.e("s_waitcnt lgkmcnt(0)")
    a.label("fh_rest")
    a.e("s_cmp_ge_u32 s60, %d" % (BI_AFTER + 1) + "")
    a.e("s_cbranch_scc1 fh_bi")
    a.e("s_barrier")
    a.e("s_add_u32 s60, s60, 1")
    a.e("s_branch fh_rest")
    a.label("fh_bi")
    a.e("s_barrier")
    a.e("s_endpgm")


def repack_issue(a):
    a.e("s_min_u32 s53, s9, 2")
    a.e(f"s_mul_i32 s54, s{S_RB}, 3")
    a.e("s_add_u32 s54, s54, s53")
    a.e("s_min_u32 s54, s54, 87")
    a.e(f"s_mov_b32 s59, {hex(W2F_OFF)}")
    a.e("s_cmp_lt_u32 s54, 20")
    a.e(f"s_cselect_b32 s59, {hex(WQF_OFF)}, s59")
    a.e("s_cselect_b32 s60, 20, 68")
    a.e("s_cselect_b32 s61, 0, 20")
    a.e("s_sub_u32 s54, s54, s61")
    a.e(f"s_mul_i32 s60, s60, s{S_CB}")
    a.e("s_add_u32 s54, s54, s60")
    a.e("s_mul_i32 s54, s54, 5120")
    a.e("s_add_u32 s54, s54, s59")
    a.e("v_add_u32 v10, s54, v7")
    a.e("v_lshrrev_b32 v12, 2, v0")
    a.e("v_mul_u32_u24 v12, 192, v12")
    a.e("v_and_b32 v13, 3, v0")
    a.e("v_lshl_add_u32 v12, v13, 3, v12")
    a.e(f"s_and_b32 s60, s{S_CB}, 1")
    a.e("s_lshl_b32 s61, s60, 5")
    a.e("s_mul_i32 s59, s53, 6144")
    a.e("s_add_u32 s61, s61, s59")
    a.e(f"s_add_u32 s61, s61, {WBASE + 6*WS1}")
    a.e("v_add_u32 v12, s61, v12")
    a.e("v_and_b32 v13, 1, v3")
    a.e("v_lshlrev_b32 v13, 5, v13")
    a.e("s_cmp_eq_u32 s60, 0")
    a.e("s_cselect_b32 s61, 1, -1")
    a.e("v_mul_lo_u32 v13, v13, s61")
    a.e("v_add_u32 v8, v12, v13")
    a.e("v_sub_u32 v9, v12, v13")


def repack_reads(a):
    for t in range(5):
        for hf in range(2):
            a.lds(f"ds_read_b64_tr_b16 {vr(208+t*4+2*hf,2)}, v{8 + (t & 1)} offset:{16*hf*192 + t*32}", "RPR")


def repack_store(a):
    a.wait_lg("RPR")
    for t in range(4):
        a.vmem(f"buffer_store_dwordx4 {vr(208+4*t,4)}, v10, {s4(SRD_WS)}, 0 offen offset:{1024*t} sc1", "rst")
    a.e("v_add_u32 v10, 4096, v10")
    a.vmem(f"buffer_store_dwordx4 {vr(224,4)}, v10, {s4(SRD_WS)}, 0 offen sc1", "rst")
    a.nop(2)


def phi4(a, c, T, out0, out1):
    p0, p1 = T, T + 1
    f = T + 2
    ex = T + 6
    if FAITH:
        a.e(f"v_cvt_pk_bf16_f32 v{p0}, v{c}, v{c+1}")
        a.e(f"v_cvt_pk_bf16_f32 v{p1}, v{c+2}, v{c+3}")
        unpack(a, f, f + 1, p0)
        unpack(a, f + 2, f + 3, p1)
        src = f
    else:
        src = c
    a.e(f"v_pk_mul_f32 {vr(ex,2)}, {vr(src,2)}, s[60:61]")
    a.e(f"v_pk_mul_f32 {vr(ex+2,2)}, {vr(src+2,2)}, s[60:61]")
    for i in range(4):
        a.e(f"v_exp_f32 v{ex+i}, v{ex+i}")
    a.e(f"v_pk_add_f32 {vr(f,2)}, {vr(src,2)}, s[62:63]")
    a.e(f"v_pk_add_f32 {vr(f+2,2)}, {vr(src+2,2)}, s[62:63]")
    for i in range(4):
        a.e(f"v_med3_f32 v{f+i}, v{f+i}, v{ex+i}, 1.0")
    if FAITH:
        a.e(f"v_cvt_pk_bf16_f32 v{p0}, v{f}, v{f+1}")
        a.e(f"v_cvt_pk_bf16_f32 v{p1}, v{f+2}, v{f+3}")
        unpack(a, f, f + 1, p0)
        unpack(a, f + 2, f + 3, p1)
    a.e(f"v_pk_add_f32 {vr(f,2)}, {vr(f,2)}, s[64:65]")
    a.e(f"v_pk_add_f32 {vr(f+2,2)}, {vr(f+2,2)}, s[64:65]")
    a.e(f"v_cvt_pk_bf16_f32 v{out0}, v{f}, v{f+1}")
    a.e(f"v_cvt_pk_bf16_f32 v{out1}, v{f+2}, v{f+3}")


def phi_consts(a):
    a.e(f"s_mov_b32 s60, {LOG2E}")
    a.e(f"s_mov_b32 s61, {LOG2E}")
    a.e("s_mov_b32 s62, 1.0")
    a.e("s_mov_b32 s63, 1.0")
    a.e("s_mov_b32 s64, 0x358637bd")
    a.e("s_mov_b32 s65, 0x358637bd")


def loop_a_cons(a, nb, arows, wfrag, afrag, acc, reads, regs, swap, cinit=None, post_repack=None):
    def bump(c):
        pass

    make_srd(a, SRD_T, P_DBG, 256)
    a.e("v_mov_b32 v254, 32")
    a.e("s_barrier")
    a.stamp("a0")
    for t in range(nb):
        reads(0, t)
    for s in range(20):
        if os.environ.get("ASTAMP") and s in (2, 4, 6, 8, 10, 12, 14, 16, 18):
            a.stamp(f"a{s}")
        if s == 2:
            repack_reads(a)
        if s == 3:
            a.vmem(f"buffer_load_dword v255, v254, {s4(SRD_T)}, 0 offen sc1", "rst")
            repack_store(a)
            if post_repack:
                post_repack()
        if s + 1 < 20:
            if s == RWPUB:
                a.wait_vm("rst")
            a.e("s_barrier")
            bump(s + 1)
            if s == RWPUB:
                lab = f"fc_norp{swap}"
                a.e("s_cmp_lg_u32 s9, 0")
                a.e(f"s_cbranch_scc1 {lab}")
                lg = list(a.lg)
                vm = list(a.vm)
                a.e("v_readfirstlane_b32 s72, v255")
                a.e("s_cmp_ge_u32 s72, 1")
                a.e(f"s_cbranch_scc1 {lab}_p_done")
                make_srd(a, SRD_T, P_DBG, 256)
                poll(a, s4(SRD_T), 254, 1, lab + "_p", tmp=255)
                a.e(f"s_lshl_b32 s10, s{S_CB}, 7")
                a.e(f"s_add_u32 s10, s10, {hex(F_RW)}")
                flag_add(a, s4(SRD_WS), "s10", 254)
                a.label(lab)
                a.lg = lg
                a.vm = vm
        for t in range(nb):
            if s + 1 < 20:
                reads(s + 1, t)
            need = [("R", s, t)]
            if t == 0:
                need += [("A", s, r) for r in range(arows)]
            a.wait_lg(need)
            for rt in range(arows):
                d = acc(rt, t)
                cin = d if s else (cinit(t) if cinit else "0")
                if swap:
                    a.e(f"v_mfma_f32_16x16x32_bf16 {d}, {wfrag(s,t)}, {afrag(s,rt)}, {cin}")
                else:
                    a.e(f"v_mfma_f32_16x16x32_bf16 {d}, {afrag(s,rt)}, {wfrag(s,t)}, {cin}")


def prefetch_a(a):
    a.e("s_lshl_b32 s53, s4, 2")
    a.e("s_add_u32 s53, s53, s9")
    a.e("s_lshr_b32 s54, s3, 2")
    a.e(f"s_mul_i32 s54, s54, {1024*1280}")
    a.e(f"s_mul_i32 s55, s53, {80*128}")
    a.e("s_add_u32 s54, s54, s55")
    a.e("v_lshlrev_b32 v32, 7, v0")
    a.e(f"buffer_load_dword v250, v32, {s4(SRD_X)}, s54 offen")
    a.e("v_and_b32 v33, 15, v0")
    a.e("v_lshlrev_b32 v33, 7, v33")
    a.e("s_add_u32 s54, s54, 8192")
    a.e(f"buffer_load_dword v251, v33, {s4(SRD_X)}, s54 offen")
    a.e("s_and_b32 s56, s3, 3")
    make_srd(a, SRD_T, P_WQKV, 640 * 3840)
    a.e("v_min_u32 v32, 39, v0")
    a.e("v_lshrrev_b32 v33, 3, v32")
    a.e("s_mul_i32 s54, s53, 5")
    a.e("v_add_u32 v33, s54, v33")
    a.e("v_mul_u32_u24 v33, 3840, v33")
    a.e("v_bfe_u32 v34, v32, 2, 1")
    a.e("v_mul_u32_u24 v34, 1280, v34")
    a.e("v_add_u32 v33, v33, v34")
    a.e("v_and_b32 v34, 3, v32")
    a.e("v_mul_u32_u24 v34, 106, v34")
    a.e("v_and_b32 v34, 0xfffffffc, v34")
    a.e("v_add_u32 v33, v33, v34")
    a.e("s_mul_i32 s54, s56, 320")
    a.e("s_add_u32 s54, s54, 1280")
    a.e(f"buffer_load_dword v252, v33, {s4(SRD_T)}, s54 offen")
    make_srd(a, SRD_T, P_W1, 640 * 3072)
    a.e("v_min_u32 v32, 29, v0")
    a.e("v_mul_u32_u24 v33, 10923, v32")
    a.e("v_lshrrev_b32 v33, 16, v33")
    a.e("v_mul_u32_u24 v34, 6, v33")
    a.e("v_sub_u32 v34, v32, v34")
    a.e("s_mul_i32 s54, s53, 5")
    a.e("v_add_u32 v33, s54, v33")
    a.e("v_mul_u32_u24 v33, 3072, v33")
    a.e("v_lshl_add_u32 v33, v34, 7, v33")
    a.e("s_mul_i32 s54, s56, 768")
    a.e(f"buffer_load_dword v253, v33, {s4(SRD_T)}, s54 offen")


def kv_duties(a):
    a.e("s_add_u32 s10, s2, s9")
    a.e("s_cmp_lg_u32 s10, 0")
    a.e("s_cbranch_scc1 fp_noflag")
    make_srd(a, SRD_T, P_DBG, 256)
    a.e("v_lshlrev_b32 v24, 7, v0")
    a.e(f"v_add_u32 v24, {hex(FLAG_OFF)}, v24")
    a.e("v_mov_b32 v25, 0")
    for i in range(3):
        a.e(f"buffer_store_dword v25, v24, {s4(SRD_WS)}, 0 offen sc1")
        a.e("v_add_u32 v24, 8192, v24")
    a.e("s_waitcnt vmcnt(0)")
    a.e("s_mov_b32 s10, 32")
    flag_add(a, s4(SRD_T), "s10", 24)
    a.label("fp_noflag")

    a.e("s_cmp_lg_u32 s5, 0")
    a.e("s_cbranch_scc1 fp_nozero")
    make_srd(a, SRD_T, P_DBG, 256)
    a.e("s_lshl_b32 s10, s7, 13")
    a.e("s_lshl_b32 s11, s9, 11")
    a.e("s_add_u32 s10, s10, s11")
    a.e(f"s_add_u32 s10, s10, {hex(PART_OFF)}")
    a.e("v_lshl_add_u32 v24, v0, 4, s10")
    for i in range(4):
        a.e(f"v_mov_b32 v{28+i}, 0")
    a.e(f"buffer_store_dwordx4 v[28:31], v24, {s4(SRD_WS)}, 0 offen sc1")
    a.e(f"buffer_store_dwordx4 v[28:31], v24, {s4(SRD_WS)}, 0 offen offset:1024 sc1")
    a.e("s_waitcnt vmcnt(0)")
    a.e("s_lshl_b32 s10, s7, 2")
    flag_add(a, s4(SRD_T), "s10", 24)
    a.label("fp_nozero")


def code_prefetch(a):
    a.e("s_getpc_b64 s[54:55]")
    a.label("fc_pc0")
    a.e("s_sub_u32 s54, s54, fc_pc0-fused_kernel")
    a.e("s_subb_u32 s55, s55, 0")
    a.e("s_lshl_b32 s56, s4, 2")
    a.e("s_add_u32 s56, s56, s9")
    a.e("s_and_b32 s56, s56, 15")
    a.e("s_lshl_b32 s56, s56, 13")
    a.e("v_lshlrev_b32 v32, 7, v0")
    a.e("v_add_u32 v32, s56, v32")
    a.e("v_min_u32 v32, f_code_end-fused_kernel-4, v32")
    a.e("v_and_b32 v32, 0xfffffffc, v32")
    a.e("global_load_dword v11, v32, s[54:55]")


def tlb_warm(a):
    a.e("s_cmp_lg_u32 s9, 1")
    a.e("s_cbranch_scc1 fc_notlb")
    spots = [0]
    for pg in (1, 2, 3, 4):
        r = -(-(pg * (2 << 20)) // ACT_RT)
        sp = ACT_OFF + r * ACT_RT + 68 * 1024
        assert sp >> 21 == pg and r < 128
        spots.append(sp)
    spots += [PART_OFF + 0x20000, WQF_OFF + 0xE0000, FLAG_OFF - 0x10000]
    a.e("s_mov_b64 exec, 1")
    for sp in spots:
        a.e(f"v_mov_b32 v32, {hex(sp)}")
        a.e(f"buffer_load_dword v11, v32, {s4(SRD_WS)}, 0 offen")
    a.e("v_mov_b32 v32, 0")
    for ptr, nb in ((P_WO, 640 * 1280), (P_W2, 1536 * 1280), (P_B1, 3072), (P_B2, 1280), (P_GW, 1280), (P_OUT, 2048 * 1280)):
        make_srd(a, SRD_T, ptr, nb)
        a.e(f"buffer_load_dword v11, v32, {s4(SRD_T)}, 0 offen")
    a.e(f"v_mov_b32 v32, {hex(2048*1280 - 4)}")
    a.e(f"buffer_load_dword v11, v32, {s4(SRD_T)}, 0 offen")
    a.e("s_mov_b64 exec, -1")
    a.label("fc_notlb")


def gen_consumers(a):
    if CPF:
        code_prefetch(a)
    a.e("s_waitcnt lgkmcnt(0)")
    make_srd(a, SRD_X, P_X, 2048 * 1280)
    make_srd(a, SRD_WS, P_WS, WS_USED)
    if TLBW:
        tlb_warm(a)
    if PFA:
        prefetch_a(a)
    repack_issue(a)
    a.e("v_lshrrev_b32 v14, 1, v2")
    a.e("v_xor_b32 v14, v14, v3")
    a.e("v_lshlrev_b32 v15, 7, v2")
    a.e("v_lshl_add_u32 v17, v14, 4, v15")
    a.e("s_cmp_ge_u32 s6, 2")
    a.e("s_cbranch_scc1 fc_h")
    vm0 = list(a.vm)
    kv_duties(a)
    a.e("v_lshrrev_b32 v19, 2, v0")
    a.e("v_mul_u32_u24 v19, 192, v19")
    a.e("v_and_b32 v20, 3, v0")
    a.e("v_lshl_add_u32 v19, v20, 3, v19")
    a.e("s_lshl_b32 s11, s8, 5")
    a.e(f"s_add_u32 s11, s11, {WBASE}")
    a.e("v_add_u32 v19, s11, v19")
    a.e("v_and_b32 v20, 1, v3")
    a.e("v_lshlrev_b32 v20, 5, v20")
    a.e("s_cmp_eq_u32 s8, 0")
    a.e("s_cselect_b32 s11, 1, -1")
    a.e("v_mul_lo_u32 v20, v20, s11")
    a.e("v_add_u32 v24, v19, v20")
    a.e("v_sub_u32 v25, v19, v20")
    a.e(f"v_add_u32 v18, {4*WS1}, v24")
    a.e(f"v_add_u32 v19, {4*WS1}, v25")
    a.e("s_lshl_b32 s14, s9, 12")
    a.e("v_add_u32 v26, s14, v17")
    a.e("v_xor_b32 v27, 64, v26")
    ACC, WB, AB = 32, 112, 192
    if PFA:
        a.e("s_waitcnt vmcnt(0)")
    a.e("s_lshl_b32 s12, s9, 6")
    a.e("v_add_u32 v16, s12, v0")
    a.e("s_lshl_b32 s12, s7, 13")
    a.e(f"s_add_u32 s12, s12, {hex(PART_OFF)}")
    for it in range(7):
        I, H_, RM, DD, E_, Dg, Eg, TI = [32 + k for k in range(8)]
        AD = 240 + it
        a.e(f"v_add_u32 v{I}, {256*it}, v16")
        a.e(f"v_mul_u32_u24 v{H_}, 1249, v{I}")
        a.e(f"v_lshrrev_b32 v{H_}, 19, v{H_}")
        a.e(f"v_mul_u32_u24 v{RM}, 420, v{H_}")
        a.e(f"v_sub_u32 v{RM}, v{I}, v{RM}")
        a.e(f"v_mul_u32_u24 v{DD}, 3277, v{RM}")
        a.e(f"v_lshrrev_b32 v{DD}, 16, v{DD}")
        a.e(f"v_mul_u32_u24 v{E_}, 20, v{DD}")
        a.e(f"v_sub_u32 v{E_}, v{RM}, v{E_}")
        a.e(f"v_mul_u32_u24 v{H_}, 20, v{H_}")
        a.e(f"v_cmp_eq_u32 vcc, 20, v{DD}")
        a.e(f"v_add_u32 v{Eg}, v{H_}, v{E_}")
        a.e(f"v_add_u32 v{Dg}, v{H_}, v{DD}")
        a.e(f"v_cndmask_b32 v{Dg}, v{Dg}, v{Eg}, vcc")
        a.e(f"v_lshrrev_b32 v{TI}, 4, v{Dg}")
        a.e(f"v_lshrrev_b32 v{AD}, 4, v{Eg}")
        a.e(f"v_lshl_add_u32 v{AD}, v{TI}, 1, v{AD}")
        a.e(f"v_add_u32 v{TI}, 13, v{TI}")
        a.e(f"v_cndmask_b32 v{TI}, v{AD}, v{TI}, vcc")
        a.e(f"v_and_b32 v{Eg}, 15, v{Eg}")
        a.e(f"v_cndmask_b32 v{Eg}, v{Eg}, 0, vcc")
        a.e(f"v_bfe_u32 v{AD}, v{Dg}, 2, 2")
        a.e(f"v_lshl_add_u32 v{AD}, v{AD}, 4, v{Eg}")
        a.e(f"v_lshlrev_b32 v{AD}, 4, v{AD}")
        a.e(f"v_lshl_add_u32 v{AD}, v{TI}, 10, v{AD}")
        a.e(f"v_and_b32 v{Dg}, 3, v{Dg}")
        a.e(f"v_lshl_add_u32 v{AD}, v{Dg}, 2, v{AD}")
        if it == 6:
            a.e(f"v_cmp_gt_u32 vcc, 1680, v{I}")
            a.e("s_nop 1")
            a.e(f"v_cndmask_b32 v{AD}, 0, v{AD}, vcc")
            a.e("s_mov_b64 s[50+28:51+28], vcc".replace("50+28:51+28", "78:79"))
        a.e(f"v_add_u32 v{AD}, {SCR}, v{AD}")
        a.e(f"v_lshl_add_u32 v{247+it}, v{I}, 2, s12")

    def reads_kv(s, t):
        if t < 2:
            a.lds(f"ds_read_b128 {vr(AB+((s&1)*2+t)*4,4)}, v{26+(s&1)} offset:{t*2048 + ((s//2)%4)*XS}", ("A", s, t))
        for hf in range(2):
            sl = s % NSL1
            off = (t // 5) * 6144 + 16 * hf * 192 + (t % 5) * 32 + (sl % 4) * WS1
            v = (24 if sl < 4 else 18) + ((t % 5) % 2)
            a.lds(f"ds_read_b64_tr_b16 {vr(WB+((s&1)*10+t)*4+2*hf,2)}, v{v} offset:{off}", ("R", s, t))

    loop_a_cons(a, 10, 2, lambda s, t: vr(WB + ((s & 1) * 10 + t) * 4, 4),
                lambda s, rt: vr(AB + ((s & 1) * 2 + rt) * 4, 4),
                lambda rt, t: vr(ACC + (t * 2 + rt) * 4, 4), reads_kv, [24, 25], False)
    a.stamp("aloop")
    a.e("s_barrier")
    phi_consts(a)
    a.nop(4)
    PK, T = 112, 152
    for t in range(5):
        for rt in range(2):
            c = ACC + (t * 2 + rt) * 4
            phi4(a, c, T + (12 if rt else 0), PK + t * 4 + rt * 2, PK + t * 4 + rt * 2 + 1)
    for t in range(5, 10):
        for rt in range(2):
            c = ACC + (t * 2 + rt) * 4
            a.e(f"v_cvt_pk_bf16_f32 v{PK+t*4+rt*2}, v{c}, v{c+1}")
            a.e(f"v_cvt_pk_bf16_f32 v{PK+t*4+rt*2+1}, v{c+2}, v{c+3}")
    ONES = 176
    for i in range(4):
        a.e(f"v_mov_b32 v{ONES+i}, 0x3f803f80")
    a.nop(2)
    D2 = 32
    pairs = [(i, j) for i in range(5) for j in range(5) if abs(i - j) <= 1]
    for (i, j) in pairs:
        a.e(f"v_mfma_f32_16x16x32_bf16 {vr(D2+(2*i+j)*4,4)}, {vr(PK+i*4,4)}, {vr(PK+(5+j)*4,4)}, 0")
    for i in range(5):
        a.e(f"v_mfma_f32_16x16x32_bf16 {vr(D2+(13+i)*4,4)}, {vr(PK+i*4,4)}, {vr(ONES,4)}, 0")
    a.e("s_mul_i32 s12, s9, 18432")
    a.e(f"s_add_u32 s12, s12, {SCR}")
    a.e("v_add_u32 v14, s12, v7")
    make_srd(a, SRD_T, P_DBG, 256)
    a.e("s_lshl_b32 s10, s7, 2")
    a.e("v_mov_b32 v20, s10")
    a.vmem(f"buffer_load_dword v22, v20, {s4(SRD_T)}, 0 offen sc1", "zp")
    a.nop(2)
    for k in range(18):
        a.lds(f"ds_write_b128 v14, {vr(D2+k*4,4)} offset:{k*1024}", "W")
    a.wait_lg_all()
    a.e("s_barrier")
    for it in range(7):
        b = 112 + it * 4
        for w in range(4):
            a.lds(f"ds_read_b32 v{b+w}, v{240+it} offset:{w*18432}", ("Q", it))
    a.wait_lg_all()
    a.e("s_barrier")
    a.wait_vm("zp")
    a.e("v_readfirstlane_b32 s72, v22")
    a.e("s_cmp_ge_u32 s72, 4")
    a.e("s_cbranch_scc1 fc_zp_done")
    poll(a, s4(SRD_T), 20, 4, "fc_zp")
    for it in range(7):
        b = 112 + it * 4
        a.e(f"v_add_f32 v{b}, v{b}, v{b+1}")
        a.e(f"v_add_f32 v{b+2}, v{b+2}, v{b+3}")
        a.e(f"v_add_f32 v{b}, v{b}, v{b+2}")
        if it == 6:
            a.e("s_mov_b64 exec, s[78:79]")
        a.vmem(f"buffer_atomic_add_f32 v{b}, v{247+it}, {s4(SRD_WS)}, 0 offen sc0 sc1", "st")
        if it == 6:
            a.e("s_mov_b64 exec, -1")
    a.e("s_lshl_b32 s71, s7, 7")
    a.e(f"s_add_u32 s71, s71, {hex(F_KV)}")
    a.e("s_branch fc_b")

    a.label("fc_h")
    a.vm = vm0
    a.lg = []
    a.nstamp = 1
    a.e("v_lshrrev_b32 v14, 5, v0")
    a.e("v_mul_u32_u24 v14, 3072, v14")
    a.e("v_bfe_u32 v15, v0, 2, 3")
    a.e("v_lshl_add_u32 v14, v15, 7, v14")
    a.e("v_and_b32 v16, 3, v0")
    a.e("v_lshl_add_u32 v14, v16, 3, v14")
    a.e(f"v_add_u32 v14, {WBASE}, v14")
    a.e("v_lshrrev_b32 v15, 1, v15")
    a.e("s_and_b32 s13, s9, 1")
    for t in range(6):
        a.e("s_mul_i32 s12, s13, 6")
        a.e(f"s_add_u32 s12, s12, {t}")
        a.e("s_and_b32 s11, s12, 3")
        a.e("s_lshr_b32 s12, s12, 2")
        a.e("s_lshl_b32 s12, s12, 10")
        a.e("v_xor_b32 v16, s11, v15")
        a.e(f"v_lshl_add_u32 v{20+t}, v16, 5, v14")
        a.e(f"v_add_u32 v{20+t}, s12, v{20+t}")
        a.e(f"v_add_u32 v{240+t}, {4*WS1}, v{20+t}")
    a.e("s_lshr_b32 s12, s9, 1")
    a.e("s_lshl_b32 s12, s12, 13")
    a.e("v_add_u32 v26, s12, v17")
    a.e("v_xor_b32 v27, 64, v26")
    ACCH, WBH, ABH = 32, 128, 176
    BB = 228

    def load_bias():
        make_srd(a, SRD_T, P_B1, 3072)
        a.e("s_mul_i32 s12, s7, 384")
        a.e("s_mul_i32 s11, s13, 192")
        a.e("s_add_u32 s12, s12, s11")
        a.e("v_lshl_add_u32 v28, v3, 3, s12")
        for t in range(6):
            a.vmem(f"buffer_load_dwordx2 {vr(BB+2*t,2)}, v28, {s4(SRD_T)}, 0 offen offset:{32*t}", "bias")

    def reads_h(s, t):
        if t < 4:
            a.lds(f"ds_read_b128 {vr(ABH+((s&1)*4+t)*4,4)}, v{26+(s&1)} offset:{t*2048 + ((s//2)%4)*XS}", ("A", s, t))
        for hf in range(2):
            sl = s % NSL1
            a.lds(f"ds_read_b64_tr_b16 {vr(WBH+((s&1)*6+t)*4+2*hf,2)}, v{(20 if sl < 4 else 240)+t} offset:{2*hf*3072 + (sl%4)*WS1}", ("R", s, t))

    loop_a_cons(a, 6, 4, lambda s, t: vr(WBH + ((s & 1) * 6 + t) * 4, 4),
                lambda s, rt: vr(ABH + ((s & 1) * 4 + rt) * 4, 4),
                lambda rt, t: vr(ACCH + (t * 4 + rt) * 4, 4), reads_h, [20, 21, 22, 23, 24, 25], True, None, load_bias)
    a.stamp("aloop")
    a.e("s_barrier")
    a.e("s_lshl_b32 s12, s5, 3")
    a.e("s_lshr_b32 s11, s9, 1")
    a.e("s_lshl_b32 s11, s11, 2")
    a.e("s_add_u32 s12, s12, s11")
    a.e(f"s_mul_i32 s12, s12, {ACT_RT}")
    a.e("s_mul_i32 s11, s7, 6")
    a.e("s_mul_i32 s10, s13, 3")
    a.e("s_add_u32 s11, s11, s10")
    a.e(f"s_add_u32 s11, s11, {20 + ACT_OFF // 1024}")
    a.e("s_lshl_b32 s11, s11, 10")
    a.e("s_add_u32 s12, s12, s11")
    a.e("v_lshrrev_b32 v14, 1, v3")
    a.e("v_lshl_add_u32 v14, v14, 4, v2")
    a.e("v_lshlrev_b32 v14, 4, v14")
    a.e("v_and_b32 v15, 1, v3")
    a.e("v_lshl_add_u32 v14, v15, 9, v14")
    for rt in range(4):
        a.e(f"v_add_u32 v{8+rt}, s12, v14")
        a.e(f"s_add_u32 s12, s12, {ACT_RT}")
    a.wait_vm("bias")
    T = 128
    for tp in range(3):
        if True:
            for h in range(2):
                t = 2 * tp + h
                unpack(a, T + 4 * h, T + 4 * h + 1, BB + 2 * t)
                unpack(a, T + 4 * h + 2, T + 4 * h + 3, BB + 2 * t + 1)
        for rt in range(4):
            O = T + 24 + ((tp * 4 + rt) % 4) * 4
            for h in range(2):
                t = 2 * tp + h
                c = ACCH + (t * 4 + rt) * 4
                p = T + 8 + h * 8
                f = p + 2
                bf = T + 4 * h
                o = O + 2 * h
                if FAITH_H:
                    a.e(f"v_cvt_pk_bf16_f32 v{p}, v{c}, v{c+1}")
                    a.e(f"v_cvt_pk_bf16_f32 v{p+1}, v{c+2}, v{c+3}")
                    unpack(a, f, f + 1, p)
                    unpack(a, f + 2, f + 3, p + 1)
                    a.e(f"v_pk_add_f32 {vr(f,2)}, {vr(f,2)}, {vr(bf,2)}")
                    a.e(f"v_pk_add_f32 {vr(f+2,2)}, {vr(f+2,2)}, {vr(bf+2,2)}")
                    a.e(f"v_cvt_pk_bf16_f32 v{p}, v{f}, v{f+1}")
                    a.e(f"v_cvt_pk_bf16_f32 v{p+1}, v{f+2}, v{f+3}")
                    a.e(f"v_pk_max_i16 v{p}, v{p}, 0")
                    a.e(f"v_pk_max_i16 v{p+1}, v{p+1}, 0")
                    unpack(a, f, f + 1, p)
                    unpack(a, f + 2, f + 3, p + 1)
                else:
                    a.e(f"v_pk_add_f32 {vr(f,2)}, {vr(c,2)}, {vr(bf,2)}")
                    a.e(f"v_pk_add_f32 {vr(f+2,2)}, {vr(c+2,2)}, {vr(bf+2,2)}")
                    for i in range(4):
                        a.e(f"v_max_f32 v{f+i}, 0, v{f+i}")
                a.e(f"v_pk_mul_f32 {vr(f,2)}, {vr(f,2)}, {vr(f,2)}")
                a.e(f"v_pk_mul_f32 {vr(f+2,2)}, {vr(f+2,2)}, {vr(f+2,2)}")
                a.e(f"v_cvt_pk_bf16_f32 v{o}, v{f}, v{f+1}")
                a.e(f"v_cvt_pk_bf16_f32 v{o+1}, v{f+2}, v{f+3}")
            a.nop(2)
            a.e(f"v_permlane16_swap_b32 v{O}, v{O+2}")
            a.e(f"v_permlane16_swap_b32 v{O+1}, v{O+3}")
            a.nop(1)
            a.vmem(f"buffer_store_dwordx4 {vr(O,4)}, v{8+rt}, {s4(SRD_WS)}, 0 offen offset:{tp*1024} sc1", "st")
    a.e("s_lshl_b32 s71, s5, 3")
    a.e("s_add_u32 s71, s71, s7")
    a.e("s_lshl_b32 s71, s71, 7")
    a.e(f"s_add_u32 s71, s71, {hex(F_H2)}")

    a.label("fc_b")
    a.vm = ["st"]
    a.lg = []
    a.nstamp = 11 if os.environ.get("ASTAMP") else 3
    a.stamp("aend")
    a.e(f"s_lshl_b32 s10, s{S_RB}, 2")
    a.e("s_add_u32 s10, s10, s9")
    a.e("s_lshl_b32 s11, s10, 4")
    a.e("v_add_u32 v4, s11, v2")
    a.e("v_lshlrev_b32 v6, 4, v3")
    a.e("s_lshl_b32 s12, s9, 10")
    a.e("s_add_u32 s12, s12, 10240")
    a.e("v_add_u32 v8, s12, v7")
    a.e("v_mov_b32 v9, v7")
    a.e("s_lshl_b32 s12, s9, 11")
    a.e("s_add_u32 s12, s12, 10240")
    a.e("v_add_u32 v10, s12, v17")
    a.e("v_xor_b32 v11, 64, v10")
    make_srd(a, SRD_X, P_B2, 1280)
    make_srd(a, 56, P_OUT, 2048 * 1280)
    a.e("s_mul_i32 s69, s73, 10")
    a.e("s_lshr_b32 s69, s69, 5")
    a.e("s_lshl_b32 s70, s69, 7")
    a.e(f"s_add_u32 s70, s70, {GWL}")
    a.e("v_add_u32 v6, s70, v6")
    ACC, WB, AB, GA, GF = 32, 64, 104, 56, 152
    ACA = 112
    B2 = 240
    a.e(f"v_mov_b32 v{GA}, 0")

    def reads(s, t):
        ks = s % 2
        if t == 0:
            if s < 20:
                a.lds(f"ds_read_b128 {vr(AB+(s&1)*4,4)}, v{10+ks}", ("A", s, 0))
                a.lds(f"ds_read_b128 {vr(GF+(s&1)*4,4)}, v6 offset:{ks*64}", ("A", s, 0))
            else:
                a.lds(f"ds_read_b128 {vr(AB+(s&1)*4,4)}, v8 offset:{ks*4096}", ("A", s, 0))
        a.lds(f"ds_read_b128 {vr(WB+((s&1)*5+t)*4,4)}, v9 offset:{ks*5120+t*1024}", ("R", s, t))

    def bump(c):
        d = SLOT2 if (c % NSL2) else -(NSL2 - 1) * SLOT2
        for r in ((8, 9, 10, 11) if c < 10 else (8, 9)):
            a.e(f"v_add_u32 v{r}, {d if d > 0 else hex(d & 0xffffffff)}, v{r}")
        if c < 10:
            a.e("s_add_u32 s69, s69, 1")
            a.e("s_cmp_ge_u32 s69, 10")
            a.e("s_cselect_b32 s70, -9, 1")
            a.e("s_cselect_b32 s69, 0, s69")
            a.e("s_lshl_b32 s70, s70, 7")
            a.e("v_add_u32 v6, s70, v6")

    def b_epilogue():
        a.stamp("bep")
        phi_consts(a)
        PQ, T = 152, 212
        for t in range(5):
            phi4(a, ACC + t * 4, T + (12 if t & 1 else 0), PQ + t * 2, PQ + t * 2 + 1)
        a.e(f"v_mov_b32 v{PQ+10}, 0")
        a.e(f"v_mov_b32 v{PQ+11}, 0")
        a.e("v_mul_u32_u24 v14, 192, v2")
        a.e("v_lshl_add_u32 v14, v3, 3, v14")
        a.e(f"v_add_u32 v14, {IMG}, v14")
        a.e(f"s_mul_i32 s12, s10, {ACT_RT}")
        a.e(f"s_mul_i32 s11, s{S_CB}, 2560")
        a.e("s_add_u32 s12, s12, s11")
        a.e(f"s_add_u32 s12, s12, {ACT_OFF}")
        a.e("v_lshrrev_b32 v15, 1, v3")
        a.e("v_lshl_add_u32 v15, v15, 4, v2")
        a.e("v_lshlrev_b32 v15, 4, v15")
        a.e("v_add_u32 v13, s12, v15")
        a.e("v_and_b32 v15, 1, v3")
        a.e("v_lshl_add_u32 v12, v15, 9, v13")
        a.e("s_barrier")
        us = {0: [0], 1: [0, 1], 2: [0, 1], 3: [1, 2], 4: [1, 2]}

        def fr(j):
            kf = 164 + (j & 1) * 16
            for im in range(2):
                for n, u in enumerate(us[j]):
                    b = kf + im * 8 + n * 4
                    off = im * 15360 + j * 16 * 192 + u * 64
                    a.lds(f"ds_read_b64 {vr(b,2)}, v14 offset:{off}", ("F", j))
                    a.lds(f"ds_read_b64 {vr(b+2,2)}, v14 offset:{off+32}", ("F", j))

        def mm(j):
            kf = 164 + (j & 1) * 16
            nd = 196 + (j & 1) * 8
            a.wait_lg(("F", j))
            for im in range(2):
                for n, u in enumerate(us[j]):
                    d = vr(nd + im * 4, 4)
                    a.e(f"v_mfma_f32_16x16x32_bf16 {d}, {vr(kf+im*8+n*4,4)}, {vr(PQ+u*4,4)}, {d if n else '0'}")

        fr(0)
        fr(1)
        mm(0)
        for j in range(5):
            if j + 1 < 5:
                mm(j + 1)
            else:
                a.nop(8)
            if j + 2 < 5:
                fr(j + 2)
            if j == 0:
                a.nop(4)
            n_ = 196 + (j & 1) * 8
            d_ = n_ + 4
            p = T
            f = T + 4
            g = T + 8
            if FAITH:
                a.e(f"v_cvt_pk_bf16_f32 v{p}, v{n_}, v{n_+1}")
                a.e(f"v_cvt_pk_bf16_f32 v{p+1}, v{n_+2}, v{n_+3}")
                a.e(f"v_cvt_pk_bf16_f32 v{p+2}, v{d_}, v{d_+1}")
                a.e(f"v_cvt_pk_bf16_f32 v{p+3}, v{d_+2}, v{d_+3}")
                unpack(a, f, f + 1, p)
                unpack(a, f + 2, f + 3, p + 1)
                unpack(a, g, g + 1, p + 2)
                unpack(a, g + 2, g + 3, p + 3)
                a.e(f"v_pk_add_f32 {vr(g,2)}, {vr(g,2)}, s[64:65]")
                a.e(f"v_pk_add_f32 {vr(g+2,2)}, {vr(g+2,2)}, s[64:65]")
                a.e(f"v_cvt_pk_bf16_f32 v{p+2}, v{g}, v{g+1}")
                a.e(f"v_cvt_pk_bf16_f32 v{p+3}, v{g+2}, v{g+3}")
                unpack(a, g, g + 1, p + 2)
                unpack(a, g + 2, g + 3, p + 3)
            else:
                a.e(f"v_pk_add_f32 {vr(g,2)}, {vr(d_,2)}, s[64:65]")
                a.e(f"v_pk_add_f32 {vr(g+2,2)}, {vr(d_+2,2)}, s[64:65]")
                for i in range(4):
                    a.e(f"v_mov_b32 v{f+i}, v{n_+i}")
            for i in range(4):
                a.e(f"v_rcp_f32 v{g+4+i}, v{g+i}")
            a.e("s_nop 0")
            a.e(f"v_pk_mul_f32 {vr(g+8,2)}, {vr(f,2)}, {vr(g+4,2)}")
            a.e(f"v_pk_mul_f32 {vr(g+10,2)}, {vr(f+2,2)}, {vr(g+6,2)}")
            if FAITH:
                for i in range(4):
                    a.e(f"v_fma_f32 v{f+i}, -v{g+i}, v{g+8+i}, v{f+i}")
                for i in range(4):
                    a.e(f"v_fma_f32 v{g+8+i}, v{f+i}, v{g+4+i}, v{g+8+i}")
            O = T + 24 + (j // 2) * 4
            if j < 4:
                o = O + (j & 1) * 2
                a.e(f"v_cvt_pk_bf16_f32 v{o}, v{g+8}, v{g+9}")
                a.e(f"v_cvt_pk_bf16_f32 v{o+1}, v{g+10}, v{g+11}")
            else:
                a.e(f"v_cvt_pk_bf16_f32 v{O}, v{g+8}, v{g+9}")
                a.e(f"v_cvt_pk_bf16_f32 v{O+1}, v{g+10}, v{g+11}")
                a.e(f"v_mov_b32 v{O+2}, v{O}")
                a.e(f"v_mov_b32 v{O+3}, v{O+1}")
            if j & 1 or j == 4:
                a.nop(2)
                a.e(f"v_permlane16_swap_b32 v{O}, v{O+2}")
                a.e(f"v_permlane16_swap_b32 v{O+1}, v{O+3}")
                a.nop(1)
                a.vmem(f"buffer_store_dwordx4 {vr(O,4)}, v{12 if j < 4 else 13}, {s4(SRD_WS)}, 0 offen offset:{512*(j & ~1)} sc1", "st")
        a.e(f"v_mov_b32 v{GA}, v52")
        a.e(f"v_cvt_pk_bf16_f32 v{GA}, v{GA}, v{GA}")
        a.e(f"v_lshlrev_b32 v{GA}, 16, v{GA}")
        a.e(f"v_mul_f32 v{GA}, 0xbfb8aa3b, v{GA}")
        a.e(f"v_exp_f32 v{GA}, v{GA}")
        a.e("s_nop 0")
        a.e(f"v_add_f32 v{GA}, 1.0, v{GA}")
        a.e(f"v_rcp_f32 v{GA}, v{GA}")
        a.e("s_nop 0")
        a.e(f"v_cvt_pk_bf16_f32 v{GA}, v{GA}, v{GA}")
        a.e(f"v_lshlrev_b32 v{GA}, 16, v{GA}")
        a.e(f"v_sub_f32 v57, 1.0, v{GA}")
        a.e("v_cvt_pk_bf16_f32 v57, v57, v57")
        a.e("v_lshlrev_b32 v57, 16, v57")
        a.e(f"s_lshl_b32 s71, s{S_RB}, 7")
        a.e(f"s_add_u32 s71, s71, {hex(F_O)}")
        a.e("s_mov_b32 s77, 0")
        a.stamp("bep_end")

    a.e("s_mov_b32 s77, 0")
    a.e("s_barrier")
    a.stamp("b0")
    for t in range(5):
        reads(0, t)
    NK = 88
    for s in range(NK):
        if s in (20, 68):
            a.stamp(f"s{s}")
        if s == 70:
            a.e(f"s_mul_i32 s12, s{S_CB}, 160")
            a.e("v_lshl_add_u32 v28, v3, 3, s12")
            for t in range(5):
                a.vmem(f"buffer_load_dwordx2 {vr(B2+2*t,2)}, v28, {s4(SRD_X)}, 0 offen offset:{32*t}", "b2")
        if s + 1 < NK and (s + 1) % 2 == 0:
            c = (s + 1) // 2
            a.e("s_barrier")
            bump(c)
            win = None
            if 1 <= c <= PUBA_DL:
                win = (c == PUBA_DL)
            if BI_AFTER + 1 <= c <= BI_AFTER + PUBO_DL:
                win = (c == BI_AFTER + PUBO_DL)
            if win is not None:
                lab = f"fc_pub{c}"
                a.e("s_cmp_lg_u32 s77, 0")
                a.e(f"s_cbranch_scc1 {lab}")
                if win:
                    a.e("s_waitcnt vmcnt(0)")
                else:
                    a.e("s_getreg_b32 s72, hwreg(HW_REG_IB_STS)")
                    a.e("s_and_b32 s72, s72, 0xc0000f")
                    a.e(f"s_cbranch_scc1 {lab}")
                flag_add(a, s4(SRD_WS), "s71", 58)
                a.e("s_mov_b32 s77, 1")
                a.label(lab)
            if c == BI_AFTER:
                b_epilogue()
        for t in range(5):
            if s + 1 < NK:
                reads(s + 1, t)
            need = [("R", s, t)]
            if t == 0:
                need.append(("A", s, 0))
            a.wait_lg(need)
            if s < 20:
                d = vr(ACC + t * 4, 4)
            else:
                d = vr(ACA + (20 if s < 68 else 0) + t * 4, 4)
            cin = "0" if s in (0, 20, 68) else d
            a.e(f"v_mfma_f32_16x16x32_bf16 {d}, {vr(WB+((s&1)*5+t)*4,4)}, {vr(AB+(s&1)*4,4)}, {cin}")
            if s < 20 and t == 2:
                a.e(f"v_mfma_f32_16x16x32_bf16 v[52:55], {vr(GF+(s&1)*4,4)}, {vr(AB+(s&1)*4,4)}, {'0' if s == 0 else 'v[52:55]'}")
    a.stamp("cloop")
    a.e("v_mul_u32_u24 v5, 1280, v4")
    a.e("v_lshl_add_u32 v5, v3, 3, v5")
    a.e(f"s_mul_i32 s12, s{S_CB}, 160")
    a.e("v_add_u32 v5, s12, v5")
    a.wait_vm_all()
    a.nop(6)
    T = 160
    for t in range(5):
        ca = ACA + t * 4
        cb = ACA + 20 + t * 4
        p = T
        fa = T + 4
        fb = T + 8
        bb = T + 12
        a.e(f"v_cvt_pk_bf16_f32 v{p}, v{ca}, v{ca+1}")
        a.e(f"v_cvt_pk_bf16_f32 v{p+1}, v{ca+2}, v{ca+3}")
        a.e(f"v_cvt_pk_bf16_f32 v{p+2}, v{cb}, v{cb+1}")
        a.e(f"v_cvt_pk_bf16_f32 v{p+3}, v{cb+2}, v{cb+3}")
        unpack(a, fa, fa + 1, p)
        unpack(a, fa + 2, fa + 3, p + 1)
        unpack(a, fb, fb + 1, p + 2)
        unpack(a, fb + 2, fb + 3, p + 3)
        unpack(a, bb, bb + 1, B2 + 2 * t)
        unpack(a, bb + 2, bb + 3, B2 + 2 * t + 1)
        a.e(f"v_pk_add_f32 {vr(fb,2)}, {vr(fb,2)}, {vr(bb,2)}")
        a.e(f"v_pk_add_f32 {vr(fb+2,2)}, {vr(fb+2,2)}, {vr(bb+2,2)}")
        for i in range(4):
            a.e(f"v_mul_f32 v{fa+i}, v{GA}, v{fa+i}")
        a.e(f"v_cvt_pk_bf16_f32 v{p+2}, v{fb}, v{fb+1}")
        a.e(f"v_cvt_pk_bf16_f32 v{p+3}, v{fb+2}, v{fb+3}")
        a.e(f"v_cvt_pk_bf16_f32 v{p}, v{fa}, v{fa+1}")
        a.e(f"v_cvt_pk_bf16_f32 v{p+1}, v{fa+2}, v{fa+3}")
        unpack(a, fb, fb + 1, p + 2)
        unpack(a, fb + 2, fb + 3, p + 3)
        unpack(a, fa, fa + 1, p)
        unpack(a, fa + 2, fa + 3, p + 1)
        for i in range(4):
            a.e(f"v_mul_f32 v{fb+i}, v57, v{fb+i}")
        a.e(f"v_cvt_pk_bf16_f32 v{p+2}, v{fb}, v{fb+1}")
        a.e(f"v_cvt_pk_bf16_f32 v{p+3}, v{fb+2}, v{fb+3}")
        unpack(a, fb, fb + 1, p + 2)
        unpack(a, fb + 2, fb + 3, p + 3)
        a.e(f"v_pk_add_f32 {vr(fa,2)}, {vr(fa,2)}, {vr(fb,2)}")
        a.e(f"v_pk_add_f32 {vr(fa+2,2)}, {vr(fa+2,2)}, {vr(fb+2,2)}")
        o = T + 20 + t * 2
        a.e(f"v_cvt_pk_bf16_f32 v{o}, v{fa}, v{fa+1}")
        a.e(f"v_cvt_pk_bf16_f32 v{o+1}, v{fa+2}, v{fa+3}")
        a.vmem(f"buffer_store_dwordx2 {vr(o,2)}, v5, s[56:59], 0 offen offset:{32*t}", "st")
    a.stamp("end")
    a.dump_stamps()


HEADER = """; Kernarg layout for this problem (96 bytes, ptrs only, base s[0:1]):
;   0 A_x  8 A_wqkv  16 A_wo  24 B_x  32 B_w1  40 B_b1  48 B_w2  56 B_b2  64 gate_w  72 d_out  80 d_debug  88 d_ws
; @launch kernel=fused_kernel grid=(256,1,1) block=(512,1,1) lds=163840
.amdgcn_target "amdgcn-amd-amdhsa--gfx950"
.text
"""


def main():
    a = Asm()
    a.kid = 1
    gen(a)
    nm = "fused_kernel"
    out = HEADER + f".globl {nm}\n.p2align 8\n.type {nm},@function\n" + "\n".join(a.lines) + "\n"
    out += '.section .rodata,"a"\n.p2align 6\n' + kd(nm, 256, 256)
    path = sys.argv[1] if len(sys.argv) > 1 else f"cdna_kernels/{NAME}.s"
    open(path, "w").write(out)


if __name__ == "__main__":
    main()
```
